```python
import torch

def _softmax(x, axis=-1):
    return torch.softmax(x, dim=axis)

def _gelu(x):
    return torch.nn.functional.gelu(x, approximate='tanh')

def _silu(x):
    return torch.nn.functional.silu(x)

def _sigmoid(x):
    return torch.sigmoid(x)

def _layernorm(x, axis=-1, eps=1e-05):
    m = x.mean(dim=axis, keepdim=True)
    v = x.var(dim=axis, keepdim=True, unbiased=False)
    return (x - m) / torch.sqrt(v + eps)

def _scatter_add(tgt, idx, src, axis=0):
    return tgt.clone().index_add_(axis, idx, src)

def _segment_sum(src, seg, n):
    out = torch.zeros((n,) + src.shape[1:], dtype=src.dtype)
    return out.index_add_(0, seg, src)

def _pad(x, pw):
    flat = tuple((v for pair in reversed(pw) for v in pair))
    return torch.nn.functional.pad(x, flat)
kernel_name = 'adaLN_cond__spectral_fnet__geglu_ffn__prompt'

def setup_inputs():

    _w = lambda a: (lambda t: t.to(torch.bfloat16) if t.is_floating_point() else t)(torch.as_tensor(a))

    def _A_setup():
        B, S, D = (1, 2048, 1024)
        ns = torch.arange(S)[:, None] * torch.arange(S)[None, :]
        nd = torch.arange(D)[:, None] * torch.arange(D)[None, :]
        Ws_re = torch.cos(-2.0 * torch.pi * ns / S).to(float)
        Ws_im = torch.sin(-2.0 * torch.pi * ns / S).to(float)
        Wd_re = torch.cos(-2.0 * torch.pi * nd / D).to(float)
        Wd_im = torch.sin(-2.0 * torch.pi * nd / D).to(float)
        return {'x': _w((lambda *s: torch.randn(*s, dtype=torch.bfloat16) * 0.05)(B, S, D)), 'dft_seq_re': _w(Ws_re), 'dft_seq_im': _w(Ws_im), 'dft_hid_re': _w(Wd_re), 'dft_hid_im': _w(Wd_im)}
    _A_in = _A_setup()

    def _B_setup():
        B, S, D, F = (1, 2048, 1024, 3584)
        return {'x': _w((lambda *s: torch.randn(*s, dtype=torch.bfloat16) * 0.05)(B, S, D)), 'w_gate': _w((lambda *s: torch.randn(*s, dtype=torch.bfloat16) * 0.4)(D, F)), 'w_up': _w((lambda *s: torch.randn(*s, dtype=torch.bfloat16) * 0.4)(D, F)), 'w_down': _w((lambda *s: torch.randn(*s, dtype=torch.bfloat16) * 0.4)(F, D))}
    _B_in = _B_setup()
    return {'A_x': _A_in['x'], 'A_dft_seq_re': _A_in['dft_seq_re'], 'A_dft_seq_im': _A_in['dft_seq_im'], 'A_dft_hid_re': _A_in['dft_hid_re'], 'A_dft_hid_im': _A_in['dft_hid_im'], 'B_x': _B_in['x'], 'B_w_gate': _B_in['w_gate'], 'B_w_up': _B_in['w_up'], 'B_w_down': _B_in['w_down'], 'c': _w((lambda *s: torch.randn(*s, dtype=torch.bfloat16) * 0.1)(1, 1024) * 8.0), 'w_mod': _w((lambda *s: torch.randn(*s, dtype=torch.bfloat16) * 0.1)(1024, 6 * 1024) * 1024 ** (-0.5) * 8.0)}

def reference(A_x, A_dft_seq_re, A_dft_seq_im, A_dft_hid_re, A_dft_hid_im, B_x, B_w_gate, B_w_up, B_w_down, c, w_mod):

    def _A_ref(x, dft_seq_re, dft_seq_im, dft_hid_re, dft_hid_im):
        a = torch.einsum('bsd,ed->bse', x, dft_hid_re)
        b = torch.einsum('bsd,ed->bse', x, dft_hid_im)
        y = torch.einsum('ts,bse->bte', dft_seq_re, a) - torch.einsum('ts,bse->bte', dft_seq_im, b)
        return y

    def _B_ref(x, w_gate, w_up, w_down):
        return _gelu(x @ w_gate) * (x @ w_up) @ w_down
    x = A_x
    mod = (_silu(c) @ w_mod).reshape(c.shape[0], 6, 1, -1)
    sa, ca, ga, sb, cb, gb = (mod[:, 0].clone(), mod[:, 1].clone(), mod[:, 2].clone(), mod[:, 3].clone(), mod[:, 4].clone(), mod[:, 5].clone())
    h = _layernorm(x, axis=-1) * (1 + ca) + sa
    x = x + ga * _A_ref(h, A_dft_seq_re, A_dft_seq_im, A_dft_hid_re, A_dft_hid_im)
    h = _layernorm(x, axis=-1) * (1 + cb) + sb
    x = x + gb * _B_ref(h, B_w_gate, B_w_up, B_w_down)
    return x
```

```python
class Kern:
    def __init__(self, name):
        self.name = name
        self.lines = []
        self.nlab = 0
        self.vgpr = 256
        self.sgpr = 102
        self.accum = 256
    def __call__(self, s):
        for l in s.split("\n"):
            l = l.strip()
            if l:
                self.lines.append("  " + l)
    def c(self, s):
        self.lines.append("  ; " + s)
    def label(self, l):
        self.lines.append(l + ":")
    def newlabel(self, base="L"):
        self.nlab += 1
        return f"{self.name}_{base}{self.nlab}"
    def text(self):
        out = []
        out.append(f".globl {self.name}")
        out.append(".p2align 8")
        out.append(f".type {self.name},@function")
        out.append(f"{self.name}:")
        out += self.lines
        return "\n".join(out) + "\n"
    def desc(self):
        return f""".p2align 6
.amdhsa_kernel {self.name}
  .amdhsa_next_free_vgpr {self.vgpr}
  .amdhsa_next_free_sgpr {self.sgpr}
  .amdhsa_accum_offset {self.accum}
  .amdhsa_group_segment_fixed_size 0
  .amdhsa_kernarg_size 112
  .amdhsa_user_sgpr_count 2
  .amdhsa_user_sgpr_kernarg_segment_ptr 1
  .amdhsa_system_sgpr_workgroup_id_x 1
  .amdhsa_float_denorm_mode_32 3
  .amdhsa_float_denorm_mode_16_64 3
.end_amdhsa_kernel
"""

def vr(base, n=1):
    return f"v{base}" if n == 1 else f"v[{base}:{base+n-1}]"
def sr(base, n=1):
    return f"s{base}" if n == 1 else f"s[{base}:{base+n-1}]"

KA = dict(x=0, wsr=8, wsi=16, wdr=24, wdi=32, bx=40, wg=48, wu=56, wd=64, c=72, wmod=80, out=88, dbg=96, ws=104)

def srd(k, d, base, nbytes, off_s=None, off_imm=0):
    if off_s is None and off_imm == 0:
        k(f"s_mov_b32 s{d}, s{base}")
        k(f"s_mov_b32 s{d+1}, s{base+1}")
    else:
        if off_s is not None:
            k(f"s_add_u32 s{d}, s{base}, {off_s}")
            k(f"s_addc_u32 s{d+1}, s{base+1}, 0")
            if off_imm:
                k(f"s_add_u32 s{d}, s{d}, {off_imm:#x}")
                k(f"s_addc_u32 s{d+1}, s{d+1}, 0")
        else:
            k(f"s_add_u32 s{d}, s{base}, {off_imm:#x}")
            k(f"s_addc_u32 s{d+1}, s{base+1}, 0")
    if isinstance(nbytes, int):
        k(f"s_mov_b32 s{d+2}, {nbytes:#x}")
    else:
        k(f"s_mov_b32 s{d+2}, {nbytes}")
    k(f"s_mov_b32 s{d+3}, 0x20000")

def build_file(header_comment, launches, kernels):
    out = []
    out.append(header_comment.rstrip("\n"))
    for (name, grid, block, lds) in launches:
        out.append(f"; @launch kernel={name} grid=({grid},1,1) block=({block},1,1) lds={lds}")
    out.append('.amdgcn_target "amdgcn-amd-amdhsa--gfx950"')
    out.append(".text")
    for k in kernels:
        out.append(k.text())
    out.append('.section .rodata,"a"')
    for k in kernels:
        out.append(k.desc())
    return "\n".join(out)

B128_GROUPS = [list(range(0,4))+list(range(12,16))+list(range(20,28)),
               list(range(4,12))+list(range(16,20))+list(range(28,32)),
               list(range(32,36))+list(range(44,48))+list(range(52,60)),
               list(range(36,44))+list(range(48,52))+list(range(60,64))]
def conflicts_b128(addr):
    worst = 1
    for grp in B128_GROUPS:
        banks = {}
        for l in grp:
            for d in range(4):
                a = addr[l] + 4*d
                banks.setdefault((a//4) % 64, set()).add(a//4)
        worst = max(worst, max(len(s) for s in banks.values()))
    return worst
def conflicts_b64(addr):
    worst = 1
    for grp in (range(0,32), range(32,64)):
        banks = {}
        for l in grp:
            for d in range(2):
                a = addr[l] + 4*d
                banks.setdefault((a//4) % 64, set()).add(a//4)
        worst = max(worst, max(len(s) for s in banks.values()))
    return worst
```

```python
from asmlib import *
from layout import *

STAMP_OFF = 0x8000000
def stamp_store(k, sbase, n, wsptr, sW):
    srd(k, 76, wsptr, 1 << 20, off_imm=STAMP_OFF)
    k("s_lshl_b32 s80, s2, 3")
    k(f"s_add_u32 s80, s80, s{sW}")
    k("s_lshl_b32 s80, s80, 6")
    for i in range(n):
        k(f"v_mov_b32 v{32+i}, s{sbase+i}")
    k("v_mov_b32 v31, 0")
    k("s_mov_b64 exec, 1")
    for i in range(0, n, 2):
        k(f"buffer_store_dwordx2 v[{32+i}:{33+i}], v31, s[76:79], s80 offen offset:{i*4}")
    k("s_waitcnt vmcnt(0)")

def pipeline_order(nI, nJ):
    return [(p, a) for p in range(nJ) for a in range(nI)]

def gen_gemm3(name="g3_kernel", NS=4, prio=False, dma_pos=(3, 11, 19, 27), rd_start=0, rd_step=2, bar_after=0, stamps=False, nomfma=False, nodma=False, noepi=False):
    k = Kern(name)
    BS = 4128
    STAGE = 8 * BS
    NT = 28
    NWG = 8 * NT
    NK = 32
    ROWB = F * 2
    P = 4
    SRD_G, SRD_U, SRD_H, SRD_O = 8, 12, 16, 20
    sKW, sKH, sBLK, sCNT, sW = 24, 25, 26, 27, 28
    sO0, sO1 = 29, 30
    vLane = 0
    vDW, vDH = 1, 2
    vRA = [4 + i for i in range(NS)]
    vRB = [10 + i for i in range(NS)]
    vSt = 3
    FR = [32, 80]
    ACC = 128
    def Af(s, a): return FR[s] + a * 4
    def Bf(s, p): return FR[s] + 16 + p * 4
    def acc(p, a): return ACC + (p * 4 + a) * 4

    k(f"s_cmp_ge_u32 s2, {NWG}")
    k(f"s_cbranch_scc1 {name}_end")
    if stamps:
        k("s_memtime s[60:61]")
        k("s_memrealtime s[70:71]")
    k(f"s_load_dwordx2 s[4:5], s[0:1], {KA['wg']}")
    k(f"s_load_dwordx2 s[6:7], s[0:1], {KA['wu']}")
    k(f"s_load_dwordx2 s[32:33], s[0:1], {KA['ws']}")
    k("v_lshrrev_b32 v1, 6, v0")
    k("v_and_b32 v0, 63, v0")
    k(f"v_readfirstlane_b32 s{sW}, v1")
    k("s_and_b32 s34, s2, 7")
    k("s_lshr_b32 s35, s2, 3")
    k("s_and_b32 s36, s34, 1")
    k("s_lshl_b32 s36, s36, 2")
    k("s_and_b32 s37, s35, 3")
    k("s_add_u32 s36, s36, s37")
    k("s_lshr_b32 s37, s34, 1")
    k("s_mul_i32 s37, s37, 7")
    k("s_lshr_b32 s38, s35, 2")
    k("s_add_u32 s37, s37, s38")
    k("v_lshrrev_b32 v16, 4, v0")
    k("v_and_b32 v17, 1, v16")
    k("v_lshlrev_b32 v17, 4, v17")
    k("v_lshrrev_b32 v18, 1, v16")
    k("v_lshlrev_b32 v18, 2, v18")
    k("v_add_u32 v17, v17, v18")
    k(f"s_lshr_b32 s39, s{sW}, 2")
    k("s_lshl_b32 s39, s39, 3")
    k(f"s_and_b32 s40, s{sW}, 3")
    k("s_add_u32 s39, s39, s40")
    k("v_add_u32 v17, s39, v17")
    k(f"s_mov_b32 s41, {ROWB}")
    k("v_mul_lo_u32 v17, v17, s41")
    k("v_and_b32 v18, 15, v0")
    k("v_lshlrev_b32 v18, 4, v18")
    k(f"v_add_u32 v{vDW}, v17, v18")
    k(f"s_lshl_b32 s39, s{sW}, 11")
    k(f"v_lshlrev_b32 v{vSt}, 4, v0")
    k(f"v_add_u32 v{vDH}, s39, v{vSt}")
    k("v_and_b32 v17, 1, v16")
    k("v_lshlrev_b32 v17, 2, v17")
    k("v_bfe_u32 v18, v0, 2, 2")
    k("v_add_u32 v17, v17, v18")
    k(f"s_mov_b32 s41, {BS}")
    k("v_mul_lo_u32 v17, v17, s41")
    k("v_lshrrev_b32 v18, 1, v16")
    k("v_lshlrev_b32 v18, 8, v18")
    k("v_add_u32 v17, v17, v18")
    k("v_and_b32 v18, 3, v0")
    k("v_lshlrev_b32 v18, 3, v18")
    k("v_add_u32 v17, v17, v18")
    k(f"s_and_b32 s39, s{sW}, 3")
    k("s_lshl_b32 s39, s39, 6")
    k(f"v_add_u32 v{vRA[0]}, s39, v17")
    k(f"s_lshr_b32 s39, s{sW}, 2")
    k(f"s_mul_i32 s39, s39, {4*BS}")
    k("s_add_u32 s39, s39, 2048")
    k(f"v_add_u32 v{vRB[0]}, s39, v{vSt}")
    for s in range(1, NS):
        k(f"v_add_u32 v{vRA[s]}, {s*STAGE}, v{vRA[0]}")
        k(f"v_add_u32 v{vRB[s]}, {s*STAGE}, v{vRB[0]}")
    k(f"s_mul_i32 s{sBLK}, s{sW}, {BS}")
    k("s_waitcnt lgkmcnt(0)")
    k("s_lshl_b32 s39, s37, 8")
    k(f"s_sub_u32 s40, {D*ROWB}, s39")
    srd(k, SRD_G, 4, "s40", off_s="s39")
    srd(k, SRD_U, 6, "s40", off_s="s39")
    k("s_lshl_b32 s39, s36, 19")
    srd(k, SRD_H, 32, 1 << 19, off_s="s39", off_imm=H2_OFF)
    srd(k, SRD_O, 32, S * F * 2, off_imm=ACT_OFF)
    k(f"s_mov_b32 s{sKW}, 0")
    k(f"s_mov_b32 s{sKH}, 0")

    def dma_group(stage, part):
        base = stage * STAGE
        if part == 0:
            return [f"s_add_u32 m0, s{sBLK}, {base}", f"buffer_load_dwordx4 v{vDW}, s[{SRD_G}:{SRD_G+3}], s{sKW} offen lds"]
        if part == 1:
            return [f"s_add_u32 m0, s{sBLK}, {base+1024}", f"buffer_load_dwordx4 v{vDW}, s[{SRD_U}:{SRD_U+3}], s{sKW} offen lds"]
        if part == 2:
            return [f"s_add_u32 m0, s{sBLK}, {base+2048}", f"buffer_load_dwordx4 v{vDH}, s[{SRD_H}:{SRD_H+3}], s{sKH} offen lds"]
        if part == 3:
            return [None, f"buffer_load_dwordx4 v{vDH}, s[{SRD_H}:{SRD_H+3}], s{sKH} offen offset:1024 lds"]
    def adv():
        return [f"s_add_u32 s{sKW}, s{sKW}, {32*ROWB}", f"s_add_u32 s{sKH}, s{sKH}, 16384"]
    for st in range(NS):
        for part in range(4):
            m, ld = dma_group(st, part)
            if m:
                k(m); k("s_nop 0")
            k(ld)
        for a in adv(): k(a)
    for r in range(128):
        k(f"v_mov_b32 v{ACC+r}, 0")

    def reads(setn, stage):
        out = []
        for a in range(4):
            for h in range(2):
                off = (a >> 1) * 1024 + (a & 1) * 32 + h * 512
                out.append(f"ds_read_b64_tr_b16 v[{Af(setn,a)+2*h}:{Af(setn,a)+2*h+1}], v{vRA[stage]} offset:{off}")
        for p in range(8):
            off = (p >> 1) * BS + (p & 1) * 1024
            out.append(f"ds_read_b128 v[{Bf(setn,p)}:{Bf(setn,p)+3}], v{vRB[stage]} offset:{off}")
        A = out[:8]; B = out[8:]
        order = [A[0], A[1], B[0], A[2], A[3], A[4], A[5], A[6], A[7]] + B[1:]
        return order

    k(f"s_waitcnt vmcnt({(NS-1)*P})")
    k("s_barrier")
    if stamps:
        k("s_memtime s[62:63]")
        k("s_waitcnt lgkmcnt(0)")
    for r in reads(0, 0): k(r)
    k(f"s_mov_b32 s{sCNT}, {NK // NS}")
    loop = f"{name}_loop"
    k.label(loop)
    order = pipeline_order(4, 8)
    for u in range(NS):
        cur = u & 1; nxt = cur ^ 1
        rd = reads(nxt, (u + 1) % NS)
        extra = {}
        ri = 0
        idx = rd_start + bar_after
        while ri < len(rd):
            extra.setdefault(min(idx, 31), []).append(rd[ri]); ri += 1
            idx += rd_step if (ri % 1 == 0) else 0
        for part, pos in enumerate(dma_pos):
            m, ld = dma_group(u, part)
            if m: extra.setdefault(pos - 1, []).append(m)
            if not nodma: extra.setdefault(pos, []).append(ld)
        extra.setdefault(31, []).extend(adv())
        k("s_waitcnt lgkmcnt(0)")
        if bar_after == 0:
            k(f"s_waitcnt vmcnt({(NS-2)*P})")
            k("s_barrier")
        if prio: k("s_setprio 1")
        for idx, (p, a) in enumerate(order):
            if bar_after and idx == bar_after:
                k(f"s_waitcnt vmcnt({(NS-2)*P})")
                k("s_barrier")
            if not nomfma: k(f"v_mfma_f32_16x16x32_bf16 v[{acc(p,a)}:{acc(p,a)+3}], v[{Af(cur,a)}:{Af(cur,a)+3}], v[{Bf(cur,p)}:{Bf(cur,p)+3}], v[{acc(p,a)}:{acc(p,a)+3}]")
            for e in extra.get(idx, []): k(e)
        if prio: k("s_setprio 0")
    k(f"s_sub_u32 s{sCNT}, s{sCNT}, 1")
    k(f"s_cmp_lg_u32 s{sCNT}, 0")
    k(f"s_cbranch_scc1 {loop}")

    if stamps:
        k("s_memtime s[64:65]")
        k("s_waitcnt lgkmcnt(0)")
    k(f"s_and_b32 s39, s{sW}, 3")
    k("s_lshl_b32 s40, s37, 2")
    k("s_add_u32 s40, s40, s39")
    k(f"s_lshr_b32 s39, s{sW}, 2")
    k("s_lshl_b32 s39, s39, 1")
    k("s_lshl_b32 s41, s36, 2")
    k("s_add_u32 s39, s39, s41")
    k("s_mul_i32 s39, s39, 56")
    k("s_lshr_b32 s41, s40, 1")
    k("s_add_u32 s39, s39, s41")
    k("s_lshl_b32 s39, s39, 13")
    k("s_and_b32 s41, s40, 1")
    k("s_lshl_b32 s41, s41, 12")
    k(f"s_add_u32 s{sO0}, s39, s41")
    k(f"s_add_u32 s{sO1}, s{sO0}, {56*8192}")
    import math, struct
    c0 = -2.0 * math.sqrt(2.0 / math.pi) * math.log2(math.e)
    c1 = c0 * 0.044715
    def f2u(x): return struct.unpack("<I", struct.pack("<f", x))[0]
    vC0, vC1, vONE = 16, 18, 20
    for d in range(2):
        k(f"v_mov_b32 v{vC0+d}, {f2u(c0):#x}")
        k(f"v_mov_b32 v{vC1+d}, {f2u(c1):#x}")
        k(f"v_mov_b32 v{vONE+d}, 1.0")
    k("s_nop 7")
    for p in range(8):
        T = 32 + (p & 1) * 8
        O = 64 + p * 4
        pairs = [(acc(p,0), acc(p,2)), (acc(p,0)+2, acc(p,2)+2), (acc(p,1), acc(p,3)), (acc(p,1)+2, acc(p,3)+2)]
        def pr(b): return f"v[{b}:{b+1}]"
        for q, (g, u) in enumerate(pairs): k(f"v_pk_mul_f32 {pr(T+2*q)}, {pr(g)}, {pr(g)}")
        for q, (g, u) in enumerate(pairs): k(f"v_pk_fma_f32 {pr(T+2*q)}, {pr(T+2*q)}, {pr(vC1)}, {pr(vC0)}")
        for q, (g, u) in enumerate(pairs): k(f"v_pk_mul_f32 {pr(T+2*q)}, {pr(T+2*q)}, {pr(g)}")
        for q in range(8): k(f"v_exp_f32 v{T+q}, v{T+q}")
        for q, (g, u) in enumerate(pairs): k(f"v_pk_mul_f32 {pr(u)}, {pr(g)}, {pr(u)}")
        for q, (g, u) in enumerate(pairs): k(f"v_pk_add_f32 {pr(T+2*q)}, {pr(T+2*q)}, {pr(vONE)}")
        for q in range(8): k(f"v_rcp_f32 v{T+q}, v{T+q}")
        k("s_nop 0")
        for q, (g, u) in enumerate(pairs): k(f"v_pk_mul_f32 {pr(u)}, {pr(u)}, {pr(T+2*q)}")
        for q, (g, u) in enumerate(pairs): k(f"v_cvt_pk_bf16_f32 v{O+q}, v{u}, v{u+1}")
        so = sO0 if p < 4 else sO1
        k(f"buffer_store_dwordx4 v[{O}:{O+3}], v{vSt}, s[{SRD_O}:{SRD_O+3}], s{so} offen offset:{(p&3)*1024}")
    if stamps:
        k("s_memtime s[66:67]")
        k("s_waitcnt vmcnt(0) lgkmcnt(0)")
        k("s_memtime s[68:69]")
        k("s_memrealtime s[72:73]")
        k("s_waitcnt lgkmcnt(0)")
        stamp_store(k, 60, 14, 32, sW)
    k.label(f"{name}_end")
    k("s_endpgm")
    k.lds = NS * STAGE
    k.grid = NWG
    k.block = 512
    return k

def check_banks():
    BS = 4128
    for wi in range(4):
        for a in range(4):
            for h in range(2):
                addr = []
                for l in range(64):
                    g = l >> 4; r = (l >> 2) & 3; c4 = l & 3
                    addr.append((4*(g&1)+r)*BS + (g>>1)*256 + c4*8 + 64*wi + (a>>1)*1024 + (a&1)*32 + h*512)
                assert conflicts_b64(addr) == 1, (wi, a, h)
    print("gemm3 banks ok")
if __name__ == "__main__":
    check_banks()
```

```python
from asmlib import *
from layout import *
from gemm3 import stamp_store

def gen_gemm4(name="g4_kernel", NS=6, stamps=False, nomfma=False, rdpos=None):
    k = Kern(name)
    PA = 1056
    AREG = 16 * PA
    STAGE = AREG + 8 * 1024
    NK = 56
    SRD_W, SRD_A, SRD_O, SRD_X, SRD_M = 8, 12, 16, 20, 24
    sW, sKW, sKA, sCNT, sRD, sDM = 28, 29, 30, 31, 40, 41
    k(f"s_cmp_ge_u32 s2, 256")
    k(f"s_cbranch_scc1 {name}_end")
    if stamps:
        k("s_memtime s[60:61]")
        k("s_memrealtime s[70:71]")
    k(f"s_load_dwordx2 s[4:5], s[0:1], {KA['wd']}")
    k(f"s_load_dwordx2 s[6:7], s[0:1], {KA['out']}")
    k(f"s_load_dwordx2 s[32:33], s[0:1], {KA['ws']}")
    k("v_lshrrev_b32 v1, 6, v0")
    k("v_and_b32 v0, 63, v0")
    k(f"v_readfirstlane_b32 s{sW}, v1")
    k("s_and_b32 s34, s2, 7")
    k("s_lshr_b32 s35, s2, 3")
    k("s_and_b32 s36, s34, 1")
    k("s_lshl_b32 s36, s36, 2")
    k("s_and_b32 s37, s35, 3")
    k("s_add_u32 s36, s36, s37")
    k("s_lshr_b32 s37, s34, 1")
    k("s_lshl_b32 s37, s37, 3")
    k("s_lshr_b32 s38, s35, 2")
    k("s_add_u32 s37, s37, s38")
    k("v_lshrrev_b32 v16, 4, v0")
    k("v_lshlrev_b32 v3, 4, v0")
    k(f"s_cmp_ge_u32 s{sW}, 4")
    k(f"s_cbranch_scc1 {name}_prod")
    vRA, vRB, vRAc, vRBc = 4, 5, 6, 7
    FR = [32, 80]
    ACC = 128
    def Af(s, ks, a): return FR[s] + (ks * 2 + a) * 4
    def Bf(s, ks, p): return FR[s] + 16 + (ks * 4 + p) * 4
    def acc(p, a): return ACC + (p * 2 + a) * 4
    k("v_and_b32 v17, 1, v16")
    k("v_lshlrev_b32 v17, 2, v17")
    k("v_bfe_u32 v18, v0, 2, 2")
    k("v_add_u32 v17, v17, v18")
    k(f"s_mov_b32 s39, {PA}")
    k("v_mul_lo_u32 v17, v17, s39")
    k("v_lshrrev_b32 v18, 1, v16")
    k("v_lshlrev_b32 v18, 8, v18")
    k("v_add_u32 v17, v17, v18")
    k("v_and_b32 v18, 3, v0")
    k("v_lshlrev_b32 v18, 3, v18")
    k("v_add_u32 v17, v17, v18")
    k(f"s_lshl_b32 s39, s{sW}, 6")
    k(f"v_add_u32 v{vRA}, s39, v17")
    k(f"v_add_u32 v{vRB}, {AREG}, v3")
    for r in range(32): k(f"v_mov_b32 v{ACC+r}, 0")
    vXO = 8
    k("v_and_b32 v17, 15, v0")
    k("v_lshlrev_b32 v17, 11, v17")
    k("v_and_b32 v18, 1, v16")
    k("v_lshlrev_b32 v18, 5, v18")
    k("v_add_u32 v17, v17, v18")
    k("v_lshrrev_b32 v18, 1, v16")
    k("v_lshlrev_b32 v18, 4, v18")
    k("v_add_u32 v17, v17, v18")
    k(f"s_lshl_b32 s39, s{sW}, 6")
    k(f"v_add_u32 v{vXO}, s39, v17")
    vGO = 9
    k("v_and_b32 v17, 1, v16")
    k("v_lshlrev_b32 v17, 6, v17")
    k("v_lshrrev_b32 v18, 1, v16")
    k("v_lshlrev_b32 v18, 5, v18")
    k("v_add_u32 v17, v17, v18")
    k(f"s_lshl_b32 s39, s{sW}, 7")
    k(f"v_add_u32 v{vGO}, s39, v17")
    k("s_waitcnt lgkmcnt(0)")
    k("s_lshl_b32 s39, s37, 17")
    k("s_lshl_b32 s38, s36, 8")
    k("s_add_u32 s39, s39, s38")
    k(f"s_sub_u32 s38, {S*D*2}, s39")
    srd(k, SRD_O, 6, "s38", off_s="s39")
    srd(k, SRD_X, 32, "s38", off_s="s39", off_imm=X1_OFF)
    k("s_lshl_b32 s39, s36, 9")
    srd(k, SRD_M, 32, 512, off_s="s39", off_imm=MODF_OFF + 5 * 4096)
    XR = 224
    GB = 240
    for p in range(4):
        k(f"s_mov_b32 s38, {p*16*2048}")
        k(f"buffer_load_dwordx4 v[{XR+4*p}:{XR+4*p+3}], v{vXO}, s[{SRD_X}:{SRD_X+3}], s38 offen")
    k(f"buffer_load_dwordx4 v[{GB}:{GB+3}], v{vGO}, s[{SRD_M}:{SRD_M+3}], 0 offen")
    k(f"buffer_load_dwordx4 v[{GB+4}:{GB+7}], v{vGO}, s[{SRD_M}:{SRD_M+3}], 0 offen offset:16")
    def reads(setn):
        out = []
        for ks in range(2):
            A = []
            for a in range(2):
                for h in range(2):
                    off = ks * 8 * PA + a * 32 + h * 512
                    A.append(f"ds_read_b64_tr_b16 v[{Af(setn,ks,a)+2*h}:{Af(setn,ks,a)+2*h+1}], v{vRAc} offset:{off}")
            B = []
            for p in range(4):
                off = (ks * 4 + p) * 1024
                B.append(f"ds_read_b128 v[{Bf(setn,ks,p)}:{Bf(setn,ks,p)+3}], v{vRBc} offset:{off}")
            out += A + B
        return out
    k(f"v_mov_b32 v{vRAc}, v{vRA}")
    k(f"v_mov_b32 v{vRBc}, v{vRB}")
    k("s_barrier")
    if stamps:
        k("s_memtime s[62:63]")
        k("s_waitcnt lgkmcnt(0)")
    for r in reads(0): k(r)
    k(f"s_mov_b32 s{sRD}, {STAGE}")
    k(f"v_add_u32 v{vRAc}, s{sRD}, v{vRA}")
    k(f"v_add_u32 v{vRBc}, s{sRD}, v{vRB}")
    k(f"s_mov_b32 s{sCNT}, {NK//2}")
    loop = f"{name}_cloop"
    k.label(loop)
    for u in range(2):
        cur = u; nxt = u ^ 1
        rd = reads(nxt)
        order = [(ks, p, a) for ks in range(2) for p in range(4) for a in range(2)]
        k("s_waitcnt lgkmcnt(0)")
        k("s_barrier")
        ri = 0
        for idx, (ks, p, a) in enumerate(order):
            if not nomfma:
                k(f"v_mfma_f32_16x16x32_bf16 v[{acc(p,a)}:{acc(p,a)+3}], v[{Af(cur,ks,a)}:{Af(cur,ks,a)+3}], v[{Bf(cur,ks,p)}:{Bf(cur,ks,p)+3}], v[{acc(p,a)}:{acc(p,a)+3}]")
            nrd = 2 if idx < 8 else 0
            for _ in range(nrd):
                if ri < len(rd): k(rd[ri]); ri += 1
            if idx == 9:
                k(f"s_add_u32 s{sRD}, s{sRD}, {STAGE}")
                k(f"s_cmp_eq_u32 s{sRD}, {NS*STAGE}")
                k(f"s_cselect_b32 s{sRD}, 0, s{sRD}")
            if idx == 11:
                k(f"v_add_u32 v{vRAc}, s{sRD}, v{vRA}")
                k(f"v_add_u32 v{vRBc}, s{sRD}, v{vRB}")
    k(f"s_sub_u32 s{sCNT}, s{sCNT}, 1")
    k(f"s_cmp_lg_u32 s{sCNT}, 0")
    k(f"s_cbranch_scc1 {loop}")
    if stamps:
        k("s_memtime s[64:65]")
        k("s_waitcnt lgkmcnt(0)")
    k("s_nop 7")
    k("s_waitcnt vmcnt(0)")
    T = 32
    for p in range(4):
        a0, a1 = acc(p, 0), acc(p, 1)
        for r in range(4):
            k(f"v_permlane16_swap_b32 v{a0+r}, v{a1+r}")
        xr = XR + 4 * p
        t = T + p * 8
        for d in range(4):
            k(f"v_lshlrev_b32 v{t+2*d}, 16, v{xr+d}")
            k(f"v_and_b32 v{t+2*d+1}, 0xffff0000, v{xr+d}")
        for e in range(8):
            src = (a0 + e) if e < 4 else (a1 + e - 4)
            k(f"v_fma_f32 v{t+e}, v{src}, v{GB+e}, v{t+e}")
        for d in range(4):
            k(f"v_cvt_pk_bf16_f32 v{xr+d}, v{t+2*d}, v{t+2*d+1}")
        k(f"s_mov_b32 s38, {p*16*2048}")
        k(f"buffer_store_dwordx4 v[{xr}:{xr+3}], v{vXO}, s[{SRD_O}:{SRD_O+3}], s38 offen")
    if stamps:
        k("s_memtime s[66:67]")
        k("s_waitcnt vmcnt(0) lgkmcnt(0)")
        k("s_memtime s[68:69]")
        k("s_memrealtime s[72:73]")
        k("s_waitcnt lgkmcnt(0)")
        stamp_store(k, 60, 14, 32, sW)
    k("s_endpgm")
    k.label(f"{name}_prod")
    vDA = [4, 5, 6, 7]
    vDB = 8
    k(f"s_sub_u32 s{sW}, s{sW}, 4")
    k("v_lshlrev_b32 v17, 3, v16")
    k(f"s_lshl_b32 s39, s{sW}, 1")
    k("v_add_u32 v17, s39, v17")
    k("v_lshlrev_b32 v17, 11, v17")
    k("v_and_b32 v18, 15, v0")
    k("v_lshlrev_b32 v18, 4, v18")
    k(f"v_add_u32 v{vDA[0]}, v17, v18")
    k(f"v_add_u32 v{vDA[1]}, 2048, v{vDA[0]}")
    k(f"v_add_u32 v{vDA[2]}, {32*2048}, v{vDA[0]}")
    k(f"v_add_u32 v{vDA[3]}, {33*2048}, v{vDA[0]}")
    k(f"s_lshl_b32 s39, s{sW}, 11")
    k(f"v_add_u32 v{vDB}, s39, v3")
    sBA, sBB = 42, 43
    k(f"s_mul_i32 s{sBA}, s{sW}, {2*PA}")
    k(f"s_lshl_b32 s{sBB}, s{sW}, 11")
    k(f"s_add_u32 s{sBB}, s{sBB}, {AREG}")
    k("s_waitcnt lgkmcnt(0)")
    k("s_lshl_b32 s39, s36, 8")
    k(f"s_sub_u32 s38, {F*D*2}, s39")
    srd(k, SRD_W, 4, "s38", off_s="s39")
    k(f"s_mul_i32 s39, s37, {56*8192}")
    srd(k, SRD_A, 32, 56 * 8192, off_s="s39", off_imm=ACT_OFF)
    k(f"s_mov_b32 s{sKW}, 0")
    k(f"s_mov_b32 s{sKA}, 0")
    k(f"s_mov_b32 s{sDM}, 0")
    def issue():
        offs = [0, PA, 8 * PA, 9 * PA]
        k(f"s_add_u32 s44, s{sDM}, s{sBA}")
        k(f"s_add_u32 s45, s{sDM}, s{sBB}")
        for i in range(4):
            k(f"s_add_u32 m0, s44, {offs[i]}")
            k("s_nop 0")
            k(f"buffer_load_dwordx4 v{vDA[i]}, s[{SRD_W}:{SRD_W+3}], s{sKW} offen lds")
        k(f"s_mov_b32 m0, s45")
        k("s_nop 0")
        k(f"buffer_load_dwordx4 v{vDB}, s[{SRD_A}:{SRD_A+3}], s{sKA} offen lds")
        k(f"buffer_load_dwordx4 v{vDB}, s[{SRD_A}:{SRD_A+3}], s{sKA} offen offset:1024 lds")
        k(f"s_add_u32 s{sKW}, s{sKW}, {64*2048}")
        k(f"s_add_u32 s{sKA}, s{sKA}, 8192")
        k(f"s_add_u32 s{sDM}, s{sDM}, {STAGE}")
        k(f"s_cmp_eq_u32 s{sDM}, {NS*STAGE}")
        k(f"s_cselect_b32 s{sDM}, 0, s{sDM}")
    for st in range(NS): issue()
    k(f"s_waitcnt vmcnt({6*(NS-1)})")
    k("s_barrier")
    k(f"s_mov_b32 s{sCNT}, {NK}")
    ploop = f"{name}_ploop"
    k.label(ploop)
    k(f"s_waitcnt vmcnt({6*(NS-2)})")
    k("s_barrier")
    issue()
    k(f"s_sub_u32 s{sCNT}, s{sCNT}, 1")
    k(f"s_cmp_lg_u32 s{sCNT}, 0")
    k(f"s_cbranch_scc1 {ploop}")
    k.label(f"{name}_end")
    k("s_endpgm")
    k.lds = NS * STAGE
    k.grid = 256
    k.block = 512
    return k

def check_banks():
    PA = 1056
    for w in range(4):
        for ks in range(2):
            for a in range(2):
                for h in range(2):
                    addr = []
                    for l in range(64):
                        g = l >> 4; r = (l >> 2) & 3; c4 = l & 3
                        addr.append((4*(g&1)+r)*PA + (g>>1)*256 + c4*8 + 64*w + ks*8*PA + a*32 + h*512)
                    assert conflicts_b64(addr) == 1
    print("gemm4 banks ok")
if __name__ == "__main__":
    check_banks()
```

```python
from asmlib import *
from layout import *
import math, struct
def f2u(x): return struct.unpack("<I", struct.pack("<f", x))[0]

def xlane_sum_16_32(k, v, tmp):
    vs = v if isinstance(v, list) else [v]
    ts = tmp if isinstance(tmp, list) else [tmp]
    for swap in ("v_permlane16_swap_b32", "v_permlane32_swap_b32"):
        for a, t in zip(vs, ts): k(f"v_mov_b32 v{t}, v{a}")
        k("s_nop 1")
        for a, t in zip(vs, ts): k(f"{swap} v{a}, v{t}")
        k("s_nop 1")
        for a, t in zip(vs, ts): k(f"v_add_f32 v{a}, v{a}, v{t}")
    return

def dpp_add(k, vs, ctrl):
    k("s_nop 1")
    for a in vs: k(f"v_add_f32_dpp v{a}, v{a}, v{a} {ctrl} row_mask:0xf bank_mask:0xf")

def wave_sum(k, vs, tmps):
    for ctrl in ("quad_perm:[1,0,3,2]", "quad_perm:[2,3,0,1]", "row_half_mirror", "row_mirror"):
        dpp_add(k, vs, ctrl)
    k("s_nop 1")
    xlane_sum_16_32(k, vs, tmps)

def gen_ka(name="ka_kernel", nt=True):
    k = Kern(name)
    NMOD = 192
    NLN = 256
    ntf = " nt" if nt else ""
    k(f"s_cmp_ge_u32 s2, {NMOD + NLN}")
    k(f"s_cbranch_scc1 {name}_end")
    k(f"s_load_dwordx2 s[32:33], s[0:1], {KA['ws']}")
    k("v_lshrrev_b32 v1, 6, v0")
    k("v_and_b32 v2, 63, v0")
    k("v_readfirstlane_b32 s28, v1")
    k(f"s_cmp_lt_u32 s2, {NLN}")
    k(f"s_cbranch_scc0 {name}_mod")
    k(f"s_load_dwordx2 s[4:5], s[0:1], {KA['x']}")
    k("v_and_b32 v3, 7, v2")
    k("v_lshrrev_b32 v4, 3, v2")
    k("v_lshlrev_b32 v5, 11, v3")
    k("v_lshlrev_b32 v6, 3, v4")
    k("v_add_u32 v5, v5, v6")
    k("s_lshl_b32 s34, s28, 8")
    k("v_add_u32 v5, s34, v5")
    k("s_lshr_b32 s35, s2, 3")
    k("s_and_b32 s36, s35, 3")
    k("s_lshr_b32 s37, s35, 3")
    k("s_and_b32 s37, s37, 1")
    k("s_lshl_b32 s37, s37, 2")
    k("s_or_b32 s36, s36, s37")
    k("s_lshl_b32 s36, s36, 2")
    k("s_and_b32 s37, s2, 7")
    k("s_lshl_b32 s37, s37, 3")
    k("s_add_u32 s36, s36, s37")
    k("v_add_u32 v6, s36, v3")
    k("v_and_b32 v6, 63, v6")
    k("s_lshl_b32 s35, s35, 6")
    k("v_add_u32 v6, s35, v6")
    k("v_lshlrev_b32 v6, 3, v6")
    k("v_lshlrev_b32 v7, 14, v4")
    k("v_add_u32 v6, v6, v7")
    k("s_lshl_b32 s38, s28, 19")
    k("v_add_u32 v6, s38, v6")
    k("s_waitcnt lgkmcnt(0)")
    k("s_lshl_b32 s34, s2, 14")
    srd(k, 8, 4, 16384, off_s="s34")
    srd(k, 12, 32, S * D * 2, off_imm=XS_OFF)
    for q in range(4):
        k(f"buffer_load_dwordx2 v[{16+2*q}:{17+2*q}], v5, s[8:11], 0 offen offset:{q*64}{ntf}")
    k("v_mov_b32 v8, 0"); k("v_mov_b32 v9, 0")
    for q in range(4):
        k(f"s_waitcnt vmcnt({3-q})")
        for d in range(2):
            src = 16 + 2*q + d; dst = 32 + 4*q + 2*d
            k(f"v_lshlrev_b32 v{dst}, 16, v{src}")
            k(f"v_and_b32 v{dst+1}, 0xffff0000, v{src}")
        for e in range(4):
            r = 32 + 4*q + e
            k(f"v_add_f32 v8, v8, v{r}")
            k(f"v_fma_f32 v9, v{r}, v{r}, v9")
    dpp_add(k, [8, 9], "row_ror:8")
    k("s_nop 1")
    xlane_sum_16_32(k, [8, 9], [10, 11])
    k("v_lshlrev_b32 v10, 6, v3")
    k("s_lshl_b32 s34, s28, 3")
    k("v_add_u32 v11, s34, v10")
    k("v_cmp_gt_u32 vcc, 8, v2")
    k("s_and_saveexec_b64 s[40:41], vcc")
    k("ds_write_b64 v11, v[8:9]")
    k("s_mov_b64 exec, s[40:41]")
    k("s_waitcnt lgkmcnt(0)")
    k("s_barrier")
    for q in range(4):
        k(f"ds_read_b128 v[{48+4*q}:{51+4*q}], v10 offset:{q*16}")
    k("s_waitcnt lgkmcnt(0)")
    k("v_add_f32 v8, v48, v50"); k("v_add_f32 v9, v49, v51")
    for r in range(52, 64, 2):
        k(f"v_add_f32 v8, v8, v{r}"); k(f"v_add_f32 v9, v9, v{r+1}")
    k(f"v_mul_f32 v8, {f2u(1.0/1024):#x}, v8")
    k(f"v_mul_f32 v9, {f2u(1.0/1024):#x}, v9")
    k("v_fma_f32 v9, -v8, v8, v9")
    k("v_max_f32 v9, 0, v9")
    k(f"v_add_f32 v9, {f2u(1e-5):#x}, v9")
    k("v_rsq_f32 v9, v9")
    k("s_nop 0")
    k("v_mul_f32 v8, v8, v9")
    for r in range(32, 48):
        k(f"v_fma_f32 v{r}, v{r}, v9, -v8")
    for q in range(4):
        for d in range(2):
            k(f"v_cvt_pk_bf16_f32 v{16+2*q+d}, v{32+4*q+2*d}, v{32+4*q+2*d+1}")
    for q in range(4):
        k(f"s_mov_b32 s34, {q*8*16384}")
        k(f"buffer_store_dwordx2 v[{16+2*q}:{17+2*q}], v6, s[12:15], s34 offen")
    k("s_endpgm")
    k.label(f"{name}_mod")
    k(f"s_load_dwordx2 s[4:5], s[0:1], {KA['wmod']}")
    k(f"s_load_dwordx2 s[6:7], s[0:1], {KA['c']}")
    k(f"s_sub_u32 s34, s2, {NLN}")
    k(f"s_mul_i32 s35, s34, {(1<<16)//48 + 1}")
    k("s_lshr_b32 s35, s35, 16")
    k("s_mul_i32 s36, s35, 48")
    k("s_sub_u32 s36, s34, s36")
    k("v_and_b32 v3, 15, v0")
    k("v_lshrrev_b32 v4, 4, v0")
    k("s_mov_b32 s37, 12288")
    k("v_mul_lo_u32 v5, v4, s37")
    k("v_lshlrev_b32 v6, 4, v3")
    k("v_add_u32 v5, v5, v6")
    k("s_waitcnt lgkmcnt(0)")
    k(f"s_mul_i32 s37, s35, {256*12288}")
    k("s_lshl_b32 s38, s36, 8")
    k("s_add_u32 s37, s37, s38")
    k(f"s_sub_u32 s38, {1024*12288}, s37")
    srd(k, 8, 4, "s38", off_s="s37")
    k("s_lshl_b32 s37, s35, 9")
    srd(k, 12, 6, 512, off_s="s37")
    k("v_lshlrev_b32 v7, 1, v0")
    k("buffer_load_ushort v8, v7, s[12:15], 0 offen")
    for p in range(8):
        k(f"s_mov_b32 s37, {p*32*12288}")
        k(f"buffer_load_dwordx4 v[{16+4*p}:{19+4*p}], v5, s[8:11], s37 offen{ntf}")
    k("s_waitcnt vmcnt(8)")
    k("v_lshlrev_b32 v8, 16, v8")
    k(f"v_mul_f32 v9, {f2u(-math.log2(math.e)):#x}, v8")
    k("v_exp_f32 v9, v9")
    k("s_nop 0")
    k("v_add_f32 v9, 1.0, v9")
    k("v_rcp_f32 v9, v9")
    k("s_nop 0")
    k("v_mul_f32 v8, v8, v9")
    k("v_cvt_pk_bf16_f32 v8, v8, v8")
    k("v_lshlrev_b32 v8, 16, v8")
    k("v_lshlrev_b32 v7, 2, v0")
    k("ds_write_b32 v7, v8")
    k("s_waitcnt lgkmcnt(0)")
    k("s_barrier")
    k("v_lshlrev_b32 v7, 2, v4")
    for p in range(8):
        k(f"ds_read_b32 v{48+p}, v7 offset:{p*128}")
    for e in range(8): k(f"v_mov_b32 v{56+e}, 0")
    k("s_waitcnt lgkmcnt(0)")
    for p in range(8):
        k(f"s_waitcnt vmcnt({7-p})")
        for d in range(4):
            k(f"v_lshlrev_b32 v8, 16, v{16+4*p+d}")
            k(f"v_and_b32 v9, 0xffff0000, v{16+4*p+d}")
            k(f"v_fma_f32 v{56+2*d}, v8, v{48+p}, v{56+2*d}")
            k(f"v_fma_f32 v{57+2*d}, v9, v{48+p}, v{57+2*d}")
    xlane_sum_16_32(k, [56+e for e in range(8)], [64+e for e in range(8)])
    k("v_lshlrev_b32 v7, 5, v3")
    k("s_lshl_b32 s37, s28, 9")
    k("s_add_u32 s37, s37, 2048")
    k("v_add_u32 v7, s37, v7")
    k("v_cmp_gt_u32 vcc, 16, v2")
    k("s_and_saveexec_b64 s[40:41], vcc")
    k("ds_write_b128 v7, v[56:59]")
    k("ds_write_b128 v7, v[60:63] offset:16")
    k("s_mov_b64 exec, s[40:41]")
    k("s_waitcnt lgkmcnt(0)")
    k("s_barrier")
    k("v_cmp_gt_u32 vcc, 128, v0")
    k("s_and_saveexec_b64 s[40:41], vcc")
    k(f"s_cbranch_execz {name}_end")
    k("v_lshlrev_b32 v7, 2, v0")
    for w in range(8):
        k(f"ds_read_b32 v{16+w}, v7 offset:{2048+w*512}")
    k("s_waitcnt lgkmcnt(0)")
    k("v_add_f32 v16, v16, v17")
    for w in range(2, 8): k(f"v_add_f32 v16, v16, v{16+w}")
    k(f"s_mul_i32 s37, s35, {6144*4}")
    k("s_lshl_b32 s38, s36, 9")
    k("s_add_u32 s37, s37, s38")
    srd(k, 12, 32, 4*6144*4, off_imm=MODP_OFF)
    k("buffer_store_dword v16, v7, s[12:15], s37 offen")
    k.label(f"{name}_end")
    k("s_endpgm")
    k.lds = 8192; k.grid = NMOD + NLN; k.block = 512; k.vgpr = 80; k.accum = 80
    return k
```

```python
from asmlib import *
from layout import *
from ka import f2u
import math

def cos_sin(k, dc, ds, n, scale):
    k(f"v_cvt_f32_u32 v{ds}, v{n}")
    k(f"v_mul_f32 v{ds}, {f2u(scale):#x}, v{ds}")
    k(f"v_cos_f32 v{dc}, v{ds}")
    k(f"v_sin_f32 v{ds}, v{ds}")

def gen_kb(name="kb_kernel"):
    k = Kern(name)
    TOFF = 16384
    k("s_cmp_ge_u32 s2, 256")
    k(f"s_cbranch_scc1 {name}_end")
    k(f"s_load_dwordx2 s[32:33], s[0:1], {KA['ws']}")
    k("v_lshrrev_b32 v1, 6, v0")
    k("v_and_b32 v0, 63, v0")
    k("v_readfirstlane_b32 s28, v1")
    k("s_and_b32 s34, s2, 7")
    k("s_lshl_b32 s34, s34, 5")
    k("s_lshr_b32 s35, s2, 3")
    k("s_add_u32 s34, s34, s35")
    k("v_lshlrev_b32 v2, 4, v0")
    k("v_lshrrev_b32 v3, 4, v0")
    k("v_and_b32 v4, 15, v0")
    k("s_waitcnt lgkmcnt(0)")
    k("s_lshl_b32 s35, s34, 14")
    srd(k, 8, 32, 16384, off_s="s35", off_imm=XS_OFF)
    srd(k, 12, 32, 4*6144*4, off_imm=MODP_OFF)
    k(f"s_mul_i32 s35, s34, {ZROWS*16}")
    srd(k, 16, 32, ZROWS*16, off_s="s35", off_imm=ZS_OFF)
    srd(k, 20, 32, 6144*4, off_imm=MODF_OFF)
    k("s_lshl_b32 s36, s28, 12")
    k("s_mov_b32 m0, s36")
    k("v_add_u32 v5, s36, v2")
    for q in range(4):
        k(f"buffer_load_dwordx4 v5, s[8:11], 0 offen offset:{q*1024} lds")
    k("s_lshl_b32 s36, s34, 2")
    k("v_add_u32 v6, s36, v0")
    k("v_lshlrev_b32 v6, 2, v6")
    k("v_add_u32 v7, 4096, v6")
    k("s_mul_i32 s36, s2, 24")
    k("v_add_u32 v16, s36, v0")
    k("v_lshlrev_b32 v17, 2, v16")
    for p in range(4):
        k(f"s_mov_b32 s37, {p*6144*4}")
        k(f"buffer_load_dword v{8+p}, v6, s[12:15], s37 offen")
        k(f"buffer_load_dword v{12+p}, v7, s[12:15], s37 offen")
        k(f"buffer_load_dword v{20+p}, v17, s[12:15], s37 offen")
    C1 = 32
    TC, TS = 100, 108
    k("v_lshlrev_b32 v24, 3, v3")
    k("v_mul_u32_u24 v24, v24, v4")
    for e in range(8):
        k("v_and_b32 v25, 31, v24")
        cos_sin(k, TC+e, TS+e, 25, 1.0/32)
        if e < 7: k("v_add_u32 v24, v24, v4")
    k("s_nop 0")
    for d in range(4):
        k(f"v_cvt_pk_bf16_f32 v{C1+d}, v{TC+2*d}, v{TC+2*d+1}")
        k(f"v_cvt_pk_bf16_f32 v{C1+8+d}, -v{TS+2*d}, -v{TS+2*d+1}")
    for d in range(4):
        k(f"v_xor_b32 v{C1+4+d}, 0x80000000, v{C1+d}")
        k(f"v_xor_b32 v{C1+12+d}, 0x80000000, v{C1+8+d}")
    C3 = 48
    k("s_lshr_b32 s36, s28, 1")
    k("s_lshl_b32 s36, s36, 4")
    k("v_add_u32 v26, s36, v4")
    for e in range(8):
        s2c = 16*(e >> 2) + 4*(e & 3)
        k(f"v_add_u32 v25, {s2c}, v3")
        k("v_mul_u32_u24 v25, v25, v26")
        k("v_and_b32 v25, 63, v25")
        cos_sin(k, TC+e, TS+e, 25, 1.0/64)
    k("v_and_b32 v25, 1, v26")
    k("v_sub_u32 v27, 0, v25")
    k("v_and_b32 v27, 0x80008000, v27")
    for d in range(4):
        k(f"v_cvt_pk_bf16_f32 v{C3+d}, v{TC+2*d}, v{TC+2*d+1}")
        k(f"v_cvt_pk_bf16_f32 v{C3+8+d}, v{TS+2*d}, v{TS+2*d+1}")
    for d in range(4):
        k(f"v_xor_b32 v{C3+4+d}, v27, v{C3+d}")
        k(f"v_xor_b32 v{C3+12+d}, v27, v{C3+8+d}")
    for d in range(8):
        k(f"v_xor_b32 v{C3+16+d}, 0x80008000, v{C3+8+d}")
    TW = 72
    k("s_lshl_b32 s36, s28, 4")
    for tau in range(4):
        k(f"v_add_u32 v25, s36, v3")
        if tau: k(f"v_add_u32 v25, {4*tau}, v25")
        for th in range(2):
            k(f"v_add_u32 v27, {16*th}, v4")
            k("v_mul_u32_u24 v27, v25, v27")
            b = TW + (tau*2 + th)*2
            cos_sin(k, b, b+1, 27, 1.0/2048)
    RA = 88
    k("v_bfe_u32 v25, v0, 2, 2")
    k("v_and_b32 v26, 3, v0")
    k("v_lshlrev_b32 v27, 12, v3")
    k("v_lshlrev_b32 v28, 9, v25")
    k("v_add_u32 v27, v27, v28")
    k("v_lshlrev_b32 v28, 2, v25")
    k("v_add_u32 v28, v28, v26")
    k("v_and_b32 v29, 1, v3")
    k("v_lshlrev_b32 v29, 4, v29")
    k("v_add_u32 v28, v28, v29")
    k("s_lshl_b32 s36, s28, 4")
    k("v_add_u32 v28, s36, v28")
    for tau in range(4):
        k(f"v_add_u32 v29, {4*tau}, v28")
        k("v_and_b32 v29, 63, v29")
        k(f"v_lshl_add_u32 v{RA+tau}, v29, 3, v27")
    k("s_waitcnt vmcnt(0)")
    k("v_add_f32 v8, v8, v9"); k("v_add_f32 v10, v10, v11"); k("v_add_f32 v8, v8, v10")
    k("v_add_f32 v12, v12, v13"); k("v_add_f32 v14, v14, v15"); k("v_add_f32 v12, v12, v14")
    k("v_add_f32 v20, v20, v21"); k("v_add_f32 v22, v22, v23"); k("v_add_f32 v20, v20, v22")
    for r in (8, 12, 20):
        k(f"v_cvt_pk_bf16_f32 v{r}, v{r}, v{r}")
        k(f"v_lshlrev_b32 v{r}, 16, v{r}")
    k("v_add_f32 v13, 1.0, v12")
    k("v_cvt_pk_bf16_f32 v13, v13, v13")
    k("v_lshlrev_b32 v13, 16, v13")
    k(f"v_mul_f32 v8, {f2u(2048.0):#x}, v8")
    k("v_add_f32 v21, 1.0, v20")
    k("v_cvt_pk_bf16_f32 v21, v21, v21")
    k("v_lshlrev_b32 v21, 16, v21")
    k("v_lshrrev_b32 v22, 10, v16")
    k("v_cmp_eq_u32 vcc, 1, v22")
    k("v_cmp_eq_u32 s[40:41], 4, v22")
    k("s_or_b64 vcc, vcc, s[40:41]")
    k("s_nop 1")
    k("v_cndmask_b32 v20, v20, v21, vcc")
    k("v_cmp_gt_u32 vcc, 24, v0")
    k("s_cmp_eq_u32 s28, 0")
    k("s_cselect_b64 s[40:41], vcc, 0")
    k("s_mov_b64 s[42:43], exec")
    k("s_mov_b64 exec, s[40:41]")
    k(f"s_cbranch_execz {name}_nofin")
    k("buffer_store_dword v20, v17, s[20:23], 0 offen")
    k.label(f"{name}_nofin")
    k("s_mov_b64 exec, s[42:43]")
    for dd in range(4):
        k(f"v_readlane_b32 s{44+dd}, v13, {dd}")
        k(f"v_readlane_b32 s{48+dd}, v8, {dd}")
    k("s_barrier")
    AF = 8
    for tau in range(4):
        for h in range(2):
            k(f"ds_read_b64_tr_b16 v[{AF+4*tau+2*h}:{AF+4*tau+2*h+1}], v{RA+tau} offset:{h*2048}")
    ACC = 128
    def a1(tau, th, ri): return ACC + ((tau*2 + th)*2 + ri)*4
    for tau in range(4):
        k(f"s_waitcnt lgkmcnt({6-2*tau})")
        for th in range(2):
            for ri in range(2):
                cb = C1 + ri*8 + th*4
                k(f"v_mfma_f32_16x16x32_bf16 v[{a1(tau,th,ri)}:{a1(tau,th,ri)+3}], v[{AF+4*tau}:{AF+4*tau+3}], v[{cb}:{cb+3}], 0")
    k("s_nop 7")
    for tau in range(4):
        for th in range(2):
            c = TW + (tau*2 + th)*2; s = c + 1
            tr = a1(tau, th, 0); ti = a1(tau, th, 1)
            for r in range(4):
                k(f"v_mul_f32 v{TC+r}, v{tr+r}, v{c}")
                k(f"v_mul_f32 v{TS+r}, v{ti+r}, v{c}")
            for r in range(4):
                k(f"v_fma_f32 v{TC+r}, v{ti+r}, v{s}, v{TC+r}")
                k(f"v_fma_f32 v{ti+r}, -v{tr+r}, v{s}, v{TS+r}")
                k(f"v_mov_b32 v{tr+r}, v{TC+r}")
    k("s_lshr_b32 s36, s28, 1")
    k("s_lshl_b32 s36, s36, 10")
    k("s_and_b32 s37, s28, 1")
    k("s_lshl_b32 s37, s37, 3")
    k("s_add_u32 s36, s36, s37")
    k(f"s_add_u32 s36, s36, {TOFF}")
    k("v_add_u32 v24, s36, v2")
    pk = 8
    for dd in range(4):
        for th in range(2):
            for ri in range(2):
                p = pk + ((dd*2 + th)*2 + ri) % 8 * 2
                k(f"v_cvt_pk_bf16_f32 v{p}, v{a1(0,th,ri)+dd}, v{a1(1,th,ri)+dd}")
                k(f"v_cvt_pk_bf16_f32 v{p+1}, v{a1(2,th,ri)+dd}, v{a1(3,th,ri)+dd}")
                k(f"ds_write_b64 v24, v[{p}:{p+1}] offset:{((dd*2+th)*2+ri)*2048}")
        k("s_nop 0")
    k("s_waitcnt lgkmcnt(0)")
    k("s_barrier")
    k("s_and_b32 s36, s28, 1")
    k("s_lshl_b32 s36, s36, 12")
    k(f"s_add_u32 s36, s36, {TOFF}")
    k("v_add_u32 v24, s36, v2")
    BF = 128
    def bfr(dd, ri, m): return BF + ((dd*2 + ri)*2 + m)*4
    for dd in range(4):
        for ri in range(2):
            for m in range(2):
                off = dd*8192 + ri*2048 + m*1024
                k(f"ds_read_b128 v[{bfr(dd,ri,m)}:{bfr(dd,ri,m)+3}], v24 offset:{off}")
    Z = 192
    def z(dd, ri): return Z + (dd*2 + ri)*4
    NQ = 224
    NC = 240
    k("v_and_b32 v25, 1, v3")
    k("v_lshlrev_b32 v25, 31, v25")
    k("v_lshrrev_b32 v26, 16, v25")
    k("v_or_b32 v25, v25, v26")
    k("v_or_b32 v25, 0x3f803f80, v25")
    k("v_cmp_eq_u32 vcc, 0, v4")
    k("s_nop 1")
    k("v_cndmask_b32 v25, 0, v25, vcc")
    for d in range(4): k(f"v_mov_b32 v{NC+d}, v25")
    for dd in range(4):
        k(f"s_waitcnt lgkmcnt({12-4*dd})")
        def mf(d, a, b, c):
            cs = "0" if c is None else f"v[{c}:{c+3}]"
            k(f"v_mfma_f32_16x16x32_bf16 v[{d}:{d+3}], v[{a}:{a+3}], v[{b}:{b+3}], {cs}")
        mf(z(dd,0), C3+0, bfr(dd,0,0), None)
        mf(z(dd,1), C3+0, bfr(dd,1,0), None)
        mf(NQ+4*dd, NC, bfr(dd,0,0), None)
        mf(z(dd,0), C3+4, bfr(dd,0,1), z(dd,0))
        mf(z(dd,1), C3+4, bfr(dd,1,1), z(dd,1))
        mf(NQ+4*dd, NC, bfr(dd,0,1), NQ+4*dd)
        mf(z(dd,0), C3+8, bfr(dd,1,0), z(dd,0))
        mf(z(dd,1), C3+16, bfr(dd,0,0), z(dd,1))
        mf(z(dd,0), C3+12, bfr(dd,1,1), z(dd,0))
        mf(z(dd,1), C3+20, bfr(dd,0,1), z(dd,1))
    k("s_and_b32 s36, s28, 1")
    k("s_lshl_b32 s36, s36, 4")
    k("s_lshr_b32 s37, s28, 1")
    k("s_lshl_b32 s37, s37, 9")
    k("s_add_u32 s36, s36, s37")
    k("v_lshlrev_b32 v25, 7, v3")
    k("v_add_u32 v25, v25, v4")
    k("v_add_u32 v25, s36, v25")
    k("v_lshlrev_b32 v25, 4, v25")
    k("v_cmp_eq_u32 vcc, 0, v25")
    for dd in range(4):
        k(f"v_mov_b32 v{26+dd}, s{48+dd}")
    k("s_nop 1")
    for dd in range(4):
        k(f"v_cndmask_b32 v{26+dd}, 0, v{26+dd}, vcc")
    k("s_nop 3")
    for dd in range(4):
        k(f"v_fma_f32 v{z(dd,0)}, v{z(dd,0)}, s{44+dd}, v{26+dd}")
        for r in range(1, 4): k(f"v_mul_f32 v{z(dd,0)+r}, s{44+dd}, v{z(dd,0)+r}")
        for r in range(4): k(f"v_mul_f32 v{z(dd,1)+r}, s{44+dd}, v{z(dd,1)+r}")
    for r in range(4):
        o = 8 + 4*r
        k(f"v_cvt_pk_bf16_f32 v{o}, v{z(0,0)+r}, v{z(1,0)+r}")
        k(f"v_cvt_pk_bf16_f32 v{o+1}, v{z(2,0)+r}, v{z(3,0)+r}")
        k(f"v_cvt_pk_bf16_f32 v{o+2}, v{z(0,1)+r}, v{z(1,1)+r}")
        k(f"v_cvt_pk_bf16_f32 v{o+3}, v{z(2,1)+r}, v{z(3,1)+r}")
        k(f"buffer_store_dwordx4 v[{o}:{o+3}], v25, s[16:19], 0 offen offset:{r*512}")
    k("s_cmp_lg_u32 s28, 0")
    k(f"s_cbranch_scc1 {name}_end")
    for dd in range(4): k(f"v_mul_f32 v{NQ+4*dd}, s{44+dd}, v{NQ+4*dd}")
    k(f"v_cvt_pk_bf16_f32 v32, v{NQ}, v{NQ+4}")
    k(f"v_cvt_pk_bf16_f32 v33, v{NQ+8}, v{NQ+12}")
    k("v_mov_b32 v34, 0"); k("v_mov_b32 v35, 0")
    k("v_mov_b32 v36, 16384")
    k("s_mov_b64 exec, 1")
    k("buffer_store_dwordx4 v[32:35], v36, s[16:19], 0 offen")
    k.label(f"{name}_end")
    k("s_endpgm")
    k.lds = 49152; k.grid = 256; k.block = 256
    return k
```

```python
from asmlib import *
from layout import *
from ka import f2u, wave_sum
from kb import cos_sin

def gen_kc(name="kc_kernel"):
    k = Kern(name)
    k("s_cmp_ge_u32 s2, 256")
    k(f"s_cbranch_scc1 {name}_end")
    k(f"s_load_dwordx2 s[32:33], s[0:1], {KA['ws']}")
    k(f"s_load_dwordx2 s[4:5], s[0:1], {KA['x']}")
    k("v_lshrrev_b32 v1, 6, v0")
    k("v_and_b32 v0, 63, v0")
    k("v_readfirstlane_b32 s28, v1")
    k("v_lshrrev_b32 v2, 3, v0")
    k("v_and_b32 v3, 7, v0")
    k("v_lshrrev_b32 v4, 1, v2")
    k("v_sub_u32 v3, v3, v4")
    k("s_lshl_b32 s34, s2, 3")
    k(f"s_mov_b32 s35, {ZROWS*16}")
    k("v_mul_lo_u32 v5, v2, s35")
    for par in range(2):
        k(f"v_subrev_u32 v6, {4*par}, v3")
        k("v_and_b32 v6, 7, v6")
        k("v_add_u32 v6, s34, v6")
        k("v_sub_u32 v7, 2048, v6")
        k("v_min_u32 v6, v6, v7")
        k(f"v_lshl_add_u32 v{8+par}, v6, 4, v5")
    k("s_waitcnt lgkmcnt(0)")
    srd(k, 8, 32, 256*ZROWS*16, off_imm=ZS_OFF)
    srd(k, 12, 32, 6144*4, off_imm=MODF_OFF)
    k("s_add_u32 s36, s34, s28")
    k("s_lshl_b32 s37, s36, 11")
    srd(k, 16, 4, 2048, off_s="s37")
    srd(k, 20, 32, 2048, off_s="s37", off_imm=X1_OFF)
    srd(k, 24, 32, S*D*2, off_imm=H2_OFF)
    for q in range(4):
        k(f"s_lshl_b32 s38, s28, 2")
        k(f"s_add_u32 s38, s38, {q}")
        k(f"s_lshl_b32 s39, s38, 10")
        k("s_mov_b32 m0, s39")
        k(f"s_mul_i32 s38, s38, {8*ZROWS*16}")
        k(f"buffer_load_dwordx4 v{8+(q&1)}, s[8:11], s38 offen lds")
    k("v_lshrrev_b32 v2, 5, v0")
    k("v_and_b32 v3, 31, v0")
    k("v_lshlrev_b32 v4, 6, v3")
    k("v_lshl_add_u32 v4, v2, 4, v4")
    k("v_lshlrev_b32 v5, 1, v4")
    XV = 200
    k(f"buffer_load_dwordx4 v[{XV}:{XV+3}], v4, s[16:19], 0 offen nt")
    k(f"buffer_load_dwordx4 v[{XV+4}:{XV+7}], v4, s[16:19], 0 offen offset:32 nt")
    MV = 208
    for vi, part in enumerate((2, 4, 3)):
        k(f"s_mov_b32 s38, {part*4096}")
        for ab in range(2):
            for hh in range(2):
                b = MV + vi*16 + ab*8 + hh*4
                k(f"buffer_load_dwordx4 v[{b}:{b+3}], v5, s[12:15], s38 offen offset:{ab*64+hh*16}")
    TC, TS = 160, 168
    k("v_lshrrev_b32 v6, 4, v3")
    k("v_lshlrev_b32 v6, 4, v6")
    k("v_bfe_u32 v7, v3, 2, 1")
    k("v_lshl_add_u32 v6, v7, 3, v6")
    k("v_bfe_u32 v7, v3, 3, 1")
    k("v_lshl_add_u32 v6, v7, 2, v6")
    k("v_and_b32 v7, 3, v3")
    k("v_add_u32 v6, v6, v7")
    C1 = 32
    k("v_lshlrev_b32 v10, 3, v2")
    k("v_mul_u32_u24 v10, v10, v6")
    for e in range(8):
        k("v_and_b32 v11, 31, v10")
        cos_sin(k, TC+e, TS+e, 11, 1.0/32)
        if e < 7: k("v_add_u32 v10, v10, v6")
    k("v_and_b32 v11, 1, v6")
    k("v_sub_u32 v12, 0, v11")
    k("v_and_b32 v12, 0x80008000, v12")
    for d in range(4):
        k(f"v_cvt_pk_bf16_f32 v{C1+d}, v{TC+2*d}, v{TC+2*d+1}")
        k(f"v_cvt_pk_bf16_f32 v{C1+8+d}, v{TS+2*d}, v{TS+2*d+1}")
    for d in range(4):
        k(f"v_xor_b32 v{C1+4+d}, v12, v{C1+d}")
        k(f"v_xor_b32 v{C1+12+d}, v12, v{C1+8+d}")
    for d in range(8):
        k(f"v_xor_b32 v{C1+16+d}, 0x80008000, v{C1+8+d}")
    C3 = 56
    k("v_lshlrev_b32 v10, 2, v2")
    for e in range(8):
        d2c = 8*(e >> 2) + (e & 3)
        k(f"v_add_u32 v11, {d2c}, v10")
        k("v_mul_u32_u24 v11, v11, v3")
        k("v_and_b32 v11, 31, v11")
        cos_sin(k, TC+e, TS+e, 11, 1.0/32)
    k("v_and_b32 v11, 1, v3")
    k("v_sub_u32 v12, 0, v11")
    k("v_and_b32 v12, 0x80008000, v12")
    for d in range(4):
        k(f"v_cvt_pk_bf16_f32 v{C3+d}, v{TC+2*d}, v{TC+2*d+1}")
        k(f"v_cvt_pk_bf16_f32 v{C3+8+d}, v{TS+2*d}, v{TS+2*d+1}")
    for d in range(4):
        k(f"v_xor_b32 v{C3+4+d}, v12, v{C3+d}")
        k(f"v_xor_b32 v{C3+12+d}, v12, v{C3+8+d}")
    TW = 72
    for r in range(16):
        d2c = 8*(r >> 2) + (r & 3)
        k(f"v_add_u32 v11, {d2c}, v10")
        k("v_mul_u32_u24 v11, v11, v6")
        cos_sin(k, TW+r, TW+16+r, 11, 1.0/1024)
    k("v_lshrrev_b32 v10, 4, v0")
    k("v_bfe_u32 v11, v0, 2, 2")
    k("v_and_b32 v12, 3, v0")
    k("v_and_b32 v13, 1, v10")
    k("v_lshl_add_u32 v13, v13, 2, v12")
    k("v_lshrrev_b32 v14, 1, v10")
    k("v_lshl_add_u32 v14, v14, 3, v11")
    k("v_lshlrev_b32 v14, 10, v14")
    k("v_lshl_add_u32 v14, v13, 7, v14")
    k("v_lshrrev_b32 v15, 1, v13")
    k("v_and_b32 v16, 1, v11")
    k("v_lshl_add_u32 v15, v16, 2, v15")
    k("v_add_u32 v15, s28, v15")
    k("v_and_b32 v15, 7, v15")
    k("v_lshl_add_u32 v14, v15, 4, v14")
    k("s_cmp_gt_u32 s36, 1024")
    k("s_cselect_b32 s40, 0x80008000, 0")
    k("s_waitcnt vmcnt(14)")
    k("s_barrier")
    ZF = 104
    for pl in range(2):
        for m in range(2):
            for h in range(2):
                b = ZF + (pl*2 + m)*4 + 2*h
                k(f"ds_read_b64_tr_b16 v[{b}:{b+1}], v14 offset:{h*4096 + m*16384 + pl*8}")
    k("s_waitcnt lgkmcnt(0)")
    for d in range(8): k(f"v_xor_b32 v{ZF+8+d}, s40, v{ZF+8+d}")
    TR, TI = 128, 144
    def mf(d, a, b, c):
        cs = "0" if c is None else f"v[{c}:{c+15}]"
        k(f"v_mfma_f32_32x32x16_bf16 v[{d}:{d+15}], v[{a}:{a+3}], v[{b}:{b+3}], {cs}")
    zr = lambda m: ZF + m*4
    zi = lambda m: ZF + 8 + m*4
    k("s_nop 1")
    mf(TR, zr(0), C1+0, None)
    mf(TI, zr(0), C1+16, None)
    mf(TR, zr(1), C1+4, TR)
    mf(TI, zr(1), C1+20, TI)
    mf(TR, zi(0), C1+8, TR)
    mf(TI, zi(0), C1+0, TI)
    mf(TR, zi(1), C1+12, TR)
    mf(TI, zi(1), C1+4, TI)
    k("s_nop 15")
    for r in range(16):
        k(f"v_mul_f32 v{160+r}, v{TR+r}, v{TW+r}")
        k(f"v_mul_f32 v{176+r}, v{TI+r}, v{TW+r}")
    for r in range(16):
        k(f"v_fma_f32 v{160+r}, v{TI+r}, v{TW+16+r}, v{160+r}")
        k(f"v_fma_f32 v{176+r}, -v{TR+r}, v{TW+16+r}, v{176+r}")
    PR, PI = 104, 112
    for d in range(8):
        k(f"v_cvt_pk_bf16_f32 v{PR+d}, v{160+2*d}, v{161+2*d}")
        k(f"v_cvt_pk_bf16_f32 v{PI+d}, v{176+2*d}, v{177+2*d}")
    Y = 128
    k("s_nop 1")
    mf(Y, PR+0, C3+0, None)
    mf(Y, PR+4, C3+4, Y)
    mf(Y, PI+0, C3+8, Y)
    mf(Y, PI+4, C3+12, Y)
    k("s_waitcnt vmcnt(0)")
    for d in range(8):
        k(f"v_lshlrev_b32 v{160+2*d}, 16, v{XV+d}")
        k(f"v_and_b32 v{161+2*d}, 0xffff0000, v{XV+d}")
    k("s_nop 7")
    for r in range(16):
        k(f"v_fma_f32 v{160+r}, v{Y+r}, v{MV+r}, v{160+r}")
    for d in range(8):
        k(f"v_cvt_pk_bf16_f32 v{XV+d}, v{160+2*d}, v{161+2*d}")
    k(f"buffer_store_dwordx4 v[{XV}:{XV+3}], v4, s[20:23], 0 offen")
    k(f"buffer_store_dwordx4 v[{XV+4}:{XV+7}], v4, s[20:23], 0 offen offset:32")
    for d in range(8):
        k(f"v_lshlrev_b32 v{160+2*d}, 16, v{XV+d}")
        k(f"v_and_b32 v{161+2*d}, 0xffff0000, v{XV+d}")
    k("v_add_f32 v10, v160, v161")
    for r in range(2, 16): k(f"v_add_f32 v10, v10, v{160+r}")
    wave_sum(k, [10], [11])
    k(f"v_mul_f32 v10, {f2u(1.0/1024):#x}, v10")
    for r in range(16): k(f"v_sub_f32 v{160+r}, v{160+r}, v10")
    k("v_mul_f32 v12, v160, v160")
    for r in range(1, 16): k(f"v_fma_f32 v12, v{160+r}, v{160+r}, v12")
    wave_sum(k, [12], [13])
    k(f"v_mul_f32 v12, {f2u(1.0/1024):#x}, v12")
    k(f"v_add_f32 v12, {f2u(1e-5):#x}, v12")
    k("v_rsq_f32 v12, v12")
    k("s_nop 0")
    for r in range(16): k(f"v_mul_f32 v{160+r}, v{160+r}, v12")
    for r in range(16): k(f"v_fma_f32 v{160+r}, v{160+r}, v{MV+16+r}, v{MV+32+r}")
    for d in range(8):
        k(f"v_cvt_pk_bf16_f32 v{176+d}, v{160+2*d}, v{161+2*d}")
    k("s_lshr_b32 s38, s36, 8")
    k("s_lshl_b32 s38, s38, 19")
    k("s_lshr_b32 s39, s36, 4")
    k("s_and_b32 s39, s39, 15")
    k("s_lshl_b32 s39, s39, 10")
    k("s_add_u32 s38, s38, s39")
    k("s_and_b32 s39, s36, 15")
    k("s_lshl_b32 s39, s39, 4")
    k("s_add_u32 s38, s38, s39")
    k("v_lshlrev_b32 v10, 14, v3")
    k("v_lshl_add_u32 v10, v2, 8, v10")
    k("buffer_store_dwordx4 v[176:179], v10, s[24:27], s38 offen")
    k("buffer_store_dwordx4 v[180:183], v10, s[24:27], s38 offen offset:512")
    k.label(f"{name}_end")
    k("s_endpgm")
    k.lds = 32768; k.grid = 256; k.block = 512
    return k
```

```python
S, D, F = 2048, 1024, 3584
MODP_OFF = 0x0
H1_OFF   = 0x100000
P_OFF    = 0x500000
X1_OFF   = 0xD00000
H2_OFF   = 0x1100000
ACT_OFF  = 0x1500000
WS_BYTES = 268435456
MODF_OFF = 0x40000
XS_OFF   = 0x100000
ZS_OFF   = 0x500000
ZROWS    = 1032
MODC_OFF = 0x50000
```

```python
import sys
from asmlib import *
from ka import gen_ka
from kb import gen_kb
from kc import gen_kc
from gemm3 import gen_gemm3
from gemm3b import gen_gemm3b
from gemm4 import gen_gemm4
from gemm4b import gen_gemm4b
NAME = "adaLN_cond__spectral_fnet__geglu_ffn__prompt"
ref = open(f"cdna_kernels/{NAME}.s.ref").read().split("\n")
hdr = []
for l in ref:
    if l.startswith("; Override launch") : break
    hdr.append(l)
hdr = "\n".join(hdr)
def build(path, ks):
    txt = build_file(hdr, [(k.name, k.grid, k.block, k.lds) for k in ks], ks)
    open(path, "w").write(txt)
if __name__ == "__main__":
    stamps = len(sys.argv) > 2
    ks = [gen_ka("ka_kernel", stamps=stamps, xnt=False, codepf=("kb_kernel", "code_end_label")), gen_kb("kb_kernel", stamps=stamps, sf=" sc1", table=False), gen_kc("kc_kernel", stamps=stamps, xnt=False), gen_gemm3b("g3_kernel", stamps=stamps, sf=" sc1", sf2=" sc1"), gen_gemm4b("g4_kernel", stamps=stamps)]
    out = sys.argv[1] if len(sys.argv) > 1 else f"cdna_kernels/{NAME}.s"
    build(out, ks)
```

```python
from mk_all import *
def nopk(name, grid=256):
    k = Kern(name)
    k("s_endpgm")
    k.lds = 0; k.grid = grid; k.block = 256; k.vgpr = 8; k.accum = 8; k.sgpr = 16
    return k
base = lambda: [gen_ka("ka_kernel"), gen_kb("kb_kernel"), gen_kc("kc_kernel"), gen_gemm3("g3_kernel"), gen_gemm4("g4_kernel")]
def build_l(path, ks, order):
    d = {k.name: k for k in ks}
    txt = build_file(hdr, [(n, d[n].grid, d[n].block, d[n].lds) for n in order], ks)
    open(path, "w").write(txt)
ks = base() + [nopk("nop_kernel")]
names = [k.name for k in ks[:5]]
build_l("v_a.s", ks[:5], names)
build_l("v_b.s", ks, ["nop_kernel"]*4 + names)
build_l("v_c.s", ks, names + ["nop_kernel"]*4)
build_l("v_d.s", ks, names[:4] + ["nop_kernel"]*4 + names[4:])
```

```python
class Kern:
    def __init__(self, name):
        self.name = name
        self.lines = []
        self.nlab = 0
        self.vgpr = 256
        self.sgpr = 102
        self.accum = 256
    def __call__(self, s):
        for l in s.split("\n"):
            l = l.strip()
            if l:
                self.lines.append("  " + l)
    def c(self, s):
        self.lines.append("  ; " + s)
    def label(self, l):
        self.lines.append(l + ":")
    def newlabel(self, base="L"):
        self.nlab += 1
        return f"{self.name}_{base}{self.nlab}"
    def text(self):
        out = []
        out.append(f".globl {self.name}")
        out.append(".p2align 8")
        out.append(f".type {self.name},@function")
        out.append(f"{self.name}:")
        out += self.lines
        return "\n".join(out) + "\n"
    def desc(self):
        return f""".p2align 6
.amdhsa_kernel {self.name}
  .amdhsa_next_free_vgpr {self.vgpr}
  .amdhsa_next_free_sgpr {self.sgpr}
  .amdhsa_accum_offset {self.accum}
  .amdhsa_group_segment_fixed_size 0
  .amdhsa_kernarg_size 112
  .amdhsa_user_sgpr_count 2
  .amdhsa_user_sgpr_kernarg_segment_ptr 1
  .amdhsa_system_sgpr_workgroup_id_x 1
  .amdhsa_float_denorm_mode_32 3
  .amdhsa_float_denorm_mode_16_64 3
.end_amdhsa_kernel
"""

def vr(base, n=1):
    return f"v{base}" if n == 1 else f"v[{base}:{base+n-1}]"
def sr(base, n=1):
    return f"s{base}" if n == 1 else f"s[{base}:{base+n-1}]"

KA = dict(x=0, wsr=8, wsi=16, wdr=24, wdi=32, bx=40, wg=48, wu=56, wd=64, c=72, wmod=80, out=88, dbg=96, ws=104)

def srd(k, d, base, nbytes, off_s=None, off_imm=0):
    if off_s is None and off_imm == 0:
        k(f"s_mov_b32 s{d}, s{base}")
        k(f"s_mov_b32 s{d+1}, s{base+1}")
    else:
        if off_s is not None:
            k(f"s_add_u32 s{d}, s{base}, {off_s}")
            k(f"s_addc_u32 s{d+1}, s{base+1}, 0")
            if off_imm:
                k(f"s_add_u32 s{d}, s{d}, {off_imm:#x}")
                k(f"s_addc_u32 s{d+1}, s{d+1}, 0")
        else:
            k(f"s_add_u32 s{d}, s{base}, {off_imm:#x}")
            k(f"s_addc_u32 s{d+1}, s{base+1}, 0")
    if isinstance(nbytes, int):
        k(f"s_mov_b32 s{d+2}, {nbytes:#x}")
    else:
        k(f"s_mov_b32 s{d+2}, {nbytes}")
    k(f"s_mov_b32 s{d+3}, 0x20000")

def build_file(header_comment, launches, kernels):
    out = []
    out.append(header_comment.rstrip("\n"))
    for (name, grid, block, lds) in launches:
        out.append(f"; @launch kernel={name} grid=({grid},1,1) block=({block},1,1) lds={lds}")
    out.append('.amdgcn_target "amdgcn-amd-amdhsa--gfx950"')
    out.append(".text")
    for k in kernels:
        out.append(k.text())
    out.append('.section .rodata,"a"')
    for k in kernels:
        out.append(k.desc())
    return "\n".join(out)

B128_GROUPS = [list(range(0,4))+list(range(12,16))+list(range(20,28)),
               list(range(4,12))+list(range(16,20))+list(range(28,32)),
               list(range(32,36))+list(range(44,48))+list(range(52,60)),
               list(range(36,44))+list(range(48,52))+list(range(60,64))]
def conflicts_b128(addr):
    worst = 1
    for grp in B128_GROUPS:
        banks = {}
        for l in grp:
            for d in range(4):
                a = addr[l] + 4*d
                banks.setdefault((a//4) % 64, set()).add(a//4)
        worst = max(worst, max(len(s) for s in banks.values()))
    return worst
def conflicts_b64(addr):
    worst = 1
    for grp in (range(0,32), range(32,64)):
        banks = {}
        for l in grp:
            for d in range(2):
                a = addr[l] + 4*d
                banks.setdefault((a//4) % 64, set()).add(a//4)
        worst = max(worst, max(len(s) for s in banks.values()))
    return worst

STAMP_OFF = 0x8000000
class Stamps:
    def __init__(self, k, on, region=0):
        self.k = k; self.on = on; self.region = region
    def start(self):
        if self.on:
            self.k("s_memtime s[60:61]"); self.k("s_memrealtime s[70:71]")
    def __call__(self, i, wait=True):
        if self.on:
            self.k(f"s_memtime s[{60+2*i}:{61+2*i}]")
            if wait: self.k("s_waitcnt lgkmcnt(0)")
    def end(self, wsptr, sW, idreg="s2"):
        if not self.on: return
        k = self.k
        k("s_waitcnt vmcnt(0) lgkmcnt(0)")
        k("s_memtime s[68:69]")
        k("s_memrealtime s[72:73]")
        k("s_waitcnt lgkmcnt(0)")
        k("s_mov_b64 exec, -1")
        srd(k, 76, wsptr, 1 << 20, off_imm=STAMP_OFF + self.region * (1 << 20))
        k(f"s_lshl_b32 s80, {idreg}, 3")
        k(f"s_add_u32 s80, s80, s{sW}")
        k("s_lshl_b32 s80, s80, 6")
        for i in range(14):
            k(f"v_mov_b32 v{32+i}, s{60+i}")
        k("v_mov_b32 v31, 0")
        k("s_mov_b64 exec, 1")
        for i in range(0, 14, 2):
            k(f"buffer_store_dwordx2 v[{32+i}:{33+i}], v31, s[76:79], s80 offen offset:{i*4}")
        k("s_waitcnt vmcnt(0)")
```

```python
from asmlib import *
from layout import *

STAMP_OFF = 0x8000000
def stamp_store(k, sbase, n, wsptr, sW):
    srd(k, 76, wsptr, 1 << 20, off_imm=STAMP_OFF)
    k("s_lshl_b32 s80, s2, 3")
    k(f"s_add_u32 s80, s80, s{sW}")
    k("s_lshl_b32 s80, s80, 6")
    for i in range(n):
        k(f"v_mov_b32 v{32+i}, s{sbase+i}")
    k("v_mov_b32 v31, 0")
    k("s_mov_b64 exec, 1")
    for i in range(0, n, 2):
        k(f"buffer_store_dwordx2 v[{32+i}:{33+i}], v31, s[76:79], s80 offen offset:{i*4}")
    k("s_waitcnt vmcnt(0)")

def pipeline_order(nI, nJ):
    return [(p, a) for p in range(nJ) for a in range(nI)]

def gen_gemm3(name="g3_kernel", NS=4, prio=False, dma_pos=(3, 11, 19, 27), rd_start=0, rd_step=2, bar_after=0, stamps=False, nomfma=False, nodma=False, noepi=False, wf='', hf=''):
    k = Kern(name)
    BS = 4128
    STAGE = 8 * BS
    NT = 28
    NWG = 8 * NT
    NK = 32
    ROWB = F * 2
    P = 4
    SRD_G, SRD_U, SRD_H, SRD_O = 8, 12, 16, 20
    sKW, sKH, sBLK, sCNT, sW = 24, 25, 26, 27, 28
    sO0, sO1 = 29, 30
    vLane = 0
    vDW, vDH = 1, 2
    vRA = [4 + i for i in range(NS)]
    vRB = [10 + i for i in range(NS)]
    vSt = 3
    FR = [32, 80]
    ACC = 128
    def Af(s, a): return FR[s] + a * 4
    def Bf(s, p): return FR[s] + 16 + p * 4
    def acc(p, a): return ACC + (p * 4 + a) * 4

    k(f"s_cmp_ge_u32 s2, {NWG}")
    k(f"s_cbranch_scc1 {name}_end")
    if stamps:
        k("s_memtime s[60:61]")
        k("s_memrealtime s[70:71]")
    k(f"s_load_dwordx2 s[4:5], s[0:1], {KA['wg']}")
    k(f"s_load_dwordx2 s[6:7], s[0:1], {KA['wu']}")
    k(f"s_load_dwordx2 s[32:33], s[0:1], {KA['ws']}")
    k("v_lshrrev_b32 v1, 6, v0")
    k("v_and_b32 v0, 63, v0")
    k(f"v_readfirstlane_b32 s{sW}, v1")
    k("s_and_b32 s34, s2, 7")
    k("s_lshr_b32 s35, s2, 3")
    k("s_and_b32 s36, s34, 1")
    k("s_lshl_b32 s36, s36, 2")
    k("s_and_b32 s37, s35, 3")
    k("s_add_u32 s36, s36, s37")
    k("s_lshr_b32 s37, s34, 1")
    k("s_mul_i32 s37, s37, 7")
    k("s_lshr_b32 s38, s35, 2")
    k("s_add_u32 s37, s37, s38")
    k("v_lshrrev_b32 v16, 4, v0")
    k("v_and_b32 v17, 1, v16")
    k("v_lshlrev_b32 v17, 4, v17")
    k("v_lshrrev_b32 v18, 1, v16")
    k("v_lshlrev_b32 v18, 2, v18")
    k("v_add_u32 v17, v17, v18")
    k(f"s_lshr_b32 s39, s{sW}, 2")
    k("s_lshl_b32 s39, s39, 3")
    k(f"s_and_b32 s40, s{sW}, 3")
    k("s_add_u32 s39, s39, s40")
    k("v_add_u32 v17, s39, v17")
    k(f"s_mov_b32 s41, {ROWB}")
    k("v_mul_lo_u32 v17, v17, s41")
    k("v_and_b32 v18, 15, v0")
    k("v_lshlrev_b32 v18, 4, v18")
    k(f"v_add_u32 v{vDW}, v17, v18")
    k(f"s_lshl_b32 s39, s{sW}, 11")
    k(f"v_lshlrev_b32 v{vSt}, 4, v0")
    k(f"v_add_u32 v{vDH}, s39, v{vSt}")
    k("v_and_b32 v17, 1, v16")
    k("v_lshlrev_b32 v17, 2, v17")
    k("v_bfe_u32 v18, v0, 2, 2")
    k("v_add_u32 v17, v17, v18")
    k(f"s_mov_b32 s41, {BS}")
    k("v_mul_lo_u32 v17, v17, s41")
    k("v_lshrrev_b32 v18, 1, v16")
    k("v_lshlrev_b32 v18, 8, v18")
    k("v_add_u32 v17, v17, v18")
    k("v_and_b32 v18, 3, v0")
    k("v_lshlrev_b32 v18, 3, v18")
    k("v_add_u32 v17, v17, v18")
    k(f"s_and_b32 s39, s{sW}, 3")
    k("s_lshl_b32 s39, s39, 6")
    k(f"v_add_u32 v{vRA[0]}, s39, v17")
    k(f"s_lshr_b32 s39, s{sW}, 2")
    k(f"s_mul_i32 s39, s39, {4*BS}")
    k("s_add_u32 s39, s39, 2048")
    k(f"v_add_u32 v{vRB[0]}, s39, v{vSt}")
    for s in range(1, NS):
        k(f"v_add_u32 v{vRA[s]}, {s*STAGE}, v{vRA[0]}")
        k(f"v_add_u32 v{vRB[s]}, {s*STAGE}, v{vRB[0]}")
    k(f"s_mul_i32 s{sBLK}, s{sW}, {BS}")
    k("s_waitcnt lgkmcnt(0)")
    k("s_lshl_b32 s39, s37, 8")
    k(f"s_sub_u32 s40, {D*ROWB}, s39")
    srd(k, SRD_G, 4, "s40", off_s="s39")
    srd(k, SRD_U, 6, "s40", off_s="s39")
    k("s_lshl_b32 s39, s36, 19")
    srd(k, SRD_H, 32, 1 << 19, off_s="s39", off_imm=H2_OFF)
    srd(k, SRD_O, 32, S * F * 2, off_imm=ACT_OFF)
    k(f"s_mov_b32 s{sKW}, 0")
    k(f"s_mov_b32 s{sKH}, 0")

    def dma_group(stage, part):
        base = stage * STAGE
        if part == 0:
            return [f"s_add_u32 m0, s{sBLK}, {base}", f"buffer_load_dwordx4 v{vDW}, s[{SRD_G}:{SRD_G+3}], s{sKW} offen{wf} lds"]
        if part == 1:
            return [f"s_add_u32 m0, s{sBLK}, {base+1024}", f"buffer_load_dwordx4 v{vDW}, s[{SRD_U}:{SRD_U+3}], s{sKW} offen{wf} lds"]
        if part == 2:
            return [f"s_add_u32 m0, s{sBLK}, {base+2048}", f"buffer_load_dwordx4 v{vDH}, s[{SRD_H}:{SRD_H+3}], s{sKH} offen{hf} lds"]
        if part == 3:
            return [None, f"buffer_load_dwordx4 v{vDH}, s[{SRD_H}:{SRD_H+3}], s{sKH} offen offset:1024{hf} lds"]
    def adv():
        return [f"s_add_u32 s{sKW}, s{sKW}, {32*ROWB}", f"s_add_u32 s{sKH}, s{sKH}, 16384"]
    for st in range(NS):
        for part in range(4):
            m, ld = dma_group(st, part)
            if m:
                k(m); k("s_nop 0")
            k(ld)
        for a in adv(): k(a)
    for r in range(128):
        k(f"v_mov_b32 v{ACC+r}, 0")

    def reads(setn, stage):
        out = []
        for a in range(4):
            for h in range(2):
                off = (a >> 1) * 1024 + (a & 1) * 32 + h * 512
                out.append(f"ds_read_b64_tr_b16 v[{Af(setn,a)+2*h}:{Af(setn,a)+2*h+1}], v{vRA[stage]} offset:{off}")
        for p in range(8):
            off = (p >> 1) * BS + (p & 1) * 1024
            out.append(f"ds_read_b128 v[{Bf(setn,p)}:{Bf(setn,p)+3}], v{vRB[stage]} offset:{off}")
        A = out[:8]; B = out[8:]
        order = [A[0], A[1], B[0], A[2], A[3], A[4], A[5], A[6], A[7]] + B[1:]
        return order

    k(f"s_waitcnt vmcnt({(NS-1)*P})")
    k("s_barrier")
    if stamps:
        k("s_memtime s[62:63]")
        k("s_waitcnt lgkmcnt(0)")
    for r in reads(0, 0): k(r)
    k(f"s_mov_b32 s{sCNT}, {NK // NS}")
    loop = f"{name}_loop"
    k.label(loop)
    order = pipeline_order(4, 8)
    for u in range(NS):
        cur = u & 1; nxt = cur ^ 1
        rd = reads(nxt, (u + 1) % NS)
        extra = {}
        ri = 0
        idx = rd_start + bar_after
        while ri < len(rd):
            extra.setdefault(min(idx, 31), []).append(rd[ri]); ri += 1
            idx += rd_step if (ri % 1 == 0) else 0
        for part, pos in enumerate(dma_pos):
            m, ld = dma_group(u, part)
            if m: extra.setdefault(pos - 1, []).append(m)
            if not nodma: extra.setdefault(pos, []).append(ld)
        extra.setdefault(31, []).extend(adv())
        k("s_waitcnt lgkmcnt(0)")
        if bar_after == 0:
            k(f"s_waitcnt vmcnt({(NS-2)*P})")
            k("s_barrier")
        if prio: k("s_setprio 1")
        for idx, (p, a) in enumerate(order):
            if bar_after and idx == bar_after:
                k(f"s_waitcnt vmcnt({(NS-2)*P})")
                k("s_barrier")
            if not nomfma: k(f"v_mfma_f32_16x16x32_bf16 v[{acc(p,a)}:{acc(p,a)+3}], v[{Af(cur,a)}:{Af(cur,a)+3}], v[{Bf(cur,p)}:{Bf(cur,p)+3}], v[{acc(p,a)}:{acc(p,a)+3}]")
            for e in extra.get(idx, []): k(e)
        if prio: k("s_setprio 0")
    k(f"s_sub_u32 s{sCNT}, s{sCNT}, 1")
    k(f"s_cmp_lg_u32 s{sCNT}, 0")
    k(f"s_cbranch_scc1 {loop}")

    if stamps:
        k("s_memtime s[64:65]")
        k("s_waitcnt lgkmcnt(0)")
    k(f"s_and_b32 s39, s{sW}, 3")
    k("s_lshl_b32 s40, s37, 2")
    k("s_add_u32 s40, s40, s39")
    k(f"s_lshr_b32 s39, s{sW}, 2")
    k("s_lshl_b32 s39, s39, 1")
    k("s_lshl_b32 s41, s36, 2")
    k("s_add_u32 s39, s39, s41")
    k("s_mul_i32 s39, s39, 56")
    k("s_lshr_b32 s41, s40, 1")
    k("s_add_u32 s39, s39, s41")
    k("s_lshl_b32 s39, s39, 13")
    k("s_and_b32 s41, s40, 1")
    k("s_lshl_b32 s41, s41, 12")
    k(f"s_add_u32 s{sO0}, s39, s41")
    k(f"s_add_u32 s{sO1}, s{sO0}, {56*8192}")
    import math, struct
    c0 = -2.0 * math.sqrt(2.0 / math.pi) * math.log2(math.e)
    c1 = c0 * 0.044715
    def f2u(x): return struct.unpack("<I", struct.pack("<f", x))[0]
    vC0, vC1, vONE = 16, 18, 20
    for d in range(2):
        k(f"v_mov_b32 v{vC0+d}, {f2u(c0):#x}")
        k(f"v_mov_b32 v{vC1+d}, {f2u(c1):#x}")
        k(f"v_mov_b32 v{vONE+d}, 1.0")
    k("s_nop 7")
    for p in range(8):
        T = 32 + (p & 1) * 8
        O = 64 + p * 4
        pairs = [(acc(p,0), acc(p,2)), (acc(p,0)+2, acc(p,2)+2), (acc(p,1), acc(p,3)), (acc(p,1)+2, acc(p,3)+2)]
        def pr(b): return f"v[{b}:{b+1}]"
        for q, (g, u) in enumerate(pairs): k(f"v_pk_mul_f32 {pr(T+2*q)}, {pr(g)}, {pr(g)}")
        for q, (g, u) in enumerate(pairs): k(f"v_pk_fma_f32 {pr(T+2*q)}, {pr(T+2*q)}, {pr(vC1)}, {pr(vC0)}")
        for q, (g, u) in enumerate(pairs): k(f"v_pk_mul_f32 {pr(T+2*q)}, {pr(T+2*q)}, {pr(g)}")
        for q in range(8): k(f"v_exp_f32 v{T+q}, v{T+q}")
        for q, (g, u) in enumerate(pairs): k(f"v_pk_mul_f32 {pr(u)}, {pr(g)}, {pr(u)}")
        for q, (g, u) in enumerate(pairs): k(f"v_pk_add_f32 {pr(T+2*q)}, {pr(T+2*q)}, {pr(vONE)}")
        for q in range(8): k(f"v_rcp_f32 v{T+q}, v{T+q}")
        k("s_nop 0")
        for q, (g, u) in enumerate(pairs): k(f"v_pk_mul_f32 {pr(u)}, {pr(u)}, {pr(T+2*q)}")
        for q, (g, u) in enumerate(pairs): k(f"v_cvt_pk_bf16_f32 v{O+q}, v{u}, v{u+1}")
        so = sO0 if p < 4 else sO1
        k(f"buffer_store_dwordx4 v[{O}:{O+3}], v{vSt}, s[{SRD_O}:{SRD_O+3}], s{so} offen offset:{(p&3)*1024}")
    if stamps:
        k("s_memtime s[66:67]")
        k("s_waitcnt vmcnt(0) lgkmcnt(0)")
        k("s_memtime s[68:69]")
        k("s_memrealtime s[72:73]")
        k("s_waitcnt lgkmcnt(0)")
        stamp_store(k, 60, 14, 32, sW)
    k.label(f"{name}_end")
    k("s_endpgm")
    k.lds = NS * STAGE
    k.grid = NWG
    k.block = 512
    return k

def check_banks():
    BS = 4128
    for wi in range(4):
        for a in range(4):
            for h in range(2):
                addr = []
                for l in range(64):
                    g = l >> 4; r = (l >> 2) & 3; c4 = l & 3
                    addr.append((4*(g&1)+r)*BS + (g>>1)*256 + c4*8 + 64*wi + (a>>1)*1024 + (a&1)*32 + h*512)
                assert conflicts_b64(addr) == 1, (wi, a, h)
    print("gemm3 banks ok")
if __name__ == "__main__":
    check_banks()
```

```python
from asmlib import *
from layout import *
import math, struct
def f2u(x): return struct.unpack("<I", struct.pack("<f", x))[0]

def gen_gemm3b(name="g3_kernel", NS=4, stamps=False, nomfma=False, pf=True, wf='', hf='', dma_frac=(0.1, 0.35, 0.6, 0.85), rd_span=0.6, prio=None, sf='', nodma=False, nords=False, prioA=None, prioB=None, dmaB=False, nobar=False):
    k = Kern(name)
    st = Stamps(k, stamps, 3)
    BS = 4128
    STAGE = 8 * BS
    NK = 32
    ROWB = F * 2
    P = 4
    SRD_G, SRD_U, SRD_H, SRD_O, SRD_P = 8, 12, 16, 20, 44
    sKW, sKH, sBLK, sCNT, sW, sPF = 24, 25, 26, 27, 28, 29
    vDW, vDH, vSt, vPF = 1, 2, 3, 30
    vRA = [4 + i for i in range(NS)]
    vRB = [10 + i for i in range(NS)]
    FR = [32, 80]
    ACC = 128
    k("s_cmp_ge_u32 s2, 256")
    k(f"s_cbranch_scc1 {name}_end")
    st.start()
    k(f"s_load_dwordx2 s[4:5], s[0:1], {KA['wg']}")
    k(f"s_load_dwordx2 s[6:7], s[0:1], {KA['wu']}")
    k(f"s_load_dwordx2 s[32:33], s[0:1], {KA['ws']}")
    k(f"s_load_dwordx2 s[30:31], s[0:1], {KA['wd']}")
    k("v_lshrrev_b32 v1, 6, v0")
    k("v_mov_b32 v30, v0")
    k("v_and_b32 v0, 63, v0")
    k(f"v_readfirstlane_b32 s{sW}, v1")
    k("s_and_b32 s34, s2, 7")
    k("s_lshr_b32 s35, s2, 3")
    k("s_and_b32 s36, s34, 1")
    k("s_lshl_b32 s36, s36, 2")
    k("s_and_b32 s37, s35, 3")
    k("s_add_u32 s36, s36, s37")
    k("s_lshr_b32 s37, s34, 1")
    k("s_lshl_b32 s37, s37, 3")
    k("s_lshr_b32 s38, s35, 2")
    k("s_add_u32 s37, s37, s38")
    k("v_lshrrev_b32 v16, 4, v0")
    k("v_and_b32 v17, 1, v16")
    k("v_lshlrev_b32 v17, 4, v17")
    k("v_lshrrev_b32 v18, 1, v16")
    k("v_lshlrev_b32 v18, 2, v18")
    k("v_add_u32 v17, v17, v18")
    k(f"s_lshr_b32 s39, s{sW}, 2")
    k("s_lshl_b32 s39, s39, 3")
    k(f"s_and_b32 s40, s{sW}, 3")
    k("s_add_u32 s39, s39, s40")
    k("v_add_u32 v17, s39, v17")
    k(f"s_mov_b32 s41, {ROWB}")
    k("v_mul_lo_u32 v17, v17, s41")
    k("v_and_b32 v18, 15, v0")
    k("v_lshlrev_b32 v19, 4, v18")
    k(f"v_add_u32 v{vDW}, v17, v19")
    k("v_cmp_lt_u32 vcc, 13, v18")
    k("v_bfrev_b32 v19, 1")
    k("s_nop 0")
    k(f"v_cndmask_b32 v{vDW}, v{vDW}, v19, vcc")
    k(f"s_lshl_b32 s39, s{sW}, 11")
    k(f"v_lshlrev_b32 v{vSt}, 4, v0")
    k(f"v_add_u32 v{vDH}, s39, v{vSt}")
    k("v_and_b32 v17, 1, v16")
    k("v_lshlrev_b32 v17, 2, v17")
    k("v_bfe_u32 v18, v0, 2, 2")
    k("v_add_u32 v17, v17, v18")
    k(f"s_mov_b32 s41, {BS}")
    k("v_mul_lo_u32 v17, v17, s41")
    k("v_lshrrev_b32 v18, 1, v16")
    k("v_lshlrev_b32 v18, 8, v18")
    k("v_add_u32 v17, v17, v18")
    k("v_and_b32 v18, 3, v0")
    k("v_lshlrev_b32 v18, 3, v18")
    k(f"v_add_u32 v{vRA[0]}, v17, v18")
    k(f"s_and_b32 s39, s{sW}, 3")
    k(f"s_mul_i32 s39, s39, {2*BS}")
    k("s_add_u32 s39, s39, 2048")
    k(f"v_add_u32 v{vRB[0]}, s39, v{vSt}")
    for s in range(1, NS):
        k(f"v_add_u32 v{vRA[s]}, {s*STAGE}, v{vRA[0]}")
        k(f"v_add_u32 v{vRB[s]}, {s*STAGE}, v{vRB[0]}")
    k(f"s_mul_i32 s{sBLK}, s{sW}, {BS}")
    k(f"v_lshlrev_b32 v{vPF}, 6, v30")
    for r in range(128):
        k(f"v_mov_b32 v{ACC+r}, 0")
    k("s_waitcnt lgkmcnt(0)")
    st(1)
    k("s_mul_i32 s39, s37, 224")
    k(f"s_sub_u32 s40, {D*ROWB}, s39")
    srd(k, SRD_G, 4, "s40", off_s="s39")
    srd(k, SRD_U, 6, "s40", off_s="s39")
    k("s_lshl_b32 s39, s36, 19")
    srd(k, SRD_H, 32, 1 << 19, off_s="s39", off_imm=H2_OFF)
    k(f"s_mov_b32 s{sKW}, 0")
    k(f"s_mov_b32 s{sKH}, 0")

    def dma_group(stage, part):
        base = stage * STAGE
        if part == 0:
            return [f"s_add_u32 m0, s{sBLK}, {base}", f"buffer_load_dwordx4 v{vDW}, s[{SRD_G}:{SRD_G+3}], s{sKW} offen{wf} lds"]
        if part == 1:
            return [f"s_add_u32 m0, s{sBLK}, {base+1024}", f"buffer_load_dwordx4 v{vDW}, s[{SRD_U}:{SRD_U+3}], s{sKW} offen{wf} lds"]
        if part == 2:
            return [f"s_add_u32 m0, s{sBLK}, {base+2048}", f"buffer_load_dwordx4 v{vDH}, s[{SRD_H}:{SRD_H+3}], s{sKH} offen{hf} lds"]
        if part == 3:
            return [None, f"buffer_load_dwordx4 v{vDH}, s[{SRD_H}:{SRD_H+3}], s{sKH} offen offset:1024{hf} lds"]
    def adv():
        return [f"s_add_u32 s{sKW}, s{sKW}, {32*ROWB}", f"s_add_u32 s{sKH}, s{sKH}, 16384"]
    def issue_stage(stg):
        for part in range(4):
            m, ld = dma_group(stg, part)
            if m:
                k(m); k("s_nop 0")
            k(ld)
        for a in adv(): k(a)
    issue_stage(0); issue_stage(1)
    srd(k, SRD_O, 32, S * F * 2, off_imm=ACT_OFF)
    k("s_mul_i32 s39, s2, 28672")
    srd(k, SRD_P, 30, 28672, off_s="s39")
    k(f"s_mov_b32 s{sPF}, 0x40000000")
    k(f"s_waitcnt vmcnt({P})")
    k("s_barrier")
    st(2)
    if stamps:
        k("s_getreg_b32 s56, hwreg(HW_REG_HW_ID)")
        k("s_getreg_b32 s57, hwreg(HW_REG_XCC_ID)")
        srd(k, 76, 32, 1 << 20, off_imm=STAMP_OFF + 7 * (1 << 20))
        k("s_lshl_b32 s80, s2, 3")
        k(f"s_add_u32 s80, s80, s{sW}")
        k("s_lshl_b32 s80, s80, 3")
        k("v_mov_b32 v28, s56")
        k("v_mov_b32 v29, s57")
        k("v_mov_b32 v27, 0")
        k("s_mov_b64 exec, 1")
        k("buffer_store_dwordx2 v[28:29], v27, s[76:79], s80 offen")
        k("s_mov_b64 exec, -1")
        k("s_waitcnt vmcnt(0)")
    k(f"s_cmp_ge_u32 s{sW}, 4")
    k(f"s_cbranch_scc1 {name}_typeB")

    def body(tp):
        nT = 4 if tp == 0 else 3
        j0 = 0 if tp == 0 else 4
        nA = 2 * nT
        def Af(s, a): return FR[s] + a * 4
        def Bf(s, p): return FR[s] + 32 + p * 4
        def acc(p, a): return ACC + (p * nA + a) * 4
        def reads(setn, stage):
            A = []
            for a in range(nA):
                gu, j = a // nT, a % nT
                for h in range(2):
                    off = gu * 1024 + (j0 + j) * 32 + h * 512
                    A.append(f"ds_read_b64_tr_b16 v[{Af(setn,a)+2*h}:{Af(setn,a)+2*h+1}], v{vRA[stage]} offset:{off}")
            B = []
            for p in range(4):
                off = (p >> 1) * BS + (p & 1) * 1024
                B.append(f"ds_read_b128 v[{Bf(setn,p)}:{Bf(setn,p)+3}], v{vRB[stage]} offset:{off}")
            return [B[0]] + A[:4] + [B[1]] + A[4:8] + [B[2]] + A[8:12] + [B[3]] + A[12:]
        for r in reads(0, 0): k(r)
        for stg in range(2, NS): issue_stage(stg)
        k(f"s_mov_b32 s{sCNT}, {NK // NS}")
        pr_ = prioA if tp == 0 else prioB
        if pr_ is not None: k(f"s_setprio {pr_}")
        loop = f"{name}_loop{tp}"
        k.label(loop)
        order = [(p, a) for p in range(4) for a in range(nA)]
        nM = len(order)
        for u in range(NS):
            cur = u & 1; nxt = cur ^ 1
            rd = reads(nxt, (u + 1) % NS)
            extra = {}
            for ri, r in enumerate(rd):
                idx = int(ri * rd_span * nM / len(rd))
                if not nords: extra.setdefault(idx, []).append(r)
            for part, fr in enumerate(dma_frac):
                pos = max(1, int(fr * nM))
                m, ld = dma_group(u, part)
                if m: extra.setdefault(pos - 1, []).append(m)
                if not nodma: extra.setdefault(pos, []).append(ld)
            extra.setdefault(nM - 1, []).extend(adv())
            if pf and u == 0:
                extra.setdefault(nM - 2, []).append(f"buffer_load_dword v31, v{vPF}, s[{SRD_P}:{SRD_P+3}], s{sPF} offen")
            nvm = (NS - 2) * P + (1 if (pf and u != 0) else 0)
            k(f"s_waitcnt vmcnt({nvm}) lgkmcnt(0)")
            if not nobar: k("s_barrier")
            if prio is not None: k(f"s_setprio {prio}")
            for idx, (p, a) in enumerate(order):
                if not nomfma:
                    k(f"v_mfma_f32_16x16x32_bf16 v[{acc(p,a)}:{acc(p,a)+3}], v[{Af(cur,a)}:{Af(cur,a)+3}], v[{Bf(cur,p)}:{Bf(cur,p)+3}], v[{acc(p,a)}:{acc(p,a)+3}]")
                for e in extra.get(idx, []): k(e)
        if pf:
            k(f"s_cmp_eq_u32 s{sCNT}, {NK//NS - 1}")
            k(f"s_cselect_b32 s{sPF}, 0, 0x40000000")
        k(f"s_sub_u32 s{sCNT}, s{sCNT}, 1")
        k(f"s_cmp_lg_u32 s{sCNT}, 0")
        k(f"s_cbranch_scc1 {loop}")
        st(3)
        k(f"s_and_b32 s39, s{sW}, 3")
        k("s_lshl_b32 s40, s36, 2")
        k("s_add_u32 s39, s39, s40")
        k(f"s_mul_i32 s39, s39, {56*8192}")
        k("s_mul_i32 s40, s37, 7")
        for j in range(nT):
            k(f"s_add_u32 s41, s40, {j0+j}")
            k("s_lshr_b32 s42, s41, 1")
            k("s_lshl_b32 s42, s42, 12")
            k("s_and_b32 s41, s41, 1")
            k("s_lshl_b32 s41, s41, 3")
            k("s_add_u32 s42, s42, s41")
            k(f"s_add_u32 s{48+j}, s42, s39")
        c0 = -2.0 * math.sqrt(2.0 / math.pi) * math.log2(math.e)
        c1 = c0 * 0.044715
        vC0, vC1, vONE = 16, 18, 20
        for d in range(2):
            k(f"v_mov_b32 v{vC0+d}, {f2u(c0):#x}")
            k(f"v_mov_b32 v{vC1+d}, {f2u(c1):#x}")
            k(f"v_mov_b32 v{vONE+d}, 1.0")
        k("s_nop 7")
        def pr(b): return f"v[{b}:{b+1}]"
        grp = 0
        for p in range(4):
            js = list(range(nT))
            for g0 in range(0, nT, 2):
                jj = js[g0:g0+2]
                pairs = []
                for j in jj:
                    g = acc(p, j); u_ = acc(p, nT + j)
                    pairs += [(g, u_), (g + 2, u_ + 2)]
                T = 32 + (grp & 1) * 8
                O = 64 + (grp % 8) * 4
                grp += 1
                n = len(pairs)
                for q, (g, u_) in enumerate(pairs): k(f"v_pk_mul_f32 {pr(T+2*q)}, {pr(g)}, {pr(g)}")
                for q in range(n): k(f"v_pk_fma_f32 {pr(T+2*q)}, {pr(T+2*q)}, {pr(vC1)}, {pr(vC0)}")
                for q, (g, u_) in enumerate(pairs): k(f"v_pk_mul_f32 {pr(T+2*q)}, {pr(T+2*q)}, {pr(g)}")
                for q in range(2*n): k(f"v_exp_f32 v{T+q}, v{T+q}")
                for q, (g, u_) in enumerate(pairs): k(f"v_pk_mul_f32 {pr(u_)}, {pr(g)}, {pr(u_)}")
                for q in range(n): k(f"v_pk_add_f32 {pr(T+2*q)}, {pr(T+2*q)}, {pr(vONE)}")
                for q in range(2*n): k(f"v_rcp_f32 v{T+q}, v{T+q}")
                k("s_nop 0")
                for q, (g, u_) in enumerate(pairs): k(f"v_pk_mul_f32 {pr(u_)}, {pr(u_)}, {pr(T+2*q)}")
                for q, (g, u_) in enumerate(pairs): k(f"v_cvt_pk_bf16_f32 v{O+q}, v{u_}, v{u_+1}")
                for i, j in enumerate(jj):
                    k(f"buffer_store_dwordx2 v[{O+2*i}:{O+2*i+1}], v{vSt}, s[{SRD_O}:{SRD_O+3}], s{48+j} offen offset:{p*1024}{sf}")
        st.end(32, sW)
        k("s_endpgm")
    body(0)
    k.label(f"{name}_typeB")
    body(1)
    k.label(f"{name}_end")
    k("s_endpgm")
    k.lds = NS * STAGE
    k.grid = 256
    k.block = 512
    return k
```

```python
from asmlib import *
from layout import *

def gen_gemm4(name="g4_kernel", NS=6, stamps=False, nomfma=False, rdpos=None, wf='', af='', sf=''):
    k = Kern(name)
    stp = Stamps(k, stamps, 4)
    PA = 1056
    AREG = 16 * PA
    STAGE = AREG + 8 * 1024
    NK = 56
    SRD_W, SRD_A, SRD_O, SRD_X, SRD_M = 8, 12, 16, 20, 24
    sW, sKW, sKA, sCNT, sRD, sDM = 28, 29, 30, 31, 40, 41
    k(f"s_cmp_ge_u32 s2, 256")
    k(f"s_cbranch_scc1 {name}_end")
    stp.start()
    k(f"s_load_dwordx2 s[4:5], s[0:1], {KA['wd']}")
    k(f"s_load_dwordx2 s[6:7], s[0:1], {KA['out']}")
    k(f"s_load_dwordx2 s[32:33], s[0:1], {KA['ws']}")
    k("v_lshrrev_b32 v1, 6, v0")
    k("v_and_b32 v0, 63, v0")
    k(f"v_readfirstlane_b32 s{sW}, v1")
    k("s_and_b32 s34, s2, 7")
    k("s_lshr_b32 s35, s2, 3")
    k("s_and_b32 s36, s34, 1")
    k("s_lshl_b32 s36, s36, 2")
    k("s_and_b32 s37, s35, 3")
    k("s_add_u32 s36, s36, s37")
    k("s_lshr_b32 s37, s34, 1")
    k("s_lshl_b32 s37, s37, 3")
    k("s_lshr_b32 s38, s35, 2")
    k("s_add_u32 s37, s37, s38")
    k("v_lshrrev_b32 v16, 4, v0")
    k("v_lshlrev_b32 v3, 4, v0")
    k(f"s_cmp_ge_u32 s{sW}, 4")
    k(f"s_cbranch_scc1 {name}_prod")
    vRA, vRB, vRAc, vRBc = 4, 5, 6, 7
    FR = [32, 80]
    ACC = 128
    def Af(s, ks, a): return FR[s] + (ks * 2 + a) * 4
    def Bf(s, ks, p): return FR[s] + 16 + (ks * 4 + p) * 4
    def acc(p, a): return ACC + (p * 2 + a) * 4
    k("v_and_b32 v17, 1, v16")
    k("v_lshlrev_b32 v17, 2, v17")
    k("v_bfe_u32 v18, v0, 2, 2")
    k("v_add_u32 v17, v17, v18")
    k(f"s_mov_b32 s39, {PA}")
    k("v_mul_lo_u32 v17, v17, s39")
    k("v_lshrrev_b32 v18, 1, v16")
    k("v_lshlrev_b32 v18, 8, v18")
    k("v_add_u32 v17, v17, v18")
    k("v_and_b32 v18, 3, v0")
    k("v_lshlrev_b32 v18, 3, v18")
    k("v_add_u32 v17, v17, v18")
    k(f"s_lshl_b32 s39, s{sW}, 6")
    k(f"v_add_u32 v{vRA}, s39, v17")
    k(f"v_add_u32 v{vRB}, {AREG}, v3")
    for r in range(32): k(f"v_mov_b32 v{ACC+r}, 0")
    vXO = 8
    k("v_and_b32 v17, 15, v0")
    k("v_lshlrev_b32 v17, 11, v17")
    k("v_and_b32 v18, 1, v16")
    k("v_lshlrev_b32 v18, 5, v18")
    k("v_add_u32 v17, v17, v18")
    k("v_lshrrev_b32 v18, 1, v16")
    k("v_lshlrev_b32 v18, 4, v18")
    k("v_add_u32 v17, v17, v18")
    k(f"s_lshl_b32 s39, s{sW}, 6")
    k(f"v_add_u32 v{vXO}, s39, v17")
    vGO = 9
    k("v_and_b32 v17, 1, v16")
    k("v_lshlrev_b32 v17, 6, v17")
    k("v_lshrrev_b32 v18, 1, v16")
    k("v_lshlrev_b32 v18, 5, v18")
    k("v_add_u32 v17, v17, v18")
    k(f"s_lshl_b32 s39, s{sW}, 7")
    k(f"v_add_u32 v{vGO}, s39, v17")
    k("s_waitcnt lgkmcnt(0)")
    k("s_lshl_b32 s39, s37, 17")
    k("s_lshl_b32 s38, s36, 8")
    k("s_add_u32 s39, s39, s38")
    k(f"s_sub_u32 s38, {S*D*2}, s39")
    srd(k, SRD_O, 6, "s38", off_s="s39")
    srd(k, SRD_X, 32, "s38", off_s="s39", off_imm=X1_OFF)
    k("s_lshl_b32 s39, s36, 9")
    srd(k, SRD_M, 32, 512, off_s="s39", off_imm=MODF_OFF + 5 * 4096)
    XR = 224
    GB = 240
    for p in range(4):
        k(f"s_mov_b32 s38, {p*16*2048}")
        k(f"buffer_load_dwordx4 v[{XR+4*p}:{XR+4*p+3}], v{vXO}, s[{SRD_X}:{SRD_X+3}], s38 offen")
    k(f"buffer_load_dwordx4 v[{GB}:{GB+3}], v{vGO}, s[{SRD_M}:{SRD_M+3}], 0 offen")
    k(f"buffer_load_dwordx4 v[{GB+4}:{GB+7}], v{vGO}, s[{SRD_M}:{SRD_M+3}], 0 offen offset:16")
    def reads(setn):
        out = []
        for ks in range(2):
            A = []
            for a in range(2):
                for h in range(2):
                    off = ks * 8 * PA + a * 32 + h * 512
                    A.append(f"ds_read_b64_tr_b16 v[{Af(setn,ks,a)+2*h}:{Af(setn,ks,a)+2*h+1}], v{vRAc} offset:{off}")
            B = []
            for p in range(4):
                off = (ks * 4 + p) * 1024
                B.append(f"ds_read_b128 v[{Bf(setn,ks,p)}:{Bf(setn,ks,p)+3}], v{vRBc} offset:{off}")
            out += A + B
        return out
    k(f"v_mov_b32 v{vRAc}, v{vRA}")
    k(f"v_mov_b32 v{vRBc}, v{vRB}")
    k("s_barrier")
    stp(1)
    for r in reads(0): k(r)
    k(f"s_mov_b32 s{sRD}, {STAGE}")
    k(f"v_add_u32 v{vRAc}, s{sRD}, v{vRA}")
    k(f"v_add_u32 v{vRBc}, s{sRD}, v{vRB}")
    k(f"s_mov_b32 s{sCNT}, {NK//2}")
    loop = f"{name}_cloop"
    k.label(loop)
    for u in range(2):
        cur = u; nxt = u ^ 1
        rd = reads(nxt)
        order = [(ks, p, a) for ks in range(2) for p in range(4) for a in range(2)]
        k("s_waitcnt lgkmcnt(0)")
        k("s_barrier")
        ri = 0
        for idx, (ks, p, a) in enumerate(order):
            if not nomfma:
                k(f"v_mfma_f32_16x16x32_bf16 v[{acc(p,a)}:{acc(p,a)+3}], v[{Af(cur,ks,a)}:{Af(cur,ks,a)+3}], v[{Bf(cur,ks,p)}:{Bf(cur,ks,p)+3}], v[{acc(p,a)}:{acc(p,a)+3}]")
            nrd = 2 if idx < 8 else 0
            for _ in range(nrd):
                if ri < len(rd): k(rd[ri]); ri += 1
            if idx == 9:
                k(f"s_add_u32 s{sRD}, s{sRD}, {STAGE}")
                k(f"s_cmp_eq_u32 s{sRD}, {NS*STAGE}")
                k(f"s_cselect_b32 s{sRD}, 0, s{sRD}")
            if idx == 11:
                k(f"v_add_u32 v{vRAc}, s{sRD}, v{vRA}")
                k(f"v_add_u32 v{vRBc}, s{sRD}, v{vRB}")
    k(f"s_sub_u32 s{sCNT}, s{sCNT}, 1")
    k(f"s_cmp_lg_u32 s{sCNT}, 0")
    k(f"s_cbranch_scc1 {loop}")
    stp(2)
    k("s_nop 7")
    k("s_waitcnt vmcnt(0)")
    T = 32
    for p in range(4):
        a0, a1 = acc(p, 0), acc(p, 1)
        for r in range(4):
            k(f"v_permlane16_swap_b32 v{a0+r}, v{a1+r}")
        xr = XR + 4 * p
        t = T + p * 8
        for d in range(4):
            k(f"v_lshlrev_b32 v{t+2*d}, 16, v{xr+d}")
            k(f"v_and_b32 v{t+2*d+1}, 0xffff0000, v{xr+d}")
        for e in range(8):
            src = (a0 + e) if e < 4 else (a1 + e - 4)
            k(f"v_fma_f32 v{t+e}, v{src}, v{GB+e}, v{t+e}")
        for d in range(4):
            k(f"v_cvt_pk_bf16_f32 v{xr+d}, v{t+2*d}, v{t+2*d+1}")
        k(f"s_mov_b32 s38, {p*16*2048}")
        k(f"buffer_store_dwordx4 v[{xr}:{xr+3}], v{vXO}, s[{SRD_O}:{SRD_O+3}], s38 offen{sf}")
    stp(3)
    stp.end(32, sW)
    k("s_endpgm")
    k.label(f"{name}_prod")
    vDA = [4, 5, 6, 7]
    vDB = 8
    k(f"s_sub_u32 s{sW}, s{sW}, 4")
    k("v_lshlrev_b32 v17, 3, v16")
    k(f"s_lshl_b32 s39, s{sW}, 1")
    k("v_add_u32 v17, s39, v17")
    k("v_lshlrev_b32 v17, 11, v17")
    k("v_and_b32 v18, 15, v0")
    k("v_lshlrev_b32 v18, 4, v18")
    k(f"v_add_u32 v{vDA[0]}, v17, v18")
    k(f"v_add_u32 v{vDA[1]}, 2048, v{vDA[0]}")
    k(f"v_add_u32 v{vDA[2]}, {32*2048}, v{vDA[0]}")
    k(f"v_add_u32 v{vDA[3]}, {33*2048}, v{vDA[0]}")
    k(f"s_lshl_b32 s39, s{sW}, 11")
    k(f"v_add_u32 v{vDB}, s39, v3")
    sBA, sBB = 42, 43
    k(f"s_mul_i32 s{sBA}, s{sW}, {2*PA}")
    k(f"s_lshl_b32 s{sBB}, s{sW}, 11")
    k(f"s_add_u32 s{sBB}, s{sBB}, {AREG}")
    k("s_waitcnt lgkmcnt(0)")
    k("s_lshl_b32 s39, s36, 8")
    k(f"s_sub_u32 s38, {F*D*2}, s39")
    srd(k, SRD_W, 4, "s38", off_s="s39")
    k(f"s_mul_i32 s39, s37, {56*8192}")
    srd(k, SRD_A, 32, 56 * 8192, off_s="s39", off_imm=ACT_OFF)
    k(f"s_mov_b32 s{sKW}, 0")
    k(f"s_mov_b32 s{sKA}, 0")
    k(f"s_mov_b32 s{sDM}, 0")
    def issue():
        offs = [0, PA, 8 * PA, 9 * PA]
        k(f"s_add_u32 s44, s{sDM}, s{sBA}")
        k(f"s_add_u32 s45, s{sDM}, s{sBB}")
        for i in range(4):
            k(f"s_add_u32 m0, s44, {offs[i]}")
            k("s_nop 0")
            k(f"buffer_load_dwordx4 v{vDA[i]}, s[{SRD_W}:{SRD_W+3}], s{sKW} offen{wf} lds")
        k(f"s_mov_b32 m0, s45")
        k("s_nop 0")
        k(f"buffer_load_dwordx4 v{vDB}, s[{SRD_A}:{SRD_A+3}], s{sKA} offen{af} lds")
        k(f"buffer_load_dwordx4 v{vDB}, s[{SRD_A}:{SRD_A+3}], s{sKA} offen offset:1024{af} lds")
        k(f"s_add_u32 s{sKW}, s{sKW}, {64*2048}")
        k(f"s_add_u32 s{sKA}, s{sKA}, 8192")
        k(f"s_add_u32 s{sDM}, s{sDM}, {STAGE}")
        k(f"s_cmp_eq_u32 s{sDM}, {NS*STAGE}")
        k(f"s_cselect_b32 s{sDM}, 0, s{sDM}")
    issue(); issue()
    k("s_waitcnt vmcnt(6)")
    k("s_barrier")
    for st in range(2, NS): issue()
    k(f"s_mov_b32 s{sCNT}, {NK}")
    ploop = f"{name}_ploop"
    k.label(ploop)
    k(f"s_waitcnt vmcnt({6*(NS-2)})")
    k("s_barrier")
    issue()
    k(f"s_sub_u32 s{sCNT}, s{sCNT}, 1")
    k(f"s_cmp_lg_u32 s{sCNT}, 0")
    k(f"s_cbranch_scc1 {ploop}")
    k.label(f"{name}_end")
    k("s_endpgm")
    k.lds = NS * STAGE
    k.grid = 256
    k.block = 512
    return k

def check_banks():
    PA = 1056
    for w in range(4):
        for ks in range(2):
            for a in range(2):
                for h in range(2):
                    addr = []
                    for l in range(64):
                        g = l >> 4; r = (l >> 2) & 3; c4 = l & 3
                        addr.append((4*(g&1)+r)*PA + (g>>1)*256 + c4*8 + 64*w + ks*8*PA + a*32 + h*512)
                    assert conflicts_b64(addr) == 1
    print("gemm4 banks ok")
if __name__ == "__main__":
    check_banks()
```

```python
from asmlib import *
from layout import *
import math, struct
def f2u(x): return struct.unpack("<I", struct.pack("<f", x))[0]

def xlane_sum_16_32(k, v, tmp):
    vs = v if isinstance(v, list) else [v]
    ts = tmp if isinstance(tmp, list) else [tmp]
    for swap in ("v_permlane16_swap_b32", "v_permlane32_swap_b32"):
        for a, t in zip(vs, ts): k(f"v_mov_b32 v{t}, v{a}")
        k("s_nop 1")
        for a, t in zip(vs, ts): k(f"{swap} v{a}, v{t}")
        k("s_nop 1")
        for a, t in zip(vs, ts): k(f"v_add_f32 v{a}, v{a}, v{t}")
    return

def dpp_add(k, vs, ctrl):
    k("s_nop 1")
    for a in vs: k(f"v_add_f32_dpp v{a}, v{a}, v{a} {ctrl} row_mask:0xf bank_mask:0xf")

def wave_sum(k, vs, tmps):
    for ctrl in ("quad_perm:[1,0,3,2]", "quad_perm:[2,3,0,1]", "row_half_mirror", "row_mirror"):
        dpp_add(k, vs, ctrl)
    k("s_nop 1")
    xlane_sum_16_32(k, vs, tmps)

def gen_ka(name="ka_kernel", nt=True, stamps=False, sf=''):
    k = Kern(name)
    st = Stamps(k, stamps, 0)
    NMOD = 192
    NLN = 256
    ntf = " nt" if nt else ""
    k(f"s_cmp_ge_u32 s2, {NMOD + NLN}")
    k(f"s_cbranch_scc1 {name}_end")
    st.start()
    k(f"s_load_dwordx2 s[32:33], s[0:1], {KA['ws']}")
    k("v_lshrrev_b32 v1, 6, v0")
    k("v_and_b32 v2, 63, v0")
    k("v_readfirstlane_b32 s28, v1")
    k(f"s_cmp_lt_u32 s2, {NLN}")
    k(f"s_cbranch_scc0 {name}_mod")
    k(f"s_load_dwordx2 s[4:5], s[0:1], {KA['x']}")
    k("v_and_b32 v3, 7, v2")
    k("v_lshrrev_b32 v4, 3, v2")
    k("v_lshlrev_b32 v5, 11, v3")
    k("v_lshlrev_b32 v6, 3, v4")
    k("v_add_u32 v5, v5, v6")
    k("s_lshl_b32 s34, s28, 8")
    k("v_add_u32 v5, s34, v5")
    k("s_lshr_b32 s35, s2, 3")
    k("s_and_b32 s36, s35, 3")
    k("s_lshr_b32 s37, s35, 3")
    k("s_and_b32 s37, s37, 1")
    k("s_lshl_b32 s37, s37, 2")
    k("s_or_b32 s36, s36, s37")
    k("s_lshl_b32 s36, s36, 2")
    k("s_and_b32 s37, s2, 7")
    k("s_lshl_b32 s37, s37, 3")
    k("s_add_u32 s36, s36, s37")
    k("v_add_u32 v6, s36, v3")
    k("v_and_b32 v6, 63, v6")
    k("s_lshl_b32 s35, s35, 6")
    k("v_add_u32 v6, s35, v6")
    k("v_lshlrev_b32 v6, 3, v6")
    k("v_lshlrev_b32 v7, 14, v4")
    k("v_add_u32 v6, v6, v7")
    k("s_lshl_b32 s38, s28, 19")
    k("v_add_u32 v6, s38, v6")
    k("s_waitcnt lgkmcnt(0)")
    st(1)
    k("s_lshl_b32 s34, s2, 14")
    srd(k, 8, 4, 16384, off_s="s34")
    srd(k, 12, 32, S * D * 2, off_imm=XS_OFF)
    for q in range(4):
        k(f"buffer_load_dwordx2 v[{16+2*q}:{17+2*q}], v5, s[8:11], 0 offen offset:{q*64}{ntf}")
    k("v_mov_b32 v8, 0"); k("v_mov_b32 v9, 0")
    for q in range(4):
        k(f"s_waitcnt vmcnt({3-q})")
        for d in range(2):
            src = 16 + 2*q + d; dst = 32 + 4*q + 2*d
            k(f"v_lshlrev_b32 v{dst}, 16, v{src}")
            k(f"v_and_b32 v{dst+1}, 0xffff0000, v{src}")
        for e in range(4):
            r = 32 + 4*q + e
            k(f"v_add_f32 v8, v8, v{r}")
            k(f"v_fma_f32 v9, v{r}, v{r}, v9")
    st(2)
    dpp_add(k, [8, 9], "row_ror:8")
    k("s_nop 1")
    xlane_sum_16_32(k, [8, 9], [10, 11])
    k("v_lshlrev_b32 v10, 6, v3")
    k("s_lshl_b32 s34, s28, 3")
    k("v_add_u32 v11, s34, v10")
    k("v_cmp_gt_u32 vcc, 8, v2")
    k("s_and_saveexec_b64 s[40:41], vcc")
    k("ds_write_b64 v11, v[8:9]")
    k("s_mov_b64 exec, s[40:41]")
    k("s_waitcnt lgkmcnt(0)")
    k("s_barrier")
    for q in range(4):
        k(f"ds_read_b128 v[{48+4*q}:{51+4*q}], v10 offset:{q*16}")
    k("s_waitcnt lgkmcnt(0)")
    k("v_add_f32 v8, v48, v50"); k("v_add_f32 v9, v49, v51")
    for r in range(52, 64, 2):
        k(f"v_add_f32 v8, v8, v{r}"); k(f"v_add_f32 v9, v9, v{r+1}")
    k(f"v_mul_f32 v8, {f2u(1.0/1024):#x}, v8")
    k(f"v_mul_f32 v9, {f2u(1.0/1024):#x}, v9")
    k("v_fma_f32 v9, -v8, v8, v9")
    k("v_max_f32 v9, 0, v9")
    k(f"v_add_f32 v9, {f2u(1e-5):#x}, v9")
    k("v_rsq_f32 v9, v9")
    k("s_nop 0")
    k("v_mul_f32 v8, v8, v9")
    for r in range(32, 48):
        k(f"v_fma_f32 v{r}, v{r}, v9, -v8")
    for q in range(4):
        for d in range(2):
            k(f"v_cvt_pk_bf16_f32 v{16+2*q+d}, v{32+4*q+2*d}, v{32+4*q+2*d+1}")
    for q in range(4):
        k(f"s_mov_b32 s34, {q*8*16384}")
        k(f"buffer_store_dwordx2 v[{16+2*q}:{17+2*q}], v6, s[12:15], s34 offen{sf}")
    st(3)
    st.end(32, 28)
    k("s_endpgm")
    k.label(f"{name}_mod")
    k(f"s_load_dwordx2 s[4:5], s[0:1], {KA['wmod']}")
    k(f"s_load_dwordx2 s[6:7], s[0:1], {KA['c']}")
    k(f"s_sub_u32 s34, s2, {NLN}")
    k(f"s_mul_i32 s35, s34, {(1<<16)//48 + 1}")
    k("s_lshr_b32 s35, s35, 16")
    k("s_mul_i32 s36, s35, 48")
    k("s_sub_u32 s36, s34, s36")
    k("v_and_b32 v3, 15, v0")
    k("v_lshrrev_b32 v4, 4, v0")
    k("s_mov_b32 s37, 12288")
    k("v_mul_lo_u32 v5, v4, s37")
    k("v_lshlrev_b32 v6, 4, v3")
    k("v_add_u32 v5, v5, v6")
    k("s_waitcnt lgkmcnt(0)")
    st(1)
    k(f"s_mul_i32 s37, s35, {256*12288}")
    k("s_lshl_b32 s38, s36, 8")
    k("s_add_u32 s37, s37, s38")
    k(f"s_sub_u32 s38, {1024*12288}, s37")
    srd(k, 8, 4, "s38", off_s="s37")
    k("s_lshl_b32 s37, s35, 9")
    srd(k, 12, 6, 512, off_s="s37")
    k("v_lshlrev_b32 v7, 1, v0")
    k("buffer_load_ushort v8, v7, s[12:15], 0 offen")
    for p in range(8):
        k(f"s_mov_b32 s37, {p*32*12288}")
        k(f"buffer_load_dwordx4 v[{16+4*p}:{19+4*p}], v5, s[8:11], s37 offen{ntf}")
    k("s_waitcnt vmcnt(8)")
    k("v_lshlrev_b32 v8, 16, v8")
    k(f"v_mul_f32 v9, {f2u(-math.log2(math.e)):#x}, v8")
    k("v_exp_f32 v9, v9")
    k("s_nop 0")
    k("v_add_f32 v9, 1.0, v9")
    k("v_rcp_f32 v9, v9")
    k("s_nop 0")
    k("v_mul_f32 v8, v8, v9")
    k("v_cvt_pk_bf16_f32 v8, v8, v8")
    k("v_lshlrev_b32 v8, 16, v8")
    k("v_lshlrev_b32 v7, 2, v0")
    k("ds_write_b32 v7, v8")
    k("s_waitcnt lgkmcnt(0)")
    k("s_barrier")
    k("v_lshlrev_b32 v7, 2, v4")
    for p in range(8):
        k(f"ds_read_b32 v{48+p}, v7 offset:{p*128}")
    for e in range(8): k(f"v_mov_b32 v{56+e}, 0")
    k("s_waitcnt lgkmcnt(0)")
    for p in range(8):
        k(f"s_waitcnt vmcnt({7-p})")
        for d in range(4):
            k(f"v_lshlrev_b32 v8, 16, v{16+4*p+d}")
            k(f"v_and_b32 v9, 0xffff0000, v{16+4*p+d}")
            k(f"v_fma_f32 v{56+2*d}, v8, v{48+p}, v{56+2*d}")
            k(f"v_fma_f32 v{57+2*d}, v9, v{48+p}, v{57+2*d}")
    st(2)
    xlane_sum_16_32(k, [56+e for e in range(8)], [64+e for e in range(8)])
    k("v_lshlrev_b32 v7, 5, v3")
    k("s_lshl_b32 s37, s28, 9")
    k("s_add_u32 s37, s37, 2048")
    k("v_add_u32 v7, s37, v7")
    k("v_cmp_gt_u32 vcc, 16, v2")
    k("s_and_saveexec_b64 s[40:41], vcc")
    k("ds_write_b128 v7, v[56:59]")
    k("ds_write_b128 v7, v[60:63] offset:16")
    k("s_mov_b64 exec, s[40:41]")
    k("s_waitcnt lgkmcnt(0)")
    k("s_barrier")
    k("v_cmp_gt_u32 vcc, 128, v0")
    k("s_and_saveexec_b64 s[40:41], vcc")
    k(f"s_cbranch_execz {name}_end")
    k("v_lshlrev_b32 v7, 2, v0")
    for w in range(8):
        k(f"ds_read_b32 v{16+w}, v7 offset:{2048+w*512}")
    k("s_waitcnt lgkmcnt(0)")
    k("v_add_f32 v16, v16, v17")
    for w in range(2, 8): k(f"v_add_f32 v16, v16, v{16+w}")
    k(f"s_mul_i32 s37, s35, {6144*4}")
    k("s_lshl_b32 s38, s36, 9")
    k("s_add_u32 s37, s37, s38")
    srd(k, 12, 32, 4*6144*4, off_imm=MODP_OFF)
    k(f"buffer_store_dword v16, v7, s[12:15], s37 offen{sf}")
    st(3)
    st.end(32, 28)
    k.label(f"{name}_end")
    k("s_endpgm")
    k.lds = 8192; k.grid = NMOD + NLN; k.block = 512; k.vgpr = 80; k.accum = 80
    return k
```

```python
from asmlib import *
from layout import *
from ka import f2u
import math

def cos_sin(k, dc, ds, n, scale):
    k(f"v_cvt_f32_u32 v{ds}, v{n}")
    k(f"v_mul_f32 v{ds}, {f2u(scale):#x}, v{ds}")
    k(f"v_cos_f32 v{dc}, v{ds}")
    k(f"v_sin_f32 v{ds}, v{ds}")

def gen_kb(name="kb_kernel", stamps=False, pf=True, sf=''):
    k = Kern(name)
    st = Stamps(k, stamps, 1)
    TOFF = 16384
    k("s_cmp_ge_u32 s2, 256")
    k(f"s_cbranch_scc1 {name}_end")
    st.start()
    k(f"s_load_dwordx2 s[32:33], s[0:1], {KA['ws']}")
    k(f"s_load_dwordx2 s[4:5], s[0:1], {KA['wg']}")
    k("v_mov_b32 v30, v0")
    k("v_lshrrev_b32 v1, 6, v0")
    k("v_and_b32 v0, 63, v0")
    k("v_readfirstlane_b32 s28, v1")
    k("s_and_b32 s34, s2, 7")
    k("s_lshl_b32 s34, s34, 5")
    k("s_lshr_b32 s35, s2, 3")
    k("s_add_u32 s34, s34, s35")
    k("v_lshlrev_b32 v2, 4, v0")
    k("v_lshrrev_b32 v3, 4, v0")
    k("v_and_b32 v4, 15, v0")
    k("s_waitcnt lgkmcnt(0)")
    k("s_lshl_b32 s35, s34, 14")
    srd(k, 8, 32, 16384, off_s="s35", off_imm=XS_OFF)
    srd(k, 12, 32, 4*6144*4, off_imm=MODP_OFF)
    k(f"s_mul_i32 s35, s34, {ZROWS*16}")
    srd(k, 16, 32, ZROWS*16, off_s="s35", off_imm=ZS_OFF)
    srd(k, 20, 32, 6144*4, off_imm=MODF_OFF)
    k("s_lshl_b32 s36, s28, 12")
    k("s_mov_b32 m0, s36")
    k("v_add_u32 v5, s36, v2")
    for q in range(4):
        k(f"buffer_load_dwordx4 v5, s[8:11], 0 offen offset:{q*1024} lds")
    k("s_lshl_b32 s36, s34, 2")
    k("v_add_u32 v6, s36, v0")
    k("v_lshlrev_b32 v6, 2, v6")
    k("v_add_u32 v7, 4096, v6")
    k("s_mul_i32 s36, s2, 24")
    k("v_add_u32 v16, s36, v0")
    k("v_lshlrev_b32 v17, 2, v16")
    for p in range(4):
        k(f"s_mov_b32 s37, {p*6144*4}")
        k(f"buffer_load_dword v{8+p}, v6, s[12:15], s37 offen")
        k(f"buffer_load_dword v{12+p}, v7, s[12:15], s37 offen")
        k(f"buffer_load_dword v{20+p}, v17, s[12:15], s37 offen")
    NPF = 0
    if pf:
        srd(k, 24, 4, D*F*2)
        k("s_lshl_b32 s37, s2, 8")
        k("v_add_u32 v31, s37, v30")
        k("v_lshlrev_b32 v31, 6, v31")
        k("buffer_load_dword v96, v31, s[24:27], 0 offen")
        k(f"s_mov_b32 s37, {65536*64}")
        k("buffer_load_dword v97, v31, s[24:27], s37 offen")
        NPF = 2
    C1 = 32
    TC, TS = 100, 108
    k("v_lshlrev_b32 v24, 3, v3")
    k("v_mul_u32_u24 v24, v24, v4")
    for e in range(8):
        k("v_and_b32 v25, 31, v24")
        cos_sin(k, TC+e, TS+e, 25, 1.0/32)
        if e < 7: k("v_add_u32 v24, v24, v4")
    k("s_nop 0")
    for d in range(4):
        k(f"v_cvt_pk_bf16_f32 v{C1+d}, v{TC+2*d}, v{TC+2*d+1}")
        k(f"v_cvt_pk_bf16_f32 v{C1+8+d}, -v{TS+2*d}, -v{TS+2*d+1}")
    for d in range(4):
        k(f"v_xor_b32 v{C1+4+d}, 0x80000000, v{C1+d}")
        k(f"v_xor_b32 v{C1+12+d}, 0x80000000, v{C1+8+d}")
    C3 = 48
    k("s_lshr_b32 s36, s28, 1")
    k("s_lshl_b32 s36, s36, 4")
    k("v_add_u32 v26, s36, v4")
    for e in range(8):
        s2c = 16*(e >> 2) + 4*(e & 3)
        k(f"v_add_u32 v25, {s2c}, v3")
        k("v_mul_u32_u24 v25, v25, v26")
        k("v_and_b32 v25, 63, v25")
        cos_sin(k, TC+e, TS+e, 25, 1.0/64)
    k("v_and_b32 v25, 1, v26")
    k("v_sub_u32 v27, 0, v25")
    k("v_and_b32 v27, 0x80008000, v27")
    for d in range(4):
        k(f"v_cvt_pk_bf16_f32 v{C3+d}, v{TC+2*d}, v{TC+2*d+1}")
        k(f"v_cvt_pk_bf16_f32 v{C3+8+d}, v{TS+2*d}, v{TS+2*d+1}")
    for d in range(4):
        k(f"v_xor_b32 v{C3+4+d}, v27, v{C3+d}")
        k(f"v_xor_b32 v{C3+12+d}, v27, v{C3+8+d}")
    for d in range(8):
        k(f"v_xor_b32 v{C3+16+d}, 0x80008000, v{C3+8+d}")
    TW = 72
    k("s_lshl_b32 s36, s28, 4")
    for tau in range(4):
        k(f"v_add_u32 v25, s36, v3")
        if tau: k(f"v_add_u32 v25, {4*tau}, v25")
        for th in range(2):
            k(f"v_add_u32 v27, {16*th}, v4")
            k("v_mul_u32_u24 v27, v25, v27")
            b = TW + (tau*2 + th)*2
            cos_sin(k, b, b+1, 27, 1.0/2048)
    RA = 88
    k("v_bfe_u32 v25, v0, 2, 2")
    k("v_and_b32 v26, 3, v0")
    k("v_lshlrev_b32 v27, 12, v3")
    k("v_lshlrev_b32 v28, 9, v25")
    k("v_add_u32 v27, v27, v28")
    k("v_lshlrev_b32 v28, 2, v25")
    k("v_add_u32 v28, v28, v26")
    k("v_and_b32 v29, 1, v3")
    k("v_lshlrev_b32 v29, 4, v29")
    k("v_add_u32 v28, v28, v29")
    k("s_lshl_b32 s36, s28, 4")
    k("v_add_u32 v28, s36, v28")
    for tau in range(4):
        k(f"v_add_u32 v29, {4*tau}, v28")
        k("v_and_b32 v29, 63, v29")
        k(f"v_lshl_add_u32 v{RA+tau}, v29, 3, v27")
    st(1)
    k(f"s_waitcnt vmcnt({NPF})")
    k("v_add_f32 v8, v8, v9"); k("v_add_f32 v10, v10, v11"); k("v_add_f32 v8, v8, v10")
    k("v_add_f32 v12, v12, v13"); k("v_add_f32 v14, v14, v15"); k("v_add_f32 v12, v12, v14")
    k("v_add_f32 v20, v20, v21"); k("v_add_f32 v22, v22, v23"); k("v_add_f32 v20, v20, v22")
    for r in (8, 12, 20):
        k(f"v_cvt_pk_bf16_f32 v{r}, v{r}, v{r}")
        k(f"v_lshlrev_b32 v{r}, 16, v{r}")
    k("v_add_f32 v13, 1.0, v12")
    k("v_cvt_pk_bf16_f32 v13, v13, v13")
    k("v_lshlrev_b32 v13, 16, v13")
    k(f"v_mul_f32 v8, {f2u(2048.0):#x}, v8")
    k("v_add_f32 v21, 1.0, v20")
    k("v_cvt_pk_bf16_f32 v21, v21, v21")
    k("v_lshlrev_b32 v21, 16, v21")
    k("v_lshrrev_b32 v22, 10, v16")
    k("v_cmp_eq_u32 vcc, 1, v22")
    k("v_cmp_eq_u32 s[40:41], 4, v22")
    k("s_or_b64 vcc, vcc, s[40:41]")
    k("s_nop 1")
    k("v_cndmask_b32 v20, v20, v21, vcc")
    k("v_cmp_gt_u32 vcc, 24, v0")
    k("s_cmp_eq_u32 s28, 0")
    k("s_cselect_b64 s[40:41], vcc, 0")
    k("s_mov_b64 s[42:43], exec")
    k("s_mov_b64 exec, s[40:41]")
    k(f"s_cbranch_execz {name}_nofin")
    k("buffer_store_dword v20, v17, s[20:23], 0 offen")
    k("v_and_b32 v21, 1023, v16")
    k("v_lshrrev_b32 v23, 5, v21")
    k("v_bfe_u32 v24, v21, 3, 1")
    k("v_lshl_add_u32 v23, v24, 5, v23")
    k("v_lshlrev_b32 v23, 4, v23")
    k("v_and_b32 v24, 3, v21")
    k("v_lshl_add_u32 v23, v24, 2, v23")
    k("v_bfe_u32 v24, v21, 4, 1")
    k("v_bfe_u32 v25, v21, 2, 1")
    k("v_lshl_add_u32 v24, v24, 1, v25")
    k("v_lshl_add_u32 v23, v24, 10, v23")
    k("v_mov_b32 v24, 0x10000")
    k("v_cmp_eq_u32 vcc, 2, v22")
    k("s_nop 1")
    k("v_cndmask_b32 v24, v24, 0, vcc")
    k("v_mov_b32 v25, 4096")
    k("v_cmp_eq_u32 vcc, 4, v22")
    k("s_nop 1")
    k("v_cndmask_b32 v24, v24, v25, vcc")
    k("v_mov_b32 v25, 8192")
    k("v_cmp_eq_u32 vcc, 3, v22")
    k("s_nop 1")
    k("v_cndmask_b32 v24, v24, v25, vcc")
    k("v_add_u32 v23, v23, v24")
    srd(k, 52, 32, 12288, off_imm=MODC_OFF)
    k("buffer_store_dword v20, v23, s[52:55], 0 offen")
    k.label(f"{name}_nofin")
    k("s_mov_b64 exec, s[42:43]")
    for dd in range(4):
        k(f"v_readlane_b32 s{44+dd}, v13, {dd}")
        k(f"v_readlane_b32 s{48+dd}, v8, {dd}")
    k("s_barrier")
    st(2)
    AF = 8
    for tau in range(4):
        for h in range(2):
            k(f"ds_read_b64_tr_b16 v[{AF+4*tau+2*h}:{AF+4*tau+2*h+1}], v{RA+tau} offset:{h*2048}")
    ACC = 128
    def a1(tau, th, ri): return ACC + ((tau*2 + th)*2 + ri)*4
    for tau in range(4):
        k(f"s_waitcnt lgkmcnt({6-2*tau})")
        for th in range(2):
            for ri in range(2):
                cb = C1 + ri*8 + th*4
                k(f"v_mfma_f32_16x16x32_bf16 v[{a1(tau,th,ri)}:{a1(tau,th,ri)+3}], v[{AF+4*tau}:{AF+4*tau+3}], v[{cb}:{cb+3}], 0")
    k("s_nop 7")
    for tau in range(4):
        for th in range(2):
            c = TW + (tau*2 + th)*2; s = c + 1
            tr = a1(tau, th, 0); ti = a1(tau, th, 1)
            for r in range(4):
                k(f"v_mul_f32 v{TC+r}, v{tr+r}, v{c}")
                k(f"v_mul_f32 v{TS+r}, v{ti+r}, v{c}")
            for r in range(4):
                k(f"v_fma_f32 v{TC+r}, v{ti+r}, v{s}, v{TC+r}")
                k(f"v_fma_f32 v{ti+r}, -v{tr+r}, v{s}, v{TS+r}")
                k(f"v_mov_b32 v{tr+r}, v{TC+r}")
    k("s_lshr_b32 s36, s28, 1")
    k("s_lshl_b32 s36, s36, 10")
    k("s_and_b32 s37, s28, 1")
    k("s_lshl_b32 s37, s37, 3")
    k("s_add_u32 s36, s36, s37")
    k(f"s_add_u32 s36, s36, {TOFF}")
    k("v_add_u32 v24, s36, v2")
    pk = 8
    for dd in range(4):
        for th in range(2):
            for ri in range(2):
                p = pk + ((dd*2 + th)*2 + ri) % 8 * 2
                k(f"v_cvt_pk_bf16_f32 v{p}, v{a1(0,th,ri)+dd}, v{a1(1,th,ri)+dd}")
                k(f"v_cvt_pk_bf16_f32 v{p+1}, v{a1(2,th,ri)+dd}, v{a1(3,th,ri)+dd}")
                k(f"ds_write_b64 v24, v[{p}:{p+1}] offset:{((dd*2+th)*2+ri)*2048}")
        k("s_nop 0")
    k("s_waitcnt lgkmcnt(0)")
    k("s_barrier")
    k("s_and_b32 s36, s28, 1")
    k("s_lshl_b32 s36, s36, 12")
    k(f"s_add_u32 s36, s36, {TOFF}")
    k("v_add_u32 v24, s36, v2")
    BF = 128
    def bfr(dd, ri, m): return BF + ((dd*2 + ri)*2 + m)*4
    for dd in range(4):
        for ri in range(2):
            for m in range(2):
                off = dd*8192 + ri*2048 + m*1024
                k(f"ds_read_b128 v[{bfr(dd,ri,m)}:{bfr(dd,ri,m)+3}], v24 offset:{off}")
    Z = 192
    def z(dd, ri): return Z + (dd*2 + ri)*4
    NQ = 224
    NC = 240
    k("v_and_b32 v25, 1, v3")
    k("v_lshlrev_b32 v25, 31, v25")
    k("v_lshrrev_b32 v26, 16, v25")
    k("v_or_b32 v25, v25, v26")
    k("v_or_b32 v25, 0x3f803f80, v25")
    k("v_cmp_eq_u32 vcc, 0, v4")
    k("s_nop 1")
    k("v_cndmask_b32 v25, 0, v25, vcc")
    for d in range(4): k(f"v_mov_b32 v{NC+d}, v25")
    for dd in range(4):
        k(f"s_waitcnt lgkmcnt({12-4*dd})")
        def mf(d, a, b, c):
            cs = "0" if c is None else f"v[{c}:{c+3}]"
            k(f"v_mfma_f32_16x16x32_bf16 v[{d}:{d+3}], v[{a}:{a+3}], v[{b}:{b+3}], {cs}")
        mf(z(dd,0), C3+0, bfr(dd,0,0), None)
        mf(z(dd,1), C3+0, bfr(dd,1,0), None)
        mf(NQ+4*dd, NC, bfr(dd,0,0), None)
        mf(z(dd,0), C3+4, bfr(dd,0,1), z(dd,0))
        mf(z(dd,1), C3+4, bfr(dd,1,1), z(dd,1))
        mf(NQ+4*dd, NC, bfr(dd,0,1), NQ+4*dd)
        mf(z(dd,0), C3+8, bfr(dd,1,0), z(dd,0))
        mf(z(dd,1), C3+16, bfr(dd,0,0), z(dd,1))
        mf(z(dd,0), C3+12, bfr(dd,1,1), z(dd,0))
        mf(z(dd,1), C3+20, bfr(dd,0,1), z(dd,1))
    k("s_and_b32 s36, s28, 1")
    k("s_lshl_b32 s36, s36, 4")
    k("s_lshr_b32 s37, s28, 1")
    k("s_lshl_b32 s37, s37, 9")
    k("s_add_u32 s36, s36, s37")
    k("v_lshlrev_b32 v25, 7, v3")
    k("v_add_u32 v25, v25, v4")
    k("v_add_u32 v25, s36, v25")
    k("v_lshlrev_b32 v25, 4, v25")
    k("v_cmp_eq_u32 vcc, 0, v25")
    for dd in range(4):
        k(f"v_mov_b32 v{26+dd}, s{48+dd}")
    k("s_nop 1")
    for dd in range(4):
        k(f"v_cndmask_b32 v{26+dd}, 0, v{26+dd}, vcc")
    k("s_nop 3")
    for dd in range(4):
        k(f"v_fma_f32 v{z(dd,0)}, v{z(dd,0)}, s{44+dd}, v{26+dd}")
        for r in range(1, 4): k(f"v_mul_f32 v{z(dd,0)+r}, s{44+dd}, v{z(dd,0)+r}")
        for r in range(4): k(f"v_mul_f32 v{z(dd,1)+r}, s{44+dd}, v{z(dd,1)+r}")
    for r in range(4):
        o = 8 + 4*r
        k(f"v_cvt_pk_bf16_f32 v{o}, v{z(0,0)+r}, v{z(1,0)+r}")
        k(f"v_cvt_pk_bf16_f32 v{o+1}, v{z(2,0)+r}, v{z(3,0)+r}")
        k(f"v_cvt_pk_bf16_f32 v{o+2}, v{z(0,1)+r}, v{z(1,1)+r}")
        k(f"v_cvt_pk_bf16_f32 v{o+3}, v{z(2,1)+r}, v{z(3,1)+r}")
        k(f"buffer_store_dwordx4 v[{o}:{o+3}], v25, s[16:19], 0 offen offset:{r*512}{sf}")
    st(3)
    k("s_cmp_lg_u32 s28, 0")
    k(f"s_cbranch_scc1 {name}_fin")
    for dd in range(4): k(f"v_mul_f32 v{NQ+4*dd}, s{44+dd}, v{NQ+4*dd}")
    k(f"v_cvt_pk_bf16_f32 v32, v{NQ}, v{NQ+4}")
    k(f"v_cvt_pk_bf16_f32 v33, v{NQ+8}, v{NQ+12}")
    k("v_mov_b32 v34, 0"); k("v_mov_b32 v35, 0")
    k("v_mov_b32 v36, 16384")
    k("s_mov_b64 exec, 1")
    k("buffer_store_dwordx4 v[32:35], v36, s[16:19], 0 offen")
    k.label(f"{name}_fin")
    st.end(32, 28)
    k.label(f"{name}_end")
    k("s_endpgm")
    k.lds = 49152; k.grid = 256; k.block = 256
    return k
```

```python
from asmlib import *
from layout import *
from ka import f2u, wave_sum
from kb import cos_sin

def gen_kc(name="kc_kernel", stamps=False, pf=True, sf=''):
    k = Kern(name)
    st = Stamps(k, stamps, 2)
    k("s_cmp_ge_u32 s2, 256")
    k(f"s_cbranch_scc1 {name}_end")
    st.start()
    k(f"s_load_dwordx2 s[32:33], s[0:1], {KA['ws']}")
    k(f"s_load_dwordx2 s[4:5], s[0:1], {KA['x']}")
    k(f"s_load_dwordx2 s[6:7], s[0:1], {KA['wu']}")
    k("v_mov_b32 v30, v0")
    k("v_lshrrev_b32 v1, 6, v0")
    k("v_and_b32 v0, 63, v0")
    k("v_readfirstlane_b32 s28, v1")
    k("v_lshrrev_b32 v2, 3, v0")
    k("v_and_b32 v3, 7, v0")
    k("v_lshrrev_b32 v4, 1, v2")
    k("v_sub_u32 v3, v3, v4")
    k("s_lshl_b32 s34, s2, 3")
    k(f"s_mov_b32 s35, {ZROWS*16}")
    k("v_mul_lo_u32 v5, v2, s35")
    for par in range(2):
        k(f"v_subrev_u32 v6, {4*par}, v3")
        k("v_and_b32 v6, 7, v6")
        k("v_add_u32 v6, s34, v6")
        k("v_sub_u32 v7, 2048, v6")
        k("v_min_u32 v6, v6, v7")
        k(f"v_lshl_add_u32 v{8+par}, v6, 4, v5")
    k("s_waitcnt lgkmcnt(0)")
    srd(k, 8, 32, 256*ZROWS*16, off_imm=ZS_OFF)
    srd(k, 12, 32, 12288, off_imm=MODC_OFF)
    k("s_add_u32 s36, s34, s28")
    k("s_lshl_b32 s37, s36, 11")
    srd(k, 16, 4, 2048, off_s="s37")
    srd(k, 20, 32, 2048, off_s="s37", off_imm=X1_OFF)
    srd(k, 24, 32, S*D*2, off_imm=H2_OFF)
    for q in range(4):
        k(f"s_lshl_b32 s38, s28, 2")
        k(f"s_add_u32 s38, s38, {q}")
        k(f"s_lshl_b32 s39, s38, 10")
        k("s_mov_b32 m0, s39")
        k(f"s_mul_i32 s38, s38, {8*ZROWS*16}")
        k(f"buffer_load_dwordx4 v{8+(q&1)}, s[8:11], s38 offen lds")
    k("v_lshrrev_b32 v2, 5, v0")
    k("v_and_b32 v3, 31, v0")
    k("v_lshlrev_b32 v4, 6, v3")
    k("v_lshl_add_u32 v4, v2, 4, v4")
    k("v_lshlrev_b32 v5, 1, v4")
    XV = 200
    k(f"buffer_load_dwordx4 v[{XV}:{XV+3}], v4, s[16:19], 0 offen nt")
    k(f"buffer_load_dwordx4 v[{XV+4}:{XV+7}], v4, s[16:19], 0 offen offset:32 nt")
    MV = 208
    k("v_lshlrev_b32 v5, 4, v0")
    for vi in range(3):
        k(f"s_mov_b32 s38, {vi*4096}")
        for q in range(4):
            b = MV + vi*16 + q*4
            k(f"buffer_load_dwordx4 v[{b}:{b+3}], v5, s[12:15], s38 offen offset:{q*1024}")
    NPF = 0
    if pf:
        srd(k, 44, 6, D*F*2)
        k("s_lshl_b32 s38, s2, 9")
        k("v_add_u32 v31, s38, v30")
        k("v_lshlrev_b32 v31, 6, v31")
        k("buffer_load_dword v120, v31, s[44:47], 0 offen")
        NPF = 1
    TC, TS = 160, 168
    k("v_lshrrev_b32 v6, 4, v3")
    k("v_lshlrev_b32 v6, 4, v6")
    k("v_bfe_u32 v7, v3, 2, 1")
    k("v_lshl_add_u32 v6, v7, 3, v6")
    k("v_bfe_u32 v7, v3, 3, 1")
    k("v_lshl_add_u32 v6, v7, 2, v6")
    k("v_and_b32 v7, 3, v3")
    k("v_add_u32 v6, v6, v7")
    C1 = 32
    k("v_lshlrev_b32 v10, 3, v2")
    k("v_mul_u32_u24 v10, v10, v6")
    for e in range(8):
        k("v_and_b32 v11, 31, v10")
        cos_sin(k, TC+e, TS+e, 11, 1.0/32)
        if e < 7: k("v_add_u32 v10, v10, v6")
    k("v_and_b32 v11, 1, v6")
    k("v_sub_u32 v12, 0, v11")
    k("v_and_b32 v12, 0x80008000, v12")
    for d in range(4):
        k(f"v_cvt_pk_bf16_f32 v{C1+d}, v{TC+2*d}, v{TC+2*d+1}")
        k(f"v_cvt_pk_bf16_f32 v{C1+8+d}, v{TS+2*d}, v{TS+2*d+1}")
    for d in range(4):
        k(f"v_xor_b32 v{C1+4+d}, v12, v{C1+d}")
        k(f"v_xor_b32 v{C1+12+d}, v12, v{C1+8+d}")
    for d in range(8):
        k(f"v_xor_b32 v{C1+16+d}, 0x80008000, v{C1+8+d}")
    C3 = 56
    k("v_lshlrev_b32 v10, 2, v2")
    for e in range(8):
        d2c = 8*(e >> 2) + (e & 3)
        k(f"v_add_u32 v11, {d2c}, v10")
        k("v_mul_u32_u24 v11, v11, v3")
        k("v_and_b32 v11, 31, v11")
        cos_sin(k, TC+e, TS+e, 11, 1.0/32)
    k("v_and_b32 v11, 1, v3")
    k("v_sub_u32 v12, 0, v11")
    k("v_and_b32 v12, 0x80008000, v12")
    for d in range(4):
        k(f"v_cvt_pk_bf16_f32 v{C3+d}, v{TC+2*d}, v{TC+2*d+1}")
        k(f"v_cvt_pk_bf16_f32 v{C3+8+d}, v{TS+2*d}, v{TS+2*d+1}")
    for d in range(4):
        k(f"v_xor_b32 v{C3+4+d}, v12, v{C3+d}")
        k(f"v_xor_b32 v{C3+12+d}, v12, v{C3+8+d}")
    TW = 72
    for r in range(16):
        d2c = 8*(r >> 2) + (r & 3)
        k(f"v_add_u32 v11, {d2c}, v10")
        k("v_mul_u32_u24 v11, v11, v6")
        cos_sin(k, TW+r, TW+16+r, 11, 1.0/1024)
    k("v_lshrrev_b32 v10, 4, v0")
    k("v_bfe_u32 v11, v0, 2, 2")
    k("v_and_b32 v12, 3, v0")
    k("v_and_b32 v13, 1, v10")
    k("v_lshl_add_u32 v13, v13, 2, v12")
    k("v_lshrrev_b32 v14, 1, v10")
    k("v_lshl_add_u32 v14, v14, 3, v11")
    k("v_lshlrev_b32 v14, 10, v14")
    k("v_lshl_add_u32 v14, v13, 7, v14")
    k("v_lshrrev_b32 v15, 1, v13")
    k("v_and_b32 v16, 1, v11")
    k("v_lshl_add_u32 v15, v16, 2, v15")
    k("v_add_u32 v15, s28, v15")
    k("v_and_b32 v15, 7, v15")
    k("v_lshl_add_u32 v14, v15, 4, v14")
    k("s_cmp_gt_u32 s36, 1024")
    k("s_cselect_b32 s40, 0x80008000, 0")
    st(1)
    k(f"s_waitcnt vmcnt({14+NPF})")
    k("s_barrier")
    st(2)
    ZF = 104
    for pl in range(2):
        for m in range(2):
            for h in range(2):
                b = ZF + (pl*2 + m)*4 + 2*h
                k(f"ds_read_b64_tr_b16 v[{b}:{b+1}], v14 offset:{h*4096 + m*16384 + pl*8}")
    k("s_waitcnt lgkmcnt(0)")
    for d in range(8): k(f"v_xor_b32 v{ZF+8+d}, s40, v{ZF+8+d}")
    TR, TI = 128, 144
    def mf(d, a, b, c):
        cs = "0" if c is None else f"v[{c}:{c+15}]"
        k(f"v_mfma_f32_32x32x16_bf16 v[{d}:{d+15}], v[{a}:{a+3}], v[{b}:{b+3}], {cs}")
    zr = lambda m: ZF + m*4
    zi = lambda m: ZF + 8 + m*4
    k("s_nop 1")
    mf(TR, zr(0), C1+0, None)
    mf(TI, zr(0), C1+16, None)
    mf(TR, zr(1), C1+4, TR)
    mf(TI, zr(1), C1+20, TI)
    mf(TR, zi(0), C1+8, TR)
    mf(TI, zi(0), C1+0, TI)
    mf(TR, zi(1), C1+12, TR)
    mf(TI, zi(1), C1+4, TI)
    k("s_nop 15")
    for r in range(16):
        k(f"v_mul_f32 v{160+r}, v{TR+r}, v{TW+r}")
        k(f"v_mul_f32 v{176+r}, v{TI+r}, v{TW+r}")
    for r in range(16):
        k(f"v_fma_f32 v{160+r}, v{TI+r}, v{TW+16+r}, v{160+r}")
        k(f"v_fma_f32 v{176+r}, -v{TR+r}, v{TW+16+r}, v{176+r}")
    PR, PI = 104, 112
    for d in range(8):
        k(f"v_cvt_pk_bf16_f32 v{PR+d}, v{160+2*d}, v{161+2*d}")
        k(f"v_cvt_pk_bf16_f32 v{PI+d}, v{176+2*d}, v{177+2*d}")
    Y = 128
    k("s_nop 1")
    mf(Y, PR+0, C3+0, None)
    mf(Y, PR+4, C3+4, Y)
    mf(Y, PI+0, C3+8, Y)
    mf(Y, PI+4, C3+12, Y)
    k(f"s_waitcnt vmcnt({NPF})")
    for d in range(8):
        k(f"v_lshlrev_b32 v{160+2*d}, 16, v{XV+d}")
        k(f"v_and_b32 v{161+2*d}, 0xffff0000, v{XV+d}")
    k("s_nop 7")
    for r in range(16):
        k(f"v_fma_f32 v{160+r}, v{Y+r}, v{MV+r}, v{160+r}")
    for d in range(8):
        k(f"v_cvt_pk_bf16_f32 v{XV+d}, v{160+2*d}, v{161+2*d}")
    k(f"buffer_store_dwordx4 v[{XV}:{XV+3}], v4, s[20:23], 0 offen{sf}")
    k(f"buffer_store_dwordx4 v[{XV+4}:{XV+7}], v4, s[20:23], 0 offen offset:32{sf}")
    for d in range(8):
        k(f"v_lshlrev_b32 v{160+2*d}, 16, v{XV+d}")
        k(f"v_and_b32 v{161+2*d}, 0xffff0000, v{XV+d}")
    k("v_add_f32 v10, v160, v161")
    for r in range(2, 16): k(f"v_add_f32 v10, v10, v{160+r}")
    wave_sum(k, [10], [11])
    k(f"v_mul_f32 v10, {f2u(1.0/1024):#x}, v10")
    for r in range(16): k(f"v_sub_f32 v{160+r}, v{160+r}, v10")
    k("v_mul_f32 v12, v160, v160")
    for r in range(1, 16): k(f"v_fma_f32 v12, v{160+r}, v{160+r}, v12")
    wave_sum(k, [12], [13])
    k(f"v_mul_f32 v12, {f2u(1.0/1024):#x}, v12")
    k(f"v_add_f32 v12, {f2u(1e-5):#x}, v12")
    k("v_rsq_f32 v12, v12")
    k("s_nop 0")
    for r in range(16): k(f"v_mul_f32 v{160+r}, v{160+r}, v12")
    for r in range(16): k(f"v_fma_f32 v{160+r}, v{160+r}, v{MV+16+r}, v{MV+32+r}")
    for d in range(8):
        k(f"v_cvt_pk_bf16_f32 v{176+d}, v{160+2*d}, v{161+2*d}")
    k("s_lshr_b32 s38, s36, 8")
    k("s_lshl_b32 s38, s38, 19")
    k("s_lshr_b32 s39, s36, 4")
    k("s_and_b32 s39, s39, 15")
    k("s_lshl_b32 s39, s39, 10")
    k("s_add_u32 s38, s38, s39")
    k("s_and_b32 s39, s36, 15")
    k("s_lshl_b32 s39, s39, 4")
    k("s_add_u32 s38, s38, s39")
    k("v_lshlrev_b32 v10, 14, v3")
    k("v_lshl_add_u32 v10, v2, 8, v10")
    k(f"buffer_store_dwordx4 v[176:179], v10, s[24:27], s38 offen{sf}")
    k(f"buffer_store_dwordx4 v[180:183], v10, s[24:27], s38 offen offset:512{sf}")
    st(3)
    st.end(32, 28)
    k.label(f"{name}_end")
    k("s_endpgm")
    k.lds = 32768; k.grid = 256; k.block = 512
    return k
```

```python
from asmlib import *
from layout import *
import math, struct
def f2u(x): return struct.unpack("<I", struct.pack("<f", x))[0]

def gen_gemm3b(name="g3_kernel", NS=4, stamps=False, nomfma=False, pf=True, wf='', hf='', dma_frac=(0.1, 0.35, 0.6, 0.85), rd_span=0.6, prio=None, sf='', nodma=False, nords=False, prioA=None, prioB=None, dmaB=False, nobar=False, l2pf=0, trips=False, l2f='', pff='', roll=0):
    k = Kern(name)
    st = Stamps(k, stamps, 3)
    BS = 4128
    STAGE = 8 * BS
    NK = 32
    ROWB = F * 2
    P = 4
    SRD_G, SRD_U, SRD_H, SRD_O, SRD_P = 8, 12, 16, 20, 44
    sKW, sKH, sBLK, sCNT, sW, sPF = 24, 25, 26, 27, 28, 29
    vDW, vDH, vSt, vPF = 1, 2, 3, 30
    vRA = [4 + i for i in range(NS)]
    vRB = [10 + i for i in range(NS)]
    FR = [32, 80]
    ACC = 128
    k("s_cmp_ge_u32 s2, 256")
    k(f"s_cbranch_scc1 {name}_end")
    st.start()
    k(f"s_load_dwordx2 s[4:5], s[0:1], {KA['wg']}")
    k(f"s_load_dwordx2 s[6:7], s[0:1], {KA['wu']}")
    k(f"s_load_dwordx2 s[32:33], s[0:1], {KA['ws']}")
    k(f"s_load_dwordx2 s[30:31], s[0:1], {KA['wd']}")
    k("v_lshrrev_b32 v1, 6, v0")
    k("v_mov_b32 v30, v0")
    k("v_and_b32 v0, 63, v0")
    k(f"v_readfirstlane_b32 s{sW}, v1")
    k("s_and_b32 s34, s2, 7")
    k("s_lshr_b32 s35, s2, 3")
    k("s_and_b32 s36, s34, 1")
    k("s_lshl_b32 s36, s36, 2")
    k("s_and_b32 s37, s35, 3")
    k("s_add_u32 s36, s36, s37")
    k("s_lshr_b32 s37, s34, 1")
    k("s_lshl_b32 s37, s37, 3")
    k("s_lshr_b32 s38, s35, 2")
    k("s_add_u32 s37, s37, s38")
    k("v_lshrrev_b32 v16, 4, v0")
    k("v_and_b32 v17, 1, v16")
    k("v_lshlrev_b32 v17, 4, v17")
    k("v_lshrrev_b32 v18, 1, v16")
    k("v_lshlrev_b32 v18, 2, v18")
    k("v_add_u32 v17, v17, v18")
    k(f"s_lshr_b32 s39, s{sW}, 2")
    k("s_lshl_b32 s39, s39, 3")
    k(f"s_and_b32 s40, s{sW}, 3")
    k("s_add_u32 s39, s39, s40")
    k("v_add_u32 v17, s39, v17")
    k(f"s_mov_b32 s41, {ROWB}")
    k("v_mul_lo_u32 v17, v17, s41")
    k("v_and_b32 v18, 15, v0")
    k("v_lshlrev_b32 v19, 4, v18")
    k(f"v_add_u32 v{vDW}, v17, v19")
    k("v_cmp_lt_u32 vcc, 13, v18")
    k("v_bfrev_b32 v19, 1")
    k("s_nop 0")
    k(f"v_cndmask_b32 v{vDW}, v{vDW}, v19, vcc")
    k(f"s_lshl_b32 s39, s{sW}, 11")
    k(f"v_lshlrev_b32 v{vSt}, 4, v0")
    k(f"v_add_u32 v{vDH}, s39, v{vSt}")
    k(f"s_mul_i32 s{sBLK}, s{sW}, {BS}")
    k("s_waitcnt lgkmcnt(0)")
    st(1)
    k("s_mul_i32 s39, s37, 224")
    k(f"s_sub_u32 s40, {D*ROWB}, s39")
    srd(k, SRD_G, 4, "s40", off_s="s39")
    srd(k, SRD_U, 6, "s40", off_s="s39")
    k("s_lshl_b32 s39, s36, 19")
    srd(k, SRD_H, 32, 1 << 19, off_s="s39", off_imm=H2_OFF)
    k(f"s_mov_b32 s{sKW}, 0")
    k(f"s_mov_b32 s{sKH}, 0")

    def dma_group(stage, part):
        base = stage * STAGE
        if part == 0:
            return [f"s_add_u32 m0, s{sBLK}, {base}", f"buffer_load_dwordx4 v{vDW}, s[{SRD_G}:{SRD_G+3}], s{sKW} offen{wf} lds"]
        if part == 1:
            return [f"s_add_u32 m0, s{sBLK}, {base+1024}", f"buffer_load_dwordx4 v{vDW}, s[{SRD_U}:{SRD_U+3}], s{sKW} offen{wf} lds"]
        if part == 2:
            return [f"s_add_u32 m0, s{sBLK}, {base+2048}", f"buffer_load_dwordx4 v{vDH}, s[{SRD_H}:{SRD_H+3}], s{sKH} offen{hf} lds"]
        if part == 3:
            return [None, f"buffer_load_dwordx4 v{vDH}, s[{SRD_H}:{SRD_H+3}], s{sKH} offen offset:1024{hf} lds"]
    def adv():
        return [f"s_add_u32 s{sKW}, s{sKW}, {32*ROWB}", f"s_add_u32 s{sKH}, s{sKH}, 16384"]
    def issue_stage(stg):
        for part in range(4):
            m, ld = dma_group(stg, part)
            if m:
                k(m); k("s_nop 0")
            k(ld)
        if roll: k(f"buffer_load_dword v28, v19, s[{SRD_G}:{SRD_G+3}], 0 offen")
        for a in adv(): k(a)
    issue_stage(0)
    k("v_and_b32 v17, 1, v16")
    k("v_lshlrev_b32 v17, 2, v17")
    k("v_bfe_u32 v18, v0, 2, 2")
    k("v_add_u32 v17, v17, v18")
    k(f"s_mov_b32 s41, {BS}")
    k("v_mul_lo_u32 v17, v17, s41")
    k("v_lshrrev_b32 v18, 1, v16")
    k("v_lshlrev_b32 v18, 8, v18")
    k("v_add_u32 v17, v17, v18")
    k("v_and_b32 v18, 3, v0")
    k("v_lshlrev_b32 v18, 3, v18")
    k(f"v_add_u32 v{vRA[0]}, v17, v18")
    k(f"s_and_b32 s39, s{sW}, 3")
    k(f"s_mul_i32 s39, s39, {2*BS}")
    k("s_add_u32 s39, s39, 2048")
    k(f"v_add_u32 v{vRB[0]}, s39, v{vSt}")
    for s in range(1, NS):
        k(f"v_add_u32 v{vRA[s]}, {s*STAGE}, v{vRA[0]}")
        k(f"v_add_u32 v{vRB[s]}, {s*STAGE}, v{vRB[0]}")
    k(f"v_lshlrev_b32 v{vPF}, 6, v30")
    for r in range(4): k(f"v_mov_b32 v{24+r}, 0")
    issue_stage(1); issue_stage(2)
    for r in range(0, 128, 16):
        k(f"v_mfma_f32_32x32x16_bf16 v[{ACC+r}:{ACC+r+15}], v[24:27], v[24:27], 0")
    srd(k, SRD_O, 32, S * F * 2, off_imm=ACT_OFF)
    k("s_mul_i32 s39, s2, 28672")
    srd(k, SRD_P, 30, 28672, off_s="s39")
    k(f"s_mov_b32 s{sPF}, 0x40000000")
    if roll:
        k("s_and_b32 s39, s36, 3")
        k("s_lshl_b32 s39, s39, 3")
        k("v_add_u32 v22, s39, v0")
        k(f"s_mov_b32 s41, {ROWB}")
        k("v_mul_lo_u32 v22, v22, s41")
        k(f"s_cmp_ge_u32 s{sW}, 3")
        k(f"s_cselect_b32 s39, 3, 0")
        k(f"s_sub_u32 s39, s{sW}, s39")
        k("s_lshl_b32 s39, s39, 7")
        k("s_min_u32 s39, s39, 220")
        k("v_add_u32 v22, s39, v22")
        k(f"s_sub_u32 s39, s{sW}, 6")
        k("s_lshl_b32 s39, s39, 9")
        k("v_lshlrev_b32 v23, 6, v0")
        k("v_add_u32 v23, s39, v23")
        k(f"s_cmp_ge_u32 s{sW}, 6")
        k("s_cselect_b64 vcc, -1, 0")
        k("v_bfrev_b32 v19, 1")
        k("s_nop 1")
        k("v_cndmask_b32 v29, v22, v23, vcc")
        k("v_cmp_gt_u32 vcc, 8, v0")
        k("s_nop 1")
        k("v_cndmask_b32 v29, v19, v29, vcc")
        k(f"s_cmp_lt_u32 s{sW}, 3")
        for d in range(3): k(f"s_cselect_b32 s{52+d}, s{SRD_G+d}, s{SRD_U+d}")
        k(f"s_cmp_ge_u32 s{sW}, 6")
        for d in range(3): k(f"s_cselect_b32 s{52+d}, s{SRD_P+d}, s{52+d}")
        k("s_mov_b32 s55, 0x20000")
        k(f"s_mov_b32 s57, {32*ROWB}")
        k(f"s_cselect_b32 s57, 1024, s57")
        k(f"s_mul_i32 s56, s57, {roll}")
        k(f"s_cselect_b32 s56, 0, s56")
    PP = P + (1 if roll else 0)
    k(f"s_waitcnt vmcnt({2*PP + (1 if roll else 0)})")
    k("s_barrier")
    st(2)
    if stamps:
        k("s_getreg_b32 s56, hwreg(HW_REG_HW_ID)")
        k("s_getreg_b32 s57, hwreg(HW_REG_XCC_ID)")
        srd(k, 76, 32, 1 << 20, off_imm=STAMP_OFF + 7 * (1 << 20))
        k("s_lshl_b32 s80, s2, 3")
        k(f"s_add_u32 s80, s80, s{sW}")
        k("s_lshl_b32 s80, s80, 3")
        k("v_mov_b32 v28, s56")
        k("v_mov_b32 v29, s57")
        k("v_mov_b32 v27, 0")
        k("s_mov_b64 exec, 1")
        k("buffer_store_dwordx2 v[28:29], v27, s[76:79], s80 offen")
        k("s_mov_b64 exec, -1")
        k("s_waitcnt vmcnt(0)")
    k(f"s_cmp_ge_u32 s{sW}, 4")
    k(f"s_cbranch_scc1 {name}_typeB")

    def body(tp):
        nT = 4 if tp == 0 else 3
        j0 = 0 if tp == 0 else 4
        nA = 2 * nT
        def Af(s, a): return FR[s] + a * 4
        def Bf(s, p): return FR[s] + 32 + p * 4
        def acc(p, a): return ACC + (p * nA + a) * 4
        def reads(setn, stage):
            A = []
            for a in range(nA):
                gu, j = a // nT, a % nT
                for h in range(2):
                    off = gu * 1024 + (j0 + j) * 32 + h * 512
                    A.append(f"ds_read_b64_tr_b16 v[{Af(setn,a)+2*h}:{Af(setn,a)+2*h+1}], v{vRA[stage]} offset:{off}")
            B = []
            for p in range(4):
                off = (p >> 1) * BS + (p & 1) * 1024
                B.append(f"ds_read_b128 v[{Bf(setn,p)}:{Bf(setn,p)+3}], v{vRB[stage]} offset:{off}")
            return [B[0]] + A[:4] + [B[1]] + A[4:8] + [B[2]] + A[8:12] + [B[3]] + A[12:]
        for r in reads(0, 0): k(r)
        for stg in range(3, NS): issue_stage(stg)
        k(f"s_mov_b32 s{sCNT}, {NK // NS}")
        pr_ = prioA if tp == 0 else prioB
        if pr_ is not None: k(f"s_setprio {pr_}")
        loop = f"{name}_loop{tp}"
        k.label(loop)
        order = [(p, a) for p in range(4) for a in range(nA)]
        nM = len(order)
        for u in range(NS):
            cur = u & 1; nxt = cur ^ 1
            rd = reads(nxt, (u + 1) % NS)
            extra = {}
            for ri, r in enumerate(rd):
                idx = int(ri * rd_span * nM / len(rd))
                if not nords: extra.setdefault(idx, []).append(r)
            for part, fr in enumerate(dma_frac):
                pos = max(1, int(fr * nM))
                m, ld = dma_group(u, part)
                if m: extra.setdefault(pos - 1, []).append(m)
                if not nodma: extra.setdefault(pos, []).append(ld)
            extra.setdefault(nM - 1, []).extend(adv())
            nvm = (NS - 2) * PP + (1 if roll else 0)
            if roll:
                extra.setdefault(nM - 2, []).append(f"buffer_load_dword v28, v29, s[52:55], s56 offen{l2f}")
                extra.setdefault(nM - 1, []).append("s_add_u32 s56, s56, s57")
            k(f"s_waitcnt vmcnt({nvm}) lgkmcnt(0)")
            if not nobar: k("s_barrier")
            if prio is not None: k(f"s_setprio {prio}")
            for idx, (p, a) in enumerate(order):
                if not nomfma:
                    k(f"v_mfma_f32_16x16x32_bf16 v[{acc(p,a)}:{acc(p,a)+3}], v[{Af(cur,a)}:{Af(cur,a)+3}], v[{Bf(cur,p)}:{Bf(cur,p)+3}], v[{acc(p,a)}:{acc(p,a)+3}]")
                for e in extra.get(idx, []): k(e)
        if trips:
            k("s_memtime s[58:59]")
            k("s_waitcnt lgkmcnt(0)")
            k(f"s_mov_b32 m0, s{sCNT}")
            k("s_nop 3")
            k(f"v_writelane_b32 v27, s58, m0")
        k(f"s_sub_u32 s{sCNT}, s{sCNT}, 1")
        k(f"s_cmp_lg_u32 s{sCNT}, 0")
        k(f"s_cbranch_scc1 {loop}")
        st(3)
        if trips:
            srd(k, 76, 32, 1 << 20, off_imm=STAMP_OFF + 6 * (1 << 20))
            k("s_lshl_b32 s80, s2, 3")
            k(f"s_add_u32 s80, s80, s{sW}")
            k("s_lshl_b32 s80, s80, 8")
            k(f"v_lshrrev_b32 v26, 2, v{vSt}")
            k("v_writelane_b32 v27, s64, 9")
            k("buffer_store_dword v27, v26, s[76:79], s80 offen")
            k("s_waitcnt vmcnt(0)")
        if pf and not roll:
            k(f"buffer_load_dword v31, v{vPF}, s[{SRD_P}:{SRD_P+3}], 0 offen{pff}")
        k(f"s_and_b32 s39, s{sW}, 3")
        k("s_lshl_b32 s40, s36, 2")
        k("s_add_u32 s39, s39, s40")
        k(f"s_mul_i32 s39, s39, {56*8192}")
        k("s_mul_i32 s40, s37, 7")
        for j in range(nT):
            k(f"s_add_u32 s41, s40, {j0+j}")
            k("s_lshr_b32 s42, s41, 1")
            k("s_lshl_b32 s42, s42, 12")
            k("s_and_b32 s41, s41, 1")
            k("s_lshl_b32 s41, s41, 3")
            k("s_add_u32 s42, s42, s41")
            k(f"s_add_u32 s{48+j}, s42, s39")
        c0 = -2.0 * math.sqrt(2.0 / math.pi) * math.log2(math.e)
        c1 = c0 * 0.044715
        vC0, vC1, vONE = 16, 18, 20
        for d in range(2):
            k(f"v_mov_b32 v{vC0+d}, {f2u(c0):#x}")
            k(f"v_mov_b32 v{vC1+d}, {f2u(c1):#x}")
            k(f"v_mov_b32 v{vONE+d}, 1.0")
        k("s_nop 7")
        def pr(b): return f"v[{b}:{b+1}]"
        grp = 0
        for p in range(4):
            js = list(range(nT))
            for g0 in range(0, nT, 2):
                jj = js[g0:g0+2]
                pairs = []
                for j in jj:
                    g = acc(p, j); u_ = acc(p, nT + j)
                    pairs += [(g, u_), (g + 2, u_ + 2)]
                T = 32 + (grp & 1) * 8
                O = 64 + (grp % 8) * 4
                grp += 1
                n = len(pairs)
                for q, (g, u_) in enumerate(pairs): k(f"v_pk_mul_f32 {pr(T+2*q)}, {pr(g)}, {pr(g)}")
                for q in range(n): k(f"v_pk_fma_f32 {pr(T+2*q)}, {pr(T+2*q)}, {pr(vC1)}, {pr(vC0)}")
                for q, (g, u_) in enumerate(pairs): k(f"v_pk_mul_f32 {pr(T+2*q)}, {pr(T+2*q)}, {pr(g)}")
                for q in range(2*n): k(f"v_exp_f32 v{T+q}, v{T+q}")
                for q, (g, u_) in enumerate(pairs): k(f"v_pk_mul_f32 {pr(u_)}, {pr(g)}, {pr(u_)}")
                for q in range(n): k(f"v_pk_add_f32 {pr(T+2*q)}, {pr(T+2*q)}, {pr(vONE)}")
                for q in range(2*n): k(f"v_rcp_f32 v{T+q}, v{T+q}")
                k("s_nop 0")
                for q, (g, u_) in enumerate(pairs): k(f"v_pk_mul_f32 {pr(u_)}, {pr(u_)}, {pr(T+2*q)}")
                for q, (g, u_) in enumerate(pairs): k(f"v_cvt_pk_bf16_f32 v{O+q}, v{u_}, v{u_+1}")
                for i, j in enumerate(jj):
                    k(f"buffer_store_dwordx2 v[{O+2*i}:{O+2*i+1}], v{vSt}, s[{SRD_O}:{SRD_O+3}], s{48+j} offen offset:{p*1024}{sf}")
        st.end(32, sW)
        k("s_endpgm")
    body(0)
    k.label(f"{name}_typeB")
    body(1)
    k.label(f"{name}_end")
    k("s_endpgm")
    k.lds = NS * STAGE
    k.grid = 256
    k.block = 512
    return k
```

```python
from asmlib import *
from layout import *

def gen_gemm4(name="g4_kernel", NS=6, stamps=False, nomfma=False, rdpos=None, wf='', af='', sf='', l2pf=0, l2f=' nt'):
    k = Kern(name)
    stp = Stamps(k, stamps, 4)
    PA = 1056
    AREG = 16 * PA
    STAGE = AREG + 8 * 1024
    NK = 56
    SRD_W, SRD_A, SRD_O, SRD_X, SRD_M = 8, 12, 16, 20, 24
    sW, sKW, sKA, sCNT, sRD, sDM = 28, 29, 30, 31, 40, 41
    k(f"s_cmp_ge_u32 s2, 256")
    k(f"s_cbranch_scc1 {name}_end")
    stp.start()
    k(f"s_load_dwordx2 s[4:5], s[0:1], {KA['wd']}")
    k(f"s_load_dwordx2 s[6:7], s[0:1], {KA['out']}")
    k(f"s_load_dwordx2 s[32:33], s[0:1], {KA['ws']}")
    k("v_lshrrev_b32 v1, 6, v0")
    k("v_and_b32 v0, 63, v0")
    k(f"v_readfirstlane_b32 s{sW}, v1")
    k("s_and_b32 s34, s2, 7")
    k("s_lshr_b32 s35, s2, 3")
    k("s_and_b32 s36, s34, 1")
    k("s_lshl_b32 s36, s36, 2")
    k("s_and_b32 s37, s35, 3")
    k("s_add_u32 s36, s36, s37")
    k("s_lshr_b32 s37, s34, 1")
    k("s_lshl_b32 s37, s37, 3")
    k("s_lshr_b32 s38, s35, 2")
    k("s_add_u32 s37, s37, s38")
    k("v_lshrrev_b32 v16, 4, v0")
    k("v_lshlrev_b32 v3, 4, v0")
    k(f"s_cmp_ge_u32 s{sW}, 4")
    k(f"s_cbranch_scc1 {name}_prod")
    vRA, vRB, vRAc, vRBc = 4, 5, 6, 7
    FR = [32, 80]
    ACC = 128
    def Af(s, ks, a): return FR[s] + (ks * 2 + a) * 4
    def Bf(s, ks, p): return FR[s] + 16 + (ks * 4 + p) * 4
    def acc(p, a): return ACC + (p * 2 + a) * 4
    k("v_and_b32 v17, 1, v16")
    k("v_lshlrev_b32 v17, 2, v17")
    k("v_bfe_u32 v18, v0, 2, 2")
    k("v_add_u32 v17, v17, v18")
    k(f"s_mov_b32 s39, {PA}")
    k("v_mul_lo_u32 v17, v17, s39")
    k("v_lshrrev_b32 v18, 1, v16")
    k("v_lshlrev_b32 v18, 8, v18")
    k("v_add_u32 v17, v17, v18")
    k("v_and_b32 v18, 3, v0")
    k("v_lshlrev_b32 v18, 3, v18")
    k("v_add_u32 v17, v17, v18")
    k(f"s_lshl_b32 s39, s{sW}, 6")
    k(f"v_add_u32 v{vRA}, s39, v17")
    k(f"v_add_u32 v{vRB}, {AREG}, v3")
    for r in range(32): k(f"v_mov_b32 v{ACC+r}, 0")
    vXO = 8
    k("v_and_b32 v17, 15, v0")
    k("v_lshlrev_b32 v17, 11, v17")
    k("v_and_b32 v18, 1, v16")
    k("v_lshlrev_b32 v18, 5, v18")
    k("v_add_u32 v17, v17, v18")
    k("v_lshrrev_b32 v18, 1, v16")
    k("v_lshlrev_b32 v18, 4, v18")
    k("v_add_u32 v17, v17, v18")
    k(f"s_lshl_b32 s39, s{sW}, 6")
    k(f"v_add_u32 v{vXO}, s39, v17")
    vGO = 9
    k("v_and_b32 v17, 1, v16")
    k("v_lshlrev_b32 v17, 6, v17")
    k("v_lshrrev_b32 v18, 1, v16")
    k("v_lshlrev_b32 v18, 5, v18")
    k("v_add_u32 v17, v17, v18")
    k(f"s_lshl_b32 s39, s{sW}, 7")
    k(f"v_add_u32 v{vGO}, s39, v17")
    k("s_waitcnt lgkmcnt(0)")
    k("s_lshl_b32 s39, s37, 17")
    k("s_lshl_b32 s38, s36, 8")
    k("s_add_u32 s39, s39, s38")
    k(f"s_sub_u32 s38, {S*D*2}, s39")
    srd(k, SRD_O, 6, "s38", off_s="s39")
    srd(k, SRD_X, 32, "s38", off_s="s39", off_imm=X1_OFF)
    k("s_lshl_b32 s39, s36, 9")
    srd(k, SRD_M, 32, 512, off_s="s39", off_imm=MODF_OFF + 5 * 4096)
    XR = 224
    GB = 240
    for p in range(4):
        k(f"s_mov_b32 s38, {p*16*2048}")
        k(f"buffer_load_dwordx4 v[{XR+4*p}:{XR+4*p+3}], v{vXO}, s[{SRD_X}:{SRD_X+3}], s38 offen")
    k(f"buffer_load_dwordx4 v[{GB}:{GB+3}], v{vGO}, s[{SRD_M}:{SRD_M+3}], 0 offen")
    k(f"buffer_load_dwordx4 v[{GB+4}:{GB+7}], v{vGO}, s[{SRD_M}:{SRD_M+3}], 0 offen offset:16")
    def reads(setn):
        out = []
        for ks in range(2):
            A = []
            for a in range(2):
                for h in range(2):
                    off = ks * 8 * PA + a * 32 + h * 512
                    A.append(f"ds_read_b64_tr_b16 v[{Af(setn,ks,a)+2*h}:{Af(setn,ks,a)+2*h+1}], v{vRAc} offset:{off}")
            B = []
            for p in range(4):
                off = (ks * 4 + p) * 1024
                B.append(f"ds_read_b128 v[{Bf(setn,ks,p)}:{Bf(setn,ks,p)+3}], v{vRBc} offset:{off}")
            out += A + B
        return out
    k(f"v_mov_b32 v{vRAc}, v{vRA}")
    k(f"v_mov_b32 v{vRBc}, v{vRB}")
    k("s_barrier")
    stp(1)
    for r in reads(0): k(r)
    k(f"s_mov_b32 s{sRD}, {STAGE}")
    k(f"v_add_u32 v{vRAc}, s{sRD}, v{vRA}")
    k(f"v_add_u32 v{vRBc}, s{sRD}, v{vRB}")
    k(f"s_mov_b32 s{sCNT}, {NK//2}")
    loop = f"{name}_cloop"
    k.label(loop)
    for u in range(2):
        cur = u; nxt = u ^ 1
        rd = reads(nxt)
        order = [(ks, p, a) for ks in range(2) for p in range(4) for a in range(2)]
        k("s_waitcnt lgkmcnt(0)")
        k("s_barrier")
        ri = 0
        for idx, (ks, p, a) in enumerate(order):
            if not nomfma:
                k(f"v_mfma_f32_16x16x32_bf16 v[{acc(p,a)}:{acc(p,a)+3}], v[{Af(cur,ks,a)}:{Af(cur,ks,a)+3}], v[{Bf(cur,ks,p)}:{Bf(cur,ks,p)+3}], v[{acc(p,a)}:{acc(p,a)+3}]")
            nrd = 2 if idx < 8 else 0
            for _ in range(nrd):
                if ri < len(rd): k(rd[ri]); ri += 1
            if idx == 9:
                k(f"s_add_u32 s{sRD}, s{sRD}, {STAGE}")
                k(f"s_cmp_eq_u32 s{sRD}, {NS*STAGE}")
                k(f"s_cselect_b32 s{sRD}, 0, s{sRD}")
            if idx == 11:
                k(f"v_add_u32 v{vRAc}, s{sRD}, v{vRA}")
                k(f"v_add_u32 v{vRBc}, s{sRD}, v{vRB}")
    k(f"s_sub_u32 s{sCNT}, s{sCNT}, 1")
    k(f"s_cmp_lg_u32 s{sCNT}, 0")
    k(f"s_cbranch_scc1 {loop}")
    stp(2)
    k("s_nop 7")
    k("s_waitcnt vmcnt(0)")
    T = 32
    for p in range(4):
        a0, a1 = acc(p, 0), acc(p, 1)
        for r in range(4):
            k(f"v_permlane16_swap_b32 v{a0+r}, v{a1+r}")
        xr = XR + 4 * p
        t = T + p * 8
        for d in range(4):
            k(f"v_lshlrev_b32 v{t+2*d}, 16, v{xr+d}")
            k(f"v_and_b32 v{t+2*d+1}, 0xffff0000, v{xr+d}")
        for e in range(8):
            src = (a0 + e) if e < 4 else (a1 + e - 4)
            k(f"v_fma_f32 v{t+e}, v{src}, v{GB+e}, v{t+e}")
        for d in range(4):
            k(f"v_cvt_pk_bf16_f32 v{xr+d}, v{t+2*d}, v{t+2*d+1}")
        k(f"s_mov_b32 s38, {p*16*2048}")
        k(f"buffer_store_dwordx4 v[{xr}:{xr+3}], v{vXO}, s[{SRD_O}:{SRD_O+3}], s38 offen{sf}")
    stp(3)
    stp.end(32, sW)
    k("s_endpgm")
    k.label(f"{name}_prod")
    vDA = [4, 5, 6, 7]
    vDB = 8
    k(f"s_sub_u32 s{sW}, s{sW}, 4")
    k("v_lshlrev_b32 v17, 3, v16")
    k(f"s_lshl_b32 s39, s{sW}, 1")
    k("v_add_u32 v17, s39, v17")
    k("v_lshlrev_b32 v17, 11, v17")
    k("v_and_b32 v18, 15, v0")
    k("v_lshlrev_b32 v18, 4, v18")
    k(f"v_add_u32 v{vDA[0]}, v17, v18")
    k(f"v_add_u32 v{vDA[1]}, 2048, v{vDA[0]}")
    k(f"v_add_u32 v{vDA[2]}, {32*2048}, v{vDA[0]}")
    k(f"v_add_u32 v{vDA[3]}, {33*2048}, v{vDA[0]}")
    k(f"s_lshl_b32 s39, s{sW}, 11")
    k(f"v_add_u32 v{vDB}, s39, v3")
    sBA, sBB = 42, 43
    k(f"s_mul_i32 s{sBA}, s{sW}, {2*PA}")
    k(f"s_lshl_b32 s{sBB}, s{sW}, 11")
    k(f"s_add_u32 s{sBB}, s{sBB}, {AREG}")
    k("s_waitcnt lgkmcnt(0)")
    k("s_lshl_b32 s39, s36, 8")
    k(f"s_sub_u32 s38, {F*D*2}, s39")
    srd(k, SRD_W, 4, "s38", off_s="s39")
    k(f"s_mul_i32 s39, s37, {56*8192}")
    srd(k, SRD_A, 32, 56 * 8192, off_s="s39", off_imm=ACT_OFF)
    k(f"s_mov_b32 s{sKW}, 0")
    k(f"s_mov_b32 s{sKA}, 0")
    k(f"s_mov_b32 s{sDM}, 0")
    if l2pf:
        k("s_and_b32 s39, s37, 7")
        k("s_lshl_b32 s39, s39, 3")
        k("v_lshrrev_b32 v20, 1, v0")
        k("v_add_u32 v20, s39, v20")
        k("v_lshlrev_b32 v20, 11, v20")
        k("v_and_b32 v21, 1, v0")
        k("v_lshl_add_u32 v20, v21, 7, v20")
        k("v_cmp_gt_u32 vcc, 16, v0")
        k(f"s_cmp_eq_u32 s{sW}, 0")
        k("s_cselect_b64 vcc, vcc, 0")
        k("v_bfrev_b32 v21, 1")
        k("s_nop 1")
        k("v_cndmask_b32 v20, v21, v20, vcc")
        k(f"s_mov_b32 s46, {l2pf*64*2048}")
    def issue(lp=True):
        offs = [0, PA, 8 * PA, 9 * PA]
        k(f"s_add_u32 s44, s{sDM}, s{sBA}")
        k(f"s_add_u32 s45, s{sDM}, s{sBB}")
        for i in range(4):
            k(f"s_add_u32 m0, s44, {offs[i]}")
            k("s_nop 0")
            k(f"buffer_load_dwordx4 v{vDA[i]}, s[{SRD_W}:{SRD_W+3}], s{sKW} offen{wf} lds")
        k(f"s_mov_b32 m0, s45")
        k("s_nop 0")
        k(f"buffer_load_dwordx4 v{vDB}, s[{SRD_A}:{SRD_A+3}], s{sKA} offen{af} lds")
        k(f"buffer_load_dwordx4 v{vDB}, s[{SRD_A}:{SRD_A+3}], s{sKA} offen offset:1024{af} lds")
        if l2pf:
            k(f"buffer_load_dword v22, v20, s[{SRD_W}:{SRD_W+3}], s46 offen{l2f}")
            k(f"s_add_u32 s46, s46, {64*2048}")
        k(f"s_add_u32 s{sKW}, s{sKW}, {64*2048}")
        k(f"s_add_u32 s{sKA}, s{sKA}, 8192")
        k(f"s_add_u32 s{sDM}, s{sDM}, {STAGE}")
        k(f"s_cmp_eq_u32 s{sDM}, {NS*STAGE}")
        k(f"s_cselect_b32 s{sDM}, 0, s{sDM}")
    issue(); issue()
    PP = 7 if l2pf else 6
    k(f"s_waitcnt vmcnt({PP+(1 if l2pf else 0)})")
    k("s_barrier")
    for st in range(2, NS): issue()
    k(f"s_mov_b32 s{sCNT}, {NK}")
    ploop = f"{name}_ploop"
    k.label(ploop)
    k(f"s_waitcnt vmcnt({PP*(NS-2)+(1 if l2pf else 0)})")
    k("s_barrier")
    issue()
    k(f"s_sub_u32 s{sCNT}, s{sCNT}, 1")
    k(f"s_cmp_lg_u32 s{sCNT}, 0")
    k(f"s_cbranch_scc1 {ploop}")
    k.label(f"{name}_end")
    k("s_endpgm")
    k.lds = NS * STAGE
    k.grid = 256
    k.block = 512
    return k

def check_banks():
    PA = 1056
    for w in range(4):
        for ks in range(2):
            for a in range(2):
                for h in range(2):
                    addr = []
                    for l in range(64):
                        g = l >> 4; r = (l >> 2) & 3; c4 = l & 3
                        addr.append((4*(g&1)+r)*PA + (g>>1)*256 + c4*8 + 64*w + ks*8*PA + a*32 + h*512)
                    assert conflicts_b64(addr) == 1
    print("gemm4 banks ok")
if __name__ == "__main__":
    check_banks()
```

```python
from asmlib import *
from layout import *

def gen_gemm4b(name="g4_kernel", NS=4, stamps=False, nomfma=False, wf='', af='', sf='', rd_per=1.0, spin_max=1 << 20, wsflag=True, fine=False):
    k = Kern(name)
    stp = Stamps(k, stamps, 4)
    PA = 1056
    AREG = 16 * PA
    STAGE = AREG + 16 * 1024
    NK = 28
    SRD_W, SRD_A, SRD_O, SRD_X, SRD_M, SRD_PW, SRD_PR, SRD_D = 8, 12, 16, 20, 24, 44, 48, 52
    sW, sKW, sKA, sCNT, sRD, sDM, sH = 28, 29, 30, 31, 40, 41, 56
    k("s_cmp_ge_u32 s2, 256")
    k(f"s_cbranch_scc1 {name}_end")
    stp.start()
    k(f"s_load_dwordx2 s[4:5], s[0:1], {KA['wd']}")
    k(f"s_load_dwordx2 s[6:7], s[0:1], {KA['out']}")
    k(f"s_load_dwordx2 s[32:33], s[0:1], {KA['ws']}")
    k(f"s_load_dwordx2 s[58:59], s[0:1], {KA['dbg']}")
    k("v_lshrrev_b32 v1, 6, v0")
    k("v_and_b32 v0, 63, v0")
    k(f"v_readfirstlane_b32 s{sW}, v1")
    k("s_and_b32 s34, s2, 7")
    k("s_lshr_b32 s35, s2, 3")
    k(f"s_and_b32 s{sH}, s35, 1")
    k("s_lshr_b32 s35, s35, 1")
    k("s_and_b32 s36, s34, 1")
    k("s_lshl_b32 s36, s36, 2")
    k("s_and_b32 s37, s35, 3")
    k("s_add_u32 s36, s36, s37")
    k("s_lshr_b32 s37, s34, 1")
    k("s_lshl_b32 s37, s37, 2")
    k("s_lshr_b32 s38, s35, 2")
    k("s_add_u32 s37, s37, s38")
    k("v_lshrrev_b32 v16, 4, v0")
    k("v_lshlrev_b32 v3, 4, v0")
    k(f"s_cmp_ge_u32 s{sW}, 4")
    k(f"s_cbranch_scc1 {name}_prod")
    vRA, vRB0, vRB2, vRAc, vRB0c, vRB2c = 4, 5, 6, 7, 8, 9
    FR = [32, 96]
    ACC = 160
    def Af(s, ks, a): return FR[s] + (ks * 4 + a) * 4
    def Bf(s, ks, p): return FR[s] + 32 + (ks * 4 + p) * 4
    def acc(p, a): return ACC + (p * 4 + a) * 4
    k("v_and_b32 v17, 1, v16")
    k("v_lshlrev_b32 v17, 2, v17")
    k("v_bfe_u32 v18, v0, 2, 2")
    k("v_add_u32 v17, v17, v18")
    k(f"s_mov_b32 s39, {PA}")
    k("v_mul_lo_u32 v17, v17, s39")
    k("v_lshrrev_b32 v18, 1, v16")
    k("v_lshlrev_b32 v18, 8, v18")
    k("v_add_u32 v17, v17, v18")
    k("v_and_b32 v18, 3, v0")
    k("v_lshlrev_b32 v18, 3, v18")
    k("v_add_u32 v17, v17, v18")
    k(f"s_and_b32 s39, s{sW}, 1")
    k("s_lshl_b32 s39, s39, 7")
    k(f"v_add_u32 v{vRA}, s39, v17")
    k(f"s_lshr_b32 s39, s{sW}, 1")
    k("s_lshl_b32 s39, s39, 13")
    k(f"s_add_u32 s39, s39, {AREG}")
    k(f"s_lshl_b32 s38, s{sH}, 11")
    k("s_add_u32 s42, s39, s38")
    k(f"v_add_u32 v{vRB0}, s42, v3")
    k("s_xor_b32 s38, s38, 2048")
    k("s_add_u32 s42, s39, s38")
    k(f"v_add_u32 v{vRB2}, s42, v3")
    for r in range(4): k(f"v_mov_b32 v{24+r}, 0")
    k("s_nop 1")
    for r in range(0, 64, 16):
        k(f"v_mfma_f32_32x32x16_bf16 v[{ACC+r}:{ACC+r+15}], v[24:27], v[24:27], 0")
    vXO, vGO = 10, 11
    k("v_and_b32 v17, 15, v0")
    k("v_lshlrev_b32 v17, 11, v17")
    k("v_and_b32 v18, 1, v16")
    k("v_lshlrev_b32 v18, 5, v18")
    k("v_add_u32 v17, v17, v18")
    k("v_lshrrev_b32 v18, 1, v16")
    k("v_lshlrev_b32 v18, 4, v18")
    k("v_add_u32 v17, v17, v18")
    k(f"s_and_b32 s39, s{sW}, 1")
    k("s_lshl_b32 s39, s39, 7")
    k(f"s_lshr_b32 s38, s{sW}, 1")
    k("s_lshl_b32 s38, s38, 17")
    k("s_add_u32 s39, s39, s38")
    k(f"s_lshl_b32 s38, s{sH}, 16")
    k("s_add_u32 s39, s39, s38")
    k(f"v_add_u32 v{vXO}, s39, v17")
    k("v_and_b32 v17, 1, v16")
    k("v_lshlrev_b32 v17, 6, v17")
    k("v_lshrrev_b32 v18, 1, v16")
    k("v_lshlrev_b32 v18, 5, v18")
    k("v_add_u32 v17, v17, v18")
    k(f"s_and_b32 s39, s{sW}, 1")
    k("s_lshl_b32 s39, s39, 8")
    k(f"v_add_u32 v{vGO}, s39, v17")
    k("s_waitcnt lgkmcnt(0)")
    k("s_lshl_b32 s39, s37, 18")
    k("s_lshl_b32 s38, s36, 8")
    k("s_add_u32 s39, s39, s38")
    k(f"s_sub_u32 s38, {S*D*2}, s39")
    srd(k, SRD_O, 6, "s38", off_s="s39")
    srd(k, SRD_X, 32, "s38", off_s="s39", off_imm=X1_OFF)
    k("s_lshl_b32 s39, s36, 9")
    srd(k, SRD_M, 32, 512, off_s="s39", off_imm=MODF_OFF + 5 * 4096)
    k("s_lshl_b32 s39, s37, 3")
    k("s_add_u32 s39, s39, s36")
    k("s_lshl_b32 s39, s39, 1")
    k(f"s_xor_b32 s38, s{sH}, 1")
    k("s_add_u32 s38, s38, s39")
    k("s_lshl_b32 s38, s38, 2")
    k(f"s_add_u32 s38, s38, s{sW}")
    k("s_lshl_b32 s38, s38, 13")
    srd(k, SRD_PW, 32, 8192, off_s="s38", off_imm=PART_OFF)
    k(f"s_add_u32 s38, s39, s{sH}")
    k("s_lshl_b32 s38, s38, 2")
    k(f"s_add_u32 s38, s38, s{sW}")
    k("s_lshl_b32 s38, s38, 13")
    srd(k, SRD_PR, 32, 8192, off_s="s38", off_imm=PART_OFF)
    if wsflag: srd(k, SRD_D, 32, 256*128, off_imm=FLAG_OFF)
    else: srd(k, SRD_D, 58, 256)
    XR = 224
    GB = 240
    for p in range(2):
        for pp in range(2):
            k(f"s_mov_b32 s38, {p*16*2048}")
            k(f"buffer_load_dwordx4 v[{XR+(p*2+pp)*4}:{XR+(p*2+pp)*4+3}], v{vXO}, s[{SRD_X}:{SRD_X+3}], s38 offen offset:{pp*64}")
    for pp in range(2):
        k(f"buffer_load_dwordx4 v[{GB+pp*8}:{GB+pp*8+3}], v{vGO}, s[{SRD_M}:{SRD_M+3}], 0 offen offset:{pp*128}")
        k(f"buffer_load_dwordx4 v[{GB+pp*8+4}:{GB+pp*8+7}], v{vGO}, s[{SRD_M}:{SRD_M+3}], 0 offen offset:{pp*128+16}")
    def reads(setn):
        out = []
        for ks in range(2):
            A = []
            for a in range(4):
                for h in range(2):
                    off = ks * 8 * PA + a * 32 + h * 512
                    A.append(f"ds_read_b64_tr_b16 v[{Af(setn,ks,a)+2*h}:{Af(setn,ks,a)+2*h+1}], v{vRAc} offset:{off}")
            B = []
            for p in range(4):
                base = vRB0c if p < 2 else vRB2c
                off = ks * 4096 + (p & 1) * 1024
                B.append(f"ds_read_b128 v[{Bf(setn,ks,p)}:{Bf(setn,ks,p)+3}], v{base} offset:{off}")
            out += [B[0]] + A[:2] + [B[1]] + A[2:4] + [B[2]] + A[4:6] + [B[3]] + A[6:]
        return out
    def setaddr():
        k(f"v_add_u32 v{vRAc}, s{sRD}, v{vRA}")
        k(f"v_add_u32 v{vRB0c}, s{sRD}, v{vRB0}")
        k(f"v_add_u32 v{vRB2c}, s{sRD}, v{vRB2}")
    k(f"s_mov_b32 s{sRD}, 0")
    setaddr()
    k("s_barrier")
    if not fine: stp(1)
    for r in reads(0): k(r)
    k(f"s_mov_b32 s{sRD}, {STAGE}")
    setaddr()
    k(f"s_mov_b32 s{sCNT}, {NK//2}")
    loop = f"{name}_cloop"
    k.label(loop)
    for u in range(2):
        cur = u; nxt = u ^ 1
        rd = reads(nxt)
        order = [(ks, p, a) for ks in range(2) for p in range(4) for a in range(4)]
        k("s_waitcnt lgkmcnt(0)")
        k("s_barrier")
        ri = 0
        for idx, (ks, p, a) in enumerate(order):
            if not nomfma:
                k(f"v_mfma_f32_16x16x32_bf16 v[{acc(p,a)}:{acc(p,a)+3}], v[{Af(cur,ks,a)}:{Af(cur,ks,a)+3}], v[{Bf(cur,ks,p)}:{Bf(cur,ks,p)+3}], v[{acc(p,a)}:{acc(p,a)+3}]")
            if ri < len(rd): k(rd[ri]); ri += 1
            if idx == 25:
                k(f"s_add_u32 s{sRD}, s{sRD}, {STAGE}")
                k(f"s_cmp_eq_u32 s{sRD}, {NS*STAGE}")
                k(f"s_cselect_b32 s{sRD}, 0, s{sRD}")
            if idx == 27: setaddr()
    k(f"s_sub_u32 s{sCNT}, s{sCNT}, 1")
    k(f"s_cmp_lg_u32 s{sCNT}, 0")
    k(f"s_cbranch_scc1 {loop}")
    stp(1 if fine else 2)
    k("s_nop 7")
    for p in (2, 3):
        for a in range(4):
            j = (p - 2) * 4 + a
            so = "0" if j < 4 else "s39"
            if j == 4: k("s_mov_b32 s39, 4096")
            k(f"buffer_store_dwordx4 v[{acc(p,a)}:{acc(p,a)+3}], v3, s[{SRD_PW}:{SRD_PW+3}], {so} offen offset:{(j&3)*1024} sc1")
    k("s_waitcnt vmcnt(0) lgkmcnt(0)")
    k("s_barrier")
    if fine: stp(2)
    k(f"s_cmp_lg_u32 s{sW}, 0")
    k(f"s_cbranch_scc1 {name}_nopoll")
    if wsflag:
        k("s_lshl_b32 s38, s2, 7")
        k("v_mov_b32 v20, 1")
        k("v_mov_b32 v21, s38")
        k("s_mov_b64 exec, 1")
        k(f"buffer_store_dword v20, v21, s[{SRD_D}:{SRD_D+3}], 0 offen sc1")
        k("s_xor_b32 s42, s2, 8")
        k("s_lshl_b32 s38, s42, 7")
        k("s_mov_b32 s39, 1")
        k("v_mov_b32 v21, s38")
    else:
        k("s_lshr_b32 s38, s2, 5")
        k("s_lshl_b32 s38, s38, 2")
        k("s_and_b32 s39, s2, 31")
        k("s_lshl_b32 s39, 1, s39")
        k("v_mov_b32 v20, s39")
        k("v_mov_b32 v21, s38")
        k("s_mov_b64 exec, 1")
        k(f"buffer_atomic_add v20, v21, s[{SRD_D}:{SRD_D+3}], 0 offen sc1")
        k("s_xor_b32 s42, s2, 8")
        k("s_lshr_b32 s38, s42, 5")
        k("s_lshl_b32 s38, s38, 2")
        k("s_and_b32 s39, s42, 31")
        k("s_lshl_b32 s39, 1, s39")
        k("v_mov_b32 v21, s38")
    k(f"s_mov_b32 s43, {spin_max}")
    k.label(f"{name}_poll")
    k(f"buffer_load_dword v22, v21, s[{SRD_D}:{SRD_D+3}], 0 offen sc1")
    k("s_waitcnt vmcnt(0)")
    k("v_readfirstlane_b32 s42, v22")
    k("s_and_b32 s42, s42, s39")
    k(f"s_cbranch_scc1 {name}_got")
    k("s_sub_u32 s43, s43, 1")
    k("s_cmp_lg_u32 s43, 0")
    k(f"s_cbranch_scc0 {name}_got")
    k("s_sleep 1")
    k(f"s_branch {name}_poll")
    k.label(f"{name}_got")
    k("s_mov_b64 exec, -1")
    k.label(f"{name}_nopoll")
    k("s_barrier")
    if fine: stp(3)
    RV = 32
    for j in range(8):
        so = "0" if j < 4 else "s39"
        if j == 4: k("s_mov_b32 s39, 4096")
        k(f"buffer_load_dwordx4 v[{RV+4*j}:{RV+4*j+3}], v3, s[{SRD_PR}:{SRD_PR+3}], {so} offen offset:{(j&3)*1024} sc1")
    T = 96
    for p in range(2):
        k(f"s_waitcnt vmcnt({4 if p == 0 else 2})")
        for a in range(4):
            for r in range(0, 4, 2):
                k(f"v_pk_add_f32 v[{acc(p,a)+r}:{acc(p,a)+r+1}], v[{acc(p,a)+r}:{acc(p,a)+r+1}], v[{RV+(p*4+a)*4+r}:{RV+(p*4+a)*4+r+1}]")
        k("s_nop 1")
        for pp in range(2):
            a0, a1 = acc(p, 2*pp), acc(p, 2*pp+1)
            for r in range(4):
                k(f"v_permlane16_swap_b32 v{a0+r}, v{a1+r}")
        for pp in range(2):
            a0, a1 = acc(p, 2*pp), acc(p, 2*pp+1)
            xr = XR + (p*2+pp)*4
            t = T + (p*2+pp) * 8
            for d in range(4):
                k(f"v_lshlrev_b32 v{t+2*d}, 16, v{xr+d}")
                k(f"v_and_b32 v{t+2*d+1}, 0xffff0000, v{xr+d}")
            for e in range(0, 8, 2):
                src = (a0 + e) if e < 4 else (a1 + e - 4)
                k(f"v_pk_fma_f32 v[{t+e}:{t+e+1}], v[{src}:{src+1}], v[{GB+pp*8+e}:{GB+pp*8+e+1}], v[{t+e}:{t+e+1}]")
            for d in range(4):
                k(f"v_cvt_pk_bf16_f32 v{xr+d}, v{t+2*d}, v{t+2*d+1}")
            k(f"s_mov_b32 s38, {p*16*2048}")
            k(f"buffer_store_dwordx4 v[{xr}:{xr+3}], v{vXO}, s[{SRD_O}:{SRD_O+3}], s38 offen offset:{pp*64}{sf}")
    if not fine: stp(3)
    stp.end(32, sW)
    k("s_endpgm")
    k.label(f"{name}_prod")
    vDA = [4, 5, 6, 7]
    vDB = 8
    k(f"s_sub_u32 s{sW}, s{sW}, 4")
    k("v_lshlrev_b32 v17, 3, v16")
    k(f"s_lshl_b32 s39, s{sW}, 1")
    k("v_add_u32 v17, s39, v17")
    k("v_lshlrev_b32 v17, 11, v17")
    k("v_and_b32 v18, 15, v0")
    k("v_lshlrev_b32 v18, 4, v18")
    k(f"v_add_u32 v{vDA[0]}, v17, v18")
    k(f"v_add_u32 v{vDA[1]}, 2048, v{vDA[0]}")
    k(f"v_add_u32 v{vDA[2]}, {32*2048}, v{vDA[0]}")
    k(f"v_add_u32 v{vDA[3]}, {33*2048}, v{vDA[0]}")
    k(f"s_lshr_b32 s39, s{sW}, 1")
    k(f"s_mul_i32 s39, s39, {56*8192}")
    k(f"s_and_b32 s38, s{sW}, 1")
    k("s_lshl_b32 s38, s38, 12")
    k("s_add_u32 s39, s39, s38")
    k(f"v_add_u32 v{vDB}, s39, v3")
    sBA, sBB = 42, 43
    k(f"s_mul_i32 s{sBA}, s{sW}, {2*PA}")
    k(f"s_lshl_b32 s{sBB}, s{sW}, 12")
    k(f"s_add_u32 s{sBB}, s{sBB}, {AREG}")
    k("s_waitcnt lgkmcnt(0)")
    k("s_lshl_b32 s39, s36, 8")
    k(f"s_mul_i32 s38, s{sH}, {28*64*2048}")
    k("s_add_u32 s39, s39, s38")
    k(f"s_sub_u32 s38, {F*D*2}, s39")
    srd(k, SRD_W, 4, "s38", off_s="s39")
    k(f"s_mul_i32 s39, s37, {2*56*8192}")
    k(f"s_mul_i32 s38, s{sH}, {28*8192}")
    k("s_add_u32 s39, s39, s38")
    srd(k, SRD_A, 32, 2*56*8192, off_s="s39", off_imm=ACT_OFF)
    k(f"s_mov_b32 s{sKW}, 0")
    k(f"s_mov_b32 s{sKA}, 0")
    k(f"s_mov_b32 s{sDM}, 0")
    k("s_mov_b32 s48, 0x40000000")
    def issue():
        offs = [0, PA, 8 * PA, 9 * PA]
        k(f"s_cmp_lt_u32 s{sKA}, {NK*8192}")
        k(f"s_cselect_b32 s46, s{sKW}, s48")
        k(f"s_cselect_b32 s47, s{sKA}, s48")
        k(f"s_add_u32 s44, s{sDM}, s{sBA}")
        k(f"s_add_u32 s45, s{sDM}, s{sBB}")
        for i in range(4):
            k(f"s_add_u32 m0, s44, {offs[i]}")
            k("s_nop 0")
            k(f"buffer_load_dwordx4 v{vDA[i]}, s[{SRD_W}:{SRD_W+3}], s46 offen{wf} lds")
        k(f"s_mov_b32 m0, s45")
        k("s_nop 0")
        for q in range(4):
            k(f"buffer_load_dwordx4 v{vDB}, s[{SRD_A}:{SRD_A+3}], s47 offen offset:{q*1024}{af} lds")
        k(f"s_add_u32 s{sKW}, s{sKW}, {64*2048}")
        k(f"s_add_u32 s{sKA}, s{sKA}, 8192")
        k(f"s_add_u32 s{sDM}, s{sDM}, {STAGE}")
        k(f"s_cmp_eq_u32 s{sDM}, {NS*STAGE}")
        k(f"s_cselect_b32 s{sDM}, 0, s{sDM}")
    issue(); issue()
    k("s_waitcnt vmcnt(8)")
    k("s_barrier")
    for stg in range(2, NS): issue()
    k(f"s_mov_b32 s{sCNT}, {NK}")
    ploop = f"{name}_ploop"
    k.label(ploop)
    k(f"s_waitcnt vmcnt({8*(NS-2)})")
    k("s_barrier")
    issue()
    k(f"s_sub_u32 s{sCNT}, s{sCNT}, 1")
    k(f"s_cmp_lg_u32 s{sCNT}, 0")
    k(f"s_cbranch_scc1 {ploop}")
    k.label(f"{name}_end")
    k("s_endpgm")
    k.lds = NS * STAGE
    k.grid = 256
    k.block = 512
    return k
```

```python
from asmlib import *
from layout import *
import math, struct
from ka_util import *
from kb import kb_consts
from kc import kc_consts
def gen_ka(name="ka_kernel", nt=True, stamps=False, sf=''):
    k = Kern(name)
    st = Stamps(k, stamps, 0)
    NMOD = 192
    NLN = 256
    ntf = " nt" if nt else ""
    k(f"s_cmp_ge_u32 s2, {NMOD + NLN + 1}")
    k(f"s_cbranch_scc1 {name}_end")
    st.start()
    k("s_mov_b32 s75, s2")
    k(f"s_load_dwordx2 s[32:33], s[0:1], {KA['ws']}")
    k("v_lshrrev_b32 v1, 6, v0")
    k("v_and_b32 v2, 63, v0")
    k("v_readfirstlane_b32 s28, v1")
    k(f"s_cmp_lt_u32 s2, {NMOD}")
    k(f"s_cbranch_scc1 {name}_mod")
    k(f"s_cmp_eq_u32 s2, {NMOD + NLN}")
    k(f"s_cbranch_scc1 {name}_tab")
    k(f"s_sub_u32 s2, s2, {NMOD}")
    k(f"s_load_dwordx2 s[4:5], s[0:1], {KA['x']}")
    k("v_and_b32 v3, 7, v2")
    k("v_lshrrev_b32 v4, 3, v2")
    k("v_lshlrev_b32 v5, 11, v3")
    k("v_lshlrev_b32 v6, 3, v4")
    k("v_add_u32 v5, v5, v6")
    k("s_lshl_b32 s34, s28, 8")
    k("v_add_u32 v5, s34, v5")
    k("s_lshr_b32 s35, s2, 3")
    k("s_and_b32 s36, s35, 3")
    k("s_lshr_b32 s37, s35, 3")
    k("s_and_b32 s37, s37, 1")
    k("s_lshl_b32 s37, s37, 2")
    k("s_or_b32 s36, s36, s37")
    k("s_lshl_b32 s36, s36, 2")
    k("s_and_b32 s37, s2, 7")
    k("s_lshl_b32 s37, s37, 3")
    k("s_add_u32 s36, s36, s37")
    k("v_add_u32 v6, s36, v3")
    k("v_and_b32 v6, 63, v6")
    k("s_lshl_b32 s35, s35, 6")
    k("v_add_u32 v6, s35, v6")
    k("v_lshlrev_b32 v6, 3, v6")
    k("v_lshlrev_b32 v7, 14, v4")
    k("v_add_u32 v6, v6, v7")
    k("s_lshl_b32 s38, s28, 19")
    k("v_add_u32 v6, s38, v6")
    k("s_waitcnt lgkmcnt(0)")
    st(1)
    k("s_lshl_b32 s34, s2, 14")
    srd(k, 8, 4, 16384, off_s="s34")
    srd(k, 12, 32, S * D * 2, off_imm=XS_OFF)
    for q in range(4):
        k(f"buffer_load_dwordx2 v[{16+2*q}:{17+2*q}], v5, s[8:11], 0 offen offset:{q*64}{ntf}")
    k("v_mov_b32 v8, 0"); k("v_mov_b32 v9, 0")
    for q in range(4):
        k(f"s_waitcnt vmcnt({3-q})")
        for d in range(2):
            src = 16 + 2*q + d; dst = 32 + 4*q + 2*d
            k(f"v_lshlrev_b32 v{dst}, 16, v{src}")
            k(f"v_and_b32 v{dst+1}, 0xffff0000, v{src}")
        for e in range(4):
            r = 32 + 4*q + e
            k(f"v_add_f32 v8, v8, v{r}")
            k(f"v_fma_f32 v9, v{r}, v{r}, v9")
    st(2)
    dpp_add(k, [8, 9], "row_ror:8")
    k("s_nop 1")
    xlane_sum_16_32(k, [8, 9], [10, 11])
    k("v_lshlrev_b32 v10, 6, v3")
    k("s_lshl_b32 s34, s28, 3")
    k("v_add_u32 v11, s34, v10")
    k("v_cmp_gt_u32 vcc, 8, v2")
    k("s_and_saveexec_b64 s[40:41], vcc")
    k("ds_write_b64 v11, v[8:9]")
    k("s_mov_b64 exec, s[40:41]")
    k("s_waitcnt lgkmcnt(0)")
    k("s_barrier")
    for q in range(4):
        k(f"ds_read_b128 v[{48+4*q}:{51+4*q}], v10 offset:{q*16}")
    k("s_waitcnt lgkmcnt(0)")
    k("v_add_f32 v8, v48, v50"); k("v_add_f32 v9, v49, v51")
    for r in range(52, 64, 2):
        k(f"v_add_f32 v8, v8, v{r}"); k(f"v_add_f32 v9, v9, v{r+1}")
    k(f"v_mul_f32 v8, {f2u(1.0/1024):#x}, v8")
    k(f"v_mul_f32 v9, {f2u(1.0/1024):#x}, v9")
    k("v_fma_f32 v9, -v8, v8, v9")
    k("v_max_f32 v9, 0, v9")
    k(f"v_add_f32 v9, {f2u(1e-5):#x}, v9")
    k("v_rsq_f32 v9, v9")
    k("s_nop 0")
    k("v_mul_f32 v8, v8, v9")
    for r in range(32, 48):
        k(f"v_fma_f32 v{r}, v{r}, v9, -v8")
    for q in range(4):
        for d in range(2):
            k(f"v_cvt_pk_bf16_f32 v{16+2*q+d}, v{32+4*q+2*d}, v{32+4*q+2*d+1}")
    for q in range(4):
        k(f"s_mov_b32 s34, {q*8*16384}")
        k(f"buffer_store_dwordx2 v[{16+2*q}:{17+2*q}], v6, s[12:15], s34 offen{sf}")
    st(3)
    st.end(32, 28, "s75")
    k("s_endpgm")
    k.label(f"{name}_mod")
    k(f"s_load_dwordx2 s[4:5], s[0:1], {KA['wmod']}")
    k(f"s_load_dwordx2 s[6:7], s[0:1], {KA['c']}")
    k(f"s_mov_b32 s34, s2")
    k(f"s_mul_i32 s35, s34, {(1<<16)//48 + 1}")
    k("s_lshr_b32 s35, s35, 16")
    k("s_mul_i32 s36, s35, 48")
    k("s_sub_u32 s36, s34, s36")
    k("v_and_b32 v3, 15, v0")
    k("v_lshrrev_b32 v4, 4, v0")
    k("s_mov_b32 s37, 12288")
    k("v_mul_lo_u32 v5, v4, s37")
    k("v_lshlrev_b32 v6, 4, v3")
    k("v_add_u32 v5, v5, v6")
    k("s_waitcnt lgkmcnt(0)")
    st(1)
    k(f"s_mul_i32 s37, s35, {256*12288}")
    k("s_lshl_b32 s38, s36, 8")
    k("s_add_u32 s37, s37, s38")
    k(f"s_sub_u32 s38, {1024*12288}, s37")
    srd(k, 8, 4, "s38", off_s="s37")
    k("s_lshl_b32 s37, s35, 9")
    srd(k, 12, 6, 512, off_s="s37")
    k("v_lshlrev_b32 v7, 1, v0")
    k("buffer_load_ushort v8, v7, s[12:15], 0 offen")
    for p in range(8):
        k(f"s_mov_b32 s37, {p*32*12288}")
        k(f"buffer_load_dwordx4 v[{16+4*p}:{19+4*p}], v5, s[8:11], s37 offen{ntf}")
    k("s_waitcnt vmcnt(8)")
    k("v_lshlrev_b32 v8, 16, v8")
    k(f"v_mul_f32 v9, {f2u(-math.log2(math.e)):#x}, v8")
    k("v_exp_f32 v9, v9")
    k("s_nop 0")
    k("v_add_f32 v9, 1.0, v9")
    k("v_rcp_f32 v9, v9")
    k("s_nop 0")
    k("v_mul_f32 v8, v8, v9")
    k("v_cvt_pk_bf16_f32 v8, v8, v8")
    k("v_lshlrev_b32 v8, 16, v8")
    k("v_lshlrev_b32 v7, 2, v0")
    k("ds_write_b32 v7, v8")
    k("s_waitcnt lgkmcnt(0)")
    k("s_barrier")
    k("v_lshlrev_b32 v7, 2, v4")
    for p in range(8):
        k(f"ds_read_b32 v{48+p}, v7 offset:{p*128}")
    for e in range(8): k(f"v_mov_b32 v{56+e}, 0")
    k("s_waitcnt lgkmcnt(0)")
    for p in range(8):
        k(f"s_waitcnt vmcnt({7-p})")
        for d in range(4):
            k(f"v_lshlrev_b32 v8, 16, v{16+4*p+d}")
            k(f"v_and_b32 v9, 0xffff0000, v{16+4*p+d}")
            k(f"v_fma_f32 v{56+2*d}, v8, v{48+p}, v{56+2*d}")
            k(f"v_fma_f32 v{57+2*d}, v9, v{48+p}, v{57+2*d}")
    st(2)
    xlane_sum_16_32(k, [56+e for e in range(8)], [64+e for e in range(8)])
    k("v_lshlrev_b32 v7, 5, v3")
    k("s_lshl_b32 s37, s28, 9")
    k("s_add_u32 s37, s37, 2048")
    k("v_add_u32 v7, s37, v7")
    k("v_cmp_gt_u32 vcc, 16, v2")
    k("s_and_saveexec_b64 s[40:41], vcc")
    k("ds_write_b128 v7, v[56:59]")
    k("ds_write_b128 v7, v[60:63] offset:16")
    k("s_mov_b64 exec, s[40:41]")
    k("s_waitcnt lgkmcnt(0)")
    k("s_barrier")
    k("v_cmp_gt_u32 vcc, 128, v0")
    k("s_and_saveexec_b64 s[40:41], vcc")
    k(f"s_cbranch_execz {name}_end")
    k("v_lshlrev_b32 v7, 2, v0")
    for w in range(8):
        k(f"ds_read_b32 v{16+w}, v7 offset:{2048+w*512}")
    k("s_waitcnt lgkmcnt(0)")
    k("v_add_f32 v16, v16, v17")
    for w in range(2, 8): k(f"v_add_f32 v16, v16, v{16+w}")
    k(f"s_mul_i32 s37, s35, {6144*4}")
    k("s_lshl_b32 s38, s36, 9")
    k("s_add_u32 s37, s37, s38")
    srd(k, 12, 32, 4*6144*4, off_imm=MODP_OFF)
    k(f"buffer_store_dword v16, v7, s[12:15], s37 offen{sf}")
    st(3)
    st.end(32, 28, "s75")
    k("s_endpgm")
    k.label(f"{name}_tab")
    k("v_mov_b32 v0, v2")
    k("s_cmp_gt_u32 s28, 5")
    k(f"s_cbranch_scc1 {name}_end")
    k("s_waitcnt lgkmcnt(0)")
    k("s_cmp_eq_u32 s28, 5")
    k(f"s_cbranch_scc1 {name}_flg")
    k("s_cmp_eq_u32 s28, 4")
    k(f"s_cbranch_scc1 {name}_tabc")
    k("v_lshrrev_b32 v3, 4, v0")
    k("v_and_b32 v4, 15, v0")
    kb_consts(k)
    srd(k, 12, 32, 32768, off_imm=TB_OFF)
    k("v_lshlrev_b32 v5, 4, v0")
    k("s_lshl_b32 s36, s28, 12")
    k("s_add_u32 s36, s36, 16384")
    for q in range(4):
        k(f"buffer_store_dwordx4 v[{72+4*q}:{75+4*q}], v5, s[12:15], s36 offen offset:{q*1024}")
    k("s_lshr_b32 s36, s28, 1")
    k("s_mul_i32 s36, s36, 6144")
    k("s_add_u32 s36, s36, 4096")
    for q in range(6):
        if q == 4: k("s_add_u32 s36, s36, 4096")
        k(f"buffer_store_dwordx4 v[{48+4*q}:{51+4*q}], v5, s[12:15], s36 offen offset:{(q%4)*1024}")
    k("s_mov_b32 s36, 0")
    for q in range(4):
        k(f"buffer_store_dwordx4 v[{32+4*q}:{35+4*q}], v5, s[12:15], s36 offen offset:{q*1024}")
    k("s_endpgm")
    k.label(f"{name}_flg")
    srd(k, 12, 32, 256*128, off_imm=FLAG_OFF)
    k("v_lshlrev_b32 v5, 7, v0")
    k("v_mov_b32 v6, 0")
    for q in range(4):
        k(f"s_mov_b32 s36, {q*8192}")
        k("buffer_store_dword v6, v5, s[12:15], s36 offen")
    k("s_endpgm")
    k.label(f"{name}_tabc")
    kc_consts(k)
    srd(k, 12, 32, 18432, off_imm=TC_OFF)
    k("v_lshlrev_b32 v5, 4, v0")
    k("s_mov_b32 s36, 0")
    for q in range(18):
        k(f"buffer_store_dwordx4 v[{32+4*q}:{35+4*q}], v5, s[12:15], s36 offen offset:{(q%4)*1024}")
        if q % 4 == 3: k("s_add_u32 s36, s36, 4096")
    k.label(f"{name}_end")
    k("s_endpgm")
    k.lds = 8192; k.grid = NMOD + NLN + 1; k.block = 512; k.vgpr = 128; k.accum = 128
    return k
```

```python
from asmlib import *
import math, struct
def f2u(x): return struct.unpack("<I", struct.pack("<f", x))[0]

def xlane_sum_16_32(k, v, tmp):
    vs = v if isinstance(v, list) else [v]
    ts = tmp if isinstance(tmp, list) else [tmp]
    for swap in ("v_permlane16_swap_b32", "v_permlane32_swap_b32"):
        for a, t in zip(vs, ts): k(f"v_mov_b32 v{t}, v{a}")
        k("s_nop 1")
        for a, t in zip(vs, ts): k(f"{swap} v{a}, v{t}")
        k("s_nop 1")
        for a, t in zip(vs, ts): k(f"v_add_f32 v{a}, v{a}, v{t}")
    return

def dpp_add(k, vs, ctrl):
    k("s_nop 1")
    for a in vs: k(f"v_add_f32_dpp v{a}, v{a}, v{a} {ctrl} row_mask:0xf bank_mask:0xf")

def wave_sum(k, vs, tmps):
    for ctrl in ("quad_perm:[1,0,3,2]", "quad_perm:[2,3,0,1]", "row_half_mirror", "row_mirror"):
        dpp_add(k, vs, ctrl)
    k("s_nop 1")
    xlane_sum_16_32(k, vs, tmps)
```

```python
from asmlib import *
from layout import *
from ka_util import f2u
import math

def cos_sin(k, dc, ds, n, scale):
    k(f"v_cvt_f32_u32 v{ds}, v{n}")
    k(f"v_mul_f32 v{ds}, {f2u(scale):#x}, v{ds}")
    k(f"v_cos_f32 v{dc}, v{ds}")
    k(f"v_sin_f32 v{ds}, v{ds}")

KB_C1, KB_C3, KB_TW = 32, 48, 72
def kb_consts(k):
    C1, C3, TW, TC, TS = KB_C1, KB_C3, KB_TW, 100, 108
    k("v_lshlrev_b32 v24, 3, v3")
    k("v_mul_u32_u24 v24, v24, v4")
    for e in range(8):
        k("v_and_b32 v25, 31, v24")
        cos_sin(k, TC+e, TS+e, 25, 1.0/32)
        if e < 7: k("v_add_u32 v24, v24, v4")
    k("s_nop 0")
    for d in range(4):
        k(f"v_cvt_pk_bf16_f32 v{C1+d}, v{TC+2*d}, v{TC+2*d+1}")
        k(f"v_cvt_pk_bf16_f32 v{C1+8+d}, -v{TS+2*d}, -v{TS+2*d+1}")
    for d in range(4):
        k(f"v_xor_b32 v{C1+4+d}, 0x80000000, v{C1+d}")
        k(f"v_xor_b32 v{C1+12+d}, 0x80000000, v{C1+8+d}")
    k("s_lshr_b32 s36, s28, 1")
    k("s_lshl_b32 s36, s36, 4")
    k("v_add_u32 v26, s36, v4")
    for e in range(8):
        s2c = 16*(e >> 2) + 4*(e & 3)
        k(f"v_add_u32 v25, {s2c}, v3")
        k("v_mul_u32_u24 v25, v25, v26")
        k("v_and_b32 v25, 63, v25")
        cos_sin(k, TC+e, TS+e, 25, 1.0/64)
    k("v_and_b32 v25, 1, v26")
    k("v_sub_u32 v27, 0, v25")
    k("v_and_b32 v27, 0x80008000, v27")
    for d in range(4):
        k(f"v_cvt_pk_bf16_f32 v{C3+d}, v{TC+2*d}, v{TC+2*d+1}")
        k(f"v_cvt_pk_bf16_f32 v{C3+8+d}, v{TS+2*d}, v{TS+2*d+1}")
    for d in range(4):
        k(f"v_xor_b32 v{C3+4+d}, v27, v{C3+d}")
        k(f"v_xor_b32 v{C3+12+d}, v27, v{C3+8+d}")
    for d in range(8):
        k(f"v_xor_b32 v{C3+16+d}, 0x80008000, v{C3+8+d}")
    k("s_lshl_b32 s36, s28, 4")
    for tau in range(4):
        k(f"v_add_u32 v25, s36, v3")
        if tau: k(f"v_add_u32 v25, {4*tau}, v25")
        for th in range(2):
            k(f"v_add_u32 v27, {16*th}, v4")
            k("v_mul_u32_u24 v27, v25, v27")
            b = TW + (tau*2 + th)*2
            cos_sin(k, b, b+1, 27, 1.0/2048)

def gen_kb(name="kb_kernel", stamps=False, pf=True, sf='', table=True, pfn=2):
    k = Kern(name)
    st = Stamps(k, stamps, 1)
    TOFF = 16384
    C1, C3, TW = KB_C1, KB_C3, KB_TW
    k("s_cmp_ge_u32 s2, 256")
    k(f"s_cbranch_scc1 {name}_end")
    st.start()
    k(f"s_load_dwordx2 s[32:33], s[0:1], {KA['ws']}")
    k(f"s_load_dwordx2 s[4:5], s[0:1], {KA['wg']}")
    k("v_mov_b32 v30, v0")
    k("v_lshrrev_b32 v1, 6, v0")
    k("v_and_b32 v0, 63, v0")
    k("v_readfirstlane_b32 s28, v1")
    k("s_and_b32 s34, s2, 7")
    k("s_lshl_b32 s34, s34, 5")
    k("s_lshr_b32 s35, s2, 3")
    k("s_add_u32 s34, s34, s35")
    k("v_lshlrev_b32 v2, 4, v0")
    k("v_lshrrev_b32 v3, 4, v0")
    k("v_and_b32 v4, 15, v0")
    k("s_lshl_b32 s36, s28, 12")
    k("v_add_u32 v5, s36, v2")
    k("s_lshl_b32 s37, s34, 2")
    k("v_add_u32 v6, s37, v0")
    k("v_lshlrev_b32 v6, 2, v6")
    k("v_add_u32 v7, 4096, v6")
    k("s_mul_i32 s37, s2, 24")
    k("v_add_u32 v16, s37, v0")
    k("v_lshlrev_b32 v17, 2, v16")
    k("s_waitcnt lgkmcnt(0)")
    k("s_lshl_b32 s35, s34, 14")
    srd(k, 8, 32, 16384, off_s="s35", off_imm=XS_OFF)
    k("s_mov_b32 m0, s36")
    srd(k, 56, 32, 32768, off_imm=TB_OFF)
    for q in range(4):
        k(f"buffer_load_dwordx4 v5, s[8:11], 0 offen offset:{q*1024} lds")
    TBL = 49152
    if table:
        k("s_lshl_b32 s36, s28, 13")
        for hq in range(2):
            k(f"s_add_u32 m0, s36, {TBL + hq*4096}")
            k(f"s_add_u32 s37, s36, {hq*4096}")
            for q in range(4):
                k(f"buffer_load_dwordx4 v2, s[56:59], s37 offen offset:{q*1024} lds")
    srd(k, 12, 32, 4*6144*4, off_imm=MODP_OFF)
    for p in range(4):
        k(f"s_mov_b32 s37, {p*6144*4}")
        k(f"buffer_load_dword v{8+p}, v6, s[12:15], s37 offen")
        k(f"buffer_load_dword v{12+p}, v7, s[12:15], s37 offen")
        k(f"buffer_load_dword v{20+p}, v17, s[12:15], s37 offen")
    NPF = 0
    k(f"s_mul_i32 s35, s34, {ZROWS*16}")
    srd(k, 16, 32, ZROWS*16, off_s="s35", off_imm=ZS_OFF)
    srd(k, 20, 32, 6144*4, off_imm=MODF_OFF)
    srd(k, 52, 32, 12288, off_imm=MODC_OFF)
    RA = 88
    k("v_bfe_u32 v25, v0, 2, 2")
    k("v_and_b32 v26, 3, v0")
    k("v_lshlrev_b32 v27, 12, v3")
    k("v_lshlrev_b32 v28, 9, v25")
    k("v_add_u32 v27, v27, v28")
    k("v_lshlrev_b32 v28, 2, v25")
    k("v_add_u32 v28, v28, v26")
    k("v_and_b32 v29, 1, v3")
    k("v_lshlrev_b32 v29, 4, v29")
    k("v_add_u32 v28, v28, v29")
    k("s_lshl_b32 s36, s28, 4")
    k("v_add_u32 v28, s36, v28")
    for tau in range(4):
        k(f"v_add_u32 v29, {4*tau}, v28")
        k("v_and_b32 v29, 63, v29")
        k(f"v_lshl_add_u32 v{RA+tau}, v29, 3, v27")
    k("s_lshr_b32 s36, s28, 1")
    k("s_lshl_b32 s36, s36, 10")
    k("s_and_b32 s37, s28, 1")
    k("s_lshl_b32 s37, s37, 3")
    k("s_add_u32 s36, s36, s37")
    k(f"s_add_u32 s36, s36, {TOFF}")
    k("v_add_u32 v92, s36, v2")
    k("s_and_b32 s36, s28, 1")
    k("s_lshl_b32 s36, s36, 12")
    k(f"s_add_u32 s36, s36, {TOFF}")
    k("v_add_u32 v93, s36, v2")
    k("s_and_b32 s36, s28, 1")
    k("s_lshl_b32 s36, s36, 4")
    k("s_lshr_b32 s37, s28, 1")
    k("s_lshl_b32 s37, s37, 9")
    k("s_add_u32 s36, s36, s37")
    k("v_lshlrev_b32 v94, 7, v3")
    k("v_add_u32 v94, v94, v4")
    k("v_add_u32 v94, s36, v94")
    k("v_lshlrev_b32 v94, 4, v94")
    k("v_and_b32 v25, 1, v3")
    k("v_lshlrev_b32 v25, 31, v25")
    k("v_lshrrev_b32 v26, 16, v25")
    k("v_or_b32 v25, v25, v26")
    k("v_or_b32 v25, 0x3f803f80, v25")
    k("v_cmp_eq_u32 vcc, 0, v4")
    k("s_nop 1")
    k("v_cndmask_b32 v25, 0, v25, vcc")
    NC = 240
    for d in range(4): k(f"v_mov_b32 v{NC+d}, v25")
    if not table: kb_consts(k)
    st(1)
    k(f"s_waitcnt vmcnt(0)")
    k("s_barrier")
    st(2)
    if pf:
        srd(k, 24, 4, D*F*2)
        k("s_lshl_b32 s37, s2, 8")
        k("v_add_u32 v31, s37, v30")
        k("v_lshlrev_b32 v31, 6, v31")
        for i in range(pfn):
            k(f"s_mov_b32 s37, {65536*64*i}")
            k(f"buffer_load_dword v{96+i}, v31, s[24:27], s37 offen")
        NPF = pfn
    if table:
        k("s_lshr_b32 s36, s28, 1")
        k("s_mul_i32 s36, s36, 6144")
        k("v_add_u32 v98, s36, v2")
        k("s_lshl_b32 s36, s28, 12")
        k(f"s_add_u32 s36, s36, {TBL+16384}")
        k("v_add_u32 v99, s36, v2")
        for q in range(4): k(f"ds_read_b128 v[{C1+4*q}:{C1+4*q+3}], v2 offset:{TBL+q*1024}")
    AF = 100
    for tau in range(4):
        for h in range(2):
            k(f"ds_read_b64_tr_b16 v[{AF+4*tau+2*h}:{AF+4*tau+2*h+1}], v{RA+tau} offset:{h*2048}")
    ACC = 128
    def a1(tau, th, ri): return ACC + ((tau*2 + th)*2 + ri)*4
    if table:
        for q in range(4): k(f"ds_read_b128 v[{TW+4*q}:{TW+4*q+3}], v99 offset:{q*1024}")
    for tau in range(4):
        k(f"s_waitcnt lgkmcnt({6-2*tau+(4 if table else 0)})")
        for th in range(2):
            for ri in range(2):
                cb = C1 + ri*8 + th*4
                k(f"v_mfma_f32_16x16x32_bf16 v[{a1(tau,th,ri)}:{a1(tau,th,ri)+3}], v[{AF+4*tau}:{AF+4*tau+3}], v[{cb}:{cb+3}], 0")
    if table:
        for q in range(6): k(f"ds_read_b128 v[{C3+4*q}:{C3+4*q+3}], v98 offset:{TBL+4096+q*1024}")
    k("v_add_f32 v8, v8, v9"); k("v_add_f32 v10, v10, v11"); k("v_add_f32 v8, v8, v10")
    k("v_add_f32 v12, v12, v13"); k("v_add_f32 v14, v14, v15"); k("v_add_f32 v12, v12, v14")
    k("v_add_f32 v20, v20, v21"); k("v_add_f32 v22, v22, v23"); k("v_add_f32 v20, v20, v22")
    for r in (8, 12, 20):
        k(f"v_cvt_pk_bf16_f32 v{r}, v{r}, v{r}")
        k(f"v_lshlrev_b32 v{r}, 16, v{r}")
    k("v_add_f32 v13, 1.0, v12")
    k("v_cvt_pk_bf16_f32 v13, v13, v13")
    k("v_lshlrev_b32 v13, 16, v13")
    k(f"v_mul_f32 v8, {f2u(2048.0):#x}, v8")
    if table: k("s_waitcnt lgkmcnt(6)")
    R2 = 192
    def r2(tau, th): return R2 + (tau*2 + th)*4
    def pr(b): return f"v[{b}:{b+1}]"
    TT = 224
    for tau in range(4):
        for th in range(2):
            cs = TW + (tau*2 + th)*2
            tr = a1(tau, th, 0); ti = a1(tau, th, 1); o = r2(tau, th)
            bc = "op_sel:[0,0] op_sel_hi:[1,0]"
            for hq in range(2):
                k(f"v_pk_mul_f32 {pr(o+2*hq)}, {pr(tr+2*hq)}, {pr(cs)} {bc}")
                k(f"v_pk_mul_f32 {pr(TT+2*hq)}, {pr(ti+2*hq)}, {pr(cs)} {bc}")
            bs = "op_sel:[0,1,0] op_sel_hi:[1,1,1]"
            for hq in range(2):
                k(f"v_pk_fma_f32 {pr(o+2*hq)}, {pr(ti+2*hq)}, {pr(cs)}, {pr(o+2*hq)} {bs}")
                k(f"v_pk_fma_f32 {pr(ti+2*hq)}, {pr(tr+2*hq)}, {pr(cs)}, {pr(TT+2*hq)} {bs} neg_lo:[1,0,0] neg_hi:[1,0,0]")
    for dd in range(4):
        k(f"v_readlane_b32 s{44+dd}, v13, {dd}")
        k(f"v_readlane_b32 s{48+dd}, v8, {dd}")
    pk = 8
    idx = 0
    for dd in range(4):
        for th in range(2):
            for ri in range(2):
                p = 100 + (idx % 8) * 2; idx += 1
                src = (lambda tau: r2(tau, th) + dd) if ri == 0 else (lambda tau: a1(tau, th, 1) + dd)
                k(f"v_cvt_pk_bf16_f32 v{p}, v{src(0)}, v{src(1)}")
                k(f"v_cvt_pk_bf16_f32 v{p+1}, v{src(2)}, v{src(3)}")
                k(f"ds_write_b64 v92, v[{p}:{p+1}] offset:{((dd*2+th)*2+ri)*2048}")
    k("v_add_f32 v21, 1.0, v20")
    k("v_cvt_pk_bf16_f32 v21, v21, v21")
    k("v_lshlrev_b32 v21, 16, v21")
    k("v_lshrrev_b32 v22, 10, v16")
    k("v_cmp_eq_u32 vcc, 1, v22")
    k("v_cmp_eq_u32 s[40:41], 4, v22")
    k("s_or_b64 vcc, vcc, s[40:41]")
    k("s_nop 1")
    k("v_cndmask_b32 v20, v20, v21, vcc")
    k("v_cmp_gt_u32 vcc, 24, v0")
    k("s_cmp_eq_u32 s28, 0")
    k("s_cselect_b64 s[40:41], vcc, 0")
    k("s_mov_b64 s[42:43], exec")
    k("s_mov_b64 exec, s[40:41]")
    k(f"s_cbranch_execz {name}_nofin")
    k("buffer_store_dword v20, v17, s[20:23], 0 offen")
    k("v_and_b32 v21, 1023, v16")
    k("v_lshrrev_b32 v23, 5, v21")
    k("v_bfe_u32 v24, v21, 3, 1")
    k("v_lshl_add_u32 v23, v24, 5, v23")
    k("v_lshlrev_b32 v23, 4, v23")
    k("v_and_b32 v24, 3, v21")
    k("v_lshl_add_u32 v23, v24, 2, v23")
    k("v_bfe_u32 v24, v21, 4, 1")
    k("v_bfe_u32 v25, v21, 2, 1")
    k("v_lshl_add_u32 v24, v24, 1, v25")
    k("v_lshl_add_u32 v23, v24, 10, v23")
    k("v_mov_b32 v24, 0x10000")
    k("v_cmp_eq_u32 vcc, 2, v22")
    k("s_nop 1")
    k("v_cndmask_b32 v24, v24, 0, vcc")
    k("v_mov_b32 v25, 4096")
    k("v_cmp_eq_u32 vcc, 4, v22")
    k("s_nop 1")
    k("v_cndmask_b32 v24, v24, v25, vcc")
    k("v_mov_b32 v25, 8192")
    k("v_cmp_eq_u32 vcc, 3, v22")
    k("s_nop 1")
    k("v_cndmask_b32 v24, v24, v25, vcc")
    k("v_add_u32 v23, v23, v24")
    k("buffer_store_dword v20, v23, s[52:55], 0 offen")
    k.label(f"{name}_nofin")
    k("s_mov_b64 exec, s[42:43]")
    k("s_waitcnt lgkmcnt(0)")
    k("s_barrier")
    BF = 128
    def bfr(dd, ri, m): return BF + ((dd*2 + ri)*2 + m)*4
    for dd in range(4):
        for ri in range(2):
            for m in range(2):
                off = dd*8192 + ri*2048 + m*1024
                k(f"ds_read_b128 v[{bfr(dd,ri,m)}:{bfr(dd,ri,m)+3}], v93 offset:{off}")
    Z = 192
    def z(dd, ri): return Z + (dd*2 + ri)*4
    NQ = 224
    k("v_cmp_eq_u32 vcc, 0, v94")
    for dd in range(4): k(f"v_mov_b32 v{26+dd}, s{48+dd}")
    k("s_nop 1")
    for dd in range(4): k(f"v_cndmask_b32 v{26+dd}, 0, v{26+dd}, vcc")
    def mf(d, a, b, c):
        cs = "0" if c is None else f"v[{c}:{c+3}]"
        k(f"v_mfma_f32_16x16x32_bf16 v[{d}:{d+3}], v[{a}:{a+3}], v[{b}:{b+3}], {cs}")
    for dd in range(4):
        k(f"s_waitcnt lgkmcnt({12-4*dd})")
        mf(z(dd,0), C3+0, bfr(dd,0,0), None)
        mf(z(dd,1), C3+0, bfr(dd,1,0), None)
        mf(NQ+4*dd, NC, bfr(dd,0,0), None)
        mf(z(dd,0), C3+4, bfr(dd,0,1), z(dd,0))
        mf(z(dd,1), C3+4, bfr(dd,1,1), z(dd,1))
        mf(NQ+4*dd, NC, bfr(dd,0,1), NQ+4*dd)
        mf(z(dd,0), C3+8, bfr(dd,1,0), z(dd,0))
        mf(z(dd,1), C3+16, bfr(dd,0,0), z(dd,1))
        mf(z(dd,0), C3+12, bfr(dd,1,1), z(dd,0))
        mf(z(dd,1), C3+20, bfr(dd,0,1), z(dd,1))
    for dd in range(4):
        if dd == 3: k("s_nop 7")
        k(f"v_fma_f32 v{z(dd,0)}, v{z(dd,0)}, s{44+dd}, v{26+dd}")
        for r in range(1, 4): k(f"v_mul_f32 v{z(dd,0)+r}, s{44+dd}, v{z(dd,0)+r}")
        for r in range(4): k(f"v_mul_f32 v{z(dd,1)+r}, s{44+dd}, v{z(dd,1)+r}")
    for r in range(4):
        o = 100 + 4*r
        k(f"v_cvt_pk_bf16_f32 v{o}, v{z(0,0)+r}, v{z(1,0)+r}")
        k(f"v_cvt_pk_bf16_f32 v{o+1}, v{z(2,0)+r}, v{z(3,0)+r}")
        k(f"v_cvt_pk_bf16_f32 v{o+2}, v{z(0,1)+r}, v{z(1,1)+r}")
        k(f"v_cvt_pk_bf16_f32 v{o+3}, v{z(2,1)+r}, v{z(3,1)+r}")
        k(f"buffer_store_dwordx4 v[{o}:{o+3}], v94, s[16:19], 0 offen offset:{r*512}{sf}")
    st(3)
    k("s_cmp_lg_u32 s28, 0")
    k(f"s_cbranch_scc1 {name}_fin")
    for dd in range(4): k(f"v_mul_f32 v{NQ+4*dd}, s{44+dd}, v{NQ+4*dd}")
    k(f"v_cvt_pk_bf16_f32 v32, v{NQ}, v{NQ+4}")
    k(f"v_cvt_pk_bf16_f32 v33, v{NQ+8}, v{NQ+12}")
    k("v_mov_b32 v34, 0"); k("v_mov_b32 v35, 0")
    k("v_mov_b32 v36, 16384")
    k("s_mov_b64 exec, 1")
    k("buffer_store_dwordx4 v[32:35], v36, s[16:19], 0 offen")
    k.label(f"{name}_fin")
    st.end(32, 28)
    k.label(f"{name}_end")
    k("s_endpgm")
    k.lds = 49152 + 32768; k.grid = 256; k.block = 256
    return k
```

```python
from asmlib import *
from layout import *
from ka_util import f2u, wave_sum
from kb import cos_sin

KC_C1, KC_C3, KC_TW = 32, 56, 72
def kc_consts(k):
    C1, C3, TW, TC, TS = KC_C1, KC_C3, KC_TW, 104, 112
    k("v_lshrrev_b32 v2, 5, v0")
    k("v_and_b32 v3, 31, v0")
    k("v_lshrrev_b32 v6, 4, v3")
    k("v_lshlrev_b32 v6, 4, v6")
    k("v_bfe_u32 v7, v3, 2, 1")
    k("v_lshl_add_u32 v6, v7, 3, v6")
    k("v_bfe_u32 v7, v3, 3, 1")
    k("v_lshl_add_u32 v6, v7, 2, v6")
    k("v_and_b32 v7, 3, v3")
    k("v_add_u32 v6, v6, v7")
    k("v_lshlrev_b32 v10, 3, v2")
    k("v_mul_u32_u24 v10, v10, v6")
    for e in range(8):
        k("v_and_b32 v11, 31, v10")
        cos_sin(k, TC+e, TS+e, 11, 1.0/32)
        if e < 7: k("v_add_u32 v10, v10, v6")
    k("v_and_b32 v11, 1, v6")
    k("v_sub_u32 v12, 0, v11")
    k("v_and_b32 v12, 0x80008000, v12")
    for d in range(4):
        k(f"v_cvt_pk_bf16_f32 v{C1+d}, v{TC+2*d}, v{TC+2*d+1}")
        k(f"v_cvt_pk_bf16_f32 v{C1+8+d}, v{TS+2*d}, v{TS+2*d+1}")
    for d in range(4):
        k(f"v_xor_b32 v{C1+4+d}, v12, v{C1+d}")
        k(f"v_xor_b32 v{C1+12+d}, v12, v{C1+8+d}")
    for d in range(8):
        k(f"v_xor_b32 v{C1+16+d}, 0x80008000, v{C1+8+d}")
    k("v_lshlrev_b32 v10, 2, v2")
    for e in range(8):
        d2c = 8*(e >> 2) + (e & 3)
        k(f"v_add_u32 v11, {d2c}, v10")
        k("v_mul_u32_u24 v11, v11, v3")
        k("v_and_b32 v11, 31, v11")
        cos_sin(k, TC+e, TS+e, 11, 1.0/32)
    k("v_and_b32 v11, 1, v3")
    k("v_sub_u32 v12, 0, v11")
    k("v_and_b32 v12, 0x80008000, v12")
    for d in range(4):
        k(f"v_cvt_pk_bf16_f32 v{C3+d}, v{TC+2*d}, v{TC+2*d+1}")
        k(f"v_cvt_pk_bf16_f32 v{C3+8+d}, v{TS+2*d}, v{TS+2*d+1}")
    for d in range(4):
        k(f"v_xor_b32 v{C3+4+d}, v12, v{C3+d}")
        k(f"v_xor_b32 v{C3+12+d}, v12, v{C3+8+d}")
    for r in range(16):
        d2c = 8*(r >> 2) + (r & 3)
        k(f"v_add_u32 v11, {d2c}, v10")
        k("v_mul_u32_u24 v11, v11, v6")
        cos_sin(k, TW+r, TW+16+r, 11, 1.0/1024)

def gen_kc(name="kc_kernel", stamps=False, pf=True, sf='', pfrows=0):
    k = Kern(name)
    st = Stamps(k, stamps, 2)
    C1, C3, TW = KC_C1, KC_C3, KC_TW
    TBL = 32768
    HST = TBL + 32768
    k("s_cmp_ge_u32 s2, 256")
    k(f"s_cbranch_scc1 {name}_end")
    st.start()
    k(f"s_load_dwordx2 s[32:33], s[0:1], {KA['ws']}")
    k(f"s_load_dwordx2 s[4:5], s[0:1], {KA['x']}")
    k(f"s_load_dwordx2 s[6:7], s[0:1], {KA['wu']}")
    k(f"s_load_dwordx2 s[42:43], s[0:1], {KA['wg']}")
    k("v_mov_b32 v30, v0")
    k("v_lshrrev_b32 v1, 6, v0")
    k("v_and_b32 v0, 63, v0")
    k("v_readfirstlane_b32 s28, v1")
    k("v_lshrrev_b32 v2, 3, v0")
    k("v_and_b32 v3, 7, v0")
    k("v_lshrrev_b32 v4, 1, v2")
    k("v_sub_u32 v3, v3, v4")
    k("s_lshl_b32 s34, s2, 3")
    k(f"s_mov_b32 s35, {ZROWS*16}")
    k("v_mul_lo_u32 v5, v2, s35")
    for par in range(2):
        k(f"v_subrev_u32 v6, {4*par}, v3")
        k("v_and_b32 v6, 7, v6")
        k("v_add_u32 v6, s34, v6")
        k("v_sub_u32 v7, 2048, v6")
        k("v_min_u32 v6, v6, v7")
        k(f"v_lshl_add_u32 v{8+par}, v6, 4, v5")
    k("v_lshlrev_b32 v5, 4, v0")
    k("v_lshrrev_b32 v2, 5, v0")
    k("v_and_b32 v3, 31, v0")
    k("v_lshlrev_b32 v4, 6, v3")
    k("v_lshl_add_u32 v4, v2, 4, v4")
    k("s_add_u32 s36, s34, s28")
    k("s_lshl_b32 s37, s36, 11")
    k("s_waitcnt lgkmcnt(0)")
    srd(k, 8, 32, 256*ZROWS*16, off_imm=ZS_OFF)
    for q in range(4):
        k(f"s_lshl_b32 s38, s28, 2")
        k(f"s_add_u32 s38, s38, {q}")
        k(f"s_lshl_b32 s39, s38, 10")
        k("s_mov_b32 m0, s39")
        k(f"s_mul_i32 s38, s38, {8*ZROWS*16}")
        k(f"buffer_load_dwordx4 v{8+(q&1)}, s[8:11], s38 offen lds")
    srd(k, 48, 32, 30720, off_imm=TC_OFF)
    k("s_lshl_b32 s38, s28, 12")
    k(f"s_add_u32 m0, s38, {TBL}")
    k("s_nop 0")
    for q in range(4):
        k(f"buffer_load_dwordx4 v5, s[48:51], s38 offen offset:{q*1024} lds")
    srd(k, 16, 4, 2048, off_s="s37")
    XV = 200
    k(f"buffer_load_dwordx4 v[{XV}:{XV+3}], v4, s[16:19], 0 offen nt")
    k(f"buffer_load_dwordx4 v[{XV+4}:{XV+7}], v4, s[16:19], 0 offen offset:32 nt")
    MV = 208
    NPF = 0
    srd(k, 20, 32, 2048, off_s="s37", off_imm=X1_OFF)
    srd(k, 24, 32, S*D*2, off_imm=H2_OFF)
    k("v_lshrrev_b32 v10, 4, v0")
    k("v_bfe_u32 v11, v0, 2, 2")
    k("v_and_b32 v12, 3, v0")
    k("v_and_b32 v13, 1, v10")
    k("v_lshl_add_u32 v13, v13, 2, v12")
    k("v_lshrrev_b32 v14, 1, v10")
    k("v_lshl_add_u32 v14, v14, 3, v11")
    k("v_lshlrev_b32 v14, 10, v14")
    k("v_lshl_add_u32 v14, v13, 7, v14")
    k("v_lshrrev_b32 v15, 1, v13")
    k("v_and_b32 v16, 1, v11")
    k("v_lshl_add_u32 v15, v16, 2, v15")
    k("v_add_u32 v15, s28, v15")
    k("v_and_b32 v15, 7, v15")
    k("v_lshl_add_u32 v14, v15, 4, v14")
    k("v_mul_u32_u24 v17, 528, v3")
    k("v_lshl_add_u32 v17, v2, 7, v17")
    k("s_lshl_b32 s38, s28, 4")
    k(f"s_add_u32 s38, s38, {HST}")
    k("v_add_u32 v17, s38, v17")
    k("v_lshrrev_b32 v18, 3, v0")
    k("v_and_b32 v19, 7, v0")
    k("v_lshrrev_b32 v20, 2, v18")
    k("v_and_b32 v21, 3, v18")
    k("v_mul_u32_u24 v22, 528, v20")
    k("v_lshl_add_u32 v22, v21, 7, v22")
    k("v_lshl_add_u32 v22, v19, 4, v22")
    k(f"s_mul_i32 s38, s28, {4*528}")
    k(f"s_add_u32 s38, s38, {HST}")
    k("v_add_u32 v22, s38, v22")
    k("v_lshlrev_b32 v23, 14, v20")
    k("v_lshl_add_u32 v23, v21, 8, v23")
    k("v_lshl_add_u32 v23, v19, 4, v23")
    k("s_lshr_b32 s38, s34, 8")
    k("s_lshl_b32 s38, s38, 19")
    k("s_lshr_b32 s39, s34, 4")
    k("s_and_b32 s39, s39, 15")
    k("s_lshl_b32 s39, s39, 10")
    k("s_add_u32 s38, s38, s39")
    k("s_and_b32 s39, s34, 15")
    k("s_lshl_b32 s39, s39, 4")
    k("s_add_u32 s38, s38, s39")
    k("s_lshl_b32 s39, s28, 16")
    k("s_add_u32 s41, s38, s39")
    k("s_cmp_gt_u32 s36, 1024")
    k("s_cselect_b32 s40, 0x80008000, 0")
    st(1)
    k(f"s_waitcnt vmcnt(0)")
    k("s_barrier")
    st(2)
    if pf and pfrows == 0:
        srd(k, 44, 6, D*F*2)
        k("s_lshl_b32 s38, s2, 9")
        k("v_add_u32 v31, s38, v30")
        k("v_lshlrev_b32 v31, 6, v31")
        k("buffer_load_dword v120, v31, s[44:47], 0 offen")
        NPF = 1
    elif pf:
        n = pfrows * 7168 // 64 // 256
        srd(k, 44, 6, pfrows * 7168)
        srd(k, 52, 42, pfrows * 7168)
        k(f"s_mul_i32 s38, s2, {n}")
        k("v_add_u32 v31, s38, v30")
        k("v_lshlrev_b32 v31, 6, v31")
        k(f"v_cmp_gt_u32 vcc, {n}, v30")
        k("v_bfrev_b32 v121, 1")
        k("s_nop 1")
        k("v_cndmask_b32 v31, v121, v31, vcc")
        k("buffer_load_dword v120, v31, s[44:47], 0 offen")
        k("buffer_load_dword v121, v31, s[52:55], 0 offen")
        NPF = 2
    ZF = 104
    for pl in range(2):
        for m in range(2):
            for h in range(2):
                b = ZF + (pl*2 + m)*4 + 2*h
                k(f"ds_read_b64_tr_b16 v[{b}:{b+1}], v14 offset:{h*4096 + m*16384 + pl*8}")
    for q in range(6):
        k(f"ds_read_b128 v[{32+4*q}:{35+4*q}], v5 offset:{TBL + q*1024}")
    k("s_waitcnt lgkmcnt(0)")
    for d in range(8): k(f"v_xor_b32 v{ZF+8+d}, s40, v{ZF+8+d}")
    TR, TI = 128, 144
    def mf(d, a, b, c):
        cs = "0" if c is None else f"v[{c}:{c+15}]"
        k(f"v_mfma_f32_32x32x16_bf16 v[{d}:{d+15}], v[{a}:{a+3}], v[{b}:{b+3}], {cs}")
    zr = lambda m: ZF + m*4
    zi = lambda m: ZF + 8 + m*4
    k("s_nop 1")
    mf(TR, zr(0), C1+0, None)
    mf(TI, zr(0), C1+16, None)
    mf(TR, zr(1), C1+4, TR)
    mf(TI, zr(1), C1+20, TI)
    mf(TR, zi(0), C1+8, TR)
    mf(TI, zi(0), C1+0, TI)
    mf(TR, zi(1), C1+12, TR)
    mf(TI, zi(1), C1+4, TI)
    for q in list(range(10, 18)) + list(range(6, 10)):
        k(f"ds_read_b128 v[{32+4*q}:{35+4*q}], v5 offset:{TBL + q*1024}")
    XF = 176
    for d in range(8):
        k(f"v_lshlrev_b32 v{XF+2*d}, 16, v{XV+d}")
        k(f"v_and_b32 v{XF+2*d+1}, 0xffff0000, v{XV+d}")
    k("s_waitcnt lgkmcnt(4)")
    for q in range(12):
        k(f"ds_read_b128 v[{MV+4*q}:{MV+4*q+3}], v5 offset:{TBL + 18432 + q*1024}")
    def pr(b): return f"v[{b}:{b+1}]"
    PRr, PIi = 160, 192
    for q in range(8):
        k(f"v_pk_mul_f32 {pr(PRr+2*q)}, {pr(TR+2*q)}, {pr(TW+2*q)}")
    for q in range(8):
        k(f"v_pk_fma_f32 {pr(PRr+2*q)}, {pr(TI+2*q)}, {pr(TW+16+2*q)}, {pr(PRr+2*q)}")
    for q in range(8):
        k(f"v_pk_mul_f32 {pr(TI+2*q)}, {pr(TI+2*q)}, {pr(TW+2*q)}")
    for q in range(8):
        k(f"v_pk_fma_f32 {pr(TI+2*q)}, {pr(TR+2*q)}, {pr(TW+16+2*q)}, {pr(TI+2*q)} neg_lo:[1,0,0] neg_hi:[1,0,0]")
    PR, PI = 104, 112
    for d in range(8):
        k(f"v_cvt_pk_bf16_f32 v{PR+d}, v{PRr+2*d}, v{PRr+2*d+1}")
        k(f"v_cvt_pk_bf16_f32 v{PI+d}, v{TI+2*d}, v{TI+2*d+1}")
    Y = 128
    k("s_waitcnt lgkmcnt(12)")
    mf(Y, PR+0, C3+0, None)
    mf(Y, PR+4, C3+4, Y)
    mf(Y, PI+0, C3+8, Y)
    mf(Y, PI+4, C3+12, Y)
    k("s_nop 15")
    k("s_waitcnt lgkmcnt(0)")
    for q in range(8):
        k(f"v_pk_fma_f32 {pr(XF+2*q)}, {pr(Y+2*q)}, {pr(MV+2*q)}, {pr(XF+2*q)}")
    for d in range(8):
        k(f"v_cvt_pk_bf16_f32 v{XV+d}, v{XF+2*d}, v{XF+2*d+1}")
    k(f"buffer_store_dwordx4 v[{XV}:{XV+3}], v4, s[20:23], 0 offen{sf}")
    k(f"buffer_store_dwordx4 v[{XV+4}:{XV+7}], v4, s[20:23], 0 offen offset:32{sf}")
    for d in range(8):
        k(f"v_lshlrev_b32 v{XF+2*d}, 16, v{XV+d}")
        k(f"v_and_b32 v{XF+2*d+1}, 0xffff0000, v{XV+d}")
    k(f"v_pk_add_f32 v[10:11], {pr(XF)}, {pr(XF+2)}")
    k(f"v_pk_mul_f32 v[12:13], {pr(XF)}, {pr(XF)}")
    for q in range(1, 8):
        if q > 1: k(f"v_pk_add_f32 v[10:11], v[10:11], {pr(XF+2*q)}")
        k(f"v_pk_fma_f32 v[12:13], {pr(XF+2*q)}, {pr(XF+2*q)}, v[12:13]")
    k("v_add_f32 v10, v10, v11")
    k("v_add_f32 v12, v12, v13")
    wave_sum(k, [10, 12], [11, 13])
    k(f"v_mul_f32 v10, {f2u(1.0/1024):#x}, v10")
    k(f"v_mul_f32 v12, {f2u(1.0/1024):#x}, v12")
    k("v_fma_f32 v12, -v10, v10, v12")
    k("v_max_f32 v12, 0, v12")
    k(f"v_add_f32 v12, {f2u(1e-5):#x}, v12")
    k("v_rsq_f32 v12, v12")
    k("v_sub_f32 v10, 0, v10")
    bc = "op_sel:[0,0] op_sel_hi:[1,0]"
    for q in range(8): k(f"v_pk_add_f32 {pr(XF+2*q)}, {pr(XF+2*q)}, v[10:11] {bc}")
    for q in range(8): k(f"v_pk_mul_f32 {pr(XF+2*q)}, {pr(XF+2*q)}, v[12:13] {bc}")
    for q in range(8): k(f"v_pk_fma_f32 {pr(XF+2*q)}, {pr(XF+2*q)}, {pr(MV+16+2*q)}, {pr(MV+32+2*q)}")
    for d in range(8):
        k(f"v_cvt_pk_bf16_f32 v{160+d}, v{XF+2*d}, v{XF+2*d+1}")
    k("ds_write_b128 v17, v[160:163]")
    k("ds_write_b128 v17, v[164:167] offset:256")
    k("s_waitcnt lgkmcnt(0)")
    k("s_barrier")
    k("ds_read_b128 v[168:171], v22")
    k(f"ds_read_b128 v[172:175], v22 offset:{2*528}")
    k("s_add_u32 s42, s41, 32768")
    k("s_waitcnt lgkmcnt(1)")
    k(f"buffer_store_dwordx4 v[168:171], v23, s[24:27], s41 offen{sf}")
    k("s_waitcnt lgkmcnt(0)")
    k(f"buffer_store_dwordx4 v[172:175], v23, s[24:27], s42 offen{sf}")
    st(3)
    st.end(32, 28)
    k.label(f"{name}_end")
    k("s_endpgm")
    k.lds = HST + 32*528; k.grid = 256; k.block = 512
    return k
```

```python
S, D, F = 2048, 1024, 3584
MODP_OFF = 0x0
H1_OFF   = 0x100000
P_OFF    = 0x500000
X1_OFF   = 0xD00000
H2_OFF   = 0x1100000
ACT_OFF  = 0x1500000
WS_BYTES = 268435456
MODF_OFF = 0x68000
XS_OFF   = 0x100000
ZS_OFF   = 0x500000
ZROWS    = 1024
MODC_OFF = 0x70000 + 18432
TB_OFF   = 0x60000
TC_OFF   = 0x70000
PART_OFF = 0x2400000
FLAG_OFF = 0x80000
EPOCH_OFF = 0x88000
WP_OFF   = 0x3400000
CNT_OFF  = 0x88000
CNTH_OFF = 0x88800
CNTB_OFF = 0x88C00
```

```python
from mk_all import *
def P(ka=dict(), kb=dict(), kc=dict(), g3=dict(), g4=dict(), old4=False):
    return [gen_ka("ka_kernel", **ka), gen_kb("kb_kernel", **kb), gen_kc("kc_kernel", **kc), gen_gemm3b("g3_kernel", **g3), (gen_gemm4 if old4 else gen_gemm4b)("g4_kernel", **g4)]
build("h_a.s", P())
build("h_b.s", P(kb=dict(pf=False), kc=dict(pf=False), g3=dict(pf=False)))
build("h_c.s", P(kb=dict(pf=False), kc=dict(pf=False)))
build("h_d.s", P(ka=dict(nt=False)))
build("h_e.s", P(old4=True))
```

```python
from asmlib import *
from layout import *
import math, struct
def f2u(x): return struct.unpack("<I", struct.pack("<f", x))[0]

def gen_gemm3b(name="g3_kernel", NS=4, stamps=False, nomfma=False, pf=True, wf='', hf='', dma_frac=(0.1, 0.35, 0.6, 0.85), rd_span=0.6, prio=None, sf='', nodma=False, nords=False, prioA=None, prioB=None, dmaB=False, nobar=False, l2pf=0, trips=False, l2f='', pff='', roll=0, sf2='', bar_after=0, rd_first=0, cpf=None):
    k = Kern(name)
    st = Stamps(k, stamps, 3)
    BS = 4128
    STAGE = 8 * BS
    NK = 32
    ROWB = F * 2
    P = 4
    SRD_G, SRD_U, SRD_H, SRD_O, SRD_P = 8, 12, 16, 20, 44
    sKW, sKH, sBLK, sCNT, sW, sPF = 24, 25, 26, 27, 28, 29
    vDW, vDH, vSt, vPF = 1, 2, 3, 30
    vRA = [4 + i for i in range(NS)]
    vRB = [10 + i for i in range(NS)]
    vRA2 = [20 + i for i in range(NS)]
    FR = [32, 80]
    ACC = 128
    k("s_cmp_ge_u32 s2, 256")
    k(f"s_cbranch_scc1 {name}_end")
    st.start()
    k(f"s_load_dwordx2 s[4:5], s[0:1], {KA['wg']}")
    k(f"s_load_dwordx2 s[6:7], s[0:1], {KA['wu']}")
    k(f"s_load_dwordx2 s[32:33], s[0:1], {KA['ws']}")
    k(f"s_load_dwordx2 s[30:31], s[0:1], {KA['wd']}")
    k("v_lshrrev_b32 v1, 6, v0")
    k("v_mov_b32 v30, v0")
    k("v_and_b32 v0, 63, v0")
    k(f"v_readfirstlane_b32 s{sW}, v1")
    k("s_and_b32 s34, s2, 7")
    k("s_lshr_b32 s35, s2, 3")
    k("s_and_b32 s36, s34, 1")
    k("s_lshl_b32 s36, s36, 2")
    k("s_and_b32 s37, s35, 3")
    k("s_add_u32 s36, s36, s37")
    k("s_lshr_b32 s37, s34, 1")
    k("s_lshl_b32 s37, s37, 3")
    k("s_lshr_b32 s38, s35, 2")
    k("s_add_u32 s37, s37, s38")
    k("v_lshrrev_b32 v16, 4, v0")
    k("v_and_b32 v17, 1, v16")
    k("v_lshlrev_b32 v17, 4, v17")
    k("v_lshrrev_b32 v18, 1, v16")
    k("v_lshlrev_b32 v18, 2, v18")
    k("v_add_u32 v17, v17, v18")
    k(f"s_lshr_b32 s39, s{sW}, 2")
    k("s_lshl_b32 s39, s39, 3")
    k(f"s_and_b32 s40, s{sW}, 3")
    k("s_add_u32 s39, s39, s40")
    k("v_add_u32 v17, s39, v17")
    k(f"s_mov_b32 s41, {ROWB}")
    k("v_mul_lo_u32 v17, v17, s41")
    k("v_and_b32 v18, 15, v0")
    k("v_lshlrev_b32 v19, 4, v18")
    k(f"v_add_u32 v{vDW}, v17, v19")
    k("v_cmp_lt_u32 vcc, 13, v18")
    k("v_bfrev_b32 v19, 1")
    k("s_nop 0")
    k(f"v_cndmask_b32 v{vDW}, v{vDW}, v19, vcc")
    k(f"s_lshl_b32 s39, s{sW}, 11")
    k(f"v_lshlrev_b32 v{vSt}, 4, v0")
    k(f"v_add_u32 v{vDH}, s39, v{vSt}")
    k(f"s_mul_i32 s{sBLK}, s{sW}, {BS}")
    k("s_waitcnt lgkmcnt(0)")
    st(1)
    k("s_mul_i32 s39, s37, 224")
    k(f"s_sub_u32 s40, {D*ROWB}, s39")
    srd(k, SRD_G, 4, "s40", off_s="s39")
    srd(k, SRD_U, 6, "s40", off_s="s39")
    k("s_lshl_b32 s39, s36, 19")
    srd(k, SRD_H, 32, 1 << 19, off_s="s39", off_imm=H2_OFF)
    k(f"s_mov_b32 s{sKW}, 0")
    k(f"s_mov_b32 s{sKH}, 0")

    def dma_group(stage, part):
        base = stage * STAGE
        if part == 0:
            return [f"s_add_u32 m0, s{sBLK}, {base}", f"buffer_load_dwordx4 v{vDW}, s[{SRD_G}:{SRD_G+3}], s{sKW} offen{wf} lds"]
        if part == 1:
            return [f"s_add_u32 m0, s{sBLK}, {base+1024}", f"buffer_load_dwordx4 v{vDW}, s[{SRD_U}:{SRD_U+3}], s{sKW} offen{wf} lds"]
        if part == 2:
            return [f"s_add_u32 m0, s{sBLK}, {base+2048}", f"buffer_load_dwordx4 v{vDH}, s[{SRD_H}:{SRD_H+3}], s{sKH} offen{hf} lds"]
        if part == 3:
            return [None, f"buffer_load_dwordx4 v{vDH}, s[{SRD_H}:{SRD_H+3}], s{sKH} offen offset:1024{hf} lds"]
    def adv():
        return [f"s_add_u32 s{sKW}, s{sKW}, {32*ROWB}", f"s_add_u32 s{sKH}, s{sKH}, 16384"]
    def issue_stage(stg):
        for part in range(4):
            m, ld = dma_group(stg, part)
            if m:
                k(m); k("s_nop 0")
            k(ld)
        if roll: k(f"buffer_load_dword v28, v19, s[{SRD_G}:{SRD_G+3}], 0 offen")
        for a in adv(): k(a)
    issue_stage(0)
    k("v_and_b32 v17, 1, v16")
    k("v_lshlrev_b32 v17, 2, v17")
    k("v_bfe_u32 v18, v0, 2, 2")
    k("v_add_u32 v17, v17, v18")
    k(f"s_mov_b32 s41, {BS}")
    k("v_mul_lo_u32 v17, v17, s41")
    k("v_lshrrev_b32 v18, 1, v16")
    k("v_lshlrev_b32 v18, 8, v18")
    k("v_add_u32 v17, v17, v18")
    k("v_and_b32 v18, 3, v0")
    k("v_lshlrev_b32 v18, 3, v18")
    k(f"v_add_u32 v{vRA[0]}, v17, v18")
    k(f"s_and_b32 s39, s{sW}, 3")
    k(f"s_mul_i32 s39, s39, {2*BS}")
    k("s_add_u32 s39, s39, 2048")
    k(f"v_add_u32 v{vRB[0]}, s39, v{vSt}")
    for s in range(1, NS):
        k(f"v_add_u32 v{vRA[s]}, {s*STAGE}, v{vRA[0]}")
        k(f"v_add_u32 v{vRB[s]}, {s*STAGE}, v{vRB[0]}")
    k(f"v_lshlrev_b32 v{vPF}, 6, v30")
    for r in range(4): k(f"v_mov_b32 v{24+r}, 0")
    issue_stage(1); issue_stage(2)
    for r in range(0, 128, 16):
        k(f"v_mfma_f32_32x32x16_bf16 v[{ACC+r}:{ACC+r+15}], v[24:27], v[24:27], 0")
    srd(k, SRD_O, 32, S * F * 2, off_imm=ACT_OFF)
    k("s_mul_i32 s39, s2, 28672")
    srd(k, SRD_P, 30, 28672, off_s="s39")
    k(f"s_mov_b32 s{sPF}, 0x40000000")
    if roll:
        k("s_and_b32 s39, s36, 3")
        k("s_lshl_b32 s39, s39, 3")
        k("v_add_u32 v22, s39, v0")
        k(f"s_mov_b32 s41, {ROWB}")
        k("v_mul_lo_u32 v22, v22, s41")
        k(f"s_cmp_ge_u32 s{sW}, 3")
        k(f"s_cselect_b32 s39, 3, 0")
        k(f"s_sub_u32 s39, s{sW}, s39")
        k("s_lshl_b32 s39, s39, 7")
        k("s_min_u32 s39, s39, 220")
        k("v_add_u32 v22, s39, v22")
        k(f"s_sub_u32 s39, s{sW}, 6")
        k("s_lshl_b32 s39, s39, 9")
        k("v_lshlrev_b32 v23, 6, v0")
        k("v_add_u32 v23, s39, v23")
        k(f"s_cmp_ge_u32 s{sW}, 6")
        k("s_cselect_b64 vcc, -1, 0")
        k("v_bfrev_b32 v19, 1")
        k("s_nop 1")
        k("v_cndmask_b32 v29, v22, v23, vcc")
        k("v_cmp_gt_u32 vcc, 8, v0")
        k("s_nop 1")
        k("v_cndmask_b32 v29, v19, v29, vcc")
        k(f"s_cmp_lt_u32 s{sW}, 3")
        for d in range(3): k(f"s_cselect_b32 s{52+d}, s{SRD_G+d}, s{SRD_U+d}")
        k(f"s_cmp_ge_u32 s{sW}, 6")
        for d in range(3): k(f"s_cselect_b32 s{52+d}, s{SRD_P+d}, s{52+d}")
        k("s_mov_b32 s55, 0x20000")
        k(f"s_mov_b32 s57, {32*ROWB}")
        k(f"s_cselect_b32 s57, 1024, s57")
        k(f"s_mul_i32 s56, s57, {roll}")
        k(f"s_cselect_b32 s56, 0, s56")
    PP = P + (1 if roll else 0)
    k(f"s_waitcnt vmcnt({2*PP + (1 if roll else 0)})")
    k("s_barrier")
    st(2)
    if stamps:
        k("s_getreg_b32 s56, hwreg(HW_REG_HW_ID)")
        k("s_getreg_b32 s57, hwreg(HW_REG_XCC_ID)")
        srd(k, 76, 32, 1 << 20, off_imm=STAMP_OFF + 7 * (1 << 20))
        k("s_lshl_b32 s80, s2, 3")
        k(f"s_add_u32 s80, s80, s{sW}")
        k("s_lshl_b32 s80, s80, 3")
        k("v_mov_b32 v28, s56")
        k("v_mov_b32 v29, s57")
        k("v_mov_b32 v27, 0")
        k("s_mov_b64 exec, 1")
        k("buffer_store_dwordx2 v[28:29], v27, s[76:79], s80 offen")
        k("s_mov_b64 exec, -1")
        k("s_waitcnt vmcnt(0)")
    k(f"s_cmp_ge_u32 s{sW}, 4")
    k(f"s_cbranch_scc1 {name}_typeB")

    def body(tp):
        nT = 4 if tp == 0 else 3
        j0 = 0 if tp == 0 else 4
        nA = 2 * nT
        def Af(s, a): return FR[s] + a * 4
        def Bf(s, p): return FR[s] + 32 + p * 4
        def acc(p, a): return ACC + (p * nA + a) * 4
        def reads(setn, stage):
            A = []
            for a in range(nA):
                gu, j = a // nT, a % nT
                for h in range(2):
                    if tp == 1 and j == 2:
                        off = gu * 1024 + h * 512; base = vRA2[stage]
                    else:
                        off = gu * 1024 + j * 32 + h * 512; base = vRA[stage]
                    A.append(f"ds_read_b64_tr_b16 v[{Af(setn,a)+2*h}:{Af(setn,a)+2*h+1}], v{base} offset:{off}")
            B = []
            for p in range(4):
                off = (p >> 1) * BS + (p & 1) * 1024
                B.append(f"ds_read_b128 v[{Bf(setn,p)}:{Bf(setn,p)+3}], v{vRB[stage]} offset:{off}")
            return [B[0]] + A[:4] + [B[1]] + A[4:8] + [B[2]] + A[8:12] + [B[3]] + A[12:]
        k("s_and_b32 s39, s37, 1")
        k("s_cmp_eq_u32 s39, 0")
        if tp == 0:
            k("s_cselect_b32 s39, 0, 96")
            for stg in range(NS): k(f"v_add_u32 v{vRA[stg]}, s39, v{vRA[stg]}")
        else:
            k("s_cselect_b32 s39, 192, 0")
            for stg in range(NS): k(f"v_add_u32 v{vRA2[stg]}, s39, v{vRA[stg]}")
            k("s_cselect_b32 s39, 128, 32")
            for stg in range(NS): k(f"v_add_u32 v{vRA[stg]}, s39, v{vRA[stg]}")
        for r in reads(0, 0): k(r)
        for stg in range(3, NS): issue_stage(stg)
        k(f"s_mov_b32 s{sCNT}, {NK // NS}")
        pr_ = prioA if tp == 0 else prioB
        if pr_ is not None: k(f"s_setprio {pr_}")
        loop = f"{name}_loop{tp}"
        k.label(loop)
        order = [(p, a) for p in range(4) for a in range(nA)]
        nM = len(order)
        for u in range(NS):
            cur = u & 1; nxt = cur ^ 1
            rd = reads(nxt, (u + 1) % NS)
            extra = {}
            for ri, r in enumerate(rd):
                idx = bar_after + int(ri * rd_span * (nM - bar_after) / len(rd))
                if not nords: extra.setdefault(idx, []).append(r)
            for part, fr in enumerate(dma_frac):
                pos = max(bar_after + 1, bar_after + int(fr * (nM - bar_after)))
                m, ld = dma_group(u, part)
                if m: extra.setdefault(pos - 1, []).append(m)
                if not nodma: extra.setdefault(pos, []).append(ld)
            extra.setdefault(nM - 1, []).extend(adv())
            nvm = (NS - 2) * PP + (1 if roll else 0)
            if roll:
                extra.setdefault(nM - 2, []).append(f"buffer_load_dword v28, v29, s[52:55], s56 offen{l2f}")
                extra.setdefault(nM - 1, []).append("s_add_u32 s56, s56, s57")
            if bar_after == 0:
                k(f"s_waitcnt vmcnt({nvm}) lgkmcnt(0)")
                if not nobar: k("s_barrier")
            else:
                k("s_waitcnt lgkmcnt(0)")
            if prio is not None: k(f"s_setprio {prio}")
            for idx, (p, a) in enumerate(order):
                if bar_after and idx == bar_after:
                    k(f"s_waitcnt vmcnt({nvm})")
                    k("s_barrier")
                if not nomfma:
                    k(f"v_mfma_f32_16x16x32_bf16 v[{acc(p,a)}:{acc(p,a)+3}], v[{Af(cur,a)}:{Af(cur,a)+3}], v[{Bf(cur,p)}:{Bf(cur,p)+3}], v[{acc(p,a)}:{acc(p,a)+3}]")
                for e in extra.get(idx, []): k(e)
        if trips:
            k("s_memtime s[58:59]")
            k("s_waitcnt lgkmcnt(0)")
            k(f"s_mov_b32 m0, s{sCNT}")
            k("s_nop 3")
            k(f"v_writelane_b32 v27, s58, m0")
        k(f"s_sub_u32 s{sCNT}, s{sCNT}, 1")
        k(f"s_cmp_lg_u32 s{sCNT}, 0")
        k(f"s_cbranch_scc1 {loop}")
        st(3)
        if trips:
            srd(k, 76, 32, 1 << 20, off_imm=STAMP_OFF + 6 * (1 << 20))
            k("s_lshl_b32 s80, s2, 3")
            k(f"s_add_u32 s80, s80, s{sW}")
            k("s_lshl_b32 s80, s80, 8")
            k(f"v_lshrrev_b32 v26, 2, v{vSt}")
            k("v_writelane_b32 v27, s64, 9")
            k("buffer_store_dword v27, v26, s[76:79], s80 offen")
            k("s_waitcnt vmcnt(0)")
        if cpf: code_pf(k, cpf[0], cpf[1], f"e{tp}", 24, -30, sp=60)
        if pf and not roll:
            k(f"buffer_load_dword v31, v{vPF}, s[{SRD_P}:{SRD_P+3}], 0 offen{pff}")
        k(f"s_and_b32 s39, s{sW}, 3")
        k("s_lshl_b32 s40, s36, 2")
        k("s_add_u32 s39, s39, s40")
        k(f"s_mul_i32 s39, s39, {56*8192}")
        k("s_mul_i32 s40, s37, 7")
        k("s_and_b32 s41, s37, 1")
        k("s_cmp_eq_u32 s41, 0")
        if tp == 0:
            k("s_cselect_b32 s41, 0, 3")
            k("s_add_u32 s41, s41, s40")
            k("s_lshl_b32 s41, s41, 11")
            k("s_add_u32 s48, s41, s39")
            k("s_add_u32 s49, s48, 4096")
        else:
            k("s_cselect_b32 s41, 4, 1")
            k("s_cselect_b32 s42, 6, 0")
            k("s_add_u32 s41, s41, s40")
            k("s_lshl_b32 s41, s41, 11")
            k("s_add_u32 s48, s41, s39")
            k("s_add_u32 s42, s42, s40")
            k("s_lshr_b32 s41, s42, 1")
            k("s_lshl_b32 s41, s41, 12")
            k("s_and_b32 s42, s42, 1")
            k("s_lshl_b32 s42, s42, 3")
            k("s_add_u32 s41, s41, s42")
            k("s_add_u32 s49, s41, s39")
        c0 = -2.0 * math.sqrt(2.0 / math.pi) * math.log2(math.e)
        c1 = c0 * 0.044715
        vC0, vC1, vONE = 16, 18, 20
        for d in range(2):
            k(f"v_mov_b32 v{vC0+d}, {f2u(c0):#x}")
            k(f"v_mov_b32 v{vC1+d}, {f2u(c1):#x}")
            k(f"v_mov_b32 v{vONE+d}, 1.0")
        k("s_nop 7")
        def pr(b): return f"v[{b}:{b+1}]"
        grp = 0
        for p in range(4):
            js = list(range(nT))
            for g0 in range(0, nT, 2):
                jj = js[g0:g0+2]
                pairs = []
                for j in jj:
                    g = acc(p, j); u_ = acc(p, nT + j)
                    pairs += [(g, u_), (g + 2, u_ + 2)]
                T = 32 + (grp & 1) * 8
                O = 64 + (grp % 8) * 4
                grp += 1
                n = len(pairs)
                for q, (g, u_) in enumerate(pairs): k(f"v_pk_mul_f32 {pr(T+2*q)}, {pr(g)}, {pr(g)}")
                for q in range(n): k(f"v_pk_fma_f32 {pr(T+2*q)}, {pr(T+2*q)}, {pr(vC1)}, {pr(vC0)}")
                for q, (g, u_) in enumerate(pairs): k(f"v_pk_mul_f32 {pr(T+2*q)}, {pr(T+2*q)}, {pr(g)}")
                for q in range(2*n): k(f"v_exp_f32 v{T+q}, v{T+q}")
                for q, (g, u_) in enumerate(pairs): k(f"v_pk_mul_f32 {pr(u_)}, {pr(g)}, {pr(u_)}")
                for q in range(n): k(f"v_pk_add_f32 {pr(T+2*q)}, {pr(T+2*q)}, {pr(vONE)}")
                for q in range(2*n): k(f"v_rcp_f32 v{T+q}, v{T+q}")
                k("s_nop 0")
                for q, (g, u_) in enumerate(pairs): k(f"v_pk_mul_f32 {pr(u_)}, {pr(u_)}, {pr(T+2*q)}")
                for q, (g, u_) in enumerate(pairs): k(f"v_cvt_pk_bf16_f32 v{O+q}, v{u_}, v{u_+1}")
                if len(jj) == 2:
                    k(f"buffer_store_dwordx4 v[{O}:{O+3}], v{vSt}, s[{SRD_O}:{SRD_O+3}], s{48+g0//2} offen offset:{p*1024}{sf}")
                else:
                    k(f"buffer_store_dwordx2 v[{O}:{O+1}], v{vSt}, s[{SRD_O}:{SRD_O+3}], s49 offen offset:{p*1024}{sf2}")
        st.end(32, sW)
        k("s_endpgm")
    body(0)
    k.label(f"{name}_typeB")
    body(1)
    k.label(f"{name}_end")
    k("s_endpgm")
    k.lds = NS * STAGE
    k.grid = 256
    k.block = 512
    return k
```

```python
from asmlib import *
from layout import *
import math, struct
from ka_util import *
from kb import kb_consts
from kc import kc_consts

def gen_ka(name="ka_kernel", nt=True, stamps=False, sf='', xnt=True):
    k = Kern(name)
    st = Stamps(k, stamps, 0)
    ntf = " nt" if nt else ""
    xntf = " nt" if xnt else ""
    k("s_cmp_ge_u32 s2, 257")
    k(f"s_cbranch_scc1 {name}_end")
    st.start()
    k(f"s_load_dwordx2 s[32:33], s[0:1], {KA['ws']}")
    k("v_lshrrev_b32 v1, 6, v0")
    k("v_and_b32 v2, 63, v0")
    k("v_readfirstlane_b32 s28, v1")
    k("s_cmp_eq_u32 s2, 256")
    k(f"s_cbranch_scc1 {name}_tab")
    k(f"s_load_dwordx2 s[4:5], s[0:1], {KA['x']}")
    k(f"s_load_dwordx2 s[6:7], s[0:1], {KA['wmod']}")
    k(f"s_load_dwordx2 s[42:43], s[0:1], {KA['c']}")
    k("v_and_b32 v3, 7, v2")
    k("v_lshrrev_b32 v4, 3, v2")
    k("v_lshlrev_b32 v5, 11, v3")
    k("v_lshlrev_b32 v6, 3, v4")
    k("v_add_u32 v5, v5, v6")
    k("s_lshl_b32 s34, s28, 8")
    k("v_add_u32 v5, s34, v5")
    k("s_lshr_b32 s35, s2, 3")
    k("s_and_b32 s36, s35, 3")
    k("s_lshr_b32 s37, s35, 3")
    k("s_and_b32 s37, s37, 1")
    k("s_lshl_b32 s37, s37, 2")
    k("s_or_b32 s36, s36, s37")
    k("s_lshl_b32 s36, s36, 2")
    k("s_and_b32 s37, s2, 7")
    k("s_lshl_b32 s37, s37, 3")
    k("s_add_u32 s36, s36, s37")
    k("v_add_u32 v6, s36, v3")
    k("v_and_b32 v6, 63, v6")
    k("s_lshl_b32 s35, s35, 6")
    k("v_add_u32 v6, s35, v6")
    k("v_lshlrev_b32 v6, 3, v6")
    k("v_lshlrev_b32 v7, 14, v4")
    k("v_add_u32 v6, v6, v7")
    k("s_lshl_b32 s38, s28, 19")
    k("v_add_u32 v6, s38, v6")
    k("v_lshlrev_b32 v12, 4, v2")
    k("v_cmp_gt_u32 vcc, 48, v2")
    k("v_bfrev_b32 v13, 1")
    k(f"s_mul_i32 s39, s28, {8*12288}")
    k("v_add_u32 v12, s39, v12")
    k("v_cndmask_b32 v12, v13, v12, vcc")
    k("v_lshlrev_b32 v14, 1, v2")
    k("s_waitcnt lgkmcnt(0)")
    st(1)
    k("s_lshl_b32 s34, s2, 14")
    srd(k, 8, 4, 16384, off_s="s34")
    for q in range(4):
        k(f"buffer_load_dwordx2 v[{16+2*q}:{17+2*q}], v5, s[8:11], 0 offen offset:{q*64}{xntf}")
    k("s_lshr_b32 s35, s2, 4")
    k("s_and_b32 s36, s2, 15")
    k(f"s_mul_i32 s37, s35, {64*12288}")
    k("s_mul_i32 s38, s36, 768")
    k("s_add_u32 s37, s37, s38")
    k(f"s_sub_u32 s38, {1024*12288}, s37")
    srd(k, 44, 6, "s38", off_s="s37")
    k("s_lshl_b32 s37, s35, 7")
    k("s_lshl_b32 s38, s28, 4")
    k("s_add_u32 s37, s37, s38")
    srd(k, 48, 42, 16, off_s="s37")
    k("buffer_load_ushort v15, v14, s[48:51], 0 offen")
    for p in range(8):
        k(f"s_mov_b32 s37, {p*12288}")
        k(f"buffer_load_dwordx4 v[{64+4*p}:{67+4*p}], v12, s[44:47], s37 offen{ntf}")
    srd(k, 12, 32, S * D * 2, off_imm=XS_OFF)
    k("v_mov_b32 v8, 0"); k("v_mov_b32 v9, 0")
    for q in range(4):
        k(f"s_waitcnt vmcnt({3-q+9})")
        for d in range(2):
            src = 16 + 2*q + d; dst = 32 + 4*q + 2*d
            k(f"v_lshlrev_b32 v{dst}, 16, v{src}")
            k(f"v_and_b32 v{dst+1}, 0xffff0000, v{src}")
        for e in range(4):
            r = 32 + 4*q + e
            k(f"v_add_f32 v8, v8, v{r}")
            k(f"v_fma_f32 v9, v{r}, v{r}, v9")
    st(2)
    dpp_add(k, [8, 9], "row_ror:8")
    k("s_nop 1")
    xlane_sum_16_32(k, [8, 9], [10, 11])
    k("v_lshlrev_b32 v10, 6, v3")
    k("s_lshl_b32 s34, s28, 3")
    k("v_add_u32 v11, s34, v10")
    k("v_cmp_gt_u32 vcc, 8, v2")
    k("s_and_saveexec_b64 s[40:41], vcc")
    k("ds_write_b64 v11, v[8:9]")
    k("s_mov_b64 exec, s[40:41]")
    k("s_waitcnt vmcnt(8)")
    k("v_lshlrev_b32 v15, 16, v15")
    k(f"v_mul_f32 v24, {f2u(-math.log2(math.e)):#x}, v15")
    k("v_exp_f32 v24, v24")
    k("s_nop 0")
    k("v_add_f32 v24, 1.0, v24")
    k("v_rcp_f32 v24, v24")
    k("s_nop 0")
    k("v_mul_f32 v15, v15, v24")
    k("v_cvt_pk_bf16_f32 v15, v15, v15")
    k("v_lshlrev_b32 v15, 16, v15")
    k("s_waitcnt lgkmcnt(0)")
    k("s_barrier")
    for q in range(4):
        k(f"ds_read_b128 v[{48+4*q}:{51+4*q}], v10 offset:{q*16}")
    for p in range(8): k(f"v_readlane_b32 s{52+p}, v15, {p}")
    k("s_waitcnt lgkmcnt(0)")
    k("v_add_f32 v8, v48, v50"); k("v_add_f32 v9, v49, v51")
    for r in range(52, 64, 2):
        k(f"v_add_f32 v8, v8, v{r}"); k(f"v_add_f32 v9, v9, v{r+1}")
    k(f"v_mul_f32 v8, {f2u(1.0/1024):#x}, v8")
    k(f"v_mul_f32 v9, {f2u(1.0/1024):#x}, v9")
    k("v_fma_f32 v9, -v8, v8, v9")
    k("v_max_f32 v9, 0, v9")
    k(f"v_add_f32 v9, {f2u(1e-5):#x}, v9")
    k("v_rsq_f32 v9, v9")
    k("s_nop 0")
    k("v_mul_f32 v8, v8, v9")
    for r in range(32, 48):
        k(f"v_fma_f32 v{r}, v{r}, v9, -v8")
    for q in range(4):
        for d in range(2):
            k(f"v_cvt_pk_bf16_f32 v{16+2*q+d}, v{32+4*q+2*d}, v{32+4*q+2*d+1}")
    for q in range(4):
        k(f"s_mov_b32 s34, {q*8*16384}")
        k(f"buffer_store_dwordx2 v[{16+2*q}:{17+2*q}], v6, s[12:15], s34 offen{sf}")
    for e in range(8): k(f"v_mov_b32 v{32+e}, 0")
    for p in range(8):
        k(f"s_waitcnt vmcnt({7-p+4})")
        for d in range(4):
            k(f"v_lshlrev_b32 v8, 16, v{64+4*p+d}")
            k(f"v_and_b32 v9, 0xffff0000, v{64+4*p+d}")
            k(f"v_fma_f32 v{32+2*d}, v8, s{52+p}, v{32+2*d}")
            k(f"v_fma_f32 v{33+2*d}, v9, s{52+p}, v{33+2*d}")
    k("v_lshlrev_b32 v10, 5, v2")
    k("s_mul_i32 s34, s28, 1536")
    k("s_add_u32 s34, s34, 1024")
    k("v_add_u32 v10, s34, v10")
    k("v_cmp_gt_u32 vcc, 48, v2")
    k("s_and_saveexec_b64 s[40:41], vcc")
    k("ds_write_b128 v10, v[32:35]")
    k("ds_write_b128 v10, v[36:39] offset:16")
    k("s_mov_b64 exec, s[40:41]")
    k("s_waitcnt lgkmcnt(0)")
    k("s_barrier")
    k("v_cmp_gt_u32 vcc, 384, v0")
    k("s_and_saveexec_b64 s[40:41], vcc")
    k(f"s_cbranch_execz {name}_fin")
    k("v_lshlrev_b32 v7, 2, v0")
    for w in range(8):
        k(f"ds_read_b32 v{16+w}, v7 offset:{1024+w*1536}")
    k("s_waitcnt lgkmcnt(0)")
    k("v_add_f32 v16, v16, v17"); k("v_add_f32 v18, v18, v19"); k("v_add_f32 v20, v20, v21"); k("v_add_f32 v22, v22, v23")
    k("v_add_f32 v16, v16, v18"); k("v_add_f32 v20, v20, v22"); k("v_add_f32 v16, v16, v20")
    k(f"s_mul_i32 s37, s35, {6144*4}")
    k("s_mul_i32 s38, s36, 1536")
    k("s_add_u32 s37, s37, s38")
    srd(k, 12, 32, 16*6144*4, off_imm=MODP_OFF)
    k(f"buffer_store_dword v16, v7, s[12:15], s37 offen{sf}")
    k.label(f"{name}_fin")
    st(3)
    st.end(32, 28)
    k("s_endpgm")
    k.label(f"{name}_tab")
    k("v_mov_b32 v0, v2")
    k("s_cmp_gt_u32 s28, 5")
    k(f"s_cbranch_scc1 {name}_end")
    k("s_waitcnt lgkmcnt(0)")
    k("s_cmp_eq_u32 s28, 5")
    k(f"s_cbranch_scc1 {name}_flg")
    k("s_cmp_eq_u32 s28, 4")
    k(f"s_cbranch_scc1 {name}_tabc")
    k("v_lshrrev_b32 v3, 4, v0")
    k("v_and_b32 v4, 15, v0")
    kb_consts(k)
    srd(k, 12, 32, 32768, off_imm=TB_OFF)
    k("v_lshlrev_b32 v5, 4, v0")
    k("s_lshl_b32 s36, s28, 12")
    k("s_add_u32 s36, s36, 16384")
    for q in range(4):
        k(f"buffer_store_dwordx4 v[{72+4*q}:{75+4*q}], v5, s[12:15], s36 offen offset:{q*1024}")
    k("s_lshr_b32 s36, s28, 1")
    k("s_mul_i32 s36, s36, 6144")
    k("s_add_u32 s36, s36, 4096")
    for q in range(6):
        if q == 4: k("s_add_u32 s36, s36, 4096")
        k(f"buffer_store_dwordx4 v[{48+4*q}:{51+4*q}], v5, s[12:15], s36 offen offset:{(q%4)*1024}")
    k("s_mov_b32 s36, 0")
    for q in range(4):
        k(f"buffer_store_dwordx4 v[{32+4*q}:{35+4*q}], v5, s[12:15], s36 offen offset:{q*1024}")
    k("s_endpgm")
    k.label(f"{name}_flg")
    srd(k, 12, 32, 256*128, off_imm=FLAG_OFF)
    k("v_lshlrev_b32 v5, 7, v0")
    k("v_mov_b32 v6, 0")
    for q in range(4):
        k(f"s_mov_b32 s36, {q*8192}")
        k("buffer_store_dword v6, v5, s[12:15], s36 offen")
    k("s_endpgm")
    k.label(f"{name}_tabc")
    kc_consts(k)
    srd(k, 12, 32, 18432, off_imm=TC_OFF)
    k("v_lshlrev_b32 v5, 4, v0")
    k("s_mov_b32 s36, 0")
    for q in range(18):
        k(f"buffer_store_dwordx4 v[{32+4*q}:{35+4*q}], v5, s[12:15], s36 offen offset:{(q%4)*1024}")
        if q % 4 == 3: k("s_add_u32 s36, s36, 4096")
    k.label(f"{name}_end")
    k("s_endpgm")
    k.lds = 1024 + 8*1536; k.grid = 257; k.block = 512; k.vgpr = 128; k.accum = 128
    return k
```

```python
from asmlib import *
from layout import *
from ka_util import f2u, dpp_add, xlane_sum_16_32
import math

def cos_sin(k, dc, ds, n, scale):
    k(f"v_cvt_f32_u32 v{ds}, v{n}")
    k(f"v_mul_f32 v{ds}, {f2u(scale):#x}, v{ds}")
    k(f"v_cos_f32 v{dc}, v{ds}")
    k(f"v_sin_f32 v{ds}, v{ds}")

KB_C1, KB_C3, KB_TW = 32, 48, 72
def kb_consts(k):
    C1, C3, TW, TC, TS = KB_C1, KB_C3, KB_TW, 100, 108
    k("v_lshlrev_b32 v24, 3, v3")
    k("v_mul_u32_u24 v24, v24, v4")
    for e in range(8):
        k("v_and_b32 v25, 31, v24")
        cos_sin(k, TC+e, TS+e, 25, 1.0/32)
        if e < 7: k("v_add_u32 v24, v24, v4")
    k("s_nop 0")
    for d in range(4):
        k(f"v_cvt_pk_bf16_f32 v{C1+d}, v{TC+2*d}, v{TC+2*d+1}")
        k(f"v_cvt_pk_bf16_f32 v{C1+8+d}, -v{TS+2*d}, -v{TS+2*d+1}")
    for d in range(4):
        k(f"v_xor_b32 v{C1+4+d}, 0x80000000, v{C1+d}")
        k(f"v_xor_b32 v{C1+12+d}, 0x80000000, v{C1+8+d}")
    k("s_lshr_b32 s36, s28, 1")
    k("s_lshl_b32 s36, s36, 4")
    k("v_add_u32 v26, s36, v4")
    for e in range(8):
        s2c = 16*(e >> 2) + 4*(e & 3)
        k(f"v_add_u32 v25, {s2c}, v3")
        k("v_mul_u32_u24 v25, v25, v26")
        k("v_and_b32 v25, 63, v25")
        cos_sin(k, TC+e, TS+e, 25, 1.0/64)
    k("v_and_b32 v25, 1, v26")
    k("v_sub_u32 v27, 0, v25")
    k("v_and_b32 v27, 0x80008000, v27")
    for d in range(4):
        k(f"v_cvt_pk_bf16_f32 v{C3+d}, v{TC+2*d}, v{TC+2*d+1}")
        k(f"v_cvt_pk_bf16_f32 v{C3+8+d}, v{TS+2*d}, v{TS+2*d+1}")
    for d in range(4):
        k(f"v_xor_b32 v{C3+4+d}, v27, v{C3+d}")
        k(f"v_xor_b32 v{C3+12+d}, v27, v{C3+8+d}")
    for d in range(8):
        k(f"v_xor_b32 v{C3+16+d}, 0x80008000, v{C3+8+d}")
    k("s_lshl_b32 s36, s28, 4")
    for tau in range(4):
        k(f"v_add_u32 v25, s36, v3")
        if tau: k(f"v_add_u32 v25, {4*tau}, v25")
        for th in range(2):
            k(f"v_add_u32 v27, {16*th}, v4")
            k("v_mul_u32_u24 v27, v25, v27")
            b = TW + (tau*2 + th)*2
            cos_sin(k, b, b+1, 27, 1.0/2048)

def gen_kb(name="kb_kernel", stamps=False, pf=True, sf='', table=True, pfn=2):
    k = Kern(name)
    st = Stamps(k, stamps, 1)
    TOFF = 16384
    C1, C3, TW = KB_C1, KB_C3, KB_TW
    k("s_cmp_ge_u32 s2, 256")
    k(f"s_cbranch_scc1 {name}_end")
    st.start()
    k(f"s_load_dwordx2 s[32:33], s[0:1], {KA['ws']}")
    k(f"s_load_dwordx2 s[4:5], s[0:1], {KA['wg']}")
    k("v_mov_b32 v30, v0")
    k("v_lshrrev_b32 v1, 6, v0")
    k("v_and_b32 v0, 63, v0")
    k("v_readfirstlane_b32 s28, v1")
    k("s_and_b32 s34, s2, 7")
    k("s_lshl_b32 s34, s34, 5")
    k("s_lshr_b32 s35, s2, 3")
    k("s_add_u32 s34, s34, s35")
    k("v_lshlrev_b32 v2, 4, v0")
    k("v_lshrrev_b32 v3, 4, v0")
    k("v_and_b32 v4, 15, v0")
    k("s_lshl_b32 s36, s28, 12")
    k("v_add_u32 v5, s36, v2")
    k("s_lshl_b32 s37, s34, 4")
    k("v_lshrrev_b32 v6, 2, v0")
    k("v_mul_u32_u24 v6, 24576, v6")
    k("v_and_b32 v7, 3, v0")
    k("v_lshl_add_u32 v6, v7, 2, v6")
    k("v_add_u32 v6, s37, v6")
    k("v_add_u32 v7, 4096, v6")
    k("s_mul_i32 s37, s2, 24")
    k("s_mul_i32 s38, s28, 6")
    k("s_add_u32 s37, s37, s38")
    k("v_add_u32 v16, s37, v3")
    k("v_mul_u32_u24 v17, 24576, v4")
    k("v_lshl_add_u32 v17, v16, 2, v17")
    k("s_waitcnt lgkmcnt(0)")
    k("s_lshl_b32 s35, s34, 14")
    srd(k, 8, 32, 16384, off_s="s35", off_imm=XS_OFF)
    k("s_mov_b32 m0, s36")
    srd(k, 56, 32, 32768, off_imm=TB_OFF)
    for q in range(4):
        k(f"buffer_load_dwordx4 v5, s[8:11], 0 offen offset:{q*1024} lds")
    TBL = 49152
    if table:
        k("s_lshl_b32 s36, s28, 13")
        for hq in range(2):
            k(f"s_add_u32 m0, s36, {TBL + hq*4096}")
            k(f"s_add_u32 s37, s36, {hq*4096}")
            for q in range(4):
                k(f"buffer_load_dwordx4 v2, s[56:59], s37 offen offset:{q*1024} lds")
    srd(k, 12, 32, 16*6144*4, off_imm=MODP_OFF)
    k("buffer_load_dword v8, v6, s[12:15], 0 offen")
    k("buffer_load_dword v12, v7, s[12:15], 0 offen")
    k("buffer_load_dword v20, v17, s[12:15], 0 offen")
    k("buffer_load_dword v21, v17, s[12:15], 0 offen offset:16")
    NPF = 0
    k(f"s_mul_i32 s35, s34, {ZROWS*16}")
    srd(k, 16, 32, ZROWS*16, off_s="s35", off_imm=ZS_OFF)
    RA = 88
    k("v_bfe_u32 v25, v0, 2, 2")
    k("v_and_b32 v26, 3, v0")
    k("v_lshlrev_b32 v27, 12, v3")
    k("v_lshlrev_b32 v28, 9, v25")
    k("v_add_u32 v27, v27, v28")
    k("v_lshlrev_b32 v28, 2, v25")
    k("v_add_u32 v28, v28, v26")
    k("v_and_b32 v29, 1, v3")
    k("v_lshlrev_b32 v29, 4, v29")
    k("v_add_u32 v28, v28, v29")
    k("s_lshl_b32 s36, s28, 4")
    k("v_add_u32 v28, s36, v28")
    for tau in range(4):
        k(f"v_add_u32 v29, {4*tau}, v28")
        k("v_and_b32 v29, 63, v29")
        k(f"v_lshl_add_u32 v{RA+tau}, v29, 3, v27")
    k("s_lshr_b32 s36, s28, 1")
    k("s_lshl_b32 s36, s36, 10")
    k("s_and_b32 s37, s28, 1")
    k("s_lshl_b32 s37, s37, 3")
    k("s_add_u32 s36, s36, s37")
    k(f"s_add_u32 s36, s36, {TOFF}")
    k("v_add_u32 v92, s36, v2")
    k("s_and_b32 s36, s28, 1")
    k("s_lshl_b32 s36, s36, 12")
    k(f"s_add_u32 s36, s36, {TOFF}")
    k("v_add_u32 v93, s36, v2")
    k("s_and_b32 s36, s28, 1")
    k("s_lshl_b32 s36, s36, 4")
    k("s_lshr_b32 s37, s28, 1")
    k("s_lshl_b32 s37, s37, 9")
    k("s_add_u32 s36, s36, s37")
    k("v_lshlrev_b32 v94, 7, v3")
    k("v_add_u32 v94, v94, v4")
    k("v_add_u32 v94, s36, v94")
    k("v_lshlrev_b32 v94, 4, v94")
    k("v_and_b32 v25, 1, v3")
    k("v_lshlrev_b32 v25, 31, v25")
    k("v_lshrrev_b32 v26, 16, v25")
    k("v_or_b32 v25, v25, v26")
    k("v_or_b32 v25, 0x3f803f80, v25")
    k("v_cmp_eq_u32 vcc, 0, v4")
    k("s_nop 1")
    k("v_cndmask_b32 v25, 0, v25, vcc")
    NC = 240
    for d in range(4): k(f"v_mov_b32 v{NC+d}, v25")
    if not table: kb_consts(k)
    st(1)
    k(f"s_waitcnt vmcnt(0)")
    k("s_barrier")
    st(2)
    if pf:
        srd(k, 24, 4, D*F*2)
        k("s_lshl_b32 s37, s2, 8")
        k("v_add_u32 v31, s37, v30")
        k("v_lshlrev_b32 v31, 6, v31")
        for i in range(pfn):
            k(f"s_mov_b32 s37, {65536*64*i}")
            k(f"buffer_load_dword v{96+i}, v31, s[24:27], s37 offen")
        NPF = pfn
    if table:
        k("s_lshr_b32 s36, s28, 1")
        k("s_mul_i32 s36, s36, 6144")
        k("v_add_u32 v98, s36, v2")
        k("s_lshl_b32 s36, s28, 12")
        k(f"s_add_u32 s36, s36, {TBL+16384}")
        k("v_add_u32 v99, s36, v2")
        for q in range(4): k(f"ds_read_b128 v[{C1+4*q}:{C1+4*q+3}], v2 offset:{TBL+q*1024}")
    AF = 100
    for tau in range(4):
        for h in range(2):
            k(f"ds_read_b64_tr_b16 v[{AF+4*tau+2*h}:{AF+4*tau+2*h+1}], v{RA+tau} offset:{h*2048}")
    ACC = 128
    def a1(tau, th, ri): return ACC + ((tau*2 + th)*2 + ri)*4
    if table:
        for q in range(4): k(f"ds_read_b128 v[{TW+4*q}:{TW+4*q+3}], v99 offset:{q*1024}")
    for tau in range(4):
        k(f"s_waitcnt lgkmcnt({6-2*tau+(4 if table else 0)})")
        for th in range(2):
            for ri in range(2):
                cb = C1 + ri*8 + th*4
                k(f"v_mfma_f32_16x16x32_bf16 v[{a1(tau,th,ri)}:{a1(tau,th,ri)+3}], v[{AF+4*tau}:{AF+4*tau+3}], v[{cb}:{cb+3}], 0")
    if table:
        for q in range(6): k(f"ds_read_b128 v[{C3+4*q}:{C3+4*q+3}], v98 offset:{TBL+4096+q*1024}")
    dpp_add(k, [8, 12], "row_ror:4")
    dpp_add(k, [8, 12], "row_ror:8")
    k("s_nop 1")
    xlane_sum_16_32(k, [8, 12], [9, 13])
    for r in (8, 12):
        k(f"v_cvt_pk_bf16_f32 v{r}, v{r}, v{r}")
        k(f"v_lshlrev_b32 v{r}, 16, v{r}")
    k("v_add_f32 v13, 1.0, v12")
    k("v_cvt_pk_bf16_f32 v13, v13, v13")
    k("v_lshlrev_b32 v13, 16, v13")
    k(f"v_mul_f32 v8, {f2u(2048.0):#x}, v8")
    if table: k("s_waitcnt lgkmcnt(6)")
    R2 = 192
    def r2(tau, th): return R2 + (tau*2 + th)*4
    def pr(b): return f"v[{b}:{b+1}]"
    TT = 224
    for tau in range(4):
        for th in range(2):
            cs = TW + (tau*2 + th)*2
            tr = a1(tau, th, 0); ti = a1(tau, th, 1); o = r2(tau, th)
            bc = "op_sel:[0,0] op_sel_hi:[1,0]"
            for hq in range(2):
                k(f"v_pk_mul_f32 {pr(o+2*hq)}, {pr(tr+2*hq)}, {pr(cs)} {bc}")
                k(f"v_pk_mul_f32 {pr(TT+2*hq)}, {pr(ti+2*hq)}, {pr(cs)} {bc}")
            bs = "op_sel:[0,1,0] op_sel_hi:[1,1,1]"
            for hq in range(2):
                k(f"v_pk_fma_f32 {pr(o+2*hq)}, {pr(ti+2*hq)}, {pr(cs)}, {pr(o+2*hq)} {bs}")
                k(f"v_pk_fma_f32 {pr(ti+2*hq)}, {pr(tr+2*hq)}, {pr(cs)}, {pr(TT+2*hq)} {bs} neg_lo:[1,0,0] neg_hi:[1,0,0]")
    for dd in range(4):
        k(f"v_readlane_b32 s{44+dd}, v13, {dd}")
        k(f"v_readlane_b32 s{48+dd}, v8, {dd}")
    pk = 8
    idx = 0
    for dd in range(4):
        for th in range(2):
            for ri in range(2):
                p = 100 + (idx % 8) * 2; idx += 1
                src = (lambda tau: r2(tau, th) + dd) if ri == 0 else (lambda tau: a1(tau, th, 1) + dd)
                k(f"v_cvt_pk_bf16_f32 v{p}, v{src(0)}, v{src(1)}")
                k(f"v_cvt_pk_bf16_f32 v{p+1}, v{src(2)}, v{src(3)}")
                k(f"ds_write_b64 v92, v[{p}:{p+1}] offset:{((dd*2+th)*2+ri)*2048}")
    k("s_waitcnt lgkmcnt(0)")
    k("s_barrier")
    BF = 128
    def bfr(dd, ri, m): return BF + ((dd*2 + ri)*2 + m)*4
    for dd in range(4):
        for ri in range(2):
            for m in range(2):
                off = dd*8192 + ri*2048 + m*1024
                k(f"ds_read_b128 v[{bfr(dd,ri,m)}:{bfr(dd,ri,m)+3}], v93 offset:{off}")
    Z = 192
    def z(dd, ri): return Z + (dd*2 + ri)*4
    NQ = 224
    k("v_cmp_eq_u32 vcc, 0, v94")
    for dd in range(4): k(f"v_mov_b32 v{26+dd}, s{48+dd}")
    k("s_nop 1")
    for dd in range(4): k(f"v_cndmask_b32 v{26+dd}, 0, v{26+dd}, vcc")
    def mf(d, a, b, c):
        cs = "0" if c is None else f"v[{c}:{c+3}]"
        k(f"v_mfma_f32_16x16x32_bf16 v[{d}:{d+3}], v[{a}:{a+3}], v[{b}:{b+3}], {cs}")
    for dd in range(4):
        k(f"s_waitcnt lgkmcnt({12-4*dd})")
        mf(z(dd,0), C3+0, bfr(dd,0,0), None)
        mf(z(dd,1), C3+0, bfr(dd,1,0), None)
        mf(NQ+4*dd, NC, bfr(dd,0,0), None)
        mf(z(dd,0), C3+4, bfr(dd,0,1), z(dd,0))
        mf(z(dd,1), C3+4, bfr(dd,1,1), z(dd,1))
        mf(NQ+4*dd, NC, bfr(dd,0,1), NQ+4*dd)
        mf(z(dd,0), C3+8, bfr(dd,1,0), z(dd,0))
        mf(z(dd,1), C3+16, bfr(dd,0,0), z(dd,1))
        mf(z(dd,0), C3+12, bfr(dd,1,1), z(dd,0))
        mf(z(dd,1), C3+20, bfr(dd,0,1), z(dd,1))
    for dd in range(4):
        if dd == 3: k("s_nop 7")
        k(f"v_fma_f32 v{z(dd,0)}, v{z(dd,0)}, s{44+dd}, v{26+dd}")
        for r in range(1, 4): k(f"v_mul_f32 v{z(dd,0)+r}, s{44+dd}, v{z(dd,0)+r}")
        for r in range(4): k(f"v_mul_f32 v{z(dd,1)+r}, s{44+dd}, v{z(dd,1)+r}")
    for r in range(4):
        o = 100 + 4*r
        k(f"v_cvt_pk_bf16_f32 v{o}, v{z(0,0)+r}, v{z(1,0)+r}")
        k(f"v_cvt_pk_bf16_f32 v{o+1}, v{z(2,0)+r}, v{z(3,0)+r}")
        k(f"v_cvt_pk_bf16_f32 v{o+2}, v{z(0,1)+r}, v{z(1,1)+r}")
        k(f"v_cvt_pk_bf16_f32 v{o+3}, v{z(2,1)+r}, v{z(3,1)+r}")
        k(f"buffer_store_dwordx4 v[{o}:{o+3}], v94, s[16:19], 0 offen offset:{r*512}{sf}")
    for ctrl in ("quad_perm:[1,0,3,2]", "quad_perm:[2,3,0,1]", "row_half_mirror", "row_mirror"):
        dpp_add(k, [20, 21], ctrl)
    srd(k, 20, 32, 6144*4, off_imm=MODF_OFF)
    srd(k, 52, 32, 12288, off_imm=MODC_OFF)
    for q in range(2):
        val, idx = 20 + q, 16
        if q == 1: k("v_add_u32 v16, 4, v16")
        k(f"v_cvt_pk_bf16_f32 v{val}, v{val}, v{val}")
        k(f"v_lshlrev_b32 v{val}, 16, v{val}")
        k(f"v_add_f32 v22, 1.0, v{val}")
        k("v_cvt_pk_bf16_f32 v22, v22, v22")
        k("v_lshlrev_b32 v22, 16, v22")
        k("v_lshrrev_b32 v23, 10, v16")
        k("v_cmp_eq_u32 vcc, 1, v23")
        k("v_cmp_eq_u32 s[40:41], 4, v23")
        k("s_or_b64 vcc, vcc, s[40:41]")
        k("s_nop 1")
        k(f"v_cndmask_b32 v{val}, v{val}, v22, vcc")
        k("v_cmp_eq_u32 vcc, 0, v4")
        if q == 1:
            k("v_cmp_gt_u32 s[40:41], 2, v3")
            k("s_and_b64 vcc, vcc, s[40:41]")
        k("s_and_saveexec_b64 s[42:43], vcc")
        k("v_lshlrev_b32 v24, 2, v16")
        k(f"buffer_store_dword v{val}, v24, s[20:23], 0 offen")
        k("v_and_b32 v25, 1023, v16")
        k("v_lshrrev_b32 v26, 5, v25")
        k("v_bfe_u32 v27, v25, 3, 1")
        k("v_lshl_add_u32 v26, v27, 5, v26")
        k("v_lshlrev_b32 v26, 4, v26")
        k("v_and_b32 v27, 3, v25")
        k("v_lshl_add_u32 v26, v27, 2, v26")
        k("v_bfe_u32 v27, v25, 4, 1")
        k("v_bfe_u32 v28, v25, 2, 1")
        k("v_lshl_add_u32 v27, v27, 1, v28")
        k("v_lshl_add_u32 v26, v27, 10, v26")
        k("v_mov_b32 v27, 0x10000")
        k("v_cmp_eq_u32 vcc, 2, v23")
        k("s_nop 1")
        k("v_cndmask_b32 v27, v27, 0, vcc")
        k("v_mov_b32 v28, 4096")
        k("v_cmp_eq_u32 vcc, 4, v23")
        k("s_nop 1")
        k("v_cndmask_b32 v27, v27, v28, vcc")
        k("v_mov_b32 v28, 8192")
        k("v_cmp_eq_u32 vcc, 3, v23")
        k("s_nop 1")
        k("v_cndmask_b32 v27, v27, v28, vcc")
        k("v_add_u32 v26, v26, v27")
        k(f"buffer_store_dword v{val}, v26, s[52:55], 0 offen")
        k("s_mov_b64 exec, s[42:43]")
    st(3)
    k("s_cmp_lg_u32 s28, 0")
    k(f"s_cbranch_scc1 {name}_fin")
    for dd in range(4): k(f"v_mul_f32 v{NQ+4*dd}, s{44+dd}, v{NQ+4*dd}")
    k(f"v_cvt_pk_bf16_f32 v32, v{NQ}, v{NQ+4}")
    k(f"v_cvt_pk_bf16_f32 v33, v{NQ+8}, v{NQ+12}")
    k("v_mov_b32 v34, 0"); k("v_mov_b32 v35, 0")
    k("v_mov_b32 v36, 16384")
    k("s_mov_b64 exec, 1")
    k("buffer_store_dwordx4 v[32:35], v36, s[16:19], 0 offen")
    k.label(f"{name}_fin")
    st.end(32, 28)
    k.label(f"{name}_end")
    k("s_endpgm")
    k.lds = 49152 + 32768; k.grid = 256; k.block = 256
    return k
```

```python
from asmlib import *
from layout import *
from ka_util import f2u, wave_sum
from kb import cos_sin

KC_C1, KC_C3, KC_TW = 32, 56, 72
def kc_consts(k):
    C1, C3, TW, TC, TS = KC_C1, KC_C3, KC_TW, 104, 112
    k("v_lshrrev_b32 v2, 5, v0")
    k("v_and_b32 v3, 31, v0")
    k("v_lshrrev_b32 v6, 4, v3")
    k("v_lshlrev_b32 v6, 4, v6")
    k("v_bfe_u32 v7, v3, 2, 1")
    k("v_lshl_add_u32 v6, v7, 3, v6")
    k("v_bfe_u32 v7, v3, 3, 1")
    k("v_lshl_add_u32 v6, v7, 2, v6")
    k("v_and_b32 v7, 3, v3")
    k("v_add_u32 v6, v6, v7")
    k("v_lshlrev_b32 v10, 3, v2")
    k("v_mul_u32_u24 v10, v10, v6")
    for e in range(8):
        k("v_and_b32 v11, 31, v10")
        cos_sin(k, TC+e, TS+e, 11, 1.0/32)
        if e < 7: k("v_add_u32 v10, v10, v6")
    k("v_and_b32 v11, 1, v6")
    k("v_sub_u32 v12, 0, v11")
    k("v_and_b32 v12, 0x80008000, v12")
    for d in range(4):
        k(f"v_cvt_pk_bf16_f32 v{C1+d}, v{TC+2*d}, v{TC+2*d+1}")
        k(f"v_cvt_pk_bf16_f32 v{C1+8+d}, v{TS+2*d}, v{TS+2*d+1}")
    for d in range(4):
        k(f"v_xor_b32 v{C1+4+d}, v12, v{C1+d}")
        k(f"v_xor_b32 v{C1+12+d}, v12, v{C1+8+d}")
    for d in range(8):
        k(f"v_xor_b32 v{C1+16+d}, 0x80008000, v{C1+8+d}")
    k("v_lshlrev_b32 v10, 2, v2")
    for e in range(8):
        d2c = 8*(e >> 2) + (e & 3)
        k(f"v_add_u32 v11, {d2c}, v10")
        k("v_mul_u32_u24 v11, v11, v3")
        k("v_and_b32 v11, 31, v11")
        cos_sin(k, TC+e, TS+e, 11, 1.0/32)
    k("v_and_b32 v11, 1, v3")
    k("v_sub_u32 v12, 0, v11")
    k("v_and_b32 v12, 0x80008000, v12")
    for d in range(4):
        k(f"v_cvt_pk_bf16_f32 v{C3+d}, v{TC+2*d}, v{TC+2*d+1}")
        k(f"v_cvt_pk_bf16_f32 v{C3+8+d}, v{TS+2*d}, v{TS+2*d+1}")
    for d in range(4):
        k(f"v_xor_b32 v{C3+4+d}, v12, v{C3+d}")
        k(f"v_xor_b32 v{C3+12+d}, v12, v{C3+8+d}")
    for r in range(16):
        d2c = 8*(r >> 2) + (r & 3)
        k(f"v_add_u32 v11, {d2c}, v10")
        k("v_mul_u32_u24 v11, v11, v6")
        cos_sin(k, TW+r, TW+16+r, 11, 1.0/1024)

def gen_kc(name="kc_kernel", stamps=False, pf=True, sf='', pfrows=0, sf2='', xnt=True):
    k = Kern(name)
    st = Stamps(k, stamps, 2)
    xntf = " nt" if xnt else ""
    C1, C3, TW = KC_C1, KC_C3, KC_TW
    TBL = 32768
    HST = TBL + 32768
    k("s_cmp_ge_u32 s2, 256")
    k(f"s_cbranch_scc1 {name}_end")
    st.start()
    k(f"s_load_dwordx2 s[32:33], s[0:1], {KA['ws']}")
    k(f"s_load_dwordx2 s[4:5], s[0:1], {KA['x']}")
    k(f"s_load_dwordx2 s[6:7], s[0:1], {KA['wu']}")
    k(f"s_load_dwordx2 s[42:43], s[0:1], {KA['wg']}")
    k("v_mov_b32 v30, v0")
    k("v_lshrrev_b32 v1, 6, v0")
    k("v_and_b32 v0, 63, v0")
    k("v_readfirstlane_b32 s28, v1")
    k("v_lshrrev_b32 v2, 3, v0")
    k("v_and_b32 v3, 7, v0")
    k("v_lshrrev_b32 v4, 1, v2")
    k("v_sub_u32 v3, v3, v4")
    k("s_lshl_b32 s34, s2, 3")
    k(f"s_mov_b32 s35, {ZROWS*16}")
    k("v_mul_lo_u32 v5, v2, s35")
    for par in range(2):
        k(f"v_subrev_u32 v6, {4*par}, v3")
        k("v_and_b32 v6, 7, v6")
        k("v_add_u32 v6, s34, v6")
        k("v_sub_u32 v7, 2048, v6")
        k("v_min_u32 v6, v6, v7")
        k(f"v_lshl_add_u32 v{8+par}, v6, 4, v5")
    k("v_lshlrev_b32 v5, 4, v0")
    k("v_lshrrev_b32 v2, 5, v0")
    k("v_and_b32 v3, 31, v0")
    k("v_lshlrev_b32 v4, 6, v3")
    k("v_lshl_add_u32 v4, v2, 4, v4")
    k("s_add_u32 s36, s34, s28")
    k("s_lshl_b32 s37, s36, 11")
    k("s_waitcnt lgkmcnt(0)")
    srd(k, 8, 32, 256*ZROWS*16, off_imm=ZS_OFF)
    for q in range(4):
        k(f"s_lshl_b32 s38, s28, 2")
        k(f"s_add_u32 s38, s38, {q}")
        k(f"s_lshl_b32 s39, s38, 10")
        k("s_mov_b32 m0, s39")
        k(f"s_mul_i32 s38, s38, {8*ZROWS*16}")
        k(f"buffer_load_dwordx4 v{8+(q&1)}, s[8:11], s38 offen lds")
    srd(k, 48, 32, 30720, off_imm=TC_OFF)
    k("s_lshl_b32 s38, s28, 12")
    k(f"s_add_u32 m0, s38, {TBL}")
    k("s_nop 0")
    for q in range(4):
        k(f"buffer_load_dwordx4 v5, s[48:51], s38 offen offset:{q*1024} lds")
    srd(k, 16, 4, 2048, off_s="s37")
    XV = 200
    k(f"buffer_load_dwordx4 v[{XV}:{XV+3}], v4, s[16:19], 0 offen{xntf}")
    k(f"buffer_load_dwordx4 v[{XV+4}:{XV+7}], v4, s[16:19], 0 offen offset:32{xntf}")
    MV = 208
    NPF = 0
    srd(k, 20, 32, 2048, off_s="s37", off_imm=X1_OFF)
    srd(k, 24, 32, S*D*2, off_imm=H2_OFF)
    k("v_lshrrev_b32 v10, 4, v0")
    k("v_bfe_u32 v11, v0, 2, 2")
    k("v_and_b32 v12, 3, v0")
    k("v_and_b32 v13, 1, v10")
    k("v_lshl_add_u32 v13, v13, 2, v12")
    k("v_lshrrev_b32 v14, 1, v10")
    k("v_lshl_add_u32 v14, v14, 3, v11")
    k("v_lshlrev_b32 v14, 10, v14")
    k("v_lshl_add_u32 v14, v13, 7, v14")
    k("v_lshrrev_b32 v15, 1, v13")
    k("v_and_b32 v16, 1, v11")
    k("v_lshl_add_u32 v15, v16, 2, v15")
    k("v_add_u32 v15, s28, v15")
    k("v_and_b32 v15, 7, v15")
    k("v_lshl_add_u32 v14, v15, 4, v14")
    k("v_mul_u32_u24 v17, 528, v3")
    k("v_lshl_add_u32 v17, v2, 7, v17")
    k("s_lshl_b32 s38, s28, 4")
    k(f"s_add_u32 s38, s38, {HST}")
    k("v_add_u32 v17, s38, v17")
    k("v_lshrrev_b32 v18, 3, v0")
    k("v_and_b32 v19, 7, v0")
    k("v_lshrrev_b32 v20, 2, v18")
    k("v_and_b32 v21, 3, v18")
    k("v_mul_u32_u24 v22, 528, v20")
    k("v_lshl_add_u32 v22, v21, 7, v22")
    k("v_lshl_add_u32 v22, v19, 4, v22")
    k(f"s_mul_i32 s38, s28, {4*528}")
    k(f"s_add_u32 s38, s38, {HST}")
    k("v_add_u32 v22, s38, v22")
    k("v_lshlrev_b32 v23, 14, v20")
    k("v_lshl_add_u32 v23, v21, 8, v23")
    k("v_lshl_add_u32 v23, v19, 4, v23")
    k("s_lshr_b32 s38, s34, 8")
    k("s_lshl_b32 s38, s38, 19")
    k("s_lshr_b32 s39, s34, 4")
    k("s_and_b32 s39, s39, 15")
    k("s_lshl_b32 s39, s39, 10")
    k("s_add_u32 s38, s38, s39")
    k("s_and_b32 s39, s34, 15")
    k("s_lshl_b32 s39, s39, 4")
    k("s_add_u32 s38, s38, s39")
    k("s_lshl_b32 s39, s28, 16")
    k("s_add_u32 s41, s38, s39")
    k("s_cmp_gt_u32 s36, 1024")
    k("s_cselect_b32 s40, 0x80008000, 0")
    st(1)
    k(f"s_waitcnt vmcnt(0)")
    k("s_barrier")
    st(2)
    if pf and pfrows == 0:
        srd(k, 44, 6, D*F*2)
        k("s_lshl_b32 s38, s2, 9")
        k("v_add_u32 v31, s38, v30")
        k("v_lshlrev_b32 v31, 6, v31")
        k("buffer_load_dword v120, v31, s[44:47], 0 offen")
        NPF = 1
    elif pf:
        n = pfrows * 7168 // 64 // 256
        srd(k, 44, 6, pfrows * 7168)
        srd(k, 52, 42, pfrows * 7168)
        k(f"s_mul_i32 s38, s2, {n}")
        k("v_add_u32 v31, s38, v30")
        k("v_lshlrev_b32 v31, 6, v31")
        k(f"v_cmp_gt_u32 vcc, {n}, v30")
        k("v_bfrev_b32 v121, 1")
        k("s_nop 1")
        k("v_cndmask_b32 v31, v121, v31, vcc")
        k("buffer_load_dword v120, v31, s[44:47], 0 offen")
        k("buffer_load_dword v121, v31, s[52:55], 0 offen")
        NPF = 2
    ZF = 104
    for pl in range(2):
        for m in range(2):
            for h in range(2):
                b = ZF + (pl*2 + m)*4 + 2*h
                k(f"ds_read_b64_tr_b16 v[{b}:{b+1}], v14 offset:{h*4096 + m*16384 + pl*8}")
    for q in range(6):
        k(f"ds_read_b128 v[{32+4*q}:{35+4*q}], v5 offset:{TBL + q*1024}")
    k("s_waitcnt lgkmcnt(0)")
    for d in range(8): k(f"v_xor_b32 v{ZF+8+d}, s40, v{ZF+8+d}")
    TR, TI = 128, 144
    def mf(d, a, b, c):
        cs = "0" if c is None else f"v[{c}:{c+15}]"
        k(f"v_mfma_f32_32x32x16_bf16 v[{d}:{d+15}], v[{a}:{a+3}], v[{b}:{b+3}], {cs}")
    zr = lambda m: ZF + m*4
    zi = lambda m: ZF + 8 + m*4
    k("s_nop 1")
    mf(TR, zr(0), C1+0, None)
    mf(TI, zr(0), C1+16, None)
    mf(TR, zr(1), C1+4, TR)
    mf(TI, zr(1), C1+20, TI)
    mf(TR, zi(0), C1+8, TR)
    mf(TI, zi(0), C1+0, TI)
    mf(TR, zi(1), C1+12, TR)
    mf(TI, zi(1), C1+4, TI)
    for q in list(range(10, 18)) + list(range(6, 10)):
        k(f"ds_read_b128 v[{32+4*q}:{35+4*q}], v5 offset:{TBL + q*1024}")
    XF = 176
    for d in range(8):
        k(f"v_lshlrev_b32 v{XF+2*d}, 16, v{XV+d}")
        k(f"v_and_b32 v{XF+2*d+1}, 0xffff0000, v{XV+d}")
    k("s_waitcnt lgkmcnt(4)")
    for q in range(12):
        k(f"ds_read_b128 v[{MV+4*q}:{MV+4*q+3}], v5 offset:{TBL + 18432 + q*1024}")
    def pr(b): return f"v[{b}:{b+1}]"
    PRr, PIi = 160, 192
    for q in range(8):
        k(f"v_pk_mul_f32 {pr(PRr+2*q)}, {pr(TR+2*q)}, {pr(TW+2*q)}")
    for q in range(8):
        k(f"v_pk_fma_f32 {pr(PRr+2*q)}, {pr(TI+2*q)}, {pr(TW+16+2*q)}, {pr(PRr+2*q)}")
    for q in range(8):
        k(f"v_pk_mul_f32 {pr(TI+2*q)}, {pr(TI+2*q)}, {pr(TW+2*q)}")
    for q in range(8):
        k(f"v_pk_fma_f32 {pr(TI+2*q)}, {pr(TR+2*q)}, {pr(TW+16+2*q)}, {pr(TI+2*q)} neg_lo:[1,0,0] neg_hi:[1,0,0]")
    PR, PI = 104, 112
    for d in range(8):
        k(f"v_cvt_pk_bf16_f32 v{PR+d}, v{PRr+2*d}, v{PRr+2*d+1}")
        k(f"v_cvt_pk_bf16_f32 v{PI+d}, v{TI+2*d}, v{TI+2*d+1}")
    Y = 128
    k("s_waitcnt lgkmcnt(12)")
    mf(Y, PR+0, C3+0, None)
    mf(Y, PR+4, C3+4, Y)
    mf(Y, PI+0, C3+8, Y)
    mf(Y, PI+4, C3+12, Y)
    k("s_nop 15")
    k("s_waitcnt lgkmcnt(0)")
    for q in range(8):
        k(f"v_pk_fma_f32 {pr(XF+2*q)}, {pr(Y+2*q)}, {pr(MV+2*q)}, {pr(XF+2*q)}")
    for d in range(8):
        k(f"v_cvt_pk_bf16_f32 v{XV+d}, v{XF+2*d}, v{XF+2*d+1}")
    k(f"buffer_store_dwordx4 v[{XV}:{XV+3}], v4, s[20:23], 0 offen{sf}")
    k(f"buffer_store_dwordx4 v[{XV+4}:{XV+7}], v4, s[20:23], 0 offen offset:32{sf}")
    for d in range(8):
        k(f"v_lshlrev_b32 v{XF+2*d}, 16, v{XV+d}")
        k(f"v_and_b32 v{XF+2*d+1}, 0xffff0000, v{XV+d}")
    k(f"v_pk_add_f32 v[10:11], {pr(XF)}, {pr(XF+2)}")
    k(f"v_pk_mul_f32 v[12:13], {pr(XF)}, {pr(XF)}")
    for q in range(1, 8):
        if q > 1: k(f"v_pk_add_f32 v[10:11], v[10:11], {pr(XF+2*q)}")
        k(f"v_pk_fma_f32 v[12:13], {pr(XF+2*q)}, {pr(XF+2*q)}, v[12:13]")
    k("v_add_f32 v10, v10, v11")
    k("v_add_f32 v12, v12, v13")
    wave_sum(k, [10, 12], [11, 13])
    k(f"v_mul_f32 v10, {f2u(1.0/1024):#x}, v10")
    k(f"v_mul_f32 v12, {f2u(1.0/1024):#x}, v12")
    k("v_fma_f32 v12, -v10, v10, v12")
    k("v_max_f32 v12, 0, v12")
    k(f"v_add_f32 v12, {f2u(1e-5):#x}, v12")
    k("v_rsq_f32 v12, v12")
    k("v_sub_f32 v10, 0, v10")
    bc = "op_sel:[0,0] op_sel_hi:[1,0]"
    for q in range(8): k(f"v_pk_add_f32 {pr(XF+2*q)}, {pr(XF+2*q)}, v[10:11] {bc}")
    for q in range(8): k(f"v_pk_mul_f32 {pr(XF+2*q)}, {pr(XF+2*q)}, v[12:13] {bc}")
    for q in range(8): k(f"v_pk_fma_f32 {pr(XF+2*q)}, {pr(XF+2*q)}, {pr(MV+16+2*q)}, {pr(MV+32+2*q)}")
    for d in range(8):
        k(f"v_cvt_pk_bf16_f32 v{160+d}, v{XF+2*d}, v{XF+2*d+1}")
    k("ds_write_b128 v17, v[160:163]")
    k("ds_write_b128 v17, v[164:167] offset:256")
    k("s_waitcnt lgkmcnt(0)")
    k("s_barrier")
    k("ds_read_b128 v[168:171], v22")
    k(f"ds_read_b128 v[172:175], v22 offset:{2*528}")
    k("s_add_u32 s42, s41, 32768")
    k("s_waitcnt lgkmcnt(1)")
    k(f"buffer_store_dwordx4 v[168:171], v23, s[24:27], s41 offen{sf2}")
    k("s_waitcnt lgkmcnt(0)")
    k(f"buffer_store_dwordx4 v[172:175], v23, s[24:27], s42 offen{sf2}")
    st(3)
    st.end(32, 28)
    k.label(f"{name}_end")
    k("s_endpgm")
    k.lds = HST + 32*528; k.grid = 256; k.block = 512
    return k
```

```python
class Kern:
    def __init__(self, name):
        self.name = name
        self.lines = []
        self.nlab = 0
        self.vgpr = 256
        self.sgpr = 102
        self.accum = 256
    def __call__(self, s):
        for l in s.split("\n"):
            l = l.strip()
            if l:
                self.lines.append("  " + l)
    def c(self, s):
        self.lines.append("  ; " + s)
    def label(self, l):
        self.lines.append(l + ":")
    def newlabel(self, base="L"):
        self.nlab += 1
        return f"{self.name}_{base}{self.nlab}"
    def text(self):
        out = []
        out.append(f".globl {self.name}")
        out.append(".p2align 8")
        out.append(f".type {self.name},@function")
        out.append(f"{self.name}:")
        out += self.lines
        return "\n".join(out) + "\n"
    def desc(self):
        return f""".p2align 6
.amdhsa_kernel {self.name}
  .amdhsa_next_free_vgpr {self.vgpr}
  .amdhsa_next_free_sgpr {self.sgpr}
  .amdhsa_accum_offset {self.accum}
  .amdhsa_group_segment_fixed_size 0
  .amdhsa_kernarg_size 112
  .amdhsa_user_sgpr_count 2
  .amdhsa_user_sgpr_kernarg_segment_ptr 1
  .amdhsa_system_sgpr_workgroup_id_x 1
  .amdhsa_float_denorm_mode_32 3
  .amdhsa_float_denorm_mode_16_64 3
.end_amdhsa_kernel
"""

def vr(base, n=1):
    return f"v{base}" if n == 1 else f"v[{base}:{base+n-1}]"
def sr(base, n=1):
    return f"s{base}" if n == 1 else f"s[{base}:{base+n-1}]"

KA = dict(x=0, wsr=8, wsi=16, wdr=24, wdi=32, bx=40, wg=48, wu=56, wd=64, c=72, wmod=80, out=88, dbg=96, ws=104)

def srd(k, d, base, nbytes, off_s=None, off_imm=0):
    if off_s is None and off_imm == 0:
        k(f"s_mov_b32 s{d}, s{base}")
        k(f"s_mov_b32 s{d+1}, s{base+1}")
    else:
        if off_s is not None:
            k(f"s_add_u32 s{d}, s{base}, {off_s}")
            k(f"s_addc_u32 s{d+1}, s{base+1}, 0")
            if off_imm:
                k(f"s_add_u32 s{d}, s{d}, {off_imm:#x}")
                k(f"s_addc_u32 s{d+1}, s{d+1}, 0")
        else:
            k(f"s_add_u32 s{d}, s{base}, {off_imm:#x}")
            k(f"s_addc_u32 s{d+1}, s{base+1}, 0")
    if isinstance(nbytes, int):
        k(f"s_mov_b32 s{d+2}, {nbytes:#x}")
    else:
        k(f"s_mov_b32 s{d+2}, {nbytes}")
    k(f"s_mov_b32 s{d+3}, 0x20000")

def build_file(header_comment, launches, kernels):
    out = []
    out.append(header_comment.rstrip("\n"))
    for (name, grid, block, lds) in launches:
        out.append(f"; @launch kernel={name} grid=({grid},1,1) block=({block},1,1) lds={lds}")
    out.append('.amdgcn_target "amdgcn-amd-amdhsa--gfx950"')
    out.append(".text")
    for k in kernels:
        out.append(k.text())
    out.append("code_end_label:")
    out.append('.section .rodata,"a"')
    for k in kernels:
        out.append(k.desc())
    return "\n".join(out)

B128_GROUPS = [list(range(0,4))+list(range(12,16))+list(range(20,28)),
               list(range(4,12))+list(range(16,20))+list(range(28,32)),
               list(range(32,36))+list(range(44,48))+list(range(52,60)),
               list(range(36,44))+list(range(48,52))+list(range(60,64))]
def conflicts_b128(addr):
    worst = 1
    for grp in B128_GROUPS:
        banks = {}
        for l in grp:
            for d in range(4):
                a = addr[l] + 4*d
                banks.setdefault((a//4) % 64, set()).add(a//4)
        worst = max(worst, max(len(s) for s in banks.values()))
    return worst
def conflicts_b64(addr):
    worst = 1
    for grp in (range(0,32), range(32,64)):
        banks = {}
        for l in grp:
            for d in range(2):
                a = addr[l] + 4*d
                banks.setdefault((a//4) % 64, set()).add(a//4)
        worst = max(worst, max(len(s) for s in banks.values()))
    return worst

STAMP_OFF = 0x8000000
class Stamps:
    def __init__(self, k, on, region=0):
        self.k = k; self.on = on; self.region = region
    def start(self):
        if self.on:
            self.k("s_memtime s[60:61]"); self.k("s_memrealtime s[70:71]")
    def __call__(self, i, wait=True):
        if self.on:
            self.k(f"s_memtime s[{60+2*i}:{61+2*i}]")
            if wait: self.k("s_waitcnt lgkmcnt(0)")
    def end(self, wsptr, sW, idreg="s2"):
        if not self.on: return
        k = self.k
        k("s_waitcnt vmcnt(0) lgkmcnt(0)")
        k("s_memtime s[68:69]")
        k("s_memrealtime s[72:73]")
        k("s_waitcnt lgkmcnt(0)")
        k("s_mov_b64 exec, -1")
        srd(k, 76, wsptr, 1 << 20, off_imm=STAMP_OFF + self.region * (1 << 20))
        k(f"s_lshl_b32 s80, {idreg}, 3")
        k(f"s_add_u32 s80, s80, s{sW}")
        k("s_lshl_b32 s80, s80, 6")
        for i in range(14):
            k(f"v_mov_b32 v{32+i}, s{60+i}")
        k("v_mov_b32 v31, 0")
        k("s_mov_b64 exec, 1")
        for i in range(0, 14, 2):
            k(f"buffer_store_dwordx2 v[{32+i}:{33+i}], v31, s[76:79], s80 offen offset:{i*4}")
        k("s_waitcnt vmcnt(0)")


class DbgStamp:
    def __init__(self, k, idx, on):
        self.k, self.i, self.on = k, idx, on
    def start(self):
        if not self.on: return
        k = self.k
        k("s_memrealtime s[84:85]")
        k("s_load_dwordx2 s[86:87], s[0:1], 96")
    def end(self, vt=250):
        if not self.on: return
        k = self.k
        k("s_waitcnt vmcnt(0) lgkmcnt(0)")
        k("s_memrealtime s[92:93]")
        k(f"s_sub_u32 s88, s86, {512*self.i}")
        k("s_subb_u32 s89, s87, 0")
        k("s_mov_b32 s90, 64")
        k("s_mov_b32 s91, 0x20000")
        k("s_waitcnt lgkmcnt(0)")
        k("s_mov_b64 exec, 1")
        k(f"v_mov_b32 v{vt}, s92")
        k(f"v_mov_b32 v{vt+1}, {8*self.i+4}")
        k(f"buffer_atomic_umax v{vt}, v{vt+1}, s[88:91], 0 offen")
        k("s_not_b32 s84, s84")
        k(f"v_mov_b32 v{vt+2}, s84")
        k(f"v_mov_b32 v{vt+3}, {8*self.i}")
        k(f"buffer_atomic_umax v{vt+2}, v{vt+3}, s[88:91], 0 offen")
        k("s_waitcnt vmcnt(0)")
```

```python
from mk_all import *
import re
ks = [gen_ka("ka_kernel", xnt=False), gen_kb("kb_kernel", sf=" sc1", table=False), gen_kc("kc_kernel", xnt=False), gen_gemm3b("g3_kernel", sf=" sc1", sf2=" sc1"), gen_gemm4b("g4_kernel")]
for i, k in enumerate(ks):
    vt = 120 if k.vgpr <= 128 else 250
    lines = k.lines
    j = next(n for n, l in enumerate(lines) if "s_cbranch_scc1" in l and l.strip().endswith("_end"))
    t = Kern("t"); d = DbgStamp(t, i, True); d.start(); st_lines = t.lines
    t = Kern("t"); d = DbgStamp(t, i, True); d.end(vt); en_lines = t.lines
    new = lines[:j+1] + st_lines
    rest = lines[j+1:]
    for n, l in enumerate(rest):
        if l.strip() == "s_endpgm" and not (n > 0 and rest[n-1].endswith("_end:")):
            new += en_lines
        if l.endswith("_end:") and k.name in ("kb_kernel", "kc_kernel"):
            new += en_lines
        new.append(l)
    k.lines = new
build("dbg.s", ks)
```

```python
from mk_all import *
DB = 0x90000
ks = [gen_ka("ka_kernel", xnt=False), gen_kb("kb_kernel", sf=" sc1", table=False), gen_kc("kc_kernel", xnt=False), gen_gemm3b("g3_kernel", sf=" sc1", sf2=" sc1"), gen_gemm4b("g4_kernel")]
def start_lines(i):
    t = Kern("t")
    t("s_memrealtime s[84:85]")
    t("s_load_dwordx2 s[86:87], s[0:1], 104")
    t("s_load_dwordx2 s[82:83], s[0:1], 96")
    t("s_mov_b32 s81, s2")
    t("v_readfirstlane_b32 s94, v0")
    return t.lines
def end_lines(i, vt, name, uid):
    t = Kern("t")
    lab = f"{name}_dbgskip{uid}"
    t("s_cmp_lg_u32 s81, 0")
    t(f"s_cbranch_scc1 {lab}")
    t("s_cmp_gt_u32 s94, 63")
    t(f"s_cbranch_scc1 {lab}")
    t("s_waitcnt vmcnt(0) lgkmcnt(0)")
    t("s_memrealtime s[92:93]")
    srd(t, 88, 86, 64, off_imm=DB)
    t("s_waitcnt lgkmcnt(0)")
    t("s_mov_b64 exec, 1")
    t(f"v_mov_b32 v{vt}, s84")
    t(f"v_mov_b32 v{vt+1}, s92")
    t(f"v_mov_b32 v{vt+2}, {8*i}")
    t(f"buffer_store_dwordx2 v[{vt}:{vt+1}], v{vt+2}, s[88:91], 0 offen")
    t("s_waitcnt vmcnt(0)")
    if i == 4:
        t("s_mov_b64 exec, 0xffff")
        t(f"v_mbcnt_lo_u32_b32 v{vt}, -1, 0")
        t(f"v_lshlrev_b32 v{vt}, 2, v{vt}")
        t(f"buffer_load_dword v{vt+1}, v{vt}, s[88:91], 0 offen sc1")
        t("s_mov_b32 s88, s82"); t("s_mov_b32 s89, s83"); t("s_mov_b32 s90, 64"); t("s_mov_b32 s91, 0x20000")
        t("s_waitcnt vmcnt(0)")
        t(f"buffer_store_dword v{vt+1}, v{vt}, s[88:91], 0 offen")
        t("s_sub_u32 s88, s82, 2048"); t("s_subb_u32 s89, s83, 0")
        t(f"buffer_store_dword v{vt+1}, v{vt}, s[88:91], 0 offen")
        t("s_waitcnt vmcnt(0)")
    t.lines.append(lab + ":")
    return t.lines
for i, k in enumerate(ks):
    vt = 120 if k.vgpr <= 128 else 248
    lines = k.lines
    j = next(n for n, l in enumerate(lines) if "s_cbranch_scc1" in l and l.strip().endswith("_end"))
    new = lines[:j+1] + start_lines(i)
    rest = lines[j+1:]
    uid = 0
    for n, l in enumerate(rest):
        if l.strip() == "s_endpgm" and not (n > 0 and rest[n-1].endswith("_end:")):
            uid += 1; new += end_lines(i, vt, k.name, uid)
        if l.endswith("_end:") and k.name in ("kb_kernel", "kc_kernel"):
            uid += 1; new += end_lines(i, vt, k.name, uid)
        new.append(l)
    k.lines = new
build("dbg.s", ks)
```

```python
from asmlib import *
from layout import *

def gen_gemm4b(name="g4_kernel", NS=4, stamps=False, nomfma=False, wf='', af='', sf='', rd_per=1.0, spin_max=1 << 20, wsflag=True, fine=False, waveflag=False, latex=True, noW=False, noA=False, etmap=0, nords=False, cprio=None, rdper=1, rdskip=0, nobar=False):
    k = Kern(name)
    stp = Stamps(k, stamps, 4)
    PA = 1056
    AREG = 16 * PA
    STAGE = AREG + 16 * 1024
    NK = 28
    SRD_W, SRD_A, SRD_O, SRD_X, SRD_M, SRD_PW, SRD_PR, SRD_D = 8, 12, 16, 20, 24, 44, 48, 52
    sW, sKW, sKA, sCNT, sRD, sDM, sH = 28, 29, 30, 31, 40, 41, 56
    k("s_cmp_ge_u32 s2, 256")
    k(f"s_cbranch_scc1 {name}_end")
    stp.start()
    k(f"s_load_dwordx2 s[4:5], s[0:1], {KA['wd']}")
    k(f"s_load_dwordx2 s[6:7], s[0:1], {KA['out']}")
    k(f"s_load_dwordx2 s[32:33], s[0:1], {KA['ws']}")
    k(f"s_load_dwordx2 s[58:59], s[0:1], {KA['dbg']}")
    k("v_lshrrev_b32 v1, 6, v0")
    k("v_and_b32 v0, 63, v0")
    k(f"v_readfirstlane_b32 s{sW}, v1")
    k("s_and_b32 s34, s2, 7")
    k("s_lshr_b32 s35, s2, 3")
    k(f"s_and_b32 s{sH}, s35, 1")
    k("s_lshr_b32 s35, s35, 1")
    if etmap == 0:
        k("s_and_b32 s36, s34, 1")
        k("s_lshl_b32 s36, s36, 2")
        k("s_and_b32 s37, s35, 3")
        k("s_add_u32 s36, s36, s37")
    else:
        k("s_and_b32 s36, s35, 3")
        k("s_lshl_b32 s36, s36, 1")
        k("s_and_b32 s37, s34, 1")
        k("s_add_u32 s36, s36, s37")
    k("s_lshr_b32 s37, s34, 1")
    k("s_lshl_b32 s37, s37, 2")
    k("s_lshr_b32 s38, s35, 2")
    k("s_add_u32 s37, s37, s38")
    k("v_lshrrev_b32 v16, 4, v0")
    k("v_lshlrev_b32 v3, 4, v0")
    k(f"s_cmp_ge_u32 s{sW}, 4")
    k(f"s_cbranch_scc1 {name}_prod")
    vRA, vRB0, vRB2, vRAc, vRB0c, vRB2c = 4, 5, 6, 7, 8, 9
    FR = [32, 96]
    ACC = 160
    def Af(s, ks, a): return FR[s] + (ks * 4 + a) * 4
    def Bf(s, ks, p): return FR[s] + 32 + (ks * 4 + p) * 4
    def acc(p, a): return ACC + (p * 4 + a) * 4
    k("v_and_b32 v17, 1, v16")
    k("v_lshlrev_b32 v17, 2, v17")
    k("v_bfe_u32 v18, v0, 2, 2")
    k("v_add_u32 v17, v17, v18")
    k(f"s_mov_b32 s39, {PA}")
    k("v_mul_lo_u32 v17, v17, s39")
    k("v_lshrrev_b32 v18, 1, v16")
    k("v_lshlrev_b32 v18, 8, v18")
    k("v_add_u32 v17, v17, v18")
    k("v_and_b32 v18, 3, v0")
    k("v_lshlrev_b32 v18, 3, v18")
    k("v_add_u32 v17, v17, v18")
    k(f"s_and_b32 s39, s{sW}, 1")
    k("s_lshl_b32 s39, s39, 7")
    k(f"v_add_u32 v{vRA}, s39, v17")
    k(f"s_lshr_b32 s39, s{sW}, 1")
    k("s_lshl_b32 s39, s39, 13")
    k(f"s_add_u32 s39, s39, {AREG}")
    k(f"s_lshl_b32 s38, s{sH}, 11")
    k("s_add_u32 s42, s39, s38")
    k(f"v_add_u32 v{vRB0}, s42, v3")
    k("s_xor_b32 s38, s38, 2048")
    k("s_add_u32 s42, s39, s38")
    k(f"v_add_u32 v{vRB2}, s42, v3")
    for r in range(4): k(f"v_mov_b32 v{24+r}, 0")
    k("s_nop 1")
    for r in range(0, 64, 16):
        k(f"v_mfma_f32_32x32x16_bf16 v[{ACC+r}:{ACC+r+15}], v[24:27], v[24:27], 0")
    vXO, vGO = 10, 11
    k("v_and_b32 v17, 15, v0")
    k("v_lshlrev_b32 v17, 11, v17")
    k("v_and_b32 v18, 1, v16")
    k("v_lshlrev_b32 v18, 5, v18")
    k("v_add_u32 v17, v17, v18")
    k("v_lshrrev_b32 v18, 1, v16")
    k("v_lshlrev_b32 v18, 4, v18")
    k("v_add_u32 v17, v17, v18")
    k(f"s_and_b32 s39, s{sW}, 1")
    k("s_lshl_b32 s39, s39, 7")
    k(f"s_lshr_b32 s38, s{sW}, 1")
    k("s_lshl_b32 s38, s38, 17")
    k("s_add_u32 s39, s39, s38")
    k(f"s_lshl_b32 s38, s{sH}, 16")
    k("s_add_u32 s39, s39, s38")
    k(f"v_add_u32 v{vXO}, s39, v17")
    k("v_and_b32 v17, 1, v16")
    k("v_lshlrev_b32 v17, 6, v17")
    k("v_lshrrev_b32 v18, 1, v16")
    k("v_lshlrev_b32 v18, 5, v18")
    k("v_add_u32 v17, v17, v18")
    k(f"s_and_b32 s39, s{sW}, 1")
    k("s_lshl_b32 s39, s39, 8")
    k(f"v_add_u32 v{vGO}, s39, v17")
    k("s_waitcnt lgkmcnt(0)")
    k("s_lshl_b32 s39, s37, 18")
    k("s_lshl_b32 s38, s36, 8")
    k("s_add_u32 s39, s39, s38")
    k(f"s_sub_u32 s38, {S*D*2}, s39")
    srd(k, SRD_O, 6, "s38", off_s="s39")
    srd(k, SRD_X, 32, "s38", off_s="s39", off_imm=X1_OFF)
    k("s_lshl_b32 s39, s36, 9")
    srd(k, SRD_M, 32, 512, off_s="s39", off_imm=MODF_OFF + 5 * 4096)
    k("s_lshl_b32 s39, s37, 3")
    k("s_add_u32 s39, s39, s36")
    k("s_lshl_b32 s39, s39, 1")
    k(f"s_xor_b32 s38, s{sH}, 1")
    k("s_add_u32 s38, s38, s39")
    k("s_lshl_b32 s38, s38, 2")
    k(f"s_add_u32 s38, s38, s{sW}")
    k("s_lshl_b32 s38, s38, 13")
    srd(k, SRD_PW, 32, 8192, off_s="s38", off_imm=PART_OFF)
    k(f"s_add_u32 s38, s39, s{sH}")
    k("s_lshl_b32 s38, s38, 2")
    k(f"s_add_u32 s38, s38, s{sW}")
    k("s_lshl_b32 s38, s38, 13")
    srd(k, SRD_PR, 32, 8192, off_s="s38", off_imm=PART_OFF)
    if wsflag: srd(k, SRD_D, 32, 256*128, off_imm=FLAG_OFF)
    else: srd(k, SRD_D, 58, 256)
    XR = 224
    GB = 240
    def xloads():
        for p in range(2):
            for pp in range(2):
                k(f"s_mov_b32 s38, {p*16*2048}")
                k(f"buffer_load_dwordx4 v[{XR+(p*2+pp)*4}:{XR+(p*2+pp)*4+3}], v{vXO}, s[{SRD_X}:{SRD_X+3}], s38 offen offset:{pp*64}")
        for pp in range(2):
            k(f"buffer_load_dwordx4 v[{GB+pp*8}:{GB+pp*8+3}], v{vGO}, s[{SRD_M}:{SRD_M+3}], 0 offen offset:{pp*128}")
            k(f"buffer_load_dwordx4 v[{GB+pp*8+4}:{GB+pp*8+7}], v{vGO}, s[{SRD_M}:{SRD_M+3}], 0 offen offset:{pp*128+16}")
    if not latex: xloads()
    def reads(setn):
        out = []
        for ks in range(2):
            A = []
            for a in range(4):
                for h in range(2):
                    off = ks * 8 * PA + a * 32 + h * 512
                    A.append(f"ds_read_b64_tr_b16 v[{Af(setn,ks,a)+2*h}:{Af(setn,ks,a)+2*h+1}], v{vRAc} offset:{off}")
            B = []
            for p in range(4):
                base = vRB0c if p < 2 else vRB2c
                off = ks * 4096 + (p & 1) * 1024
                B.append(f"ds_read_b128 v[{Bf(setn,ks,p)}:{Bf(setn,ks,p)+3}], v{base} offset:{off}")
            out += [B[0]] + A[:2] + [B[1]] + A[2:4] + [B[2]] + A[4:6] + [B[3]] + A[6:]
        return out
    def setaddr():
        k(f"v_add_u32 v{vRAc}, s{sRD}, v{vRA}")
        k(f"v_add_u32 v{vRB0c}, s{sRD}, v{vRB0}")
        k(f"v_add_u32 v{vRB2c}, s{sRD}, v{vRB2}")
    k(f"s_mov_b32 s{sRD}, 0")
    setaddr()
    k("s_barrier")
    if not fine: stp(1)
    for r in reads(0): k(r)
    if latex: xloads()
    k(f"s_mov_b32 s{sRD}, {STAGE}")
    setaddr()
    k(f"s_mov_b32 s{sCNT}, {NK//2}")
    if cprio is not None: k(f"s_setprio {cprio}")
    loop = f"{name}_cloop"
    k.label(loop)
    for u in range(2):
        cur = u; nxt = u ^ 1
        rd = reads(nxt)
        order = [(ks, p, a) for ks in range(2) for p in range(4) for a in range(4)]
        k("s_waitcnt lgkmcnt(0)")
        k("s_barrier")
        ri = 0
        for idx, (ks, p, a) in enumerate(order):
            if not nomfma:
                k(f"v_mfma_f32_16x16x32_bf16 v[{acc(p,a)}:{acc(p,a)+3}], v[{Af(cur,ks,a)}:{Af(cur,ks,a)+3}], v[{Bf(cur,ks,p)}:{Bf(cur,ks,p)+3}], v[{acc(p,a)}:{acc(p,a)+3}]")
            if idx >= rdskip:
                for _ in range(rdper):
                    if ri < len(rd):
                        if not nords: k(rd[ri])
                        ri += 1
            if idx == 25:
                k(f"s_add_u32 s{sRD}, s{sRD}, {STAGE}")
                k(f"s_cmp_eq_u32 s{sRD}, {NS*STAGE}")
                k(f"s_cselect_b32 s{sRD}, 0, s{sRD}")
            if idx == 27: setaddr()
    k(f"s_sub_u32 s{sCNT}, s{sCNT}, 1")
    k(f"s_cmp_lg_u32 s{sCNT}, 0")
    k(f"s_cbranch_scc1 {loop}")
    stp(1 if fine else 2)
    k("s_nop 7")
    for p in (2, 3):
        for a in range(4):
            j = (p - 2) * 4 + a
            so = "0" if j < 4 else "s39"
            if j == 4: k("s_mov_b32 s39, 4096")
            k(f"buffer_store_dwordx4 v[{acc(p,a)}:{acc(p,a)+3}], v3, s[{SRD_PW}:{SRD_PW+3}], {so} offen offset:{(j&3)*1024} sc1")
    if waveflag:
        k("s_waitcnt vmcnt(0) lgkmcnt(0)")
        if fine: stp(2)
        k("s_lshl_b32 s38, s2, 7")
        k(f"s_lshl_b32 s39, s{sW}, 4")
        k("s_add_u32 s38, s38, s39")
        k("v_mov_b32 v20, 1")
        k("v_mov_b32 v21, s38")
        k("s_mov_b64 exec, 1")
        k(f"buffer_store_dword v20, v21, s[{SRD_D}:{SRD_D+3}], 0 offen sc1")
        k("s_xor_b32 s38, s38, 1024")
        k("v_mov_b32 v21, s38")
        k(f"s_mov_b32 s43, {spin_max}")
        k.label(f"{name}_poll")
        k(f"buffer_load_dword v22, v21, s[{SRD_D}:{SRD_D+3}], 0 offen sc1")
        k("s_waitcnt vmcnt(0)")
        k("v_readfirstlane_b32 s42, v22")
        k("s_cmp_lg_u32 s42, 0")
        k(f"s_cbranch_scc1 {name}_got")
        k("s_sub_u32 s43, s43, 1")
        k("s_cmp_lg_u32 s43, 0")
        k(f"s_cbranch_scc0 {name}_got")
        k("s_sleep 1")
        k(f"s_branch {name}_poll")
        k.label(f"{name}_got")
        k("s_mov_b64 exec, -1")
        if fine: stp(3)
    else:
        k("s_waitcnt vmcnt(0) lgkmcnt(0)")
        k("s_barrier")
        if fine: stp(2)
        k(f"s_cmp_lg_u32 s{sW}, 0")
        k(f"s_cbranch_scc1 {name}_nopoll")
        if wsflag:
            k("s_lshl_b32 s38, s2, 7")
            k("v_mov_b32 v20, 1")
            k("v_mov_b32 v21, s38")
            k("s_mov_b64 exec, 1")
            k(f"buffer_store_dword v20, v21, s[{SRD_D}:{SRD_D+3}], 0 offen sc1")
            k("s_xor_b32 s42, s2, 8")
            k("s_lshl_b32 s38, s42, 7")
            k("s_mov_b32 s39, 1")
            k("v_mov_b32 v21, s38")
        else:
            k("s_lshr_b32 s38, s2, 5")
            k("s_lshl_b32 s38, s38, 2")
            k("s_and_b32 s39, s2, 31")
            k("s_lshl_b32 s39, 1, s39")
            k("v_mov_b32 v20, s39")
            k("v_mov_b32 v21, s38")
            k("s_mov_b64 exec, 1")
            k(f"buffer_atomic_add v20, v21, s[{SRD_D}:{SRD_D+3}], 0 offen sc1")
            k("s_xor_b32 s42, s2, 8")
            k("s_lshr_b32 s38, s42, 5")
            k("s_lshl_b32 s38, s38, 2")
            k("s_and_b32 s39, s42, 31")
            k("s_lshl_b32 s39, 1, s39")
            k("v_mov_b32 v21, s38")
        k(f"s_mov_b32 s43, {spin_max}")
        k.label(f"{name}_poll")
        k(f"buffer_load_dword v22, v21, s[{SRD_D}:{SRD_D+3}], 0 offen sc1")
        k("s_waitcnt vmcnt(0)")
        k("v_readfirstlane_b32 s42, v22")
        k("s_and_b32 s42, s42, s39")
        k(f"s_cbranch_scc1 {name}_got")
        k("s_sub_u32 s43, s43, 1")
        k("s_cmp_lg_u32 s43, 0")
        k(f"s_cbranch_scc0 {name}_got")
        k("s_sleep 1")
        k(f"s_branch {name}_poll")
        k.label(f"{name}_got")
        k("s_mov_b64 exec, -1")
        k.label(f"{name}_nopoll")
        k("s_barrier")
        if fine: stp(3)
    RV = 32
    for j in range(8):
        so = "0" if j < 4 else "s39"
        if j == 4: k("s_mov_b32 s39, 4096")
        k(f"buffer_load_dwordx4 v[{RV+4*j}:{RV+4*j+3}], v3, s[{SRD_PR}:{SRD_PR+3}], {so} offen offset:{(j&3)*1024} sc1")
    T = 96
    for p in range(2):
        k(f"s_waitcnt vmcnt({4 if p == 0 else 2})")
        for a in range(4):
            for r in range(0, 4, 2):
                k(f"v_pk_add_f32 v[{acc(p,a)+r}:{acc(p,a)+r+1}], v[{acc(p,a)+r}:{acc(p,a)+r+1}], v[{RV+(p*4+a)*4+r}:{RV+(p*4+a)*4+r+1}]")
        k("s_nop 1")
        for pp in range(2):
            a0, a1 = acc(p, 2*pp), acc(p, 2*pp+1)
            for r in range(4):
                k(f"v_permlane16_swap_b32 v{a0+r}, v{a1+r}")
        for pp in range(2):
            a0, a1 = acc(p, 2*pp), acc(p, 2*pp+1)
            xr = XR + (p*2+pp)*4
            t = T + (p*2+pp) * 8
            for d in range(4):
                k(f"v_lshlrev_b32 v{t+2*d}, 16, v{xr+d}")
                k(f"v_and_b32 v{t+2*d+1}, 0xffff0000, v{xr+d}")
            for e in range(0, 8, 2):
                src = (a0 + e) if e < 4 else (a1 + e - 4)
                k(f"v_pk_fma_f32 v[{t+e}:{t+e+1}], v[{src}:{src+1}], v[{GB+pp*8+e}:{GB+pp*8+e+1}], v[{t+e}:{t+e+1}]")
            for d in range(4):
                k(f"v_cvt_pk_bf16_f32 v{xr+d}, v{t+2*d}, v{t+2*d+1}")
            k(f"s_mov_b32 s38, {p*16*2048}")
            k(f"buffer_store_dwordx4 v[{xr}:{xr+3}], v{vXO}, s[{SRD_O}:{SRD_O+3}], s38 offen offset:{pp*64}{sf}")
    if not fine: stp(3)
    stp.end(32, sW)
    k("s_endpgm")
    k.label(f"{name}_prod")
    vDA = [4, 5, 6, 7]
    vDB = 8
    k(f"s_sub_u32 s{sW}, s{sW}, 4")
    k("v_lshlrev_b32 v17, 3, v16")
    k(f"s_lshl_b32 s39, s{sW}, 1")
    k("v_add_u32 v17, s39, v17")
    k("v_lshlrev_b32 v17, 11, v17")
    k("v_and_b32 v18, 15, v0")
    k("v_lshlrev_b32 v18, 4, v18")
    k(f"v_add_u32 v{vDA[0]}, v17, v18")
    k(f"v_add_u32 v{vDA[1]}, {2048 - PA}, v{vDA[0]}")
    k(f"v_add_u32 v{vDA[2]}, {32*2048}, v{vDA[0]}")
    k(f"v_add_u32 v{vDA[3]}, {33*2048 - PA}, v{vDA[0]}")
    k(f"s_and_b32 s38, s{sW}, 1")
    k("s_lshl_b32 s38, s38, 12")
    k(f"v_add_u32 v{vDB}, s38, v3")
    sBA, sBB = 42, 43
    k(f"s_mul_i32 s{sBA}, s{sW}, {2*PA}")
    k(f"s_lshl_b32 s{sBB}, s{sW}, 12")
    k(f"s_add_u32 s{sBB}, s{sBB}, {AREG}")
    k("s_waitcnt lgkmcnt(0)")
    k("s_lshl_b32 s39, s36, 8")
    k(f"s_mul_i32 s38, s{sH}, {28*64*2048}")
    k("s_add_u32 s39, s39, s38")
    srd(k, SRD_W, 4, 28*64*2048, off_s="s39")
    k(f"s_mul_i32 s39, s37, {2*56*8192}")
    k(f"s_mul_i32 s38, s{sH}, {28*8192}")
    k("s_add_u32 s39, s39, s38")
    k(f"s_lshr_b32 s38, s{sW}, 1")
    k(f"s_mul_i32 s38, s38, {56*8192}")
    k("s_add_u32 s39, s39, s38")
    srd(k, SRD_A, 32, 28*8192, off_s="s39", off_imm=ACT_OFF)
    k(f"s_mov_b32 s{sKW}, 0")
    k(f"s_mov_b32 s{sKA}, 0")
    if noW: k(f"s_mov_b32 s{SRD_W+2}, 0")
    if noA: k(f"s_mov_b32 s{SRD_A+2}, 0")
    def issue(stg):
        base = stg * STAGE
        k(f"s_add_u32 m0, s{sBA}, {base}")
        k(f"s_add_u32 s44, s{sBA}, {base + 8*PA}")
        k(f"buffer_load_dwordx4 v{vDA[0]}, s[{SRD_W}:{SRD_W+3}], s{sKW} offen{wf} lds")
        k(f"buffer_load_dwordx4 v{vDA[1]}, s[{SRD_W}:{SRD_W+3}], s{sKW} offen offset:{PA}{wf} lds")
        k(f"s_mov_b32 m0, s44")
        k(f"s_add_u32 s45, s{sBB}, {base}")
        k(f"buffer_load_dwordx4 v{vDA[2]}, s[{SRD_W}:{SRD_W+3}], s{sKW} offen{wf} lds")
        k(f"buffer_load_dwordx4 v{vDA[3]}, s[{SRD_W}:{SRD_W+3}], s{sKW} offen offset:{PA}{wf} lds")
        k(f"s_mov_b32 m0, s45")
        k(f"s_add_u32 s{sKW}, s{sKW}, {64*2048}")
        for q in range(4):
            k(f"buffer_load_dwordx4 v{vDB}, s[{SRD_A}:{SRD_A+3}], s{sKA} offen offset:{q*1024}{af} lds")
        k(f"s_add_u32 s{sKA}, s{sKA}, 8192")
    issue(0); issue(1)
    k("s_waitcnt vmcnt(8)")
    k("s_barrier")
    for stg in range(2, NS): issue(stg)
    k(f"s_mov_b32 s{sCNT}, {NK // NS}")
    ploop = f"{name}_ploop"
    k.label(ploop)
    for u in range(NS):
        k(f"s_waitcnt vmcnt({8*(NS-2)})")
        k("s_barrier")
        issue(u)
    k(f"s_sub_u32 s{sCNT}, s{sCNT}, 1")
    k(f"s_cmp_lg_u32 s{sCNT}, 0")
    k(f"s_cbranch_scc1 {ploop}")
    k.label(f"{name}_end")
    k("s_endpgm")
    k.lds = NS * STAGE
    k.grid = 256
    k.block = 512
    return k
```

```python
from asmlib import *
from layout import *
import math, struct
from ka_util import *
from kb import kb_consts
from kc import kc_consts

def gen_ka(name="ka_kernel", nt=True, stamps=False, sf='', xnt=True):
    k = Kern(name)
    st = Stamps(k, stamps, 0)
    ntf = " nt" if nt else ""
    xntf = " nt" if xnt else ""
    k("s_cmp_ge_u32 s2, 257")
    k(f"s_cbranch_scc1 {name}_end")
    st.start()
    k(f"s_load_dwordx2 s[32:33], s[0:1], {KA['ws']}")
    k("v_lshrrev_b32 v1, 6, v0")
    k("v_and_b32 v2, 63, v0")
    k("v_readfirstlane_b32 s28, v1")
    k("s_cmp_eq_u32 s2, 256")
    k(f"s_cbranch_scc1 {name}_tab")
    k(f"s_load_dwordx2 s[4:5], s[0:1], {KA['x']}")
    k(f"s_load_dwordx2 s[6:7], s[0:1], {KA['wmod']}")
    k(f"s_load_dwordx2 s[42:43], s[0:1], {KA['c']}")
    k("v_and_b32 v3, 7, v2")
    k("v_lshrrev_b32 v4, 3, v2")
    k("v_lshlrev_b32 v5, 11, v3")
    k("v_lshlrev_b32 v6, 3, v4")
    k("v_add_u32 v5, v5, v6")
    k("s_lshl_b32 s34, s28, 8")
    k("v_add_u32 v5, s34, v5")
    k("s_lshr_b32 s35, s2, 3")
    k("s_and_b32 s36, s35, 3")
    k("s_lshr_b32 s37, s35, 3")
    k("s_and_b32 s37, s37, 1")
    k("s_lshl_b32 s37, s37, 2")
    k("s_or_b32 s36, s36, s37")
    k("s_lshl_b32 s36, s36, 2")
    k("s_and_b32 s37, s2, 7")
    k("s_lshl_b32 s37, s37, 3")
    k("s_add_u32 s36, s36, s37")
    k("v_add_u32 v6, s36, v3")
    k("v_and_b32 v6, 63, v6")
    k("s_lshl_b32 s35, s35, 6")
    k("v_add_u32 v6, s35, v6")
    k("v_lshlrev_b32 v6, 3, v6")
    k("v_lshlrev_b32 v7, 14, v4")
    k("v_add_u32 v6, v6, v7")
    k("s_lshl_b32 s38, s28, 19")
    k("v_add_u32 v6, s38, v6")
    k("v_lshlrev_b32 v12, 4, v2")
    k("v_cmp_gt_u32 vcc, 48, v2")
    k("v_bfrev_b32 v13, 1")
    k(f"s_mul_i32 s39, s28, {8*12288}")
    k("v_add_u32 v12, s39, v12")
    k("v_cndmask_b32 v12, v13, v12, vcc")
    k("v_lshlrev_b32 v14, 1, v2")
    k("s_waitcnt lgkmcnt(0)")
    st(1)
    k("s_lshl_b32 s34, s2, 14")
    srd(k, 8, 4, 16384, off_s="s34")
    for q in range(4):
        k(f"buffer_load_dwordx2 v[{16+2*q}:{17+2*q}], v5, s[8:11], 0 offen offset:{q*64}{xntf}")
    k("s_lshr_b32 s35, s2, 4")
    k("s_and_b32 s36, s2, 15")
    k(f"s_mul_i32 s37, s35, {64*12288}")
    k("s_mul_i32 s38, s36, 768")
    k("s_add_u32 s37, s37, s38")
    k(f"s_sub_u32 s38, {1024*12288}, s37")
    srd(k, 44, 6, "s38", off_s="s37")
    k("s_lshl_b32 s37, s35, 7")
    k("s_lshl_b32 s38, s28, 4")
    k("s_add_u32 s37, s37, s38")
    srd(k, 48, 42, 16, off_s="s37")
    k("buffer_load_ushort v15, v14, s[48:51], 0 offen")
    for p in range(8):
        k(f"s_mov_b32 s37, {p*12288}")
        k(f"buffer_load_dwordx4 v[{64+4*p}:{67+4*p}], v12, s[44:47], s37 offen{ntf}")
    srd(k, 12, 32, S * D * 2, off_imm=XS_OFF)
    k("v_mov_b32 v8, 0"); k("v_mov_b32 v9, 0")
    for q in range(4):
        k(f"s_waitcnt vmcnt({3-q+9})")
        for d in range(2):
            src = 16 + 2*q + d; dst = 32 + 4*q + 2*d
            k(f"v_lshlrev_b32 v{dst}, 16, v{src}")
            k(f"v_and_b32 v{dst+1}, 0xffff0000, v{src}")
        for e in range(4):
            r = 32 + 4*q + e
            k(f"v_add_f32 v8, v8, v{r}")
            k(f"v_fma_f32 v9, v{r}, v{r}, v9")
    st(2)
    dpp_add(k, [8, 9], "row_ror:8")
    k("s_nop 1")
    xlane_sum_16_32(k, [8, 9], [10, 11])
    k("v_lshlrev_b32 v10, 6, v3")
    k("s_lshl_b32 s34, s28, 3")
    k("v_add_u32 v11, s34, v10")
    k("v_cmp_gt_u32 vcc, 8, v2")
    k("s_and_saveexec_b64 s[40:41], vcc")
    k("ds_write_b64 v11, v[8:9]")
    k("s_mov_b64 exec, s[40:41]")
    k("s_waitcnt vmcnt(8)")
    k("v_lshlrev_b32 v15, 16, v15")
    k(f"v_mul_f32 v24, {f2u(-math.log2(math.e)):#x}, v15")
    k("v_exp_f32 v24, v24")
    k("s_nop 0")
    k("v_add_f32 v24, 1.0, v24")
    k("v_rcp_f32 v24, v24")
    k("s_nop 0")
    k("v_mul_f32 v15, v15, v24")
    k("v_cvt_pk_bf16_f32 v15, v15, v15")
    k("v_lshlrev_b32 v15, 16, v15")
    k("s_waitcnt lgkmcnt(0)")
    k("s_barrier")
    for q in range(4):
        k(f"ds_read_b128 v[{48+4*q}:{51+4*q}], v10 offset:{q*16}")
    for p in range(8): k(f"v_readlane_b32 s{52+p}, v15, {p}")
    k("s_waitcnt lgkmcnt(0)")
    k("v_add_f32 v8, v48, v50"); k("v_add_f32 v9, v49, v51")
    for r in range(52, 64, 2):
        k(f"v_add_f32 v8, v8, v{r}"); k(f"v_add_f32 v9, v9, v{r+1}")
    k(f"v_mul_f32 v8, {f2u(1.0/1024):#x}, v8")
    k(f"v_mul_f32 v9, {f2u(1.0/1024):#x}, v9")
    k("v_fma_f32 v9, -v8, v8, v9")
    k("v_max_f32 v9, 0, v9")
    k(f"v_add_f32 v9, {f2u(1e-5):#x}, v9")
    k("v_rsq_f32 v9, v9")
    k("s_nop 0")
    k("v_mul_f32 v8, v8, v9")
    for r in range(32, 48):
        k(f"v_fma_f32 v{r}, v{r}, v9, -v8")
    for q in range(4):
        for d in range(2):
            k(f"v_cvt_pk_bf16_f32 v{16+2*q+d}, v{32+4*q+2*d}, v{32+4*q+2*d+1}")
    for q in range(4):
        k(f"s_mov_b32 s34, {q*8*16384}")
        k(f"buffer_store_dwordx2 v[{16+2*q}:{17+2*q}], v6, s[12:15], s34 offen{sf}")
    for e in range(8): k(f"v_mov_b32 v{32+e}, 0")
    for p in range(8):
        k(f"s_waitcnt vmcnt({7-p+4})")
        for d in range(4):
            k(f"v_lshlrev_b32 v8, 16, v{64+4*p+d}")
            k(f"v_and_b32 v9, 0xffff0000, v{64+4*p+d}")
            k(f"v_fma_f32 v{32+2*d}, v8, s{52+p}, v{32+2*d}")
            k(f"v_fma_f32 v{33+2*d}, v9, s{52+p}, v{33+2*d}")
    k("v_lshlrev_b32 v10, 5, v2")
    k("s_mul_i32 s34, s28, 1536")
    k("s_add_u32 s34, s34, 1024")
    k("v_add_u32 v10, s34, v10")
    k("v_cmp_gt_u32 vcc, 48, v2")
    k("s_and_saveexec_b64 s[40:41], vcc")
    k("ds_write_b128 v10, v[32:35]")
    k("ds_write_b128 v10, v[36:39] offset:16")
    k("s_mov_b64 exec, s[40:41]")
    k("s_waitcnt lgkmcnt(0)")
    k("s_barrier")
    k("v_cmp_gt_u32 vcc, 384, v0")
    k("s_and_saveexec_b64 s[40:41], vcc")
    k(f"s_cbranch_execz {name}_fin")
    k("v_lshlrev_b32 v7, 2, v0")
    for w in range(8):
        k(f"ds_read_b32 v{16+w}, v7 offset:{1024+w*1536}")
    k("s_waitcnt lgkmcnt(0)")
    k("v_add_f32 v16, v16, v17"); k("v_add_f32 v18, v18, v19"); k("v_add_f32 v20, v20, v21"); k("v_add_f32 v22, v22, v23")
    k("v_add_f32 v16, v16, v18"); k("v_add_f32 v20, v20, v22"); k("v_add_f32 v16, v16, v20")
    k(f"s_mul_i32 s37, s35, {6144*4}")
    k("s_mul_i32 s38, s36, 1536")
    k("s_add_u32 s37, s37, s38")
    srd(k, 12, 32, 16*6144*4, off_imm=MODP_OFF)
    k(f"buffer_store_dword v16, v7, s[12:15], s37 offen{sf}")
    k.label(f"{name}_fin")
    st(3)
    st.end(32, 28)
    k("s_endpgm")
    k.label(f"{name}_tab")
    k("v_mov_b32 v0, v2")
    k("s_cmp_gt_u32 s28, 5")
    k(f"s_cbranch_scc1 {name}_end")
    k("s_waitcnt lgkmcnt(0)")
    k("s_cmp_eq_u32 s28, 5")
    k(f"s_cbranch_scc1 {name}_flg")
    k("s_cmp_eq_u32 s28, 4")
    k(f"s_cbranch_scc1 {name}_tabc")
    k("v_lshrrev_b32 v3, 4, v0")
    k("v_and_b32 v4, 15, v0")
    kb_consts(k)
    srd(k, 12, 32, 32768, off_imm=TB_OFF)
    k("v_lshlrev_b32 v5, 4, v0")
    k("s_lshl_b32 s36, s28, 12")
    k("s_add_u32 s36, s36, 16384")
    for q in range(4):
        k(f"buffer_store_dwordx4 v[{72+4*q}:{75+4*q}], v5, s[12:15], s36 offen offset:{q*1024}")
    k("s_lshr_b32 s36, s28, 1")
    k("s_mul_i32 s36, s36, 6144")
    k("s_add_u32 s36, s36, 4096")
    for q in range(6):
        if q == 4: k("s_add_u32 s36, s36, 4096")
        k(f"buffer_store_dwordx4 v[{48+4*q}:{51+4*q}], v5, s[12:15], s36 offen offset:{(q%4)*1024}")
    k("s_mov_b32 s36, 0")
    for q in range(4):
        k(f"buffer_store_dwordx4 v[{32+4*q}:{35+4*q}], v5, s[12:15], s36 offen offset:{q*1024}")
    k("s_endpgm")
    k.label(f"{name}_flg")
    srd(k, 12, 32, 256*128, off_imm=FLAG_OFF)
    k("v_lshlrev_b32 v5, 4, v0")
    for r in range(4): k(f"v_mov_b32 v{8+r}, 0")
    for q in range(32):
        k(f"s_mov_b32 s36, {q*1024}")
        k("buffer_store_dwordx4 v[8:11], v5, s[12:15], s36 offen")
    k("s_endpgm")
    k.label(f"{name}_tabc")
    kc_consts(k)
    srd(k, 12, 32, 18432, off_imm=TC_OFF)
    k("v_lshlrev_b32 v5, 4, v0")
    k("s_mov_b32 s36, 0")
    for q in range(18):
        k(f"buffer_store_dwordx4 v[{32+4*q}:{35+4*q}], v5, s[12:15], s36 offen offset:{(q%4)*1024}")
        if q % 4 == 3: k("s_add_u32 s36, s36, 4096")
    k.label(f"{name}_end")
    k("s_endpgm")
    k.lds = 1024 + 8*1536; k.grid = 257; k.block = 512; k.vgpr = 128; k.accum = 128
    return k
```

```python
from asmlib import *
from layout import *
from ka_util import f2u, dpp_add, xlane_sum_16_32
import math

def cos_sin(k, dc, ds, n, scale):
    k(f"v_cvt_f32_u32 v{ds}, v{n}")
    k(f"v_mul_f32 v{ds}, {f2u(scale):#x}, v{ds}")
    k(f"v_cos_f32 v{dc}, v{ds}")
    k(f"v_sin_f32 v{ds}, v{ds}")

KB_C1, KB_C3, KB_TW = 32, 48, 72
def kb_consts(k):
    C1, C3, TW, TC, TS = KB_C1, KB_C3, KB_TW, 100, 108
    k("v_lshlrev_b32 v24, 3, v3")
    k("v_mul_u32_u24 v24, v24, v4")
    for e in range(8):
        k("v_and_b32 v25, 31, v24")
        cos_sin(k, TC+e, TS+e, 25, 1.0/32)
        if e < 7: k("v_add_u32 v24, v24, v4")
    k("s_nop 0")
    for d in range(4):
        k(f"v_cvt_pk_bf16_f32 v{C1+d}, v{TC+2*d}, v{TC+2*d+1}")
        k(f"v_cvt_pk_bf16_f32 v{C1+8+d}, -v{TS+2*d}, -v{TS+2*d+1}")
    for d in range(4):
        k(f"v_xor_b32 v{C1+4+d}, 0x80000000, v{C1+d}")
        k(f"v_xor_b32 v{C1+12+d}, 0x80000000, v{C1+8+d}")
    k("s_lshr_b32 s36, s28, 1")
    k("s_lshl_b32 s36, s36, 4")
    k("v_add_u32 v26, s36, v4")
    for e in range(8):
        s2c = 16*(e >> 2) + 4*(e & 3)
        k(f"v_add_u32 v25, {s2c}, v3")
        k("v_mul_u32_u24 v25, v25, v26")
        k("v_and_b32 v25, 63, v25")
        cos_sin(k, TC+e, TS+e, 25, 1.0/64)
    k("v_and_b32 v25, 1, v26")
    k("v_sub_u32 v27, 0, v25")
    k("v_and_b32 v27, 0x80008000, v27")
    for d in range(4):
        k(f"v_cvt_pk_bf16_f32 v{C3+d}, v{TC+2*d}, v{TC+2*d+1}")
        k(f"v_cvt_pk_bf16_f32 v{C3+8+d}, v{TS+2*d}, v{TS+2*d+1}")
    for d in range(4):
        k(f"v_xor_b32 v{C3+4+d}, v27, v{C3+d}")
        k(f"v_xor_b32 v{C3+12+d}, v27, v{C3+8+d}")
    for d in range(8):
        k(f"v_xor_b32 v{C3+16+d}, 0x80008000, v{C3+8+d}")
    k("s_lshl_b32 s36, s28, 4")
    for tau in range(4):
        k(f"v_add_u32 v25, s36, v3")
        if tau: k(f"v_add_u32 v25, {4*tau}, v25")
        for th in range(2):
            k(f"v_add_u32 v27, {16*th}, v4")
            k("v_mul_u32_u24 v27, v25, v27")
            b = TW + (tau*2 + th)*2
            cos_sin(k, b, b+1, 27, 1.0/2048)

def gen_kb(name="kb_kernel", stamps=False, pf=True, sf='', table=True, pfn=2, cpf=None):
    k = Kern(name)
    st = Stamps(k, stamps, 1)
    TOFF = 16384
    C1, C3, TW = KB_C1, KB_C3, KB_TW
    k("s_cmp_ge_u32 s2, 256")
    k(f"s_cbranch_scc1 {name}_end")
    st.start()
    k(f"s_load_dwordx2 s[32:33], s[0:1], {KA['ws']}")
    k(f"s_load_dwordx2 s[4:5], s[0:1], {KA['wg']}")
    k("v_mov_b32 v30, v0")
    k("v_lshrrev_b32 v1, 6, v0")
    k("v_and_b32 v0, 63, v0")
    k("v_readfirstlane_b32 s28, v1")
    k("s_and_b32 s34, s2, 7")
    k("s_lshl_b32 s34, s34, 5")
    k("s_lshr_b32 s35, s2, 3")
    k("s_add_u32 s34, s34, s35")
    k("v_lshlrev_b32 v2, 4, v0")
    k("v_lshrrev_b32 v3, 4, v0")
    k("v_and_b32 v4, 15, v0")
    k("s_lshl_b32 s36, s28, 12")
    k("v_add_u32 v5, s36, v2")
    k("s_lshl_b32 s37, s34, 4")
    k("v_lshrrev_b32 v6, 2, v0")
    k("v_mul_u32_u24 v6, 24576, v6")
    k("v_and_b32 v7, 3, v0")
    k("v_lshl_add_u32 v6, v7, 2, v6")
    k("v_add_u32 v6, s37, v6")
    k("v_add_u32 v7, 4096, v6")
    k("s_mul_i32 s37, s2, 24")
    k("s_mul_i32 s38, s28, 6")
    k("s_add_u32 s37, s37, s38")
    k("v_add_u32 v16, s37, v3")
    k("v_mul_u32_u24 v17, 24576, v4")
    k("v_lshl_add_u32 v17, v16, 2, v17")
    k("s_waitcnt lgkmcnt(0)")
    k("s_lshl_b32 s35, s34, 14")
    srd(k, 8, 32, 16384, off_s="s35", off_imm=XS_OFF)
    k("s_mov_b32 m0, s36")
    srd(k, 56, 32, 32768, off_imm=TB_OFF)
    for q in range(4):
        k(f"buffer_load_dwordx4 v5, s[8:11], 0 offen offset:{q*1024} lds")
    TBL = 49152
    if table:
        k("s_lshl_b32 s36, s28, 13")
        for hq in range(2):
            k(f"s_add_u32 m0, s36, {TBL + hq*4096}")
            k(f"s_add_u32 s37, s36, {hq*4096}")
            for q in range(4):
                k(f"buffer_load_dwordx4 v2, s[56:59], s37 offen offset:{q*1024} lds")
    srd(k, 12, 32, 16*6144*4, off_imm=MODP_OFF)
    k("buffer_load_dword v8, v6, s[12:15], 0 offen")
    k("buffer_load_dword v12, v7, s[12:15], 0 offen")
    k("buffer_load_dword v20, v17, s[12:15], 0 offen")
    k("buffer_load_dword v21, v17, s[12:15], 0 offen offset:16")
    NPF = 0
    k(f"s_mul_i32 s35, s34, {ZROWS*16}")
    srd(k, 16, 32, ZROWS*16, off_s="s35", off_imm=ZS_OFF)
    RA = 88
    k("v_bfe_u32 v25, v0, 2, 2")
    k("v_and_b32 v26, 3, v0")
    k("v_lshlrev_b32 v27, 12, v3")
    k("v_lshlrev_b32 v28, 9, v25")
    k("v_add_u32 v27, v27, v28")
    k("v_lshlrev_b32 v28, 2, v25")
    k("v_add_u32 v28, v28, v26")
    k("v_and_b32 v29, 1, v3")
    k("v_lshlrev_b32 v29, 4, v29")
    k("v_add_u32 v28, v28, v29")
    k("s_lshl_b32 s36, s28, 4")
    k("v_add_u32 v28, s36, v28")
    for tau in range(4):
        k(f"v_add_u32 v29, {4*tau}, v28")
        k("v_and_b32 v29, 63, v29")
        k(f"v_lshl_add_u32 v{RA+tau}, v29, 3, v27")
    k("s_lshr_b32 s36, s28, 1")
    k("s_lshl_b32 s36, s36, 10")
    k("s_and_b32 s37, s28, 1")
    k("s_lshl_b32 s37, s37, 3")
    k("s_add_u32 s36, s36, s37")
    k(f"s_add_u32 s36, s36, {TOFF}")
    k("v_add_u32 v92, s36, v2")
    k("s_and_b32 s36, s28, 1")
    k("s_lshl_b32 s36, s36, 12")
    k(f"s_add_u32 s36, s36, {TOFF}")
    k("v_add_u32 v93, s36, v2")
    k("s_and_b32 s36, s28, 1")
    k("s_lshl_b32 s36, s36, 4")
    k("s_lshr_b32 s37, s28, 1")
    k("s_lshl_b32 s37, s37, 9")
    k("s_add_u32 s36, s36, s37")
    k("v_lshlrev_b32 v94, 7, v3")
    k("v_add_u32 v94, v94, v4")
    k("v_add_u32 v94, s36, v94")
    k("v_lshlrev_b32 v94, 4, v94")
    k("v_and_b32 v25, 1, v3")
    k("v_lshlrev_b32 v25, 31, v25")
    k("v_lshrrev_b32 v26, 16, v25")
    k("v_or_b32 v25, v25, v26")
    k("v_or_b32 v25, 0x3f803f80, v25")
    k("v_cmp_eq_u32 vcc, 0, v4")
    k("s_nop 1")
    k("v_cndmask_b32 v25, 0, v25, vcc")
    NC = 240
    for d in range(4): k(f"v_mov_b32 v{NC+d}, v25")
    if not table: kb_consts(k)
    st(1)
    k(f"s_waitcnt vmcnt(0)")
    k("s_barrier")
    st(2)
    if cpf: code_pf(k, cpf[0], cpf[1], "a", 116, 30, sp=60)
    if pf:
        srd(k, 24, 4, D*F*2)
        k("s_lshl_b32 s37, s2, 8")
        k("v_add_u32 v31, s37, v30")
        k("v_lshlrev_b32 v31, 6, v31")
        for i in range(pfn):
            k(f"s_mov_b32 s37, {65536*64*i}")
            k(f"buffer_load_dword v{96+i}, v31, s[24:27], s37 offen")
        NPF = pfn
    if table:
        k("s_lshr_b32 s36, s28, 1")
        k("s_mul_i32 s36, s36, 6144")
        k("v_add_u32 v98, s36, v2")
        k("s_lshl_b32 s36, s28, 12")
        k(f"s_add_u32 s36, s36, {TBL+16384}")
        k("v_add_u32 v99, s36, v2")
        for q in range(4): k(f"ds_read_b128 v[{C1+4*q}:{C1+4*q+3}], v2 offset:{TBL+q*1024}")
    AF = 100
    for tau in range(4):
        for h in range(2):
            k(f"ds_read_b64_tr_b16 v[{AF+4*tau+2*h}:{AF+4*tau+2*h+1}], v{RA+tau} offset:{h*2048}")
    ACC = 128
    def a1(tau, th, ri): return ACC + ((tau*2 + th)*2 + ri)*4
    if table:
        for q in range(4): k(f"ds_read_b128 v[{TW+4*q}:{TW+4*q+3}], v99 offset:{q*1024}")
    for tau in range(4):
        k(f"s_waitcnt lgkmcnt({6-2*tau+(4 if table else 0)})")
        for th in range(2):
            for ri in range(2):
                cb = C1 + ri*8 + th*4
                k(f"v_mfma_f32_16x16x32_bf16 v[{a1(tau,th,ri)}:{a1(tau,th,ri)+3}], v[{AF+4*tau}:{AF+4*tau+3}], v[{cb}:{cb+3}], 0")
    if table:
        for q in range(6): k(f"ds_read_b128 v[{C3+4*q}:{C3+4*q+3}], v98 offset:{TBL+4096+q*1024}")
    dpp_add(k, [8, 12], "row_ror:4")
    dpp_add(k, [8, 12], "row_ror:8")
    k("s_nop 1")
    xlane_sum_16_32(k, [8, 12], [9, 13])
    for r in (8, 12):
        k(f"v_cvt_pk_bf16_f32 v{r}, v{r}, v{r}")
        k(f"v_lshlrev_b32 v{r}, 16, v{r}")
    k("v_add_f32 v13, 1.0, v12")
    k("v_cvt_pk_bf16_f32 v13, v13, v13")
    k("v_lshlrev_b32 v13, 16, v13")
    k(f"v_mul_f32 v8, {f2u(2048.0):#x}, v8")
    if table: k("s_waitcnt lgkmcnt(6)")
    R2 = 192
    def r2(tau, th): return R2 + (tau*2 + th)*4
    def pr(b): return f"v[{b}:{b+1}]"
    TT = 224
    for tau in range(4):
        for th in range(2):
            cs = TW + (tau*2 + th)*2
            tr = a1(tau, th, 0); ti = a1(tau, th, 1); o = r2(tau, th)
            bc = "op_sel:[0,0] op_sel_hi:[1,0]"
            for hq in range(2):
                k(f"v_pk_mul_f32 {pr(o+2*hq)}, {pr(tr+2*hq)}, {pr(cs)} {bc}")
                k(f"v_pk_mul_f32 {pr(TT+2*hq)}, {pr(ti+2*hq)}, {pr(cs)} {bc}")
            bs = "op_sel:[0,1,0] op_sel_hi:[1,1,1]"
            for hq in range(2):
                k(f"v_pk_fma_f32 {pr(o+2*hq)}, {pr(ti+2*hq)}, {pr(cs)}, {pr(o+2*hq)} {bs}")
                k(f"v_pk_fma_f32 {pr(ti+2*hq)}, {pr(tr+2*hq)}, {pr(cs)}, {pr(TT+2*hq)} {bs} neg_lo:[1,0,0] neg_hi:[1,0,0]")
    for dd in range(4):
        k(f"v_readlane_b32 s{44+dd}, v13, {dd}")
        k(f"v_readlane_b32 s{48+dd}, v8, {dd}")
    pk = 8
    idx = 0
    for dd in range(4):
        for th in range(2):
            for ri in range(2):
                p = 100 + (idx % 8) * 2; idx += 1
                src = (lambda tau: r2(tau, th) + dd) if ri == 0 else (lambda tau: a1(tau, th, 1) + dd)
                k(f"v_cvt_pk_bf16_f32 v{p}, v{src(0)}, v{src(1)}")
                k(f"v_cvt_pk_bf16_f32 v{p+1}, v{src(2)}, v{src(3)}")
                k(f"ds_write_b64 v92, v[{p}:{p+1}] offset:{((dd*2+th)*2+ri)*2048}")
    k("s_waitcnt lgkmcnt(0)")
    k("s_barrier")
    BF = 128
    def bfr(dd, ri, m): return BF + ((dd*2 + ri)*2 + m)*4
    for dd in range(4):
        for ri in range(2):
            for m in range(2):
                off = dd*8192 + ri*2048 + m*1024
                k(f"ds_read_b128 v[{bfr(dd,ri,m)}:{bfr(dd,ri,m)+3}], v93 offset:{off}")
    Z = 192
    def z(dd, ri): return Z + (dd*2 + ri)*4
    NQ = 224
    k("v_cmp_eq_u32 vcc, 0, v94")
    for dd in range(4): k(f"v_mov_b32 v{26+dd}, s{48+dd}")
    k("s_nop 1")
    for dd in range(4): k(f"v_cndmask_b32 v{26+dd}, 0, v{26+dd}, vcc")
    def mf(d, a, b, c):
        cs = "0" if c is None else f"v[{c}:{c+3}]"
        k(f"v_mfma_f32_16x16x32_bf16 v[{d}:{d+3}], v[{a}:{a+3}], v[{b}:{b+3}], {cs}")
    for dd in range(4):
        k(f"s_waitcnt lgkmcnt({12-4*dd})")
        mf(z(dd,0), C3+0, bfr(dd,0,0), None)
        mf(z(dd,1), C3+0, bfr(dd,1,0), None)
        mf(NQ+4*dd, NC, bfr(dd,0,0), None)
        mf(z(dd,0), C3+4, bfr(dd,0,1), z(dd,0))
        mf(z(dd,1), C3+4, bfr(dd,1,1), z(dd,1))
        mf(NQ+4*dd, NC, bfr(dd,0,1), NQ+4*dd)
        mf(z(dd,0), C3+8, bfr(dd,1,0), z(dd,0))
        mf(z(dd,1), C3+16, bfr(dd,0,0), z(dd,1))
        mf(z(dd,0), C3+12, bfr(dd,1,1), z(dd,0))
        mf(z(dd,1), C3+20, bfr(dd,0,1), z(dd,1))
    k("s_nop 7")
    k("v_cmp_eq_u32 vcc, 0, v94")
    k("s_nop 1")
    for dd in range(4): k(f"v_cndmask_b32 v{z(dd,1)}, v{z(dd,1)}, v{NQ+4*dd}, vcc")
    for dd in range(4):
        k(f"v_fma_f32 v{z(dd,0)}, v{z(dd,0)}, s{44+dd}, v{26+dd}")
        for r in range(1, 4): k(f"v_mul_f32 v{z(dd,0)+r}, s{44+dd}, v{z(dd,0)+r}")
        for r in range(4): k(f"v_mul_f32 v{z(dd,1)+r}, s{44+dd}, v{z(dd,1)+r}")
    for r in range(4):
        o = 100 + 4*r
        k(f"v_cvt_pk_bf16_f32 v{o}, v{z(0,0)+r}, v{z(1,0)+r}")
        k(f"v_cvt_pk_bf16_f32 v{o+1}, v{z(2,0)+r}, v{z(3,0)+r}")
        k(f"v_cvt_pk_bf16_f32 v{o+2}, v{z(0,1)+r}, v{z(1,1)+r}")
        k(f"v_cvt_pk_bf16_f32 v{o+3}, v{z(2,1)+r}, v{z(3,1)+r}")
        k(f"buffer_store_dwordx4 v[{o}:{o+3}], v94, s[16:19], 0 offen offset:{r*512}{sf}")
    for ctrl in ("quad_perm:[1,0,3,2]", "quad_perm:[2,3,0,1]", "row_half_mirror", "row_mirror"):
        dpp_add(k, [20, 21], ctrl)
    srd(k, 20, 32, 6144*4, off_imm=MODF_OFF)
    srd(k, 52, 32, 12288, off_imm=MODC_OFF)
    for q in range(2):
        val, idx = 20 + q, 16
        if q == 1: k("v_add_u32 v16, 4, v16")
        k(f"v_cvt_pk_bf16_f32 v{val}, v{val}, v{val}")
        k(f"v_lshlrev_b32 v{val}, 16, v{val}")
        k(f"v_add_f32 v22, 1.0, v{val}")
        k("v_cvt_pk_bf16_f32 v22, v22, v22")
        k("v_lshlrev_b32 v22, 16, v22")
        k("v_lshrrev_b32 v23, 10, v16")
        k("v_cmp_eq_u32 vcc, 1, v23")
        k("v_cmp_eq_u32 s[40:41], 4, v23")
        k("s_or_b64 vcc, vcc, s[40:41]")
        k("s_nop 1")
        k(f"v_cndmask_b32 v{val}, v{val}, v22, vcc")
        k("v_cmp_eq_u32 vcc, 0, v4")
        if q == 1:
            k("v_cmp_gt_u32 s[40:41], 2, v3")
            k("s_and_b64 vcc, vcc, s[40:41]")
        k("s_and_saveexec_b64 s[42:43], vcc")
        k("v_lshlrev_b32 v24, 2, v16")
        k(f"buffer_store_dword v{val}, v24, s[20:23], 0 offen")
        k("v_and_b32 v25, 1023, v16")
        k("v_lshrrev_b32 v26, 5, v25")
        k("v_bfe_u32 v27, v25, 3, 1")
        k("v_lshl_add_u32 v26, v27, 5, v26")
        k("v_lshlrev_b32 v26, 4, v26")
        k("v_and_b32 v27, 3, v25")
        k("v_lshl_add_u32 v26, v27, 2, v26")
        k("v_bfe_u32 v27, v25, 4, 1")
        k("v_bfe_u32 v28, v25, 2, 1")
        k("v_lshl_add_u32 v27, v27, 1, v28")
        k("v_lshl_add_u32 v26, v27, 10, v26")
        k("v_mov_b32 v27, 0x10000")
        k("v_cmp_eq_u32 vcc, 2, v23")
        k("s_nop 1")
        k("v_cndmask_b32 v27, v27, 0, vcc")
        k("v_mov_b32 v28, 4096")
        k("v_cmp_eq_u32 vcc, 4, v23")
        k("s_nop 1")
        k("v_cndmask_b32 v27, v27, v28, vcc")
        k("v_mov_b32 v28, 8192")
        k("v_cmp_eq_u32 vcc, 3, v23")
        k("s_nop 1")
        k("v_cndmask_b32 v27, v27, v28, vcc")
        k("v_add_u32 v26, v26, v27")
        k(f"buffer_store_dword v{val}, v26, s[52:55], 0 offen")
        k("s_mov_b64 exec, s[42:43]")
    st(3)
    k.label(f"{name}_fin")
    st.end(32, 28)
    k.label(f"{name}_end")
    k("s_endpgm")
    k.lds = 49152 + 32768; k.grid = 256; k.block = 256
    return k
```

```python
from asmlib import *
from layout import *
from ka_util import f2u, wave_sum
from kb import cos_sin

KC_C1, KC_C3, KC_TW = 32, 56, 72
def kc_consts(k):
    C1, C3, TW, TC, TS = KC_C1, KC_C3, KC_TW, 104, 112
    k("v_lshrrev_b32 v2, 5, v0")
    k("v_and_b32 v3, 31, v0")
    k("v_lshrrev_b32 v6, 4, v3")
    k("v_lshlrev_b32 v6, 4, v6")
    k("v_bfe_u32 v7, v3, 2, 1")
    k("v_lshl_add_u32 v6, v7, 3, v6")
    k("v_bfe_u32 v7, v3, 3, 1")
    k("v_lshl_add_u32 v6, v7, 2, v6")
    k("v_and_b32 v7, 3, v3")
    k("v_add_u32 v6, v6, v7")
    k("v_lshlrev_b32 v10, 3, v2")
    k("v_mul_u32_u24 v10, v10, v6")
    for e in range(8):
        k("v_and_b32 v11, 31, v10")
        cos_sin(k, TC+e, TS+e, 11, 1.0/32)
        if e < 7: k("v_add_u32 v10, v10, v6")
    k("v_and_b32 v11, 1, v6")
    k("v_sub_u32 v12, 0, v11")
    k("v_and_b32 v12, 0x80008000, v12")
    for d in range(4):
        k(f"v_cvt_pk_bf16_f32 v{C1+d}, v{TC+2*d}, v{TC+2*d+1}")
        k(f"v_cvt_pk_bf16_f32 v{C1+8+d}, v{TS+2*d}, v{TS+2*d+1}")
    for d in range(4):
        k(f"v_xor_b32 v{C1+4+d}, v12, v{C1+d}")
        k(f"v_xor_b32 v{C1+12+d}, v12, v{C1+8+d}")
    for d in range(8):
        k(f"v_xor_b32 v{C1+16+d}, 0x80008000, v{C1+8+d}")
    k("v_lshlrev_b32 v10, 2, v2")
    for e in range(8):
        d2c = 8*(e >> 2) + (e & 3)
        k(f"v_add_u32 v11, {d2c}, v10")
        k("v_mul_u32_u24 v11, v11, v3")
        k("v_and_b32 v11, 31, v11")
        cos_sin(k, TC+e, TS+e, 11, 1.0/32)
    k("v_and_b32 v11, 1, v3")
    k("v_sub_u32 v12, 0, v11")
    k("v_and_b32 v12, 0x80008000, v12")
    for d in range(4):
        k(f"v_cvt_pk_bf16_f32 v{C3+d}, v{TC+2*d}, v{TC+2*d+1}")
        k(f"v_cvt_pk_bf16_f32 v{C3+8+d}, v{TS+2*d}, v{TS+2*d+1}")
    for d in range(4):
        k(f"v_xor_b32 v{C3+4+d}, v12, v{C3+d}")
        k(f"v_xor_b32 v{C3+12+d}, v12, v{C3+8+d}")
    for r in range(16):
        d2c = 8*(r >> 2) + (r & 3)
        k(f"v_add_u32 v11, {d2c}, v10")
        k("v_mul_u32_u24 v11, v11, v6")
        cos_sin(k, TW+r, TW+16+r, 11, 1.0/1024)

def gen_kc(name="kc_kernel", stamps=False, pf=True, sf='', pfrows=0, sf2='', xnt=True, cpf=None):
    k = Kern(name)
    st = Stamps(k, stamps, 2)
    xntf = " nt" if xnt else ""
    C1, C3, TW = KC_C1, KC_C3, KC_TW
    TBL = 16384
    HST = TBL + 32768
    k("s_cmp_ge_u32 s2, 256")
    k(f"s_cbranch_scc1 {name}_end")
    st.start()
    k(f"s_load_dwordx2 s[32:33], s[0:1], {KA['ws']}")
    k(f"s_load_dwordx2 s[4:5], s[0:1], {KA['x']}")
    k(f"s_load_dwordx2 s[6:7], s[0:1], {KA['wu']}")
    k(f"s_load_dwordx2 s[42:43], s[0:1], {KA['wg']}")
    k("v_mov_b32 v30, v0")
    k("v_lshrrev_b32 v1, 6, v0")
    k("v_and_b32 v0, 63, v0")
    k("v_readfirstlane_b32 s28, v1")
    k("s_and_b32 s34, s2, 7")
    k("s_lshl_b32 s34, s34, 5")
    k("s_lshr_b32 s35, s2, 3")
    k("s_add_u32 s34, s34, s35")
    k("s_lshl_b32 s34, s34, 2")
    k("v_lshrrev_b32 v2, 2, v0")
    k("v_lshrrev_b32 v4, 4, v0")
    k("v_sub_u32 v3, v0, v4")
    k("v_and_b32 v3, 3, v3")
    k(f"s_mov_b32 s35, {ZROWS*16}")
    k("v_mul_lo_u32 v8, v2, s35")
    k("v_add_u32 v3, s34, v3")
    k("v_lshl_add_u32 v8, v3, 4, v8")
    k("v_lshlrev_b32 v5, 4, v0")
    k("v_lshrrev_b32 v2, 5, v0")
    k("v_and_b32 v3, 31, v0")
    k("v_lshlrev_b32 v4, 6, v3")
    k("v_lshl_add_u32 v4, v2, 4, v4")
    k("s_and_b32 s38, s28, 3")
    k("s_add_u32 s36, s34, s38")
    k("s_sub_u32 s39, 2048, s36")
    k("s_cmp_eq_u32 s36, 0")
    k("s_cselect_b32 s39, 1024, s39")
    k("s_cmp_ge_u32 s28, 4")
    k("s_cselect_b32 s36, s39, s36")
    k("s_lshl_b32 s37, s36, 11")
    k("s_waitcnt lgkmcnt(0)")
    srd(k, 8, 32, 256*ZROWS*16, off_imm=ZS_OFF)
    for q in range(2):
        k(f"s_lshl_b32 s38, s28, 1")
        k(f"s_add_u32 s38, s38, {q}")
        k(f"s_lshl_b32 s39, s38, 10")
        k("s_mov_b32 m0, s39")
        k(f"s_mul_i32 s38, s38, {16*ZROWS*16}")
        k(f"buffer_load_dwordx4 v8, s[8:11], s38 offen lds")
    srd(k, 48, 32, 30720, off_imm=TC_OFF)
    k("s_lshl_b32 s38, s28, 12")
    k(f"s_add_u32 m0, s38, {TBL}")
    k("s_nop 0")
    for q in range(4):
        k(f"buffer_load_dwordx4 v5, s[48:51], s38 offen offset:{q*1024} lds")
    srd(k, 16, 4, 2048, off_s="s37")
    XV = 200
    k(f"buffer_load_dwordx4 v[{XV}:{XV+3}], v4, s[16:19], 0 offen{xntf}")
    k(f"buffer_load_dwordx4 v[{XV+4}:{XV+7}], v4, s[16:19], 0 offen offset:32{xntf}")
    MV = 208
    NPF = 0
    srd(k, 20, 32, 2048, off_s="s37", off_imm=X1_OFF)
    srd(k, 24, 32, S*D*2, off_imm=H2_OFF)
    k("v_lshrrev_b32 v10, 4, v0")
    k("v_bfe_u32 v11, v0, 2, 2")
    k("v_and_b32 v12, 3, v0")
    k("v_and_b32 v13, 1, v10")
    k("v_lshl_add_u32 v16, v13, 2, v12")
    k("v_lshrrev_b32 v14, 1, v10")
    k("v_lshl_add_u32 v14, v14, 3, v11")
    k("v_lshlrev_b32 v14, 9, v14")
    k("v_lshl_add_u32 v14, v16, 6, v14")
    k("v_and_b32 v15, 1, v11")
    k("v_lshl_add_u32 v15, v15, 1, v13")
    k("s_and_b32 s38, s28, 3")
    k("v_add_u32 v15, s38, v15")
    k("v_and_b32 v15, 3, v15")
    k("v_lshl_add_u32 v14, v15, 4, v14")
    k("v_mul_u32_u24 v17, 528, v3")
    k("v_lshl_add_u32 v17, v2, 7, v17")
    k("s_lshl_b32 s38, s28, 4")
    k(f"s_add_u32 s38, s38, {HST}")
    k("v_add_u32 v17, s38, v17")
    k("v_lshrrev_b32 v18, 3, v0")
    k("v_and_b32 v19, 7, v0")
    k("v_lshrrev_b32 v20, 2, v18")
    k("v_and_b32 v21, 3, v18")
    k("v_mul_u32_u24 v22, 528, v20")
    k("v_lshl_add_u32 v22, v21, 7, v22")
    k("v_lshl_add_u32 v22, v19, 4, v22")
    k(f"s_mul_i32 s38, s28, {4*528}")
    k(f"s_add_u32 s38, s38, {HST}")
    k("v_add_u32 v22, s38, v22")
    k("v_and_b32 v24, 3, v19")
    k("v_add_u32 v24, s34, v24")
    k("v_sub_u32 v25, 2048, v24")
    k("v_mov_b32 v26, 1024")
    k("v_cmp_eq_u32 vcc, 0, v24")
    k("s_nop 1")
    k("v_cndmask_b32 v25, v25, v26, vcc")
    k("v_cmp_lt_u32 vcc, 3, v19")
    k("s_nop 1")
    k("v_cndmask_b32 v24, v24, v25, vcc")
    k("v_lshrrev_b32 v25, 8, v24")
    k("v_lshlrev_b32 v23, 19, v25")
    k("v_bfe_u32 v25, v24, 4, 4")
    k("v_lshl_add_u32 v23, v25, 10, v23")
    k("v_and_b32 v25, 15, v24")
    k("v_lshl_add_u32 v23, v25, 4, v23")
    k("v_lshl_add_u32 v23, v20, 14, v23")
    k("v_lshl_add_u32 v23, v21, 8, v23")
    k("s_lshl_b32 s41, s28, 16")
    k("s_cmp_ge_u32 s28, 4")
    k("s_cselect_b32 s40, 0x80008000, 0")
    st(1)
    k(f"s_waitcnt vmcnt(0)")
    k("s_barrier")
    st(2)
    if cpf: code_pf(k, cpf[0], cpf[1], "a", 122, 30, sp=60)
    if pf and pfrows == 0:
        srd(k, 44, 6, D*F*2)
        k("s_lshl_b32 s38, s2, 9")
        k("v_add_u32 v31, s38, v30")
        k("v_lshlrev_b32 v31, 6, v31")
        k("buffer_load_dword v120, v31, s[44:47], 0 offen")
        NPF = 1
    elif pf:
        n = pfrows * 7168 // 64 // 256
        srd(k, 44, 6, pfrows * 7168)
        srd(k, 52, 42, pfrows * 7168)
        k(f"s_mul_i32 s38, s2, {n}")
        k("v_add_u32 v31, s38, v30")
        k("v_lshlrev_b32 v31, 6, v31")
        k(f"v_cmp_gt_u32 vcc, {n}, v30")
        k("v_bfrev_b32 v121, 1")
        k("s_nop 1")
        k("v_cndmask_b32 v31, v121, v31, vcc")
        k("buffer_load_dword v120, v31, s[44:47], 0 offen")
        k("buffer_load_dword v121, v31, s[52:55], 0 offen")
        NPF = 2
    ZF = 104
    for pl in range(2):
        for m in range(2):
            for h in range(2):
                b = ZF + (pl*2 + m)*4 + 2*h
                k(f"ds_read_b64_tr_b16 v[{b}:{b+1}], v14 offset:{h*2048 + m*8192 + pl*8}")
    for q in range(6):
        k(f"ds_read_b128 v[{32+4*q}:{35+4*q}], v5 offset:{TBL + q*1024}")
    k("s_waitcnt lgkmcnt(0)")
    for d in range(8): k(f"v_xor_b32 v{ZF+8+d}, s40, v{ZF+8+d}")
    k("s_and_b32 s38, s28, 3")
    k("s_or_b32 s38, s38, s34")
    k("s_cmp_lg_u32 s38, 0")
    k(f"s_cbranch_scc1 {name}_nosp")
    k("s_cmp_eq_u32 s28, 0")
    k(f"s_cbranch_scc1 {name}_sp0")
    for d in range(8): k(f"v_xor_b32 v{ZF+d}, s40, v{ZF+8+d}")
    k.label(f"{name}_sp0")
    for d in range(8): k(f"v_mov_b32 v{ZF+8+d}, 0")
    k.label(f"{name}_nosp")
    TR, TI = 128, 144
    def mf(d, a, b, c):
        cs = "0" if c is None else f"v[{c}:{c+15}]"
        k(f"v_mfma_f32_32x32x16_bf16 v[{d}:{d+15}], v[{a}:{a+3}], v[{b}:{b+3}], {cs}")
    zr = lambda m: ZF + m*4
    zi = lambda m: ZF + 8 + m*4
    k("s_nop 1")
    mf(TR, zr(0), C1+0, None)
    mf(TI, zr(0), C1+16, None)
    mf(TR, zr(1), C1+4, TR)
    mf(TI, zr(1), C1+20, TI)
    mf(TR, zi(0), C1+8, TR)
    mf(TI, zi(0), C1+0, TI)
    mf(TR, zi(1), C1+12, TR)
    mf(TI, zi(1), C1+4, TI)
    for q in list(range(10, 18)) + list(range(6, 10)):
        k(f"ds_read_b128 v[{32+4*q}:{35+4*q}], v5 offset:{TBL + q*1024}")
    XF = 176
    for d in range(8):
        k(f"v_lshlrev_b32 v{XF+2*d}, 16, v{XV+d}")
        k(f"v_and_b32 v{XF+2*d+1}, 0xffff0000, v{XV+d}")
    k("s_waitcnt lgkmcnt(4)")
    for q in range(12):
        k(f"ds_read_b128 v[{MV+4*q}:{MV+4*q+3}], v5 offset:{TBL + 18432 + q*1024}")
    def pr(b): return f"v[{b}:{b+1}]"
    PRr, PIi = 160, 192
    for q in range(8):
        k(f"v_pk_mul_f32 {pr(PRr+2*q)}, {pr(TR+2*q)}, {pr(TW+2*q)}")
    for q in range(8):
        k(f"v_pk_fma_f32 {pr(PRr+2*q)}, {pr(TI+2*q)}, {pr(TW+16+2*q)}, {pr(PRr+2*q)}")
    for q in range(8):
        k(f"v_pk_mul_f32 {pr(TI+2*q)}, {pr(TI+2*q)}, {pr(TW+2*q)}")
    for q in range(8):
        k(f"v_pk_fma_f32 {pr(TI+2*q)}, {pr(TR+2*q)}, {pr(TW+16+2*q)}, {pr(TI+2*q)} neg_lo:[1,0,0] neg_hi:[1,0,0]")
    PR, PI = 104, 112
    for d in range(8):
        k(f"v_cvt_pk_bf16_f32 v{PR+d}, v{PRr+2*d}, v{PRr+2*d+1}")
        k(f"v_cvt_pk_bf16_f32 v{PI+d}, v{TI+2*d}, v{TI+2*d+1}")
    Y = 128
    k("s_waitcnt lgkmcnt(12)")
    mf(Y, PR+0, C3+0, None)
    mf(Y, PR+4, C3+4, Y)
    mf(Y, PI+0, C3+8, Y)
    mf(Y, PI+4, C3+12, Y)
    k("s_nop 15")
    k("s_waitcnt lgkmcnt(0)")
    for q in range(8):
        k(f"v_pk_fma_f32 {pr(XF+2*q)}, {pr(Y+2*q)}, {pr(MV+2*q)}, {pr(XF+2*q)}")
    for d in range(8):
        k(f"v_cvt_pk_bf16_f32 v{XV+d}, v{XF+2*d}, v{XF+2*d+1}")
    k(f"buffer_store_dwordx4 v[{XV}:{XV+3}], v4, s[20:23], 0 offen{sf}")
    k(f"buffer_store_dwordx4 v[{XV+4}:{XV+7}], v4, s[20:23], 0 offen offset:32{sf}")
    for d in range(8):
        k(f"v_lshlrev_b32 v{XF+2*d}, 16, v{XV+d}")
        k(f"v_and_b32 v{XF+2*d+1}, 0xffff0000, v{XV+d}")
    k(f"v_pk_add_f32 v[10:11], {pr(XF)}, {pr(XF+2)}")
    k(f"v_pk_mul_f32 v[12:13], {pr(XF)}, {pr(XF)}")
    for q in range(1, 8):
        if q > 1: k(f"v_pk_add_f32 v[10:11], v[10:11], {pr(XF+2*q)}")
        k(f"v_pk_fma_f32 v[12:13], {pr(XF+2*q)}, {pr(XF+2*q)}, v[12:13]")
    k("v_add_f32 v10, v10, v11")
    k("v_add_f32 v12, v12, v13")
    wave_sum(k, [10, 12], [11, 13])
    k(f"v_mul_f32 v10, {f2u(1.0/1024):#x}, v10")
    k(f"v_mul_f32 v12, {f2u(1.0/1024):#x}, v12")
    k("v_fma_f32 v12, -v10, v10, v12")
    k("v_max_f32 v12, 0, v12")
    k(f"v_add_f32 v12, {f2u(1e-5):#x}, v12")
    k("v_rsq_f32 v12, v12")
    k("v_sub_f32 v10, 0, v10")
    bc = "op_sel:[0,0] op_sel_hi:[1,0]"
    for q in range(8): k(f"v_pk_add_f32 {pr(XF+2*q)}, {pr(XF+2*q)}, v[10:11] {bc}")
    for q in range(8): k(f"v_pk_mul_f32 {pr(XF+2*q)}, {pr(XF+2*q)}, v[12:13] {bc}")
    for q in range(8): k(f"v_pk_fma_f32 {pr(XF+2*q)}, {pr(XF+2*q)}, {pr(MV+16+2*q)}, {pr(MV+32+2*q)}")
    for d in range(8):
        k(f"v_cvt_pk_bf16_f32 v{160+d}, v{XF+2*d}, v{XF+2*d+1}")
    k("ds_write_b128 v17, v[160:163]")
    k("ds_write_b128 v17, v[164:167] offset:256")
    k("s_waitcnt lgkmcnt(0)")
    k("s_barrier")
    k("ds_read_b128 v[168:171], v22")
    k(f"ds_read_b128 v[172:175], v22 offset:{2*528}")
    k("s_add_u32 s42, s41, 32768")
    k("s_waitcnt lgkmcnt(1)")
    k(f"buffer_store_dwordx4 v[168:171], v23, s[24:27], s41 offen{sf2}")
    k("s_waitcnt lgkmcnt(0)")
    k(f"buffer_store_dwordx4 v[172:175], v23, s[24:27], s42 offen{sf2}")
    st(3)
    st.end(32, 28)
    k.label(f"{name}_end")
    k("s_endpgm")
    k.lds = HST + 32*528; k.grid = 256; k.block = 512
    return k
```

```python
from asmlib import *
from layout import *
import math, struct
from ka_util import *
from kb import kb_consts
from kc import kc_consts

def gen_ka(name="ka_kernel", nt=True, stamps=False, sf='', xnt=True, codepf=None):
    k = Kern(name)
    st = Stamps(k, stamps, 0)
    ntf = " nt" if nt else ""
    xntf = " nt" if xnt else ""
    k("s_cmp_ge_u32 s2, 257")
    k(f"s_cbranch_scc1 {name}_end")
    st.start()
    k(f"s_load_dwordx2 s[32:33], s[0:1], {KA['ws']}")
    k("v_lshrrev_b32 v1, 6, v0")
    k("v_and_b32 v2, 63, v0")
    k("v_readfirstlane_b32 s28, v1")
    k("s_cmp_eq_u32 s2, 256")
    k(f"s_cbranch_scc1 {name}_tab")
    if codepf:
        first, last = codepf
        k("s_cmp_ge_u32 s2, 8")
        k(f"s_cbranch_scc1 {name}_nocpf")
        k("s_getpc_b64 s[56:57]")
        k.label(f"{name}_pc")
        k(f"s_add_u32 s56, s56, {first}-{name}_pc")
        k("s_addc_u32 s57, s57, 0")
        k(f"s_mov_b32 s58, {last}-{first}")
        k("v_lshlrev_b32 v100, 6, v0")
        for q in range(2):
            if q: k("v_add_u32 v100, 0x8000, v100")
            k("v_cmp_gt_u32 vcc, s58, v100")
            k("s_and_saveexec_b64 s[40:41], vcc")
            k(f"s_cbranch_execz {name}_cpf{q}")
            k("v_mov_b32 v103, s57")
            k("v_add_co_u32 v102, vcc, s56, v100")
            k("s_nop 1")
            k("v_addc_co_u32 v103, vcc, 0, v103, vcc")
            k(f"global_load_dword v{104+q}, v[102:103], off")
            k.label(f"{name}_cpf{q}")
            k("s_mov_b64 exec, s[40:41]")
        k.label(f"{name}_nocpf")
    k(f"s_load_dwordx2 s[4:5], s[0:1], {KA['x']}")
    k(f"s_load_dwordx2 s[6:7], s[0:1], {KA['wmod']}")
    k(f"s_load_dwordx2 s[42:43], s[0:1], {KA['c']}")
    k("v_and_b32 v3, 7, v2")
    k("v_lshrrev_b32 v4, 3, v2")
    k("v_lshlrev_b32 v5, 11, v3")
    k("v_lshlrev_b32 v6, 3, v4")
    k("v_add_u32 v5, v5, v6")
    k("s_lshl_b32 s34, s28, 8")
    k("v_add_u32 v5, s34, v5")
    k("s_lshr_b32 s35, s2, 3")
    k("s_and_b32 s36, s35, 3")
    k("s_lshr_b32 s37, s35, 3")
    k("s_and_b32 s37, s37, 1")
    k("s_lshl_b32 s37, s37, 2")
    k("s_or_b32 s36, s36, s37")
    k("s_lshl_b32 s36, s36, 2")
    k("s_and_b32 s37, s2, 7")
    k("s_lshl_b32 s37, s37, 3")
    k("s_add_u32 s36, s36, s37")
    k("v_add_u32 v6, s36, v3")
    k("v_and_b32 v6, 63, v6")
    k("s_lshl_b32 s35, s35, 6")
    k("v_add_u32 v6, s35, v6")
    k("v_lshlrev_b32 v6, 3, v6")
    k("v_lshlrev_b32 v7, 14, v4")
    k("v_add_u32 v6, v6, v7")
    k("s_lshl_b32 s38, s28, 19")
    k("v_add_u32 v6, s38, v6")
    k("v_lshlrev_b32 v12, 4, v2")
    k("v_cmp_gt_u32 vcc, 48, v2")
    k("v_bfrev_b32 v13, 1")
    k(f"s_mul_i32 s39, s28, {8*12288}")
    k("v_add_u32 v12, s39, v12")
    k("v_cndmask_b32 v12, v13, v12, vcc")
    k("v_lshlrev_b32 v14, 1, v2")
    k("s_waitcnt lgkmcnt(0)")
    st(1)
    k("s_lshl_b32 s34, s2, 14")
    srd(k, 8, 4, 16384, off_s="s34")
    for q in range(4):
        k(f"buffer_load_dwordx2 v[{16+2*q}:{17+2*q}], v5, s[8:11], 0 offen offset:{q*64}{xntf}")
    k("s_lshr_b32 s35, s2, 4")
    k("s_and_b32 s36, s2, 15")
    k(f"s_mul_i32 s37, s35, {64*12288}")
    k("s_mul_i32 s38, s36, 768")
    k("s_add_u32 s37, s37, s38")
    k(f"s_sub_u32 s38, {1024*12288}, s37")
    srd(k, 44, 6, "s38", off_s="s37")
    k("s_lshl_b32 s37, s35, 7")
    k("s_lshl_b32 s38, s28, 4")
    k("s_add_u32 s37, s37, s38")
    srd(k, 48, 42, 16, off_s="s37")
    k("buffer_load_ushort v15, v14, s[48:51], 0 offen")
    for p in range(8):
        k(f"s_mov_b32 s37, {p*12288}")
        k(f"buffer_load_dwordx4 v[{64+4*p}:{67+4*p}], v12, s[44:47], s37 offen{ntf}")
    srd(k, 12, 32, S * D * 2, off_imm=XS_OFF)
    k("v_mov_b32 v8, 0"); k("v_mov_b32 v9, 0")
    for q in range(4):
        k(f"s_waitcnt vmcnt({3-q+9})")
        for d in range(2):
            src = 16 + 2*q + d; dst = 32 + 4*q + 2*d
            k(f"v_lshlrev_b32 v{dst}, 16, v{src}")
            k(f"v_and_b32 v{dst+1}, 0xffff0000, v{src}")
        for e in range(4):
            r = 32 + 4*q + e
            k(f"v_add_f32 v8, v8, v{r}")
            k(f"v_fma_f32 v9, v{r}, v{r}, v9")
    st(2)
    dpp_add(k, [8, 9], "row_ror:8")
    k("s_nop 1")
    xlane_sum_16_32(k, [8, 9], [10, 11])
    k("v_lshlrev_b32 v10, 6, v3")
    k("s_lshl_b32 s34, s28, 3")
    k("v_add_u32 v11, s34, v10")
    k("v_cmp_gt_u32 vcc, 8, v2")
    k("s_and_saveexec_b64 s[40:41], vcc")
    k("ds_write_b64 v11, v[8:9]")
    k("s_mov_b64 exec, s[40:41]")
    k("s_waitcnt vmcnt(8)")
    k("v_lshlrev_b32 v15, 16, v15")
    k(f"v_mul_f32 v24, {f2u(-math.log2(math.e)):#x}, v15")
    k("v_exp_f32 v24, v24")
    k("s_nop 0")
    k("v_add_f32 v24, 1.0, v24")
    k("v_rcp_f32 v24, v24")
    k("s_nop 0")
    k("v_mul_f32 v15, v15, v24")
    k("v_cvt_pk_bf16_f32 v15, v15, v15")
    k("v_lshlrev_b32 v15, 16, v15")
    k("s_waitcnt lgkmcnt(0)")
    k("s_barrier")
    for q in range(4):
        k(f"ds_read_b128 v[{48+4*q}:{51+4*q}], v10 offset:{q*16}")
    for p in range(8): k(f"v_readlane_b32 s{52+p}, v15, {p}")
    k("s_waitcnt lgkmcnt(0)")
    k("v_add_f32 v8, v48, v50"); k("v_add_f32 v9, v49, v51")
    for r in range(52, 64, 2):
        k(f"v_add_f32 v8, v8, v{r}"); k(f"v_add_f32 v9, v9, v{r+1}")
    k(f"v_mul_f32 v8, {f2u(1.0/1024):#x}, v8")
    k(f"v_mul_f32 v9, {f2u(1.0/1024):#x}, v9")
    k("v_fma_f32 v9, -v8, v8, v9")
    k("v_max_f32 v9, 0, v9")
    k(f"v_add_f32 v9, {f2u(1e-5):#x}, v9")
    k("v_rsq_f32 v9, v9")
    k("s_nop 0")
    k("v_mul_f32 v8, v8, v9")
    for r in range(32, 48):
        k(f"v_fma_f32 v{r}, v{r}, v9, -v8")
    for q in range(4):
        for d in range(2):
            k(f"v_cvt_pk_bf16_f32 v{16+2*q+d}, v{32+4*q+2*d}, v{32+4*q+2*d+1}")
    for q in range(4):
        k(f"s_mov_b32 s34, {q*8*16384}")
        k(f"buffer_store_dwordx2 v[{16+2*q}:{17+2*q}], v6, s[12:15], s34 offen{sf}")
    for e in range(8): k(f"v_mov_b32 v{32+e}, 0")
    for p in range(8):
        k(f"s_waitcnt vmcnt({7-p+4})")
        for d in range(4):
            k(f"v_lshlrev_b32 v8, 16, v{64+4*p+d}")
            k(f"v_and_b32 v9, 0xffff0000, v{64+4*p+d}")
            k(f"v_fma_f32 v{32+2*d}, v8, s{52+p}, v{32+2*d}")
            k(f"v_fma_f32 v{33+2*d}, v9, s{52+p}, v{33+2*d}")
    k("v_lshlrev_b32 v10, 5, v2")
    k("s_mul_i32 s34, s28, 1536")
    k("s_add_u32 s34, s34, 1024")
    k("v_add_u32 v10, s34, v10")
    k("v_cmp_gt_u32 vcc, 48, v2")
    k("s_and_saveexec_b64 s[40:41], vcc")
    k("ds_write_b128 v10, v[32:35]")
    k("ds_write_b128 v10, v[36:39] offset:16")
    k("s_mov_b64 exec, s[40:41]")
    k("s_waitcnt lgkmcnt(0)")
    k("s_barrier")
    k("v_cmp_gt_u32 vcc, 384, v0")
    k("s_and_saveexec_b64 s[40:41], vcc")
    k(f"s_cbranch_execz {name}_fin")
    k("v_lshlrev_b32 v7, 2, v0")
    for w in range(8):
        k(f"ds_read_b32 v{16+w}, v7 offset:{1024+w*1536}")
    k("s_waitcnt lgkmcnt(0)")
    k("v_add_f32 v16, v16, v17"); k("v_add_f32 v18, v18, v19"); k("v_add_f32 v20, v20, v21"); k("v_add_f32 v22, v22, v23")
    k("v_add_f32 v16, v16, v18"); k("v_add_f32 v20, v20, v22"); k("v_add_f32 v16, v16, v20")
    k(f"s_mul_i32 s37, s35, {6144*4}")
    k("s_mul_i32 s38, s36, 1536")
    k("s_add_u32 s37, s37, s38")
    srd(k, 12, 32, 16*6144*4, off_imm=MODP_OFF)
    k(f"buffer_store_dword v16, v7, s[12:15], s37 offen{sf}")
    k.label(f"{name}_fin")
    st(3)
    st.end(32, 28)
    k("s_endpgm")
    k.label(f"{name}_tab")
    k("v_mov_b32 v0, v2")
    k("s_cmp_gt_u32 s28, 5")
    k(f"s_cbranch_scc1 {name}_end")
    k("s_waitcnt lgkmcnt(0)")
    k("s_cmp_eq_u32 s28, 5")
    k(f"s_cbranch_scc1 {name}_flg")
    k("s_cmp_eq_u32 s28, 4")
    k(f"s_cbranch_scc1 {name}_tabc")
    k("v_lshrrev_b32 v3, 4, v0")
    k("v_and_b32 v4, 15, v0")
    kb_consts(k)
    srd(k, 12, 32, 32768, off_imm=TB_OFF)
    k("v_lshlrev_b32 v5, 4, v0")
    k("s_lshl_b32 s36, s28, 12")
    k("s_add_u32 s36, s36, 16384")
    for q in range(4):
        k(f"buffer_store_dwordx4 v[{72+4*q}:{75+4*q}], v5, s[12:15], s36 offen offset:{q*1024}")
    k("s_lshr_b32 s36, s28, 1")
    k("s_mul_i32 s36, s36, 6144")
    k("s_add_u32 s36, s36, 4096")
    for q in range(6):
        if q == 4: k("s_add_u32 s36, s36, 4096")
        k(f"buffer_store_dwordx4 v[{48+4*q}:{51+4*q}], v5, s[12:15], s36 offen offset:{(q%4)*1024}")
    k("s_mov_b32 s36, 0")
    for q in range(4):
        k(f"buffer_store_dwordx4 v[{32+4*q}:{35+4*q}], v5, s[12:15], s36 offen offset:{q*1024}")
    k("s_endpgm")
    k.label(f"{name}_flg")
    srd(k, 12, 32, 256*128, off_imm=FLAG_OFF)
    k("v_lshlrev_b32 v5, 4, v0")
    for r in range(4): k(f"v_mov_b32 v{8+r}, 0")
    for q in range(32):
        k(f"s_mov_b32 s36, {q*1024}")
        k("buffer_store_dwordx4 v[8:11], v5, s[12:15], s36 offen")
    k("s_endpgm")
    k.label(f"{name}_tabc")
    kc_consts(k)
    srd(k, 12, 32, 18432, off_imm=TC_OFF)
    k("v_lshlrev_b32 v5, 4, v0")
    k("s_mov_b32 s36, 0")
    for q in range(18):
        k(f"buffer_store_dwordx4 v[{32+4*q}:{35+4*q}], v5, s[12:15], s36 offen offset:{(q%4)*1024}")
        if q % 4 == 3: k("s_add_u32 s36, s36, 4096")
    k.label(f"{name}_end")
    k("s_endpgm")
    k.lds = 1024 + 8*1536; k.grid = 257; k.block = 512; k.vgpr = 128; k.accum = 128
    return k
```

```python
from asmlib import *
from layout import *
import math, struct
from ka_util import *
from kb import kb_consts
from kc import kc_consts

def gen_ka(name="ka_kernel", nt=True, stamps=False, sf='', xnt=True, codepf=None, selfpf=False, tlbpf=0):
    k = Kern(name)
    st = Stamps(k, stamps, 0)
    ntf = " nt" if nt else ""
    xntf = " nt" if xnt else ""
    k("s_cmp_ge_u32 s2, 257")
    k(f"s_cbranch_scc1 {name}_end")
    if selfpf:
        k("s_cmp_ge_u32 s2, 8")
        k(f"s_cbranch_scc1 {name}_nospf")
        k("s_getpc_b64 s[56:57]")
        k.label(f"{name}_pc0")
        k(f"s_mov_b32 s58, {codepf[0]}-{name}_pc0")
        k("v_lshlrev_b32 v100, 6, v0")
        k("v_cmp_gt_u32 vcc, s58, v100")
        k("s_and_saveexec_b64 s[40:41], vcc")
        k("v_mov_b32 v103, s57")
        k("v_add_co_u32 v102, vcc, s56, v100")
        k("s_nop 1")
        k("v_addc_co_u32 v103, vcc, 0, v103, vcc")
        k(f"s_cbranch_execz {name}_spf1")
        k("global_load_dword v106, v[102:103], off")
        k.label(f"{name}_spf1")
        k("s_mov_b64 exec, s[40:41]")
        k.label(f"{name}_nospf")
    st.start()
    k(f"s_load_dwordx2 s[32:33], s[0:1], {KA['ws']}")
    k("v_lshrrev_b32 v1, 6, v0")
    k("v_and_b32 v2, 63, v0")
    k("v_readfirstlane_b32 s28, v1")
    k("s_cmp_eq_u32 s2, 256")
    k(f"s_cbranch_scc1 {name}_tab")
    if codepf:
        first, last = codepf
        k("s_cmp_ge_u32 s2, 8")
        k(f"s_cbranch_scc1 {name}_nocpf")
        k("s_getpc_b64 s[56:57]")
        k.label(f"{name}_pc")
        k(f"s_add_u32 s56, s56, {first}-{name}_pc")
        k("s_addc_u32 s57, s57, 0")
        k(f"s_mov_b32 s58, {last}-{first}")
        k("v_lshlrev_b32 v100, 6, v0")
        for q in range(2):
            if q: k("v_add_u32 v100, 0x8000, v100")
            k("v_cmp_gt_u32 vcc, s58, v100")
            k("s_and_saveexec_b64 s[40:41], vcc")
            k(f"s_cbranch_execz {name}_cpf{q}")
            k("v_mov_b32 v103, s57")
            k("v_add_co_u32 v102, vcc, s56, v100")
            k("s_nop 1")
            k("v_addc_co_u32 v103, vcc, 0, v103, vcc")
            k(f"global_load_dword v{104+q}, v[102:103], off")
            k.label(f"{name}_cpf{q}")
            k("s_mov_b64 exec, s[40:41]")
        k.label(f"{name}_nocpf")
    k(f"s_load_dwordx2 s[4:5], s[0:1], {KA['x']}")
    k(f"s_load_dwordx2 s[6:7], s[0:1], {KA['wmod']}")
    k(f"s_load_dwordx2 s[42:43], s[0:1], {KA['c']}")
    k("v_and_b32 v3, 7, v2")
    k("v_lshrrev_b32 v4, 3, v2")
    k("v_lshlrev_b32 v5, 11, v3")
    k("v_lshlrev_b32 v6, 3, v4")
    k("v_add_u32 v5, v5, v6")
    k("s_lshl_b32 s34, s28, 8")
    k("v_add_u32 v5, s34, v5")
    k("s_lshr_b32 s35, s2, 3")
    k("s_and_b32 s36, s35, 3")
    k("s_lshr_b32 s37, s35, 3")
    k("s_and_b32 s37, s37, 1")
    k("s_lshl_b32 s37, s37, 2")
    k("s_or_b32 s36, s36, s37")
    k("s_lshl_b32 s36, s36, 2")
    k("s_and_b32 s37, s2, 7")
    k("s_lshl_b32 s37, s37, 3")
    k("s_add_u32 s36, s36, s37")
    k("v_add_u32 v6, s36, v3")
    k("v_and_b32 v6, 63, v6")
    k("s_lshl_b32 s35, s35, 6")
    k("v_add_u32 v6, s35, v6")
    k("v_lshlrev_b32 v6, 3, v6")
    k("v_lshlrev_b32 v7, 14, v4")
    k("v_add_u32 v6, v6, v7")
    k("s_lshl_b32 s38, s28, 19")
    k("v_add_u32 v6, s38, v6")
    k("v_lshlrev_b32 v12, 4, v2")
    k("v_cmp_gt_u32 vcc, 48, v2")
    k("v_bfrev_b32 v13, 1")
    k(f"s_mul_i32 s39, s28, {8*12288}")
    k("v_add_u32 v12, s39, v12")
    k("v_cndmask_b32 v12, v13, v12, vcc")
    k("v_lshlrev_b32 v14, 1, v2")
    k("s_waitcnt lgkmcnt(0)")
    st(1)
    if tlbpf:
        k("s_cmp_ge_u32 s2, 8")
        k(f"s_cbranch_scc1 {name}_notlb")
        k(f"s_load_dwordx4 s[60:63], s[0:1], {KA['wg']}")
        k(f"s_load_dwordx2 s[64:65], s[0:1], {KA['wd']}")
        k(f"s_load_dwordx2 s[66:67], s[0:1], {KA['out']}")
        k(f"v_mul_u32_u24 v107, {tlbpf}, v0")
        srd(k, 68, 32, 0x2C00000)
        k("buffer_load_dword v108, v107, s[68:71], 0 offen")
        k("s_waitcnt lgkmcnt(0)")
        for i, (b, n) in enumerate(((60, D*F*2), (62, D*F*2), (64, D*F*2), (66, S*D*2))):
            srd(k, 68, b, n)
            k(f"buffer_load_dword v{109+i}, v107, s[68:71], 0 offen")
        k.label(f"{name}_notlb")
    k("s_lshl_b32 s34, s2, 14")
    srd(k, 8, 4, 16384, off_s="s34")
    for q in range(4):
        k(f"buffer_load_dwordx2 v[{16+2*q}:{17+2*q}], v5, s[8:11], 0 offen offset:{q*64}{xntf}")
    k("s_lshr_b32 s35, s2, 4")
    k("s_and_b32 s36, s2, 15")
    k(f"s_mul_i32 s37, s35, {64*12288}")
    k("s_mul_i32 s38, s36, 768")
    k("s_add_u32 s37, s37, s38")
    k(f"s_sub_u32 s38, {1024*12288}, s37")
    srd(k, 44, 6, "s38", off_s="s37")
    k("s_lshl_b32 s37, s35, 7")
    k("s_lshl_b32 s38, s28, 4")
    k("s_add_u32 s37, s37, s38")
    srd(k, 48, 42, 16, off_s="s37")
    k("buffer_load_ushort v15, v14, s[48:51], 0 offen")
    for p in range(8):
        k(f"s_mov_b32 s37, {p*12288}")
        k(f"buffer_load_dwordx4 v[{64+4*p}:{67+4*p}], v12, s[44:47], s37 offen{ntf}")
    srd(k, 12, 32, S * D * 2, off_imm=XS_OFF)
    k("v_mov_b32 v8, 0"); k("v_mov_b32 v9, 0")
    for q in range(4):
        k(f"s_waitcnt vmcnt({3-q+9})")
        for d in range(2):
            src = 16 + 2*q + d; dst = 32 + 4*q + 2*d
            k(f"v_lshlrev_b32 v{dst}, 16, v{src}")
            k(f"v_and_b32 v{dst+1}, 0xffff0000, v{src}")
        for e in range(4):
            r = 32 + 4*q + e
            k(f"v_add_f32 v8, v8, v{r}")
            k(f"v_fma_f32 v9, v{r}, v{r}, v9")
    st(2)
    dpp_add(k, [8, 9], "row_ror:8")
    k("s_nop 1")
    xlane_sum_16_32(k, [8, 9], [10, 11])
    k("v_lshlrev_b32 v10, 6, v3")
    k("s_lshl_b32 s34, s28, 3")
    k("v_add_u32 v11, s34, v10")
    k("v_cmp_gt_u32 vcc, 8, v2")
    k("s_and_saveexec_b64 s[40:41], vcc")
    k("ds_write_b64 v11, v[8:9]")
    k("s_mov_b64 exec, s[40:41]")
    k("s_waitcnt vmcnt(8)")
    k("v_lshlrev_b32 v15, 16, v15")
    k(f"v_mul_f32 v24, {f2u(-math.log2(math.e)):#x}, v15")
    k("v_exp_f32 v24, v24")
    k("s_nop 0")
    k("v_add_f32 v24, 1.0, v24")
    k("v_rcp_f32 v24, v24")
    k("s_nop 0")
    k("v_mul_f32 v15, v15, v24")
    k("v_cvt_pk_bf16_f32 v15, v15, v15")
    k("v_lshlrev_b32 v15, 16, v15")
    k("s_waitcnt lgkmcnt(0)")
    k("s_barrier")
    for q in range(4):
        k(f"ds_read_b128 v[{48+4*q}:{51+4*q}], v10 offset:{q*16}")
    for p in range(8): k(f"v_readlane_b32 s{52+p}, v15, {p}")
    k("s_waitcnt lgkmcnt(0)")
    k("v_add_f32 v8, v48, v50"); k("v_add_f32 v9, v49, v51")
    for r in range(52, 64, 2):
        k(f"v_add_f32 v8, v8, v{r}"); k(f"v_add_f32 v9, v9, v{r+1}")
    k(f"v_mul_f32 v8, {f2u(1.0/1024):#x}, v8")
    k(f"v_mul_f32 v9, {f2u(1.0/1024):#x}, v9")
    k("v_fma_f32 v9, -v8, v8, v9")
    k("v_max_f32 v9, 0, v9")
    k(f"v_add_f32 v9, {f2u(1e-5):#x}, v9")
    k("v_rsq_f32 v9, v9")
    k("s_nop 0")
    k("v_mul_f32 v8, v8, v9")
    for r in range(32, 48):
        k(f"v_fma_f32 v{r}, v{r}, v9, -v8")
    for q in range(4):
        for d in range(2):
            k(f"v_cvt_pk_bf16_f32 v{16+2*q+d}, v{32+4*q+2*d}, v{32+4*q+2*d+1}")
    for q in range(4):
        k(f"s_mov_b32 s34, {q*8*16384}")
        k(f"buffer_store_dwordx2 v[{16+2*q}:{17+2*q}], v6, s[12:15], s34 offen{sf}")
    for e in range(8): k(f"v_mov_b32 v{32+e}, 0")
    for p in range(8):
        k(f"s_waitcnt vmcnt({7-p+4})")
        for d in range(4):
            k(f"v_lshlrev_b32 v8, 16, v{64+4*p+d}")
            k(f"v_and_b32 v9, 0xffff0000, v{64+4*p+d}")
            k(f"v_fma_f32 v{32+2*d}, v8, s{52+p}, v{32+2*d}")
            k(f"v_fma_f32 v{33+2*d}, v9, s{52+p}, v{33+2*d}")
    k("v_lshlrev_b32 v10, 5, v2")
    k("s_mul_i32 s34, s28, 1536")
    k("s_add_u32 s34, s34, 1024")
    k("v_add_u32 v10, s34, v10")
    k("v_cmp_gt_u32 vcc, 48, v2")
    k("s_and_saveexec_b64 s[40:41], vcc")
    k("ds_write_b128 v10, v[32:35]")
    k("ds_write_b128 v10, v[36:39] offset:16")
    k("s_mov_b64 exec, s[40:41]")
    k("s_waitcnt lgkmcnt(0)")
    k("s_barrier")
    k("v_cmp_gt_u32 vcc, 384, v0")
    k("s_and_saveexec_b64 s[40:41], vcc")
    k(f"s_cbranch_execz {name}_fin")
    k("v_lshlrev_b32 v7, 2, v0")
    for w in range(8):
        k(f"ds_read_b32 v{16+w}, v7 offset:{1024+w*1536}")
    k("s_waitcnt lgkmcnt(0)")
    k("v_add_f32 v16, v16, v17"); k("v_add_f32 v18, v18, v19"); k("v_add_f32 v20, v20, v21"); k("v_add_f32 v22, v22, v23")
    k("v_add_f32 v16, v16, v18"); k("v_add_f32 v20, v20, v22"); k("v_add_f32 v16, v16, v20")
    k(f"s_mul_i32 s37, s35, {6144*4}")
    k("s_mul_i32 s38, s36, 1536")
    k("s_add_u32 s37, s37, s38")
    srd(k, 12, 32, 16*6144*4, off_imm=MODP_OFF)
    k(f"buffer_store_dword v16, v7, s[12:15], s37 offen{sf}")
    k.label(f"{name}_fin")
    st(3)
    st.end(32, 28)
    k("s_endpgm")
    k.label(f"{name}_tab")
    k("v_mov_b32 v0, v2")
    k("s_cmp_gt_u32 s28, 5")
    k(f"s_cbranch_scc1 {name}_end")
    k("s_waitcnt lgkmcnt(0)")
    k("s_cmp_eq_u32 s28, 5")
    k(f"s_cbranch_scc1 {name}_flg")
    k("s_cmp_eq_u32 s28, 4")
    k(f"s_cbranch_scc1 {name}_tabc")
    k("v_lshrrev_b32 v3, 4, v0")
    k("v_and_b32 v4, 15, v0")
    kb_consts(k)
    srd(k, 12, 32, 32768, off_imm=TB_OFF)
    k("v_lshlrev_b32 v5, 4, v0")
    k("s_lshl_b32 s36, s28, 12")
    k("s_add_u32 s36, s36, 16384")
    for q in range(4):
        k(f"buffer_store_dwordx4 v[{72+4*q}:{75+4*q}], v5, s[12:15], s36 offen offset:{q*1024}")
    k("s_lshr_b32 s36, s28, 1")
    k("s_mul_i32 s36, s36, 6144")
    k("s_add_u32 s36, s36, 4096")
    for q in range(6):
        if q == 4: k("s_add_u32 s36, s36, 4096")
        k(f"buffer_store_dwordx4 v[{48+4*q}:{51+4*q}], v5, s[12:15], s36 offen offset:{(q%4)*1024}")
    k("s_mov_b32 s36, 0")
    for q in range(4):
        k(f"buffer_store_dwordx4 v[{32+4*q}:{35+4*q}], v5, s[12:15], s36 offen offset:{q*1024}")
    k("s_endpgm")
    k.label(f"{name}_flg")
    srd(k, 12, 32, 256*128, off_imm=FLAG_OFF)
    k("v_lshlrev_b32 v5, 4, v0")
    for r in range(4): k(f"v_mov_b32 v{8+r}, 0")
    for q in range(32):
        k(f"s_mov_b32 s36, {q*1024}")
        k("buffer_store_dwordx4 v[8:11], v5, s[12:15], s36 offen")
    k("s_endpgm")
    k.label(f"{name}_tabc")
    kc_consts(k)
    srd(k, 12, 32, 18432, off_imm=TC_OFF)
    k("v_lshlrev_b32 v5, 4, v0")
    k("s_mov_b32 s36, 0")
    for q in range(18):
        k(f"buffer_store_dwordx4 v[{32+4*q}:{35+4*q}], v5, s[12:15], s36 offen offset:{(q%4)*1024}")
        if q % 4 == 3: k("s_add_u32 s36, s36, 4096")
    k.label(f"{name}_end")
    k("s_endpgm")
    k.lds = 1024 + 8*1536; k.grid = 257; k.block = 512; k.vgpr = 128; k.accum = 128
    return k
```

```python
from mk_all import *
S1 = ' sc1'
CP = ("kb_kernel", "code_end_label")
def P(ka):
    return [gen_ka("ka_kernel", xnt=False, codepf=CP, **ka), gen_kb("kb_kernel", sf=S1, table=False), gen_kc("kc_kernel", xnt=False), gen_gemm3b("g3_kernel", sf=S1, sf2=S1), gen_gemm4b("g4_kernel")]
build("t_a.s", P(dict()))
build("t_b.s", P(dict(selfpf=True)))
build("t_c.s", P(dict(tlbpf=131072)))
build("t_d.s", P(dict(selfpf=True, tlbpf=131072)))
```

```python
class Kern:
    def __init__(self, name):
        self.name = name
        self.lines = []
        self.nlab = 0
        self.vgpr = 256
        self.sgpr = 102
        self.accum = 256
    def __call__(self, s):
        for l in s.split("\n"):
            l = l.strip()
            if l:
                self.lines.append("  " + l)
    def c(self, s):
        self.lines.append("  ; " + s)
    def label(self, l):
        self.lines.append(l + ":")
    def newlabel(self, base="L"):
        self.nlab += 1
        return f"{self.name}_{base}{self.nlab}"
    def text(self):
        out = []
        out.append(f".globl {self.name}")
        out.append(".p2align 8")
        out.append(f".type {self.name},@function")
        out.append(f"{self.name}:")
        out += self.lines
        return "\n".join(out) + "\n"
    def desc(self):
        return f""".p2align 6
.amdhsa_kernel {self.name}
  .amdhsa_next_free_vgpr {self.vgpr}
  .amdhsa_next_free_sgpr {self.sgpr}
  .amdhsa_accum_offset {self.accum}
  .amdhsa_group_segment_fixed_size 0
  .amdhsa_kernarg_size 112
  .amdhsa_user_sgpr_count 2
  .amdhsa_user_sgpr_kernarg_segment_ptr 1
  .amdhsa_system_sgpr_workgroup_id_x 1
  .amdhsa_float_denorm_mode_32 3
  .amdhsa_float_denorm_mode_16_64 3
.end_amdhsa_kernel
"""

def vr(base, n=1):
    return f"v{base}" if n == 1 else f"v[{base}:{base+n-1}]"
def sr(base, n=1):
    return f"s{base}" if n == 1 else f"s[{base}:{base+n-1}]"

KA = dict(x=0, wsr=8, wsi=16, wdr=24, wdi=32, bx=40, wg=48, wu=56, wd=64, c=72, wmod=80, out=88, dbg=96, ws=104)

def srd(k, d, base, nbytes, off_s=None, off_imm=0):
    if off_s is None and off_imm == 0:
        k(f"s_mov_b32 s{d}, s{base}")
        k(f"s_mov_b32 s{d+1}, s{base+1}")
    else:
        if off_s is not None:
            k(f"s_add_u32 s{d}, s{base}, {off_s}")
            k(f"s_addc_u32 s{d+1}, s{base+1}, 0")
            if off_imm:
                k(f"s_add_u32 s{d}, s{d}, {off_imm:#x}")
                k(f"s_addc_u32 s{d+1}, s{d+1}, 0")
        else:
            k(f"s_add_u32 s{d}, s{base}, {off_imm:#x}")
            k(f"s_addc_u32 s{d+1}, s{base+1}, 0")
    if isinstance(nbytes, int):
        k(f"s_mov_b32 s{d+2}, {nbytes:#x}")
    else:
        k(f"s_mov_b32 s{d+2}, {nbytes}")
    k(f"s_mov_b32 s{d+3}, 0x20000")

def build_file(header_comment, launches, kernels):
    out = []
    out.append(header_comment.rstrip("\n"))
    for (name, grid, block, lds) in launches:
        out.append(f"; @launch kernel={name} grid=({grid},1,1) block=({block},1,1) lds={lds}")
    out.append('.amdgcn_target "amdgcn-amd-amdhsa--gfx950"')
    out.append(".text")
    for k in kernels:
        out.append(k.text())
    out.append("code_end_label:")
    out.append('.section .rodata,"a"')
    for k in kernels:
        out.append(k.desc())
    return "\n".join(out)

B128_GROUPS = [list(range(0,4))+list(range(12,16))+list(range(20,28)),
               list(range(4,12))+list(range(16,20))+list(range(28,32)),
               list(range(32,36))+list(range(44,48))+list(range(52,60)),
               list(range(36,44))+list(range(48,52))+list(range(60,64))]
def conflicts_b128(addr):
    worst = 1
    for grp in B128_GROUPS:
        banks = {}
        for l in grp:
            for d in range(4):
                a = addr[l] + 4*d
                banks.setdefault((a//4) % 64, set()).add(a//4)
        worst = max(worst, max(len(s) for s in banks.values()))
    return worst
def conflicts_b64(addr):
    worst = 1
    for grp in (range(0,32), range(32,64)):
        banks = {}
        for l in grp:
            for d in range(2):
                a = addr[l] + 4*d
                banks.setdefault((a//4) % 64, set()).add(a//4)
        worst = max(worst, max(len(s) for s in banks.values()))
    return worst

STAMP_OFF = 0x8000000
class Stamps:
    def __init__(self, k, on, region=0):
        self.k = k; self.on = on; self.region = region
    def start(self):
        if self.on:
            self.k("s_memtime s[60:61]"); self.k("s_memrealtime s[70:71]")
    def __call__(self, i, wait=True):
        if self.on:
            self.k(f"s_memtime s[{60+2*i}:{61+2*i}]")
            if wait: self.k("s_waitcnt lgkmcnt(0)")
    def end(self, wsptr, sW, idreg="s2"):
        if not self.on: return
        k = self.k
        k("s_waitcnt vmcnt(0) lgkmcnt(0)")
        k("s_memtime s[68:69]")
        k("s_memrealtime s[72:73]")
        k("s_waitcnt lgkmcnt(0)")
        k("s_mov_b64 exec, -1")
        srd(k, 76, wsptr, 1 << 20, off_imm=STAMP_OFF + self.region * (1 << 20))
        k(f"s_lshl_b32 s80, {idreg}, 3")
        k(f"s_add_u32 s80, s80, s{sW}")
        k("s_lshl_b32 s80, s80, 6")
        for i in range(14):
            k(f"v_mov_b32 v{32+i}, s{60+i}")
        k("v_mov_b32 v31, 0")
        k("s_mov_b64 exec, 1")
        for i in range(0, 14, 2):
            k(f"buffer_store_dwordx2 v[{32+i}:{33+i}], v31, s[76:79], s80 offen offset:{i*4}")
        k("s_waitcnt vmcnt(0)")


class DbgStamp:
    def __init__(self, k, idx, on):
        self.k, self.i, self.on = k, idx, on
    def start(self):
        if not self.on: return
        k = self.k
        k("s_memrealtime s[84:85]")
        k("s_load_dwordx2 s[86:87], s[0:1], 96")
    def end(self, vt=250):
        if not self.on: return
        k = self.k
        k("s_waitcnt vmcnt(0) lgkmcnt(0)")
        k("s_memrealtime s[92:93]")
        k(f"s_sub_u32 s88, s86, {512*self.i}")
        k("s_subb_u32 s89, s87, 0")
        k("s_mov_b32 s90, 64")
        k("s_mov_b32 s91, 0x20000")
        k("s_waitcnt lgkmcnt(0)")
        k("s_mov_b64 exec, 1")
        k(f"v_mov_b32 v{vt}, s92")
        k(f"v_mov_b32 v{vt+1}, {8*self.i+4}")
        k(f"buffer_atomic_umax v{vt}, v{vt+1}, s[88:91], 0 offen")
        k("s_not_b32 s84, s84")
        k(f"v_mov_b32 v{vt+2}, s84")
        k(f"v_mov_b32 v{vt+3}, {8*self.i}")
        k(f"buffer_atomic_umax v{vt+2}, v{vt+3}, s[88:91], 0 offen")
        k("s_waitcnt vmcnt(0)")


def code_pf(k, first, last, tag, vt, tidreg, sp=56):
    n = k.name
    k("s_cmp_ge_u32 s2, 8")
    k(f"s_cbranch_scc1 {n}_nocp{tag}")
    k(f"s_getpc_b64 s[{sp}:{sp+1}]")
    k.label(f"{n}_pcc{tag}")
    k(f"s_add_u32 s{sp}, s{sp}, {first}-{n}_pcc{tag}")
    k(f"s_addc_u32 s{sp+1}, s{sp+1}, 0")
    k(f"s_mov_b32 s{sp+2}, {last}-{first}")
    if tidreg >= 0: k(f"v_lshlrev_b32 v{vt}, 6, v{tidreg}")
    else: k(f"v_mov_b32 v{vt}, v{-tidreg}")
    k(f"v_cmp_gt_u32 vcc, s{sp+2}, v{vt}")
    k(f"s_and_saveexec_b64 s[{sp+4}:{sp+5}], vcc")
    k(f"s_cbranch_execz {n}_cpx{tag}")
    k(f"v_mov_b32 v{vt+3}, s{sp+1}")
    k(f"v_add_co_u32 v{vt+2}, vcc, s{sp}, v{vt}")
    k("s_nop 1")
    k(f"v_addc_co_u32 v{vt+3}, vcc, 0, v{vt+3}, vcc")
    k(f"global_load_dword v{vt+1}, v[{vt+2}:{vt+3}], off")
    k.label(f"{n}_cpx{tag}")
    k(f"s_mov_b64 exec, s[{sp+4}:{sp+5}]")
    k.label(f"{n}_nocp{tag}")
```

```python
from mk_all import *
S1 = ' sc1'
CP = ("kb_kernel", "code_end_label")
def P(chain):
    return [gen_ka("ka_kernel", xnt=False, codepf=CP),
            gen_kb("kb_kernel", sf=S1, table=False, cpf=("kc_kernel", "g3_kernel") if chain else None),
            gen_kc("kc_kernel", xnt=False, cpf=("g3_kernel", "g4_kernel") if chain else None),
            gen_gemm3b("g3_kernel", sf=S1, sf2=S1, cpf=("g4_kernel", "code_end_label") if chain else None), gen_gemm4b("g4_kernel")]
build("t_a.s", P(False))
build("t_b.s", P(True))
```

```python
from asmlib import *
from layout import *
import math, struct, re
def f2u(x): return struct.unpack("<I", struct.pack("<f", x))[0]

def gen_gemm3c(name="g3_kernel", stamps=False, pf=True, sf=' sc1', sf2=' sc1', dma_frac=(0.1, 0.35, 0.6, 0.85), rd_span=0.6, cpf=None,
               peel_first=True, peel_last=True, fuse=True):
    k = Kern(name)
    st = Stamps(k, stamps, 3)
    NS = 4
    BS = 4128
    STAGE = 8 * BS
    NK = 32
    ROWB = F * 2
    P = 4
    SRD_G, SRD_U, SRD_H, SRD_O, SRD_P = 8, 12, 16, 20, 44
    sKW, sKH, sBLK, sCNT, sW = 24, 25, 26, 27, 28
    vDW, vDH, vSt, vPF = 1, 2, 3, 30
    vRA = [4 + i for i in range(NS)]
    vRB = [10 + i for i in range(NS)]
    vRA2 = [20 + i for i in range(NS)]
    FR = [32, 80]
    ACC = 128
    k("s_cmp_ge_u32 s2, 256")
    k(f"s_cbranch_scc1 {name}_end")
    st.start()
    k(f"s_load_dwordx2 s[4:5], s[0:1], {KA['wg']}")
    k(f"s_load_dwordx2 s[6:7], s[0:1], {KA['wu']}")
    k(f"s_load_dwordx2 s[32:33], s[0:1], {KA['ws']}")
    k(f"s_load_dwordx2 s[30:31], s[0:1], {KA['wd']}")
    k("v_lshrrev_b32 v1, 6, v0")
    k("v_mov_b32 v30, v0")
    k("v_and_b32 v0, 63, v0")
    k(f"v_readfirstlane_b32 s{sW}, v1")
    k("s_and_b32 s34, s2, 7")
    k("s_lshr_b32 s35, s2, 3")
    k("s_and_b32 s36, s34, 1")
    k("s_lshl_b32 s36, s36, 2")
    k("s_and_b32 s37, s35, 3")
    k("s_add_u32 s36, s36, s37")
    k("s_lshr_b32 s37, s34, 1")
    k("s_lshl_b32 s37, s37, 3")
    k("s_lshr_b32 s38, s35, 2")
    k("s_add_u32 s37, s37, s38")
    k("v_lshrrev_b32 v16, 4, v0")
    k("v_and_b32 v17, 1, v16")
    k("v_lshlrev_b32 v17, 4, v17")
    k("v_lshrrev_b32 v18, 1, v16")
    k("v_lshlrev_b32 v18, 2, v18")
    k("v_add_u32 v17, v17, v18")
    k(f"s_lshr_b32 s39, s{sW}, 2")
    k("s_lshl_b32 s39, s39, 3")
    k(f"s_and_b32 s40, s{sW}, 3")
    k("s_add_u32 s39, s39, s40")
    k("v_add_u32 v17, s39, v17")
    k(f"s_mov_b32 s41, {ROWB}")
    k("v_mul_lo_u32 v17, v17, s41")
    k("v_and_b32 v18, 15, v0")
    k("v_lshlrev_b32 v19, 4, v18")
    k(f"v_add_u32 v{vDW}, v17, v19")
    k("v_cmp_lt_u32 vcc, 13, v18")
    k("v_bfrev_b32 v19, 1")
    k("s_nop 0")
    k(f"v_cndmask_b32 v{vDW}, v{vDW}, v19, vcc")
    k(f"s_lshl_b32 s39, s{sW}, 11")
    k(f"v_lshlrev_b32 v{vSt}, 4, v0")
    k(f"v_add_u32 v{vDH}, s39, v{vSt}")
    k(f"s_mul_i32 s{sBLK}, s{sW}, {BS}")
    k("s_mul_i32 s39, s37, 224")
    k(f"s_sub_u32 s40, {D*ROWB}, s39")
    k("s_lshl_b32 s42, s36, 19")
    k("s_waitcnt lgkmcnt(0)")
    st(1)
    srd(k, SRD_G, 4, "s40", off_s="s39")
    srd(k, SRD_U, 6, "s40", off_s="s39")
    srd(k, SRD_H, 32, 1 << 19, off_s="s42", off_imm=H2_OFF)
    k(f"s_mov_b32 s{sKW}, 0")
    k(f"s_mov_b32 s{sKH}, 0")

    def dma_group(stage, part):
        base = (stage % NS) * STAGE
        if part == 0:
            return [f"s_add_u32 m0, s{sBLK}, {base}", f"buffer_load_dwordx4 v{vDW}, s[{SRD_G}:{SRD_G+3}], s{sKW} offen lds"]
        if part == 1:
            return [f"s_add_u32 m0, s{sBLK}, {base+1024}", f"buffer_load_dwordx4 v{vDW}, s[{SRD_U}:{SRD_U+3}], s{sKW} offen lds"]
        if part == 2:
            return [f"s_add_u32 m0, s{sBLK}, {base+2048}", f"buffer_load_dwordx4 v{vDH}, s[{SRD_H}:{SRD_H+3}], s{sKH} offen lds"]
        if part == 3:
            return [None, f"buffer_load_dwordx4 v{vDH}, s[{SRD_H}:{SRD_H+3}], s{sKH} offen offset:1024 lds"]
    def adv():
        return [f"s_add_u32 s{sKW}, s{sKW}, {32*ROWB}", f"s_add_u32 s{sKH}, s{sKH}, 16384"]
    def issue_stage(stg):
        for part in range(4):
            m, ld = dma_group(stg, part)
            if m:
                k(m); k("s_nop 0")
            k(ld)
        for a in adv(): k(a)
    issue_stage(0)
    k("v_and_b32 v17, 1, v16")
    k("v_lshlrev_b32 v17, 2, v17")
    k("v_bfe_u32 v18, v0, 2, 2")
    k("v_add_u32 v17, v17, v18")
    k(f"s_mov_b32 s41, {BS}")
    k("v_mul_lo_u32 v17, v17, s41")
    k("v_lshrrev_b32 v18, 1, v16")
    k("v_lshlrev_b32 v18, 8, v18")
    k("v_add_u32 v17, v17, v18")
    k("v_and_b32 v18, 3, v0")
    k("v_lshlrev_b32 v18, 3, v18")
    k(f"v_add_u32 v{vRA[0]}, v17, v18")
    k(f"s_and_b32 s39, s{sW}, 3")
    k(f"s_mul_i32 s39, s39, {2*BS}")
    k("s_add_u32 s39, s39, 2048")
    k(f"v_add_u32 v{vRB[0]}, s39, v{vSt}")
    for r in range(4): k(f"v_mov_b32 v{24+r}, 0")
    issue_stage(1)
    if not peel_first: issue_stage(2)
    for r in range(0, 128, 16):
        k(f"v_mfma_f32_32x32x16_bf16 v[{ACC+r}:{ACC+r+15}], v[24:27], v[24:27], 0")
    k("s_and_b32 s39, s37, 1")
    k("s_cmp_eq_u32 s39, 0")
    k("s_cselect_b32 s40, 0, 96")
    k("s_cselect_b32 s41, 128, 32")
    k("s_cselect_b32 s42, 192, 0")
    k(f"s_cmp_ge_u32 s{sW}, 4")
    k("s_cselect_b32 s40, s41, s40")
    k(f"v_add_u32 v{vRA2[0]}, s42, v{vRA[0]}")
    k(f"v_add_u32 v{vRA[0]}, s40, v{vRA[0]}")
    for s in range(1, NS):
        k(f"v_add_u32 v{vRA[s]}, {s*STAGE}, v{vRA[0]}")
        k(f"v_add_u32 v{vRA2[s]}, {s*STAGE}, v{vRA2[0]}")
        k(f"v_add_u32 v{vRB[s]}, {s*STAGE}, v{vRB[0]}")
    k(f"v_lshlrev_b32 v{vPF}, 6, v30")
    srd(k, SRD_O, 32, S * F * 2, off_imm=ACT_OFF)
    k("s_mul_i32 s39, s2, 28672")
    srd(k, SRD_P, 30, 28672, off_s="s39")
    k(f"s_waitcnt vmcnt({P if peel_first else 2*P})")
    k("s_barrier")
    st(2)
    k(f"s_cmp_ge_u32 s{sW}, 4")
    k(f"s_cbranch_scc1 {name}_typeB")

    def body(tp):
        nT = 4 if tp == 0 else 3
        nA = 2 * nT
        def Af(s, a): return FR[s] + a * 4
        def Bf(s, p): return FR[s] + 32 + p * 4
        def acc(p, a): return ACC + (p * nA + a) * 4
        def reads(setn, stage):
            A = []
            for a in range(nA):
                gu, j = a // nT, a % nT
                for h in range(2):
                    if tp == 1 and j == 2:
                        off = gu * 1024 + h * 512; base = vRA2[stage]
                    else:
                        off = gu * 1024 + j * 32 + h * 512; base = vRA[stage]
                    A.append(f"ds_read_b64_tr_b16 v[{Af(setn,a)+2*h}:{Af(setn,a)+2*h+1}], v{base} offset:{off}")
            B = []
            for p in range(4):
                off = (p >> 1) * BS + (p & 1) * 1024
                B.append(f"ds_read_b128 v[{Bf(setn,p)}:{Bf(setn,p)+3}], v{vRB[stage]} offset:{off}")
            return [B[0]] + A[:4] + [B[1]] + A[4:8] + [B[2]] + A[8:12] + [B[3]] + A[12:]
        order = [(p, a) for p in range(4) for a in range(nA)]
        nM = len(order)
        def mfma(cur, p, a):
            return f"v_mfma_f32_16x16x32_bf16 v[{acc(p,a)}:{acc(p,a)+3}], v[{Af(cur,a)}:{Af(cur,a)+3}], v[{Bf(cur,p)}:{Bf(cur,p)+3}], v[{acc(p,a)}:{acc(p,a)+3}]"
        def iteration(u, dma_stages, nvm, do_reads=True, barrier=True):
            cur = u & 1; nxt = cur ^ 1
            extra = {}
            if do_reads:
                rd = reads(nxt, (u + 1) % NS)
                for ri, r in enumerate(rd):
                    extra.setdefault(int(ri * rd_span * nM / len(rd)), []).append(r)
            nd = len(dma_stages) * 4
            for si, stg in enumerate(dma_stages):
                for part in range(4):
                    q = si * 4 + part
                    fr = dma_frac[part] if len(dma_stages) == 1 else (0.04 + 0.9 * q / nd)
                    pos = max(1, int(fr * nM))
                    m, ld = dma_group(stg, part)
                    if m: extra.setdefault(pos - 1, []).append(m)
                    extra.setdefault(pos, []).append(ld)
                    if part == 3:
                        extra.setdefault(pos, []).extend(adv())
            if nvm is None: k("s_waitcnt lgkmcnt(0)")
            else: k(f"s_waitcnt vmcnt({nvm}) lgkmcnt(0)")
            if barrier: k("s_barrier")
            for idx, (p, a) in enumerate(order):
                k(mfma(cur, p, a))
                for e in extra.get(idx, []): k(e)
        for r in reads(0, 0): k(r)
        if not peel_first: issue_stage(3)
        ntrips = NK // NS
        if peel_first:
            iteration(0, [2, 3], 0)
            iteration(1, [0, 1], P)
            iteration(2, [2], 2 * P)
            iteration(3, [3], 2 * P)
            ntrips -= 1
        if peel_last: ntrips -= 1
        k(f"s_mov_b32 s{sCNT}, {ntrips}")
        loop = f"{name}_loop{tp}"
        k.label(loop)
        for u in range(NS): iteration(u, [u], 2 * P)
        k(f"s_sub_u32 s{sCNT}, s{sCNT}, 1")
        k(f"s_cmp_lg_u32 s{sCNT}, 0")
        k(f"s_cbranch_scc1 {loop}")
        def epi_setup():
            if cpf: code_pf(k, cpf[0], cpf[1], f"e{tp}", 24, -30, sp=60)
            if pf: k(f"buffer_load_dword v31, v{vPF}, s[{SRD_P}:{SRD_P+3}], 0 offen")
            k(f"s_and_b32 s39, s{sW}, 3")
            k("s_lshl_b32 s40, s36, 2")
            k("s_add_u32 s39, s39, s40")
            k(f"s_mul_i32 s39, s39, {56*8192}")
            k("s_mul_i32 s40, s37, 7")
            k("s_and_b32 s41, s37, 1")
            k("s_cmp_eq_u32 s41, 0")
            if tp == 0:
                k("s_cselect_b32 s41, 0, 3")
                k("s_add_u32 s41, s41, s40")
                k("s_lshl_b32 s41, s41, 11")
                k("s_add_u32 s48, s41, s39")
                k("s_add_u32 s49, s48, 4096")
            else:
                k("s_cselect_b32 s41, 4, 1")
                k("s_cselect_b32 s42, 6, 0")
                k("s_add_u32 s41, s41, s40")
                k("s_lshl_b32 s41, s41, 11")
                k("s_add_u32 s48, s41, s39")
                k("s_add_u32 s42, s42, s40")
                k("s_lshr_b32 s41, s42, 1")
                k("s_lshl_b32 s41, s41, 12")
                k("s_and_b32 s42, s42, 1")
                k("s_lshl_b32 s42, s42, 3")
                k("s_add_u32 s41, s41, s42")
                k("s_add_u32 s49, s41, s39")
            for d in range(2):
                k(f"v_mov_b32 v{vC0+d}, {f2u(c0):#x}")
                k(f"v_mov_b32 v{vC1+d}, {f2u(c1):#x}")
                k(f"v_mov_b32 v{vONE+d}, 1.0")
        c0 = -2.0 * math.sqrt(2.0 / math.pi) * math.log2(math.e)
        c1 = c0 * 0.044715
        vC0, vC1, vONE = 16, 18, 28
        def pr(b): return f"v[{b}:{b+1}]"
        def epi(p, TB, OB):
            out = []
            gi = 0
            for g0 in range(0, nT, 2):
                jj = list(range(nT))[g0:g0+2]
                pairs = []
                for j in jj:
                    g = acc(p, j); u_ = acc(p, nT + j)
                    pairs += [(g, u_), (g + 2, u_ + 2)]
                T = TB + gi * 8; O = OB + gi * 4; gi += 1
                n = len(pairs)
                for q, (g, u_) in enumerate(pairs): out.append(f"v_pk_mul_f32 {pr(T+2*q)}, {pr(g)}, {pr(g)}")
                for q in range(n): out.append(f"v_pk_fma_f32 {pr(T+2*q)}, {pr(T+2*q)}, {pr(vC1)}, {pr(vC0)}")
                for q, (g, u_) in enumerate(pairs): out.append(f"v_pk_mul_f32 {pr(T+2*q)}, {pr(T+2*q)}, {pr(g)}")
                for q in range(2*n): out.append(f"v_exp_f32 v{T+q}, v{T+q}")
                for q, (g, u_) in enumerate(pairs): out.append(f"v_pk_mul_f32 {pr(u_)}, {pr(g)}, {pr(u_)}")
                for q in range(n): out.append(f"v_pk_add_f32 {pr(T+2*q)}, {pr(T+2*q)}, {pr(vONE)}")
                for q in range(2*n): out.append(f"v_rcp_f32 v{T+q}, v{T+q}")
                out.append("s_nop 0")
                for q, (g, u_) in enumerate(pairs): out.append(f"v_pk_mul_f32 {pr(u_)}, {pr(u_)}, {pr(T+2*q)}")
                for q, (g, u_) in enumerate(pairs): out.append(f"v_cvt_pk_bf16_f32 v{O+q}, v{u_}, v{u_+1}")
                if len(jj) == 2:
                    out.append(f"buffer_store_dwordx4 v[{O}:{O+3}], v{vSt}, s[{SRD_O}:{SRD_O+3}], s{48+g0//2} offen offset:{p*1024}{sf}")
                else:
                    out.append(f"buffer_store_dwordx2 v[{O}:{O+1}], v{vSt}, s[{SRD_O}:{SRD_O+3}], s49 offen offset:{p*1024}{sf2}")
            return out
        if peel_last:
            iteration(0, [], 2 * P)
            iteration(1, [], P)
            iteration(2, [], 0)
            cur = 1
            k("s_waitcnt lgkmcnt(0)")
            st(3)
            epi_setup()
            TBs = [FR[0], FR[0] + 16]
            OBs = [FR[0] + 32, FR[0] + 40]
            if fuse:
                for a in range(nA): k(mfma(cur, 0, a))
                for p in range(1, 4):
                    E = epi(p - 1, TBs[(p - 1) & 1], OBs[(p - 1) & 1])
                    M = [mfma(cur, p, a) for a in range(nA)]
                    k(M[0]); k(M[1]); k("s_nop 5")
                    rest = M[2:]
                    step = max(1, len(E) // (len(rest) + 1))
                    mi = 0
                    for ei, e in enumerate(E):
                        k(e)
                        if (ei + 1) % step == 0 and mi < len(rest):
                            k(rest[mi]); mi += 1
                    while mi < len(rest): k(rest[mi]); mi += 1
                k("s_nop 7")
                for e in epi(3, TBs[1], OBs[1]): k(e)
            else:
                for (p, a) in order: k(mfma(cur, p, a))
                k("s_nop 7")
                for p in range(4):
                    for e in epi(p, TBs[p & 1], OBs[p & 1]): k(e)
        else:
            st(3)
            epi_setup()
            k("s_nop 7")
            for p in range(4):
                for e in epi(p, 32 + (p & 1) * 16, 64 + (p & 1) * 8): k(e)
        st.end(32, sW)
        k("s_endpgm")
    body(0)
    k.label(f"{name}_typeB")
    body(1)
    k.label(f"{name}_end")
    k("s_endpgm")
    k.lds = NS * STAGE
    k.grid = 256
    k.block = 512
    return k
```

```python
from asmlib import *
from layout import *

def gen_gemm4b(name="g4_kernel", NS=4, stamps=False, nomfma=False, wf='', af='', sf='', rd_per=1.0, spin_max=1 << 20, wsflag=True, fine=False, waveflag=False, latex=True, noW=False, noA=False, etmap=0, nords=False, cprio=None, rdper=1, rdskip=0, nobar=False, tagged=False, psleep=2, wcontig=False):
    k = Kern(name)
    stp = Stamps(k, stamps, 4)
    PA = 1056
    AREG = 16 * PA
    STAGE = AREG + 16 * 1024
    NK = 28
    SRD_W, SRD_A, SRD_O, SRD_X, SRD_M, SRD_PW, SRD_PR, SRD_D = 8, 12, 16, 20, 24, 44, 48, 52
    sW, sKW, sKA, sCNT, sRD, sDM, sH = 28, 29, 30, 31, 40, 41, 56
    k("s_cmp_ge_u32 s2, 256")
    k(f"s_cbranch_scc1 {name}_end")
    stp.start()
    k(f"s_load_dwordx2 s[4:5], s[0:1], {KA['wd']}")
    k(f"s_load_dwordx2 s[6:7], s[0:1], {KA['out']}")
    k(f"s_load_dwordx2 s[32:33], s[0:1], {KA['ws']}")
    k(f"s_load_dwordx2 s[58:59], s[0:1], {KA['dbg']}")
    k("v_lshrrev_b32 v1, 6, v0")
    k("v_and_b32 v0, 63, v0")
    k(f"v_readfirstlane_b32 s{sW}, v1")
    k("s_and_b32 s34, s2, 7")
    k("s_lshr_b32 s35, s2, 3")
    k(f"s_and_b32 s{sH}, s35, 1")
    k("s_lshr_b32 s35, s35, 1")
    if etmap == 0:
        k("s_and_b32 s36, s34, 1")
        k("s_lshl_b32 s36, s36, 2")
        k("s_and_b32 s37, s35, 3")
        k("s_add_u32 s36, s36, s37")
    else:
        k("s_and_b32 s36, s35, 3")
        k("s_lshl_b32 s36, s36, 1")
        k("s_and_b32 s37, s34, 1")
        k("s_add_u32 s36, s36, s37")
    k("s_lshr_b32 s37, s34, 1")
    k("s_lshl_b32 s37, s37, 2")
    k("s_lshr_b32 s38, s35, 2")
    k("s_add_u32 s37, s37, s38")
    k("v_lshrrev_b32 v16, 4, v0")
    k("v_lshlrev_b32 v3, 4, v0")
    k(f"s_cmp_ge_u32 s{sW}, 4")
    k(f"s_cbranch_scc1 {name}_prod")
    vRA, vRB0, vRB2, vRAc, vRB0c, vRB2c = 4, 5, 6, 7, 8, 9
    FR = [32, 96]
    ACC = 160
    def Af(s, ks, a): return FR[s] + (ks * 4 + a) * 4
    def Bf(s, ks, p): return FR[s] + 32 + (ks * 4 + p) * 4
    def acc(p, a): return ACC + (p * 4 + a) * 4
    k("v_and_b32 v17, 1, v16")
    k("v_lshlrev_b32 v17, 2, v17")
    k("v_bfe_u32 v18, v0, 2, 2")
    k("v_add_u32 v17, v17, v18")
    k(f"s_mov_b32 s39, {PA}")
    k("v_mul_lo_u32 v17, v17, s39")
    k("v_lshrrev_b32 v18, 1, v16")
    k("v_lshlrev_b32 v18, 8, v18")
    k("v_add_u32 v17, v17, v18")
    k("v_and_b32 v18, 3, v0")
    k("v_lshlrev_b32 v18, 3, v18")
    k("v_add_u32 v17, v17, v18")
    k(f"s_and_b32 s39, s{sW}, 1")
    k("s_lshl_b32 s39, s39, 7")
    k(f"v_add_u32 v{vRA}, s39, v17")
    k(f"s_lshr_b32 s39, s{sW}, 1")
    k("s_lshl_b32 s39, s39, 13")
    k(f"s_add_u32 s39, s39, {AREG}")
    k(f"s_lshl_b32 s38, s{sH}, 11")
    k("s_add_u32 s42, s39, s38")
    k(f"v_add_u32 v{vRB0}, s42, v3")
    k("s_xor_b32 s38, s38, 2048")
    k("s_add_u32 s42, s39, s38")
    k(f"v_add_u32 v{vRB2}, s42, v3")
    for r in range(4): k(f"v_mov_b32 v{24+r}, 0")
    k("s_nop 1")
    for r in range(0, 64, 16):
        k(f"v_mfma_f32_32x32x16_bf16 v[{ACC+r}:{ACC+r+15}], v[24:27], v[24:27], 0")
    vXO, vGO = 10, 11
    k("v_and_b32 v17, 15, v0")
    k("v_lshlrev_b32 v17, 11, v17")
    k("v_and_b32 v18, 1, v16")
    k("v_lshlrev_b32 v18, 5, v18")
    k("v_add_u32 v17, v17, v18")
    k("v_lshrrev_b32 v18, 1, v16")
    k("v_lshlrev_b32 v18, 4, v18")
    k("v_add_u32 v17, v17, v18")
    k(f"s_and_b32 s39, s{sW}, 1")
    k("s_lshl_b32 s39, s39, 7")
    k(f"s_lshr_b32 s38, s{sW}, 1")
    k("s_lshl_b32 s38, s38, 17")
    k("s_add_u32 s39, s39, s38")
    k(f"s_lshl_b32 s38, s{sH}, 16")
    k("s_add_u32 s39, s39, s38")
    k(f"v_add_u32 v{vXO}, s39, v17")
    k("v_and_b32 v17, 1, v16")
    k("v_lshlrev_b32 v17, 6, v17")
    k("v_lshrrev_b32 v18, 1, v16")
    k("v_lshlrev_b32 v18, 5, v18")
    k("v_add_u32 v17, v17, v18")
    k(f"s_and_b32 s39, s{sW}, 1")
    k("s_lshl_b32 s39, s39, 8")
    k(f"v_add_u32 v{vGO}, s39, v17")
    k("s_waitcnt lgkmcnt(0)")
    if tagged: k(f"s_load_dwordx2 s[96:97], s[32:33], {EPOCH_OFF:#x}")
    k("s_lshl_b32 s39, s37, 18")
    k("s_lshl_b32 s38, s36, 8")
    k("s_add_u32 s39, s39, s38")
    k(f"s_sub_u32 s38, {S*D*2}, s39")
    srd(k, SRD_O, 6, "s38", off_s="s39")
    srd(k, SRD_X, 32, "s38", off_s="s39", off_imm=X1_OFF)
    k("s_lshl_b32 s39, s36, 9")
    srd(k, SRD_M, 32, 512, off_s="s39", off_imm=MODF_OFF + 5 * 4096)
    k("s_lshl_b32 s39, s37, 3")
    k("s_add_u32 s39, s39, s36")
    k("s_lshl_b32 s39, s39, 1")
    k(f"s_xor_b32 s38, s{sH}, 1")
    k("s_add_u32 s38, s38, s39")
    k("s_lshl_b32 s38, s38, 2")
    k(f"s_add_u32 s38, s38, s{sW}")
    k(f"s_lshl_b32 s38, s38, {14 if tagged else 13}")
    srd(k, SRD_PW, 32, 16384 if tagged else 8192, off_s="s38", off_imm=PART_OFF)
    k(f"s_add_u32 s38, s39, s{sH}")
    k("s_lshl_b32 s38, s38, 2")
    k(f"s_add_u32 s38, s38, s{sW}")
    k(f"s_lshl_b32 s38, s38, {14 if tagged else 13}")
    srd(k, SRD_PR, 32, 16384 if tagged else 8192, off_s="s38", off_imm=PART_OFF)
    if wsflag: srd(k, SRD_D, 32, 256*128, off_imm=FLAG_OFF)
    else: srd(k, SRD_D, 58, 256)
    XR = 224
    GB = 240
    def xloads():
        for p in range(2):
            for pp in range(2):
                k(f"s_mov_b32 s38, {p*16*2048}")
                k(f"buffer_load_dwordx4 v[{XR+(p*2+pp)*4}:{XR+(p*2+pp)*4+3}], v{vXO}, s[{SRD_X}:{SRD_X+3}], s38 offen offset:{pp*64}")
        for pp in range(2):
            k(f"buffer_load_dwordx4 v[{GB+pp*8}:{GB+pp*8+3}], v{vGO}, s[{SRD_M}:{SRD_M+3}], 0 offen offset:{pp*128}")
            k(f"buffer_load_dwordx4 v[{GB+pp*8+4}:{GB+pp*8+7}], v{vGO}, s[{SRD_M}:{SRD_M+3}], 0 offen offset:{pp*128+16}")
    if not latex: xloads()
    def reads(setn):
        out = []
        for ks in range(2):
            A = []
            for a in range(4):
                for h in range(2):
                    off = ks * 8 * PA + a * 32 + h * 512
                    A.append(f"ds_read_b64_tr_b16 v[{Af(setn,ks,a)+2*h}:{Af(setn,ks,a)+2*h+1}], v{vRAc} offset:{off}")
            B = []
            for p in range(4):
                base = vRB0c if p < 2 else vRB2c
                off = ks * 4096 + (p & 1) * 1024
                B.append(f"ds_read_b128 v[{Bf(setn,ks,p)}:{Bf(setn,ks,p)+3}], v{base} offset:{off}")
            out += [B[0]] + A[:2] + [B[1]] + A[2:4] + [B[2]] + A[4:6] + [B[3]] + A[6:]
        return out
    def setaddr():
        k(f"v_add_u32 v{vRAc}, s{sRD}, v{vRA}")
        k(f"v_add_u32 v{vRB0c}, s{sRD}, v{vRB0}")
        k(f"v_add_u32 v{vRB2c}, s{sRD}, v{vRB2}")
    k(f"s_mov_b32 s{sRD}, 0")
    setaddr()
    k("s_barrier")
    if not fine: stp(1)
    for r in reads(0): k(r)
    if latex: xloads()
    k(f"s_mov_b32 s{sRD}, {STAGE}")
    setaddr()
    k(f"s_mov_b32 s{sCNT}, {NK//2}")
    if cprio is not None: k(f"s_setprio {cprio}")
    loop = f"{name}_cloop"
    k.label(loop)
    for u in range(2):
        cur = u; nxt = u ^ 1
        rd = reads(nxt)
        order = [(ks, p, a) for ks in range(2) for p in range(4) for a in range(4)]
        k("s_waitcnt lgkmcnt(0)")
        k("s_barrier")
        ri = 0
        for idx, (ks, p, a) in enumerate(order):
            if not nomfma:
                k(f"v_mfma_f32_16x16x32_bf16 v[{acc(p,a)}:{acc(p,a)+3}], v[{Af(cur,ks,a)}:{Af(cur,ks,a)+3}], v[{Bf(cur,ks,p)}:{Bf(cur,ks,p)+3}], v[{acc(p,a)}:{acc(p,a)+3}]")
            if idx >= rdskip:
                for _ in range(rdper):
                    if ri < len(rd):
                        if not nords: k(rd[ri])
                        ri += 1
            if idx == 25:
                k(f"s_add_u32 s{sRD}, s{sRD}, {STAGE}")
                k(f"s_cmp_eq_u32 s{sRD}, {NS*STAGE}")
                k(f"s_cselect_b32 s{sRD}, 0, s{sRD}")
            if idx == 27: setaddr()
    k(f"s_sub_u32 s{sCNT}, s{sCNT}, 1")
    k(f"s_cmp_lg_u32 s{sCNT}, 0")
    k(f"s_cbranch_scc1 {loop}")
    stp(1 if fine else 2)
    if tagged:
        k("s_nop 7")
        k("s_waitcnt lgkmcnt(0)")
        SEND = ACC + 32
        QS, QR = 32, 96
        for j in range(16):
            k(f"v_mov_b64 v[{QS+4*j}:{QS+4*j+1}], v[{SEND+2*j}:{SEND+2*j+1}]")
            k(f"v_mov_b64 v[{QS+4*j+2}:{QS+4*j+3}], s[96:97]")
        for j in range(16):
            if j % 4 == 0: k(f"s_mov_b32 s39, {j*1024}")
            k(f"buffer_store_dwordx4 v[{QS+4*j}:{QS+4*j+3}], v3, s[{SRD_PW}:{SRD_PW+3}], s39 offen offset:{(j%4)*1024} sc1")
        if fine: stp(2)
        k(f"s_mov_b32 s43, {spin_max}")
        k("s_mov_b32 s38, 15360")
        k.label(f"{name}_poll")
        k(f"buffer_load_dwordx4 v[{QR+60}:{QR+63}], v3, s[{SRD_PR}:{SRD_PR+3}], s38 offen sc1")
        k("s_waitcnt vmcnt(0)")
        k(f"v_cmp_eq_u64 vcc, s[96:97], v[{QR+62}:{QR+63}]")
        k("s_cmp_eq_u64 vcc, exec")
        k(f"s_cbranch_scc1 {name}_last")
        k("s_sub_u32 s43, s43, 1")
        k("s_cmp_lg_u32 s43, 0")
        k(f"s_cbranch_scc0 {name}_got")
        k(f"s_sleep {psleep}")
        k(f"s_branch {name}_poll")
        k.label(f"{name}_last")
        for j in range(15):
            if j % 4 == 0: k(f"s_mov_b32 s39, {j*1024}")
            k(f"buffer_load_dwordx4 v[{QR+4*j}:{QR+4*j+3}], v3, s[{SRD_PR}:{SRD_PR+3}], s39 offen offset:{(j%4)*1024} sc1")
        k("s_mov_b64 s[98:99], -1")
        for j in range(15):
            k(f"s_waitcnt vmcnt({14-j})")
            k(f"v_cmp_eq_u64 vcc, s[96:97], v[{QR+4*j+2}:{QR+4*j+3}]")
            k("s_and_b64 s[98:99], s[98:99], vcc")
        k("s_cmp_eq_u64 s[98:99], exec")
        k(f"s_cbranch_scc1 {name}_got")
        k("s_sub_u32 s43, s43, 1")
        k("s_cmp_lg_u32 s43, 0")
        k(f"s_cbranch_scc1 {name}_last")
        k.label(f"{name}_got")
        if fine: stp(3)
        for j in range(16):
            k(f"v_pk_add_f32 v[{ACC+2*j}:{ACC+2*j+1}], v[{ACC+2*j}:{ACC+2*j+1}], v[{QR+4*j}:{QR+4*j+1}]")
    else:
        k("s_nop 7")
        for p in (2, 3):
            for a in range(4):
                j = (p - 2) * 4 + a
                so = "0" if j < 4 else "s39"
                if j == 4: k("s_mov_b32 s39, 4096")
                k(f"buffer_store_dwordx4 v[{acc(p,a)}:{acc(p,a)+3}], v3, s[{SRD_PW}:{SRD_PW+3}], {so} offen offset:{(j&3)*1024} sc1")
        if waveflag:
            k("s_waitcnt vmcnt(0) lgkmcnt(0)")
            if fine: stp(2)
            k("s_lshl_b32 s38, s2, 7")
            k(f"s_lshl_b32 s39, s{sW}, 4")
            k("s_add_u32 s38, s38, s39")
            k("v_mov_b32 v20, 1")
            k("v_mov_b32 v21, s38")
            k("s_mov_b64 exec, 1")
            k(f"buffer_store_dword v20, v21, s[{SRD_D}:{SRD_D+3}], 0 offen sc1")
            k("s_xor_b32 s38, s38, 1024")
            k("v_mov_b32 v21, s38")
            k(f"s_mov_b32 s43, {spin_max}")
            k.label(f"{name}_poll")
            k(f"buffer_load_dword v22, v21, s[{SRD_D}:{SRD_D+3}], 0 offen sc1")
            k("s_waitcnt vmcnt(0)")
            k("v_readfirstlane_b32 s42, v22")
            k("s_cmp_lg_u32 s42, 0")
            k(f"s_cbranch_scc1 {name}_got")
            k("s_sub_u32 s43, s43, 1")
            k("s_cmp_lg_u32 s43, 0")
            k(f"s_cbranch_scc0 {name}_got")
            k("s_sleep 1")
            k(f"s_branch {name}_poll")
            k.label(f"{name}_got")
            k("s_mov_b64 exec, -1")
            if fine: stp(3)
        else:
            k("s_waitcnt vmcnt(0) lgkmcnt(0)")
            k("s_barrier")
            if fine: stp(2)
            k(f"s_cmp_lg_u32 s{sW}, 0")
            k(f"s_cbranch_scc1 {name}_nopoll")
            if wsflag:
                k("s_lshl_b32 s38, s2, 7")
                k("v_mov_b32 v20, 1")
                k("v_mov_b32 v21, s38")
                k("s_mov_b64 exec, 1")
                k(f"buffer_store_dword v20, v21, s[{SRD_D}:{SRD_D+3}], 0 offen sc1")
                k("s_xor_b32 s42, s2, 8")
                k("s_lshl_b32 s38, s42, 7")
                k("s_mov_b32 s39, 1")
                k("v_mov_b32 v21, s38")
            else:
                k("s_lshr_b32 s38, s2, 5")
                k("s_lshl_b32 s38, s38, 2")
                k("s_and_b32 s39, s2, 31")
                k("s_lshl_b32 s39, 1, s39")
                k("v_mov_b32 v20, s39")
                k("v_mov_b32 v21, s38")
                k("s_mov_b64 exec, 1")
                k(f"buffer_atomic_add v20, v21, s[{SRD_D}:{SRD_D+3}], 0 offen sc1")
                k("s_xor_b32 s42, s2, 8")
                k("s_lshr_b32 s38, s42, 5")
                k("s_lshl_b32 s38, s38, 2")
                k("s_and_b32 s39, s42, 31")
                k("s_lshl_b32 s39, 1, s39")
                k("v_mov_b32 v21, s38")
            k(f"s_mov_b32 s43, {spin_max}")
            k.label(f"{name}_poll")
            k(f"buffer_load_dword v22, v21, s[{SRD_D}:{SRD_D+3}], 0 offen sc1")
            k("s_waitcnt vmcnt(0)")
            k("v_readfirstlane_b32 s42, v22")
            k("s_and_b32 s42, s42, s39")
            k(f"s_cbranch_scc1 {name}_got")
            k("s_sub_u32 s43, s43, 1")
            k("s_cmp_lg_u32 s43, 0")
            k(f"s_cbranch_scc0 {name}_got")
            k("s_sleep 1")
            k(f"s_branch {name}_poll")
            k.label(f"{name}_got")
            k("s_mov_b64 exec, -1")
            k.label(f"{name}_nopoll")
            k("s_barrier")
            if fine: stp(3)
        RV = 32
        for j in range(8):
            so = "0" if j < 4 else "s39"
            if j == 4: k("s_mov_b32 s39, 4096")
            k(f"buffer_load_dwordx4 v[{RV+4*j}:{RV+4*j+3}], v3, s[{SRD_PR}:{SRD_PR+3}], {so} offen offset:{(j&3)*1024} sc1")
    RV = 32
    T = 96
    for p in range(2):
        if not tagged:
            k(f"s_waitcnt vmcnt({4 if p == 0 else 2})")
            for a in range(4):
                for r in range(0, 4, 2):
                    k(f"v_pk_add_f32 v[{acc(p,a)+r}:{acc(p,a)+r+1}], v[{acc(p,a)+r}:{acc(p,a)+r+1}], v[{RV+(p*4+a)*4+r}:{RV+(p*4+a)*4+r+1}]")
        k("s_nop 1")
        for pp in range(2):
            a0, a1 = acc(p, 2*pp), acc(p, 2*pp+1)
            for r in range(4):
                k(f"v_permlane16_swap_b32 v{a0+r}, v{a1+r}")
        for pp in range(2):
            a0, a1 = acc(p, 2*pp), acc(p, 2*pp+1)
            xr = XR + (p*2+pp)*4
            t = T + (p*2+pp) * 8
            for d in range(4):
                k(f"v_lshlrev_b32 v{t+2*d}, 16, v{xr+d}")
                k(f"v_and_b32 v{t+2*d+1}, 0xffff0000, v{xr+d}")
            for e in range(0, 8, 2):
                src = (a0 + e) if e < 4 else (a1 + e - 4)
                k(f"v_pk_fma_f32 v[{t+e}:{t+e+1}], v[{src}:{src+1}], v[{GB+pp*8+e}:{GB+pp*8+e+1}], v[{t+e}:{t+e+1}]")
            for d in range(4):
                k(f"v_cvt_pk_bf16_f32 v{xr+d}, v{t+2*d}, v{t+2*d+1}")
            k(f"s_mov_b32 s38, {p*16*2048}")
            k(f"buffer_store_dwordx4 v[{xr}:{xr+3}], v{vXO}, s[{SRD_O}:{SRD_O+3}], s38 offen offset:{pp*64}{sf}")
    if not fine: stp(3)
    stp.end(32, sW)
    k("s_endpgm")
    k.label(f"{name}_prod")
    vDA = [4, 5, 6, 7]
    vDB = 8
    k(f"s_sub_u32 s{sW}, s{sW}, 4")
    k("v_lshlrev_b32 v17, 3, v16")
    k(f"s_lshl_b32 s39, s{sW}, 1")
    k("v_add_u32 v17, s39, v17")
    k("v_lshlrev_b32 v17, 11, v17")
    k("v_and_b32 v18, 15, v0")
    k("v_lshlrev_b32 v18, 4, v18")
    k(f"v_add_u32 v{vDA[0]}, v17, v18")
    k(f"v_add_u32 v{vDA[1]}, {2048 - PA}, v{vDA[0]}")
    k(f"v_add_u32 v{vDA[2]}, {32*2048}, v{vDA[0]}")
    k(f"v_add_u32 v{vDA[3]}, {33*2048 - PA}, v{vDA[0]}")
    k(f"s_and_b32 s38, s{sW}, 1")
    k("s_lshl_b32 s38, s38, 12")
    k(f"v_add_u32 v{vDB}, s38, v3")
    sBA, sBB = 42, 43
    k(f"s_mul_i32 s{sBA}, s{sW}, {2*PA}")
    k(f"s_lshl_b32 s{sBB}, s{sW}, 12")
    k(f"s_add_u32 s{sBB}, s{sBB}, {AREG}")
    k("s_waitcnt lgkmcnt(0)")
    k("s_lshl_b32 s39, s36, 8")
    k(f"s_mul_i32 s38, s{sH}, {28*64*2048}")
    k("s_add_u32 s39, s39, s38")
    srd(k, SRD_W, 4, 28*64*2048, off_s="s39")
    k(f"s_mul_i32 s39, s37, {2*56*8192}")
    k(f"s_mul_i32 s38, s{sH}, {28*8192}")
    k("s_add_u32 s39, s39, s38")
    k(f"s_lshr_b32 s38, s{sW}, 1")
    k(f"s_mul_i32 s38, s38, {56*8192}")
    k("s_add_u32 s39, s39, s38")
    srd(k, SRD_A, 32, 28*8192, off_s="s39", off_imm=ACT_OFF)
    if wcontig:
        k(f"s_lshl_b32 s39, s{sW}, 11")
        k("s_add_u32 s39, s39, 64")
        k(f"v_add_u32 v{vDA[0]}, s39, v3")
        k(f"v_subrev_u32 v{vDA[1]}, {PA-1024}, v{vDA[0]}")
        k(f"v_add_u32 v{vDA[2]}, 8192, v{vDA[0]}")
        k(f"v_add_u32 v{vDA[3]}, 8192, v{vDA[1]}")
        k("s_lshl_b32 s39, s36, 1")
        k(f"s_add_u32 s39, s39, s{sH}")
        k(f"s_mul_i32 s39, s39, {28*16384}")
        srd(k, SRD_W, 4, 28*16384, off_s="s39")
    k(f"s_mov_b32 s{sKW}, 0")
    k(f"s_mov_b32 s{sKA}, 0")
    if noW: k(f"s_mov_b32 s{SRD_W+2}, 0")
    if noA: k(f"s_mov_b32 s{SRD_A+2}, 0")
    def issue(stg):
        base = stg * STAGE
        k(f"s_add_u32 m0, s{sBA}, {base}")
        k(f"s_add_u32 s44, s{sBA}, {base + 8*PA}")
        k(f"buffer_load_dwordx4 v{vDA[0]}, s[{SRD_W}:{SRD_W+3}], s{sKW} offen{wf} lds")
        k(f"buffer_load_dwordx4 v{vDA[1]}, s[{SRD_W}:{SRD_W+3}], s{sKW} offen offset:{PA}{wf} lds")
        k(f"s_mov_b32 m0, s44")
        k(f"s_add_u32 s45, s{sBB}, {base}")
        k(f"buffer_load_dwordx4 v{vDA[2]}, s[{SRD_W}:{SRD_W+3}], s{sKW} offen{wf} lds")
        k(f"buffer_load_dwordx4 v{vDA[3]}, s[{SRD_W}:{SRD_W+3}], s{sKW} offen offset:{PA}{wf} lds")
        k(f"s_mov_b32 m0, s45")
        k(f"s_add_u32 s{sKW}, s{sKW}, {16384 if wcontig else 64*2048}")
        for q in range(4):
            k(f"buffer_load_dwordx4 v{vDB}, s[{SRD_A}:{SRD_A+3}], s{sKA} offen offset:{q*1024}{af} lds")
        k(f"s_add_u32 s{sKA}, s{sKA}, 8192")
    issue(0); issue(1)
    k("s_waitcnt vmcnt(8)")
    k("s_barrier")
    for stg in range(2, NS): issue(stg)
    k(f"s_mov_b32 s{sCNT}, {NK // NS}")
    ploop = f"{name}_ploop"
    k.label(ploop)
    for u in range(NS):
        k(f"s_waitcnt vmcnt({8*(NS-2)})")
        k("s_barrier")
        issue(u)
    k(f"s_sub_u32 s{sCNT}, s{sCNT}, 1")
    k(f"s_cmp_lg_u32 s{sCNT}, 0")
    k(f"s_cbranch_scc1 {ploop}")
    k.label(f"{name}_end")
    k("s_endpgm")
    k.lds = NS * STAGE
    k.grid = 256
    k.block = 512
    return k
```

```python
import sys
from asmlib import *
from ka import gen_ka
from kb import gen_kb
from kc import gen_kc
from gemm3 import gen_gemm3
from gemm3b import gen_gemm3b
from gemm4 import gen_gemm4
from gemm4b import gen_gemm4b
NAME = "adaLN_cond__spectral_fnet__geglu_ffn__prompt"
ref = open(f"cdna_kernels/{NAME}.s.ref").read().split("\n")
hdr = []
for l in ref:
    if l.startswith("; Override launch") : break
    hdr.append(l)
hdr = "\n".join(hdr)
def build(path, ks):
    txt = build_file(hdr, [(k.name, k.grid, k.block, k.lds) for k in ks], ks)
    open(path, "w").write(txt)
from gemm3c import gen_gemm3c
from gemm4c import gen_gemm4c
def best(stamps=False):
    S1 = " sc1"
    return [gen_ka("ka_kernel", stamps=stamps, xnt=False, codepf=("kb_kernel", "code_end_label"), flags=True),
            gen_kb("kb_kernel", stamps=stamps, sf=S1, table=False, cpf=None if stamps else ("kc_kernel", "g3_kernel")),
            gen_kc("kc_kernel", stamps=stamps, xnt=False, cpf=None if stamps else ("g3_kernel", "g4_kernel")),
            gen_gemm3c("g3_kernel", stamps=stamps, cpf=None if stamps else ("g4_kernel", "code_end_label"), peel_first=False, peel_last=True, fuse=True),
            gen_gemm4b("g4_kernel", stamps=stamps, sf=S1)]
if __name__ == "__main__":
    stamps = len(sys.argv) > 2
    out = sys.argv[1] if len(sys.argv) > 1 else f"cdna_kernels/{NAME}.s"
    build(out, best(stamps))
```

```python
from asmlib import *
from layout import *
import math, struct
from ka_util import *
from kb import kb_consts
from kc import kc_consts

def gen_ka(name="ka_kernel", nt=True, stamps=False, sf='', xnt=True, codepf=None, selfpf=False, tlbpf=0, helpers=0, htlb=0):
    k = Kern(name)
    st = Stamps(k, stamps, 0)
    ntf = " nt" if nt else ""
    xntf = " nt" if xnt else ""
    k(f"s_cmp_ge_u32 s2, {257 + helpers}")
    k(f"s_cbranch_scc1 {name}_end")
    if helpers:
        k("s_cmp_ge_u32 s2, 257")
        k(f"s_cbranch_scc1 {name}_help")
    if selfpf:
        k("s_cmp_ge_u32 s2, 8")
        k(f"s_cbranch_scc1 {name}_nospf")
        k("s_getpc_b64 s[56:57]")
        k.label(f"{name}_pc0")
        k(f"s_mov_b32 s58, {codepf[0]}-{name}_pc0")
        k("v_lshlrev_b32 v100, 6, v0")
        k("v_cmp_gt_u32 vcc, s58, v100")
        k("s_and_saveexec_b64 s[40:41], vcc")
        k("v_mov_b32 v103, s57")
        k("v_add_co_u32 v102, vcc, s56, v100")
        k("s_nop 1")
        k("v_addc_co_u32 v103, vcc, 0, v103, vcc")
        k(f"s_cbranch_execz {name}_spf1")
        k("global_load_dword v106, v[102:103], off")
        k.label(f"{name}_spf1")
        k("s_mov_b64 exec, s[40:41]")
        k.label(f"{name}_nospf")
    st.start()
    k(f"s_load_dwordx2 s[32:33], s[0:1], {KA['ws']}")
    k("v_lshrrev_b32 v1, 6, v0")
    k("v_and_b32 v2, 63, v0")
    k("v_readfirstlane_b32 s28, v1")
    k("s_cmp_eq_u32 s2, 256")
    k(f"s_cbranch_scc1 {name}_tab")
    if codepf and not helpers:
        first, last = codepf
        k("s_cmp_ge_u32 s2, 8")
        k(f"s_cbranch_scc1 {name}_nocpf")
        k("s_getpc_b64 s[56:57]")
        k.label(f"{name}_pc")
        k(f"s_add_u32 s56, s56, {first}-{name}_pc")
        k("s_addc_u32 s57, s57, 0")
        k(f"s_mov_b32 s58, {last}-{first}")
        k("v_lshlrev_b32 v100, 6, v0")
        for q in range(2):
            if q: k("v_add_u32 v100, 0x8000, v100")
            k("v_cmp_gt_u32 vcc, s58, v100")
            k("s_and_saveexec_b64 s[40:41], vcc")
            k(f"s_cbranch_execz {name}_cpf{q}")
            k("v_mov_b32 v103, s57")
            k("v_add_co_u32 v102, vcc, s56, v100")
            k("s_nop 1")
            k("v_addc_co_u32 v103, vcc, 0, v103, vcc")
            k(f"global_load_dword v{104+q}, v[102:103], off")
            k.label(f"{name}_cpf{q}")
            k("s_mov_b64 exec, s[40:41]")
        k.label(f"{name}_nocpf")
    k(f"s_load_dwordx2 s[4:5], s[0:1], {KA['x']}")
    k(f"s_load_dwordx2 s[6:7], s[0:1], {KA['wmod']}")
    k(f"s_load_dwordx2 s[42:43], s[0:1], {KA['c']}")
    k("v_and_b32 v3, 7, v2")
    k("v_lshrrev_b32 v4, 3, v2")
    k("v_lshlrev_b32 v5, 11, v3")
    k("v_lshlrev_b32 v6, 3, v4")
    k("v_add_u32 v5, v5, v6")
    k("s_lshl_b32 s34, s28, 8")
    k("v_add_u32 v5, s34, v5")
    k("s_lshr_b32 s35, s2, 3")
    k("s_and_b32 s36, s35, 3")
    k("s_lshr_b32 s37, s35, 3")
    k("s_and_b32 s37, s37, 1")
    k("s_lshl_b32 s37, s37, 2")
    k("s_or_b32 s36, s36, s37")
    k("s_lshl_b32 s36, s36, 2")
    k("s_and_b32 s37, s2, 7")
    k("s_lshl_b32 s37, s37, 3")
    k("s_add_u32 s36, s36, s37")
    k("v_add_u32 v6, s36, v3")
    k("v_and_b32 v6, 63, v6")
    k("s_lshl_b32 s35, s35, 6")
    k("v_add_u32 v6, s35, v6")
    k("v_lshlrev_b32 v6, 3, v6")
    k("v_lshlrev_b32 v7, 14, v4")
    k("v_add_u32 v6, v6, v7")
    k("s_lshl_b32 s38, s28, 19")
    k("v_add_u32 v6, s38, v6")
    k("v_lshlrev_b32 v12, 4, v2")
    k("v_cmp_gt_u32 vcc, 48, v2")
    k("v_bfrev_b32 v13, 1")
    k(f"s_mul_i32 s39, s28, {8*12288}")
    k("v_add_u32 v12, s39, v12")
    k("v_cndmask_b32 v12, v13, v12, vcc")
    k("v_lshlrev_b32 v14, 1, v2")
    k("s_waitcnt lgkmcnt(0)")
    st(1)
    if tlbpf:
        k("s_cmp_ge_u32 s2, 8")
        k(f"s_cbranch_scc1 {name}_notlb")
        k(f"s_load_dwordx4 s[60:63], s[0:1], {KA['wg']}")
        k(f"s_load_dwordx2 s[64:65], s[0:1], {KA['wd']}")
        k(f"s_load_dwordx2 s[66:67], s[0:1], {KA['out']}")
        k(f"v_mul_u32_u24 v107, {tlbpf}, v0")
        srd(k, 68, 32, 0x2C00000)
        k("buffer_load_dword v108, v107, s[68:71], 0 offen")
        k("s_waitcnt lgkmcnt(0)")
        for i, (b, n) in enumerate(((60, D*F*2), (62, D*F*2), (64, D*F*2), (66, S*D*2))):
            srd(k, 68, b, n)
            k(f"buffer_load_dword v{109+i}, v107, s[68:71], 0 offen")
        k.label(f"{name}_notlb")
    k("s_lshl_b32 s34, s2, 14")
    srd(k, 8, 4, 16384, off_s="s34")
    for q in range(4):
        k(f"buffer_load_dwordx2 v[{16+2*q}:{17+2*q}], v5, s[8:11], 0 offen offset:{q*64}{xntf}")
    k("s_lshr_b32 s35, s2, 4")
    k("s_and_b32 s36, s2, 15")
    k(f"s_mul_i32 s37, s35, {64*12288}")
    k("s_mul_i32 s38, s36, 768")
    k("s_add_u32 s37, s37, s38")
    k(f"s_sub_u32 s38, {1024*12288}, s37")
    srd(k, 44, 6, "s38", off_s="s37")
    k("s_lshl_b32 s37, s35, 7")
    k("s_lshl_b32 s38, s28, 4")
    k("s_add_u32 s37, s37, s38")
    srd(k, 48, 42, 16, off_s="s37")
    k("buffer_load_ushort v15, v14, s[48:51], 0 offen")
    for p in range(8):
        k(f"s_mov_b32 s37, {p*12288}")
        k(f"buffer_load_dwordx4 v[{64+4*p}:{67+4*p}], v12, s[44:47], s37 offen{ntf}")
    srd(k, 12, 32, S * D * 2, off_imm=XS_OFF)
    k("v_mov_b32 v8, 0"); k("v_mov_b32 v9, 0")
    for q in range(4):
        k(f"s_waitcnt vmcnt({3-q+9})")
        for d in range(2):
            src = 16 + 2*q + d; dst = 32 + 4*q + 2*d
            k(f"v_lshlrev_b32 v{dst}, 16, v{src}")
            k(f"v_and_b32 v{dst+1}, 0xffff0000, v{src}")
        for e in range(4):
            r = 32 + 4*q + e
            k(f"v_add_f32 v8, v8, v{r}")
            k(f"v_fma_f32 v9, v{r}, v{r}, v9")
    st(2)
    dpp_add(k, [8, 9], "row_ror:8")
    k("s_nop 1")
    xlane_sum_16_32(k, [8, 9], [10, 11])
    k("v_lshlrev_b32 v10, 6, v3")
    k("s_lshl_b32 s34, s28, 3")
    k("v_add_u32 v11, s34, v10")
    k("v_cmp_gt_u32 vcc, 8, v2")
    k("s_and_saveexec_b64 s[40:41], vcc")
    k("ds_write_b64 v11, v[8:9]")
    k("s_mov_b64 exec, s[40:41]")
    k("s_waitcnt vmcnt(8)")
    k("v_lshlrev_b32 v15, 16, v15")
    k(f"v_mul_f32 v24, {f2u(-math.log2(math.e)):#x}, v15")
    k("v_exp_f32 v24, v24")
    k("s_nop 0")
    k("v_add_f32 v24, 1.0, v24")
    k("v_rcp_f32 v24, v24")
    k("s_nop 0")
    k("v_mul_f32 v15, v15, v24")
    k("v_cvt_pk_bf16_f32 v15, v15, v15")
    k("v_lshlrev_b32 v15, 16, v15")
    k("s_waitcnt lgkmcnt(0)")
    k("s_barrier")
    for q in range(4):
        k(f"ds_read_b128 v[{48+4*q}:{51+4*q}], v10 offset:{q*16}")
    for p in range(8): k(f"v_readlane_b32 s{52+p}, v15, {p}")
    k("s_waitcnt lgkmcnt(0)")
    k("v_add_f32 v8, v48, v50"); k("v_add_f32 v9, v49, v51")
    for r in range(52, 64, 2):
        k(f"v_add_f32 v8, v8, v{r}"); k(f"v_add_f32 v9, v9, v{r+1}")
    k(f"v_mul_f32 v8, {f2u(1.0/1024):#x}, v8")
    k(f"v_mul_f32 v9, {f2u(1.0/1024):#x}, v9")
    k("v_fma_f32 v9, -v8, v8, v9")
    k("v_max_f32 v9, 0, v9")
    k(f"v_add_f32 v9, {f2u(1e-5):#x}, v9")
    k("v_rsq_f32 v9, v9")
    k("s_nop 0")
    k("v_mul_f32 v8, v8, v9")
    for r in range(32, 48):
        k(f"v_fma_f32 v{r}, v{r}, v9, -v8")
    for q in range(4):
        for d in range(2):
            k(f"v_cvt_pk_bf16_f32 v{16+2*q+d}, v{32+4*q+2*d}, v{32+4*q+2*d+1}")
    for q in range(4):
        k(f"s_mov_b32 s34, {q*8*16384}")
        k(f"buffer_store_dwordx2 v[{16+2*q}:{17+2*q}], v6, s[12:15], s34 offen{sf}")
    for e in range(8): k(f"v_mov_b32 v{32+e}, 0")
    for p in range(8):
        k(f"s_waitcnt vmcnt({7-p+4})")
        for d in range(4):
            k(f"v_lshlrev_b32 v8, 16, v{64+4*p+d}")
            k(f"v_and_b32 v9, 0xffff0000, v{64+4*p+d}")
            k(f"v_fma_f32 v{32+2*d}, v8, s{52+p}, v{32+2*d}")
            k(f"v_fma_f32 v{33+2*d}, v9, s{52+p}, v{33+2*d}")
    k("v_lshlrev_b32 v10, 5, v2")
    k("s_mul_i32 s34, s28, 1536")
    k("s_add_u32 s34, s34, 1024")
    k("v_add_u32 v10, s34, v10")
    k("v_cmp_gt_u32 vcc, 48, v2")
    k("s_and_saveexec_b64 s[40:41], vcc")
    k("ds_write_b128 v10, v[32:35]")
    k("ds_write_b128 v10, v[36:39] offset:16")
    k("s_mov_b64 exec, s[40:41]")
    k("s_waitcnt lgkmcnt(0)")
    k("s_barrier")
    k("v_cmp_gt_u32 vcc, 384, v0")
    k("s_and_saveexec_b64 s[40:41], vcc")
    k(f"s_cbranch_execz {name}_fin")
    k("v_lshlrev_b32 v7, 2, v0")
    for w in range(8):
        k(f"ds_read_b32 v{16+w}, v7 offset:{1024+w*1536}")
    k("s_waitcnt lgkmcnt(0)")
    k("v_add_f32 v16, v16, v17"); k("v_add_f32 v18, v18, v19"); k("v_add_f32 v20, v20, v21"); k("v_add_f32 v22, v22, v23")
    k("v_add_f32 v16, v16, v18"); k("v_add_f32 v20, v20, v22"); k("v_add_f32 v16, v16, v20")
    k(f"s_mul_i32 s37, s35, {6144*4}")
    k("s_mul_i32 s38, s36, 1536")
    k("s_add_u32 s37, s37, s38")
    srd(k, 12, 32, 16*6144*4, off_imm=MODP_OFF)
    k(f"buffer_store_dword v16, v7, s[12:15], s37 offen{sf}")
    k.label(f"{name}_fin")
    st(3)
    st.end(32, 28)
    k("s_endpgm")
    k.label(f"{name}_tab")
    k("v_mov_b32 v0, v2")
    k("s_cmp_gt_u32 s28, 5")
    k(f"s_cbranch_scc1 {name}_end")
    k("s_waitcnt lgkmcnt(0)")
    k("s_cmp_eq_u32 s28, 5")
    k(f"s_cbranch_scc1 {name}_flg")
    k("s_cmp_eq_u32 s28, 4")
    k(f"s_cbranch_scc1 {name}_tabc")
    k("v_lshrrev_b32 v3, 4, v0")
    k("v_and_b32 v4, 15, v0")
    kb_consts(k)
    srd(k, 12, 32, 32768, off_imm=TB_OFF)
    k("v_lshlrev_b32 v5, 4, v0")
    k("s_lshl_b32 s36, s28, 12")
    k("s_add_u32 s36, s36, 16384")
    for q in range(4):
        k(f"buffer_store_dwordx4 v[{72+4*q}:{75+4*q}], v5, s[12:15], s36 offen offset:{q*1024}")
    k("s_lshr_b32 s36, s28, 1")
    k("s_mul_i32 s36, s36, 6144")
    k("s_add_u32 s36, s36, 4096")
    for q in range(6):
        if q == 4: k("s_add_u32 s36, s36, 4096")
        k(f"buffer_store_dwordx4 v[{48+4*q}:{51+4*q}], v5, s[12:15], s36 offen offset:{(q%4)*1024}")
    k("s_mov_b32 s36, 0")
    for q in range(4):
        k(f"buffer_store_dwordx4 v[{32+4*q}:{35+4*q}], v5, s[12:15], s36 offen offset:{q*1024}")
    k("s_endpgm")
    k.label(f"{name}_flg")
    srd(k, 12, 32, 256*128, off_imm=FLAG_OFF)
    k("v_lshlrev_b32 v5, 4, v0")
    for r in range(4): k(f"v_mov_b32 v{8+r}, 0")
    for q in range(32):
        k(f"s_mov_b32 s36, {q*1024}")
        k("buffer_store_dwordx4 v[8:11], v5, s[12:15], s36 offen")
    k("s_endpgm")
    if helpers:
        k.label(f"{name}_help")
        first, last = codepf
        k("s_getpc_b64 s[56:57]")
        k.label(f"{name}_pch")
        k(f"s_add_u32 s56, s56, {first}-{name}_pch")
        k("s_addc_u32 s57, s57, 0")
        k(f"s_mov_b32 s58, {last}-{first}")
        k("v_lshlrev_b32 v100, 6, v0")
        if htlb:
            k(f"s_load_dwordx2 s[32:33], s[0:1], {KA['ws']}")
            k(f"s_load_dwordx4 s[60:63], s[0:1], {KA['wg']}")
            k(f"s_load_dwordx2 s[64:65], s[0:1], {KA['wd']}")
            k(f"s_load_dwordx2 s[66:67], s[0:1], {KA['out']}")
        for q in range(2):
            if q: k("v_add_u32 v100, 0x8000, v100")
            k("v_cmp_gt_u32 vcc, s58, v100")
            k("s_and_saveexec_b64 s[40:41], vcc")
            k(f"s_cbranch_execz {name}_hcp{q}")
            k("v_mov_b32 v103, s57")
            k("v_add_co_u32 v102, vcc, s56, v100")
            k("s_nop 1")
            k("v_addc_co_u32 v103, vcc, 0, v103, vcc")
            k(f"global_load_dword v{104+q}, v[102:103], off")
            k.label(f"{name}_hcp{q}")
            k("s_mov_b64 exec, s[40:41]")
        if htlb:
            k(f"v_mul_u32_u24 v107, {htlb}, v0")
            k("s_waitcnt lgkmcnt(0)")
            srd(k, 68, 32, 0x2C00000)
            k("buffer_load_dword v108, v107, s[68:71], 0 offen")
            for i, (b, n) in enumerate(((60, D*F*2), (62, D*F*2), (64, D*F*2), (66, S*D*2))):
                srd(k, 68, b, n)
                k(f"buffer_load_dword v{109+i}, v107, s[68:71], 0 offen")
        k("s_endpgm")
    k.label(f"{name}_tabc")
    kc_consts(k)
    srd(k, 12, 32, 18432, off_imm=TC_OFF)
    k("v_lshlrev_b32 v5, 4, v0")
    k("s_mov_b32 s36, 0")
    for q in range(18):
        k(f"buffer_store_dwordx4 v[{32+4*q}:{35+4*q}], v5, s[12:15], s36 offen offset:{(q%4)*1024}")
        if q % 4 == 3: k("s_add_u32 s36, s36, 4096")
    k.label(f"{name}_end")
    k("s_endpgm")
    k.lds = 1024 + 8*1536; k.grid = 257 + helpers; k.block = 512; k.vgpr = 128; k.accum = 128
    return k
```

```python
from mk_all import *
def P(ka):
    ks = best()
    ks[0] = gen_ka("ka_kernel", xnt=False, codepf=("kb_kernel", "code_end_label"), **ka)
    return ks
build("z_a.s", P(dict()))
build("z_b.s", P(dict(helpers=8)))
build("z_c.s", P(dict(helpers=8, htlb=131072)))
```

```python
from asmlib import *
from layout import *
import math, struct, re
def f2u(x): return struct.unpack("<I", struct.pack("<f", x))[0]

def gen_gemm3c(name="g3_kernel", stamps=False, pf=True, sf=' sc1', sf2=' sc1', dma_frac=(0.1, 0.35, 0.6, 0.85), rd_span=0.6, cpf=None,
               peel_first=True, peel_last=True, fuse=True, xmap=0):
    k = Kern(name)
    st = Stamps(k, stamps, 3)
    NS = 4
    BS = 4128
    STAGE = 8 * BS
    NK = 32
    ROWB = F * 2
    P = 4
    SRD_G, SRD_U, SRD_H, SRD_O, SRD_P = 8, 12, 16, 20, 44
    sKW, sKH, sBLK, sCNT, sW = 24, 25, 26, 27, 28
    vDW, vDH, vSt, vPF = 1, 2, 3, 30
    vRA = [4 + i for i in range(NS)]
    vRB = [10 + i for i in range(NS)]
    vRA2 = [20 + i for i in range(NS)]
    FR = [32, 80]
    ACC = 128
    k("s_cmp_ge_u32 s2, 256")
    k(f"s_cbranch_scc1 {name}_end")
    st.start()
    k(f"s_load_dwordx2 s[4:5], s[0:1], {KA['wg']}")
    k(f"s_load_dwordx2 s[6:7], s[0:1], {KA['wu']}")
    k(f"s_load_dwordx2 s[32:33], s[0:1], {KA['ws']}")
    k(f"s_load_dwordx2 s[30:31], s[0:1], {KA['wd']}")
    k("v_lshrrev_b32 v1, 6, v0")
    k("v_mov_b32 v30, v0")
    k("v_and_b32 v0, 63, v0")
    k(f"v_readfirstlane_b32 s{sW}, v1")
    k("s_and_b32 s34, s2, 7")
    k("s_lshr_b32 s35, s2, 3")
    if xmap == 0:
        k("s_and_b32 s36, s34, 1")
        k("s_lshl_b32 s36, s36, 2")
        k("s_and_b32 s37, s35, 3")
        k("s_add_u32 s36, s36, s37")
        k("s_lshr_b32 s37, s34, 1")
        k("s_lshl_b32 s37, s37, 3")
        k("s_lshr_b32 s38, s35, 2")
        k("s_add_u32 s37, s37, s38")
    elif xmap == 1:
        k("s_and_b32 s36, s35, 7")
        k("s_lshl_b32 s37, s34, 2")
        k("s_lshr_b32 s38, s35, 3")
        k("s_add_u32 s37, s37, s38")
    else:
        k("s_and_b32 s36, s34, 3")
        k("s_lshl_b32 s36, s36, 1")
        k("s_and_b32 s37, s35, 1")
        k("s_add_u32 s36, s36, s37")
        k("s_lshr_b32 s37, s34, 2")
        k("s_lshl_b32 s37, s37, 4")
        k("s_lshr_b32 s38, s35, 1")
        k("s_add_u32 s37, s37, s38")
    k("v_lshrrev_b32 v16, 4, v0")
    k("v_and_b32 v17, 1, v16")
    k("v_lshlrev_b32 v17, 4, v17")
    k("v_lshrrev_b32 v18, 1, v16")
    k("v_lshlrev_b32 v18, 2, v18")
    k("v_add_u32 v17, v17, v18")
    k(f"s_lshr_b32 s39, s{sW}, 2")
    k("s_lshl_b32 s39, s39, 3")
    k(f"s_and_b32 s40, s{sW}, 3")
    k("s_add_u32 s39, s39, s40")
    k("v_add_u32 v17, s39, v17")
    k(f"s_mov_b32 s41, {ROWB}")
    k("v_mul_lo_u32 v17, v17, s41")
    k("v_and_b32 v18, 15, v0")
    k("v_lshlrev_b32 v19, 4, v18")
    k(f"v_add_u32 v{vDW}, v17, v19")
    k("v_cmp_lt_u32 vcc, 13, v18")
    k("v_bfrev_b32 v19, 1")
    k("s_nop 0")
    k(f"v_cndmask_b32 v{vDW}, v{vDW}, v19, vcc")
    k(f"s_lshl_b32 s39, s{sW}, 11")
    k(f"v_lshlrev_b32 v{vSt}, 4, v0")
    k(f"v_add_u32 v{vDH}, s39, v{vSt}")
    k(f"s_mul_i32 s{sBLK}, s{sW}, {BS}")
    k("s_mul_i32 s39, s37, 224")
    k(f"s_sub_u32 s40, {D*ROWB}, s39")
    k("s_lshl_b32 s42, s36, 19")
    k("s_waitcnt lgkmcnt(0)")
    st(1)
    srd(k, SRD_G, 4, "s40", off_s="s39")
    srd(k, SRD_U, 6, "s40", off_s="s39")
    srd(k, SRD_H, 32, 1 << 19, off_s="s42", off_imm=H2_OFF)
    k(f"s_mov_b32 s{sKW}, 0")
    k(f"s_mov_b32 s{sKH}, 0")

    def dma_group(stage, part):
        base = (stage % NS) * STAGE
        if part == 0:
            return [f"s_add_u32 m0, s{sBLK}, {base}", f"buffer_load_dwordx4 v{vDW}, s[{SRD_G}:{SRD_G+3}], s{sKW} offen lds"]
        if part == 1:
            return [f"s_add_u32 m0, s{sBLK}, {base+1024}", f"buffer_load_dwordx4 v{vDW}, s[{SRD_U}:{SRD_U+3}], s{sKW} offen lds"]
        if part == 2:
            return [f"s_add_u32 m0, s{sBLK}, {base+2048}", f"buffer_load_dwordx4 v{vDH}, s[{SRD_H}:{SRD_H+3}], s{sKH} offen lds"]
        if part == 3:
            return [None, f"buffer_load_dwordx4 v{vDH}, s[{SRD_H}:{SRD_H+3}], s{sKH} offen offset:1024 lds"]
    def adv():
        return [f"s_add_u32 s{sKW}, s{sKW}, {32*ROWB}", f"s_add_u32 s{sKH}, s{sKH}, 16384"]
    def issue_stage(stg):
        for part in range(4):
            m, ld = dma_group(stg, part)
            if m:
                k(m); k("s_nop 0")
            k(ld)
        for a in adv(): k(a)
    issue_stage(0)
    k("v_and_b32 v17, 1, v16")
    k("v_lshlrev_b32 v17, 2, v17")
    k("v_bfe_u32 v18, v0, 2, 2")
    k("v_add_u32 v17, v17, v18")
    k(f"s_mov_b32 s41, {BS}")
    k("v_mul_lo_u32 v17, v17, s41")
    k("v_lshrrev_b32 v18, 1, v16")
    k("v_lshlrev_b32 v18, 8, v18")
    k("v_add_u32 v17, v17, v18")
    k("v_and_b32 v18, 3, v0")
    k("v_lshlrev_b32 v18, 3, v18")
    k(f"v_add_u32 v{vRA[0]}, v17, v18")
    k(f"s_and_b32 s39, s{sW}, 3")
    k(f"s_mul_i32 s39, s39, {2*BS}")
    k("s_add_u32 s39, s39, 2048")
    k(f"v_add_u32 v{vRB[0]}, s39, v{vSt}")
    for r in range(4): k(f"v_mov_b32 v{24+r}, 0")
    issue_stage(1)
    if not peel_first: issue_stage(2)
    for r in range(0, 128, 16):
        k(f"v_mfma_f32_32x32x16_bf16 v[{ACC+r}:{ACC+r+15}], v[24:27], v[24:27], 0")
    k("s_and_b32 s39, s37, 1")
    k("s_cmp_eq_u32 s39, 0")
    k("s_cselect_b32 s40, 0, 96")
    k("s_cselect_b32 s41, 128, 32")
    k("s_cselect_b32 s42, 192, 0")
    k(f"s_cmp_ge_u32 s{sW}, 4")
    k("s_cselect_b32 s40, s41, s40")
    k(f"v_add_u32 v{vRA2[0]}, s42, v{vRA[0]}")
    k(f"v_add_u32 v{vRA[0]}, s40, v{vRA[0]}")
    for s in range(1, NS):
        k(f"v_add_u32 v{vRA[s]}, {s*STAGE}, v{vRA[0]}")
        k(f"v_add_u32 v{vRA2[s]}, {s*STAGE}, v{vRA2[0]}")
        k(f"v_add_u32 v{vRB[s]}, {s*STAGE}, v{vRB[0]}")
    k(f"v_lshlrev_b32 v{vPF}, 6, v30")
    srd(k, SRD_O, 32, S * F * 2, off_imm=ACT_OFF)
    k("s_mul_i32 s39, s2, 28672")
    srd(k, SRD_P, 30, 28672, off_s="s39")
    k(f"s_waitcnt vmcnt({P if peel_first else 2*P})")
    k("s_barrier")
    st(2)
    k(f"s_cmp_ge_u32 s{sW}, 4")
    k(f"s_cbranch_scc1 {name}_typeB")

    def body(tp):
        nT = 4 if tp == 0 else 3
        nA = 2 * nT
        def Af(s, a): return FR[s] + a * 4
        def Bf(s, p): return FR[s] + 32 + p * 4
        def acc(p, a): return ACC + (p * nA + a) * 4
        def reads(setn, stage):
            A = []
            for a in range(nA):
                gu, j = a // nT, a % nT
                for h in range(2):
                    if tp == 1 and j == 2:
                        off = gu * 1024 + h * 512; base = vRA2[stage]
                    else:
                        off = gu * 1024 + j * 32 + h * 512; base = vRA[stage]
                    A.append(f"ds_read_b64_tr_b16 v[{Af(setn,a)+2*h}:{Af(setn,a)+2*h+1}], v{base} offset:{off}")
            B = []
            for p in range(4):
                off = (p >> 1) * BS + (p & 1) * 1024
                B.append(f"ds_read_b128 v[{Bf(setn,p)}:{Bf(setn,p)+3}], v{vRB[stage]} offset:{off}")
            return [B[0]] + A[:4] + [B[1]] + A[4:8] + [B[2]] + A[8:12] + [B[3]] + A[12:]
        order = [(p, a) for p in range(4) for a in range(nA)]
        nM = len(order)
        def mfma(cur, p, a):
            return f"v_mfma_f32_16x16x32_bf16 v[{acc(p,a)}:{acc(p,a)+3}], v[{Af(cur,a)}:{Af(cur,a)+3}], v[{Bf(cur,p)}:{Bf(cur,p)+3}], v[{acc(p,a)}:{acc(p,a)+3}]"
        def iteration(u, dma_stages, nvm, do_reads=True, barrier=True):
            cur = u & 1; nxt = cur ^ 1
            extra = {}
            if do_reads:
                rd = reads(nxt, (u + 1) % NS)
                for ri, r in enumerate(rd):
                    extra.setdefault(int(ri * rd_span * nM / len(rd)), []).append(r)
            nd = len(dma_stages) * 4
            for si, stg in enumerate(dma_stages):
                for part in range(4):
                    q = si * 4 + part
                    fr = dma_frac[part] if len(dma_stages) == 1 else (0.04 + 0.9 * q / nd)
                    pos = max(1, int(fr * nM))
                    m, ld = dma_group(stg, part)
                    if m: extra.setdefault(pos - 1, []).append(m)
                    extra.setdefault(pos, []).append(ld)
                    if part == 3:
                        extra.setdefault(pos, []).extend(adv())
            if nvm is None: k("s_waitcnt lgkmcnt(0)")
            else: k(f"s_waitcnt vmcnt({nvm}) lgkmcnt(0)")
            if barrier: k("s_barrier")
            for idx, (p, a) in enumerate(order):
                k(mfma(cur, p, a))
                for e in extra.get(idx, []): k(e)
        for r in reads(0, 0): k(r)
        if not peel_first: issue_stage(3)
        ntrips = NK // NS
        if peel_first:
            iteration(0, [2, 3], 0)
            iteration(1, [0, 1], P)
            iteration(2, [2], 2 * P)
            iteration(3, [3], 2 * P)
            ntrips -= 1
        if peel_last: ntrips -= 1
        k(f"s_mov_b32 s{sCNT}, {ntrips}")
        loop = f"{name}_loop{tp}"
        k.label(loop)
        for u in range(NS): iteration(u, [u], 2 * P)
        k(f"s_sub_u32 s{sCNT}, s{sCNT}, 1")
        k(f"s_cmp_lg_u32 s{sCNT}, 0")
        k(f"s_cbranch_scc1 {loop}")
        def epi_setup():
            if cpf: code_pf(k, cpf[0], cpf[1], f"e{tp}", 24, -30, sp=60)
            if pf: k(f"buffer_load_dword v31, v{vPF}, s[{SRD_P}:{SRD_P+3}], 0 offen")
            k(f"s_and_b32 s39, s{sW}, 3")
            k("s_lshl_b32 s40, s36, 2")
            k("s_add_u32 s39, s39, s40")
            k(f"s_mul_i32 s39, s39, {56*8192}")
            k("s_mul_i32 s40, s37, 7")
            k("s_and_b32 s41, s37, 1")
            k("s_cmp_eq_u32 s41, 0")
            if tp == 0:
                k("s_cselect_b32 s41, 0, 3")
                k("s_add_u32 s41, s41, s40")
                k("s_lshl_b32 s41, s41, 11")
                k("s_add_u32 s48, s41, s39")
                k("s_add_u32 s49, s48, 4096")
            else:
                k("s_cselect_b32 s41, 4, 1")
                k("s_cselect_b32 s42, 6, 0")
                k("s_add_u32 s41, s41, s40")
                k("s_lshl_b32 s41, s41, 11")
                k("s_add_u32 s48, s41, s39")
                k("s_add_u32 s42, s42, s40")
                k("s_lshr_b32 s41, s42, 1")
                k("s_lshl_b32 s41, s41, 12")
                k("s_and_b32 s42, s42, 1")
                k("s_lshl_b32 s42, s42, 3")
                k("s_add_u32 s41, s41, s42")
                k("s_add_u32 s49, s41, s39")
            for d in range(2):
                k(f"v_mov_b32 v{vC0+d}, {f2u(c0):#x}")
                k(f"v_mov_b32 v{vC1+d}, {f2u(c1):#x}")
                k(f"v_mov_b32 v{vONE+d}, 1.0")
        c0 = -2.0 * math.sqrt(2.0 / math.pi) * math.log2(math.e)
        c1 = c0 * 0.044715
        vC0, vC1, vONE = 16, 18, 28
        def pr(b): return f"v[{b}:{b+1}]"
        def epi(p, TB, OB):
            out = []
            gi = 0
            for g0 in range(0, nT, 2):
                jj = list(range(nT))[g0:g0+2]
                pairs = []
                for j in jj:
                    g = acc(p, j); u_ = acc(p, nT + j)
                    pairs += [(g, u_), (g + 2, u_ + 2)]
                T = TB + gi * 8; O = OB + gi * 4; gi += 1
                n = len(pairs)
                for q, (g, u_) in enumerate(pairs): out.append(f"v_pk_mul_f32 {pr(T+2*q)}, {pr(g)}, {pr(g)}")
                for q in range(n): out.append(f"v_pk_fma_f32 {pr(T+2*q)}, {pr(T+2*q)}, {pr(vC1)}, {pr(vC0)}")
                for q, (g, u_) in enumerate(pairs): out.append(f"v_pk_mul_f32 {pr(T+2*q)}, {pr(T+2*q)}, {pr(g)}")
                for q in range(2*n): out.append(f"v_exp_f32 v{T+q}, v{T+q}")
                for q, (g, u_) in enumerate(pairs): out.append(f"v_pk_mul_f32 {pr(u_)}, {pr(g)}, {pr(u_)}")
                for q in range(n): out.append(f"v_pk_add_f32 {pr(T+2*q)}, {pr(T+2*q)}, {pr(vONE)}")
                for q in range(2*n): out.append(f"v_rcp_f32 v{T+q}, v{T+q}")
                out.append("s_nop 0")
                for q, (g, u_) in enumerate(pairs): out.append(f"v_pk_mul_f32 {pr(u_)}, {pr(u_)}, {pr(T+2*q)}")
                for q, (g, u_) in enumerate(pairs): out.append(f"v_cvt_pk_bf16_f32 v{O+q}, v{u_}, v{u_+1}")
                if len(jj) == 2:
                    out.append(f"buffer_store_dwordx4 v[{O}:{O+3}], v{vSt}, s[{SRD_O}:{SRD_O+3}], s{48+g0//2} offen offset:{p*1024}{sf}")
                else:
                    out.append(f"buffer_store_dwordx2 v[{O}:{O+1}], v{vSt}, s[{SRD_O}:{SRD_O+3}], s49 offen offset:{p*1024}{sf2}")
            return out
        if peel_last:
            iteration(0, [], 2 * P)
            iteration(1, [], P)
            iteration(2, [], 0)
            cur = 1
            k("s_waitcnt lgkmcnt(0)")
            st(3)
            epi_setup()
            TBs = [FR[0], FR[0] + 16]
            OBs = [FR[0] + 32, FR[0] + 40]
            if fuse:
                for a in range(nA): k(mfma(cur, 0, a))
                for p in range(1, 4):
                    E = epi(p - 1, TBs[(p - 1) & 1], OBs[(p - 1) & 1])
                    M = [mfma(cur, p, a) for a in range(nA)]
                    k(M[0]); k(M[1]); k("s_nop 5")
                    rest = M[2:]
                    step = max(1, len(E) // (len(rest) + 1))
                    mi = 0
                    for ei, e in enumerate(E):
                        k(e)
                        if (ei + 1) % step == 0 and mi < len(rest):
                            k(rest[mi]); mi += 1
                    while mi < len(rest): k(rest[mi]); mi += 1
                k("s_nop 7")
                for e in epi(3, TBs[1], OBs[1]): k(e)
            else:
                for (p, a) in order: k(mfma(cur, p, a))
                k("s_nop 7")
                for p in range(4):
                    for e in epi(p, TBs[p & 1], OBs[p & 1]): k(e)
        else:
            st(3)
            epi_setup()
            k("s_nop 7")
            for p in range(4):
                for e in epi(p, 32 + (p & 1) * 16, 64 + (p & 1) * 8): k(e)
        st.end(32, sW)
        k("s_endpgm")
    body(0)
    k.label(f"{name}_typeB")
    body(1)
    k.label(f"{name}_end")
    k("s_endpgm")
    k.lds = NS * STAGE
    k.grid = 256
    k.block = 512
    return k
```

```python
from asmlib import *
from layout import *

def gen_gemm4c(name="g4_kernel", NS=6, stamps=False, sf=' sc1', cons_dma=True, rdn=2, noW=False, noA=False, etmap=0):
    k = Kern(name)
    stp = Stamps(k, stamps, 4)
    PA = 1056
    AREG = 16 * PA
    STAGE = AREG + 8 * 1024
    NK = 56
    SRD_W, SRD_A, SRD_O, SRD_X, SRD_M = 8, 12, 16, 20, 24
    sW, sKW, sKA, sCNT, sRD, sDM = 28, 29, 30, 31, 40, 41
    k("s_cmp_ge_u32 s2, 256")
    k(f"s_cbranch_scc1 {name}_end")
    stp.start()
    k(f"s_load_dwordx2 s[4:5], s[0:1], {KA['wd']}")
    k(f"s_load_dwordx2 s[6:7], s[0:1], {KA['out']}")
    k(f"s_load_dwordx2 s[32:33], s[0:1], {KA['ws']}")
    k("v_lshrrev_b32 v1, 6, v0")
    k("v_and_b32 v0, 63, v0")
    k(f"v_readfirstlane_b32 s{sW}, v1")
    k("s_and_b32 s34, s2, 7")
    k("s_lshr_b32 s35, s2, 3")
    if etmap == 0:
        k("s_and_b32 s36, s34, 1")
        k("s_lshl_b32 s36, s36, 2")
        k("s_and_b32 s37, s35, 3")
        k("s_add_u32 s36, s36, s37")
        k("s_lshr_b32 s37, s34, 1")
        k("s_lshl_b32 s37, s37, 3")
        k("s_lshr_b32 s38, s35, 2")
        k("s_add_u32 s37, s37, s38")
    elif etmap == 1:
        k("s_and_b32 s36, s35, 7")
        k("s_lshl_b32 s37, s34, 2")
        k("s_lshr_b32 s38, s35, 3")
        k("s_add_u32 s37, s37, s38")
    else:
        k("s_and_b32 s36, s34, 3")
        k("s_lshl_b32 s36, s36, 1")
        k("s_and_b32 s37, s35, 1")
        k("s_add_u32 s36, s36, s37")
        k("s_lshr_b32 s37, s34, 2")
        k("s_lshl_b32 s37, s37, 4")
        k("s_lshr_b32 s38, s35, 1")
        k("s_add_u32 s37, s37, s38")
    k("v_lshrrev_b32 v16, 4, v0")
    k("v_lshlrev_b32 v3, 4, v0")
    k(f"s_mov_b32 s{sDM}, 0")
    k(f"s_cmp_ge_u32 s{sW}, 4")
    k(f"s_cbranch_scc1 {name}_prod")
    def wrap(reg):
        k(f"s_add_u32 s{reg}, s{reg}, {STAGE}")
        k(f"s_cmp_eq_u32 s{reg}, {NS*STAGE}")
        k(f"s_cselect_b32 s{reg}, 0, s{reg}")
    vRA, vRB, vRAc, vRBc, vDB = 4, 5, 6, 7, 10
    FR = [32, 80]
    ACC = 128
    def Af(s, ks, a): return FR[s] + (ks * 2 + a) * 4
    def Bf(s, ks, p): return FR[s] + 16 + (ks * 4 + p) * 4
    def acc(p, a): return ACC + (p * 2 + a) * 4
    k(f"s_lshl_b32 s39, s{sW}, 11")
    k(f"v_add_u32 v{vDB}, s39, v3")
    k(f"s_add_u32 s42, s39, {AREG}")
    k(f"s_mul_i32 s39, s37, {56*8192}")
    k("s_waitcnt lgkmcnt(0)")
    srd(k, SRD_A, 32, 56 * 8192, off_s="s39", off_imm=ACT_OFF)
    if noA: k(f"s_mov_b32 s{SRD_A+2}, 0")
    k(f"s_mov_b32 s{sKA}, 0")
    NA = 2 if cons_dma else 0
    def issueA():
        out = [f"s_add_u32 m0, s{sDM}, s42", f"s_add_u32 s{sDM}, s{sDM}, {STAGE}",
               f"buffer_load_dwordx4 v{vDB}, s[{SRD_A}:{SRD_A+3}], s{sKA} offen lds",
               f"buffer_load_dwordx4 v{vDB}, s[{SRD_A}:{SRD_A+3}], s{sKA} offen offset:1024 lds",
               f"s_cmp_eq_u32 s{sDM}, {NS*STAGE}", f"s_cselect_b32 s{sDM}, 0, s{sDM}", f"s_add_u32 s{sKA}, s{sKA}, 8192"]
        return out
    if cons_dma:
        for i in range(2):
            for l in issueA(): k(l)
    k("v_and_b32 v17, 1, v16")
    k("v_lshlrev_b32 v17, 2, v17")
    k("v_bfe_u32 v18, v0, 2, 2")
    k("v_add_u32 v17, v17, v18")
    k(f"s_mov_b32 s39, {PA}")
    k("v_mul_lo_u32 v17, v17, s39")
    k("v_lshrrev_b32 v18, 1, v16")
    k("v_lshlrev_b32 v18, 8, v18")
    k("v_add_u32 v17, v17, v18")
    k("v_and_b32 v18, 3, v0")
    k("v_lshlrev_b32 v18, 3, v18")
    k("v_add_u32 v17, v17, v18")
    k(f"s_lshl_b32 s39, s{sW}, 6")
    k(f"v_add_u32 v{vRA}, s39, v17")
    k(f"v_add_u32 v{vRB}, {AREG}, v3")
    for r in range(4): k(f"v_mov_b32 v{24+r}, 0")
    vXO, vGO = 8, 9
    k("v_and_b32 v17, 15, v0")
    k("v_lshlrev_b32 v17, 11, v17")
    k("v_and_b32 v18, 1, v16")
    k("v_lshlrev_b32 v18, 5, v18")
    k("v_add_u32 v17, v17, v18")
    k("v_lshrrev_b32 v18, 1, v16")
    k("v_lshlrev_b32 v18, 4, v18")
    k("v_add_u32 v17, v17, v18")
    k(f"s_lshl_b32 s39, s{sW}, 6")
    k(f"v_add_u32 v{vXO}, s39, v17")
    k("v_and_b32 v17, 1, v16")
    k("v_lshlrev_b32 v17, 6, v17")
    k("v_lshrrev_b32 v18, 1, v16")
    k("v_lshlrev_b32 v18, 5, v18")
    k("v_add_u32 v17, v17, v18")
    k(f"s_lshl_b32 s39, s{sW}, 7")
    k(f"v_add_u32 v{vGO}, s39, v17")
    for r in range(0, 32, 16):
        k(f"v_mfma_f32_32x32x16_bf16 v[{ACC+r}:{ACC+r+15}], v[24:27], v[24:27], 0")
    k("s_lshl_b32 s39, s37, 17")
    k("s_lshl_b32 s38, s36, 8")
    k("s_add_u32 s39, s39, s38")
    k(f"s_sub_u32 s38, {S*D*2}, s39")
    srd(k, SRD_O, 6, "s38", off_s="s39")
    srd(k, SRD_X, 32, "s38", off_s="s39", off_imm=X1_OFF)
    k("s_lshl_b32 s39, s36, 9")
    srd(k, SRD_M, 32, 512, off_s="s39", off_imm=MODF_OFF + 5 * 4096)
    XR, GB = 224, 240
    for p in range(4):
        k(f"s_mov_b32 s38, {p*16*2048}")
        k(f"buffer_load_dwordx4 v[{XR+4*p}:{XR+4*p+3}], v{vXO}, s[{SRD_X}:{SRD_X+3}], s38 offen")
    k(f"buffer_load_dwordx4 v[{GB}:{GB+3}], v{vGO}, s[{SRD_M}:{SRD_M+3}], 0 offen")
    k(f"buffer_load_dwordx4 v[{GB+4}:{GB+7}], v{vGO}, s[{SRD_M}:{SRD_M+3}], 0 offen offset:16")
    def reads(setn):
        out = []
        for ks in range(2):
            A = []
            for a in range(2):
                for h in range(2):
                    off = ks * 8 * PA + a * 32 + h * 512
                    A.append(f"ds_read_b64_tr_b16 v[{Af(setn,ks,a)+2*h}:{Af(setn,ks,a)+2*h+1}], v{vRAc} offset:{off}")
            B = []
            for p in range(4):
                off = (ks * 4 + p) * 1024
                B.append(f"ds_read_b128 v[{Bf(setn,ks,p)}:{Bf(setn,ks,p)+3}], v{vRBc} offset:{off}")
            out += [B[0]] + A[:2] + [B[1]] + A[2:] + B[2:]
        return out
    k(f"v_mov_b32 v{vRAc}, v{vRA}")
    k(f"v_mov_b32 v{vRBc}, v{vRB}")
    if cons_dma: k(f"s_waitcnt vmcnt({NA + 6})")
    k("s_barrier")
    stp(1)
    for r in reads(0): k(r)
    if cons_dma:
        for i in range(2, NS):
            for l in issueA(): k(l)
    k(f"s_mov_b32 s{sRD}, {STAGE}")
    k(f"v_add_u32 v{vRAc}, s{sRD}, v{vRA}")
    k(f"v_add_u32 v{vRBc}, s{sRD}, v{vRB}")
    k(f"s_mov_b32 s{sCNT}, {NK//2}")
    loop = f"{name}_cloop"
    k.label(loop)
    for u in range(2):
        cur = u; nxt = u ^ 1
        rd = reads(nxt)
        order = [(ks, p, a) for ks in range(2) for p in range(4) for a in range(2)]
        if cons_dma: k(f"s_waitcnt vmcnt({NA*(NS-2)}) lgkmcnt(0)")
        else: k("s_waitcnt lgkmcnt(0)")
        k("s_barrier")
        ia = issueA() if cons_dma else []
        ri = 0
        for idx, (ks, p, a) in enumerate(order):
            k(f"v_mfma_f32_16x16x32_bf16 v[{acc(p,a)}:{acc(p,a)+3}], v[{Af(cur,ks,a)}:{Af(cur,ks,a)+3}], v[{Bf(cur,ks,p)}:{Bf(cur,ks,p)+3}], v[{acc(p,a)}:{acc(p,a)+3}]")
            for _ in range(rdn):
                if ri < len(rd): k(rd[ri]); ri += 1
            if idx == 8:
                k(f"s_add_u32 s{sRD}, s{sRD}, {STAGE}")
                k(f"s_cmp_eq_u32 s{sRD}, {NS*STAGE}")
                k(f"s_cselect_b32 s{sRD}, 0, s{sRD}")
            if cons_dma:
                if idx == 9: k(ia[0]); k(ia[1])
                if idx == 10: k(ia[2])
                if idx == 12: k(ia[3])
                if idx == 13: k(ia[4]); k(ia[5]); k(ia[6])
            if idx == 14:
                k(f"v_add_u32 v{vRAc}, s{sRD}, v{vRA}")
                k(f"v_add_u32 v{vRBc}, s{sRD}, v{vRB}")
    k(f"s_sub_u32 s{sCNT}, s{sCNT}, 1")
    k(f"s_cmp_lg_u32 s{sCNT}, 0")
    k(f"s_cbranch_scc1 {loop}")
    stp(2)
    k("s_nop 7")
    T = 32
    for p in range(4):
        a0, a1 = acc(p, 0), acc(p, 1)
        for r in range(4):
            k(f"v_permlane16_swap_b32 v{a0+r}, v{a1+r}")
        xr = XR + 4 * p
        t = T + p * 8
        for d in range(4):
            k(f"v_lshlrev_b32 v{t+2*d}, 16, v{xr+d}")
            k(f"v_and_b32 v{t+2*d+1}, 0xffff0000, v{xr+d}")
        for e in range(0, 8, 2):
            src = (a0 + e) if e < 4 else (a1 + e - 4)
            k(f"v_pk_fma_f32 v[{t+e}:{t+e+1}], v[{src}:{src+1}], v[{GB+e}:{GB+e+1}], v[{t+e}:{t+e+1}]")
        for d in range(4):
            k(f"v_cvt_pk_bf16_f32 v{xr+d}, v{t+2*d}, v{t+2*d+1}")
        k(f"s_mov_b32 s38, {p*16*2048}")
        k(f"buffer_store_dwordx4 v[{xr}:{xr+3}], v{vXO}, s[{SRD_O}:{SRD_O+3}], s38 offen{sf}")
    stp(3)
    stp.end(32, sW)
    k("s_endpgm")
    k.label(f"{name}_prod")
    vDA = [4, 5, 6, 7]
    vDB2 = 8
    k(f"s_sub_u32 s{sW}, s{sW}, 4")
    k("v_lshlrev_b32 v17, 3, v16")
    k(f"s_lshl_b32 s39, s{sW}, 1")
    k("v_add_u32 v17, s39, v17")
    k("v_lshlrev_b32 v17, 11, v17")
    k("v_and_b32 v18, 15, v0")
    k("v_lshlrev_b32 v18, 4, v18")
    k(f"v_add_u32 v{vDA[0]}, v17, v18")
    k(f"v_add_u32 v{vDA[1]}, {2048 - PA}, v{vDA[0]}")
    k(f"v_add_u32 v{vDA[2]}, {32*2048}, v{vDA[0]}")
    k(f"v_add_u32 v{vDA[3]}, {33*2048 - PA}, v{vDA[0]}")
    k(f"s_mul_i32 s42, s{sW}, {2*PA}")
    k(f"s_lshl_b32 s43, s{sW}, 11")
    k(f"v_add_u32 v{vDB2}, s43, v3")
    k(f"s_add_u32 s43, s43, {AREG}")
    k("s_lshl_b32 s39, s36, 8")
    k(f"s_mul_i32 s38, s37, {56*8192}")
    k("s_waitcnt lgkmcnt(0)")
    srd(k, SRD_W, 4, F*D*2 - 7*256, off_s="s39") if False else None
    k(f"s_sub_u32 s44, {F*D*2}, s39")
    srd(k, SRD_W, 4, "s44", off_s="s39")
    if not cons_dma: srd(k, SRD_A, 32, 56 * 8192, off_s="s38", off_imm=ACT_OFF)
    if noW: k(f"s_mov_b32 s{SRD_W+2}, 0")
    k(f"s_mov_b32 s{sKW}, 0")
    k(f"s_mov_b32 s{sKA}, 0")
    NP = 4 if cons_dma else 6
    def issue():
        k(f"s_add_u32 m0, s{sDM}, s42")
        k(f"s_add_u32 s44, s{sDM}, s42")
        k(f"buffer_load_dwordx4 v{vDA[0]}, s[{SRD_W}:{SRD_W+3}], s{sKW} offen lds")
        k(f"buffer_load_dwordx4 v{vDA[1]}, s[{SRD_W}:{SRD_W+3}], s{sKW} offen offset:{PA} lds")
        k(f"s_add_u32 m0, s44, {8*PA}")
        k(f"s_add_u32 s45, s{sDM}, s43")
        k(f"buffer_load_dwordx4 v{vDA[2]}, s[{SRD_W}:{SRD_W+3}], s{sKW} offen lds")
        k(f"buffer_load_dwordx4 v{vDA[3]}, s[{SRD_W}:{SRD_W+3}], s{sKW} offen offset:{PA} lds")
        if not cons_dma:
            k("s_mov_b32 m0, s45")
            k(f"s_add_u32 s{sKW}, s{sKW}, {64*2048}")
            k(f"buffer_load_dwordx4 v{vDB2}, s[{SRD_A}:{SRD_A+3}], s{sKA} offen lds")
            k(f"buffer_load_dwordx4 v{vDB2}, s[{SRD_A}:{SRD_A+3}], s{sKA} offen offset:1024 lds")
            k(f"s_add_u32 s{sKA}, s{sKA}, 8192")
        else:
            k(f"s_add_u32 s{sKW}, s{sKW}, {64*2048}")
        wrap(sDM)
    issue(); issue()
    k(f"s_waitcnt vmcnt({NP})")
    k("s_barrier")
    for stg in range(2, NS): issue()
    k(f"s_mov_b32 s{sCNT}, {NK}")
    ploop = f"{name}_ploop"
    k.label(ploop)
    k(f"s_waitcnt vmcnt({NP*(NS-2)})")
    k("s_barrier")
    issue()
    k(f"s_sub_u32 s{sCNT}, s{sCNT}, 1")
    k(f"s_cmp_lg_u32 s{sCNT}, 0")
    k(f"s_cbranch_scc1 {ploop}")
    k.label(f"{name}_end")
    k("s_endpgm")
    k.lds = NS * STAGE
    k.grid = 256
    k.block = 512
    return k
```

```python
from asmlib import *
from layout import *
import math, struct
from ka_util import *
from kb import kb_consts
from kc import kc_consts

def gen_ka(name="ka_kernel", nt=True, stamps=False, sf='', xnt=True, codepf=None, selfpf=False, tlbpf=0, helpers=0, htlb=0, flags=False):
    k = Kern(name)
    st = Stamps(k, stamps, 0)
    ntf = " nt" if nt else ""
    xntf = " nt" if xnt else ""
    k(f"s_cmp_ge_u32 s2, {257 + helpers}")
    k(f"s_cbranch_scc1 {name}_end")
    if helpers:
        k("s_cmp_ge_u32 s2, 257")
        k(f"s_cbranch_scc1 {name}_help")
    if selfpf:
        k("s_cmp_ge_u32 s2, 8")
        k(f"s_cbranch_scc1 {name}_nospf")
        k("s_getpc_b64 s[56:57]")
        k.label(f"{name}_pc0")
        k(f"s_mov_b32 s58, {codepf[0]}-{name}_pc0")
        k("v_lshlrev_b32 v100, 6, v0")
        k("v_cmp_gt_u32 vcc, s58, v100")
        k("s_and_saveexec_b64 s[40:41], vcc")
        k("v_mov_b32 v103, s57")
        k("v_add_co_u32 v102, vcc, s56, v100")
        k("s_nop 1")
        k("v_addc_co_u32 v103, vcc, 0, v103, vcc")
        k(f"s_cbranch_execz {name}_spf1")
        k("global_load_dword v106, v[102:103], off")
        k.label(f"{name}_spf1")
        k("s_mov_b64 exec, s[40:41]")
        k.label(f"{name}_nospf")
    st.start()
    k(f"s_load_dwordx2 s[32:33], s[0:1], {KA['ws']}")
    k("v_lshrrev_b32 v1, 6, v0")
    k("v_and_b32 v2, 63, v0")
    k("v_readfirstlane_b32 s28, v1")
    k("s_cmp_eq_u32 s2, 256")
    k(f"s_cbranch_scc1 {name}_tab")
    if codepf and not helpers:
        first, last = codepf
        k("s_cmp_ge_u32 s2, 8")
        k(f"s_cbranch_scc1 {name}_nocpf")
        k("s_getpc_b64 s[56:57]")
        k.label(f"{name}_pc")
        k(f"s_add_u32 s56, s56, {first}-{name}_pc")
        k("s_addc_u32 s57, s57, 0")
        k(f"s_mov_b32 s58, {last}-{first}")
        k("v_lshlrev_b32 v100, 6, v0")
        for q in range(2):
            if q: k("v_add_u32 v100, 0x8000, v100")
            k("v_cmp_gt_u32 vcc, s58, v100")
            k("s_and_saveexec_b64 s[40:41], vcc")
            k(f"s_cbranch_execz {name}_cpf{q}")
            k("v_mov_b32 v103, s57")
            k("v_add_co_u32 v102, vcc, s56, v100")
            k("s_nop 1")
            k("v_addc_co_u32 v103, vcc, 0, v103, vcc")
            k(f"global_load_dword v{104+q}, v[102:103], off")
            k.label(f"{name}_cpf{q}")
            k("s_mov_b64 exec, s[40:41]")
        k.label(f"{name}_nocpf")
    k(f"s_load_dwordx2 s[4:5], s[0:1], {KA['x']}")
    k(f"s_load_dwordx2 s[6:7], s[0:1], {KA['wmod']}")
    k(f"s_load_dwordx2 s[42:43], s[0:1], {KA['c']}")
    k("v_and_b32 v3, 7, v2")
    k("v_lshrrev_b32 v4, 3, v2")
    k("v_lshlrev_b32 v5, 11, v3")
    k("v_lshlrev_b32 v6, 3, v4")
    k("v_add_u32 v5, v5, v6")
    k("s_lshl_b32 s34, s28, 8")
    k("v_add_u32 v5, s34, v5")
    k("s_lshr_b32 s35, s2, 3")
    k("s_and_b32 s36, s35, 3")
    k("s_lshr_b32 s37, s35, 3")
    k("s_and_b32 s37, s37, 1")
    k("s_lshl_b32 s37, s37, 2")
    k("s_or_b32 s36, s36, s37")
    k("s_lshl_b32 s36, s36, 2")
    k("s_and_b32 s37, s2, 7")
    k("s_lshl_b32 s37, s37, 3")
    k("s_add_u32 s36, s36, s37")
    k("v_add_u32 v6, s36, v3")
    k("v_and_b32 v6, 63, v6")
    k("s_lshl_b32 s35, s35, 6")
    k("v_add_u32 v6, s35, v6")
    k("v_lshlrev_b32 v6, 3, v6")
    k("v_lshlrev_b32 v7, 14, v4")
    k("v_add_u32 v6, v6, v7")
    k("s_lshl_b32 s38, s28, 19")
    k("v_add_u32 v6, s38, v6")
    k("v_lshlrev_b32 v12, 4, v2")
    k("v_cmp_gt_u32 vcc, 48, v2")
    k("v_bfrev_b32 v13, 1")
    k(f"s_mul_i32 s39, s28, {8*12288}")
    k("v_add_u32 v12, s39, v12")
    k("v_cndmask_b32 v12, v13, v12, vcc")
    k("v_lshlrev_b32 v14, 1, v2")
    k("s_waitcnt lgkmcnt(0)")
    st(1)
    if tlbpf:
        k("s_cmp_ge_u32 s2, 8")
        k(f"s_cbranch_scc1 {name}_notlb")
        k(f"s_load_dwordx4 s[60:63], s[0:1], {KA['wg']}")
        k(f"s_load_dwordx2 s[64:65], s[0:1], {KA['wd']}")
        k(f"s_load_dwordx2 s[66:67], s[0:1], {KA['out']}")
        k(f"v_mul_u32_u24 v107, {tlbpf}, v0")
        srd(k, 68, 32, 0x2C00000)
        k("buffer_load_dword v108, v107, s[68:71], 0 offen")
        k("s_waitcnt lgkmcnt(0)")
        for i, (b, n) in enumerate(((60, D*F*2), (62, D*F*2), (64, D*F*2), (66, S*D*2))):
            srd(k, 68, b, n)
            k(f"buffer_load_dword v{109+i}, v107, s[68:71], 0 offen")
        k.label(f"{name}_notlb")
    k("s_lshl_b32 s34, s2, 14")
    srd(k, 8, 4, 16384, off_s="s34")
    for q in range(4):
        k(f"buffer_load_dwordx2 v[{16+2*q}:{17+2*q}], v5, s[8:11], 0 offen offset:{q*64}{xntf}")
    k("s_lshr_b32 s35, s2, 4")
    k("s_and_b32 s36, s2, 15")
    k(f"s_mul_i32 s37, s35, {64*12288}")
    k("s_mul_i32 s38, s36, 768")
    k("s_add_u32 s37, s37, s38")
    k(f"s_sub_u32 s38, {1024*12288}, s37")
    srd(k, 44, 6, "s38", off_s="s37")
    k("s_lshl_b32 s37, s35, 7")
    k("s_lshl_b32 s38, s28, 4")
    k("s_add_u32 s37, s37, s38")
    srd(k, 48, 42, 16, off_s="s37")
    k("buffer_load_ushort v15, v14, s[48:51], 0 offen")
    for p in range(8):
        k(f"s_mov_b32 s37, {p*12288}")
        k(f"buffer_load_dwordx4 v[{64+4*p}:{67+4*p}], v12, s[44:47], s37 offen{ntf}")
    srd(k, 12, 32, S * D * 2, off_imm=XS_OFF)
    k("v_mov_b32 v8, 0"); k("v_mov_b32 v9, 0")
    for q in range(4):
        k(f"s_waitcnt vmcnt({3-q+9})")
        for d in range(2):
            src = 16 + 2*q + d; dst = 32 + 4*q + 2*d
            k(f"v_lshlrev_b32 v{dst}, 16, v{src}")
            k(f"v_and_b32 v{dst+1}, 0xffff0000, v{src}")
        for e in range(4):
            r = 32 + 4*q + e
            k(f"v_add_f32 v8, v8, v{r}")
            k(f"v_fma_f32 v9, v{r}, v{r}, v9")
    st(2)
    dpp_add(k, [8, 9], "row_ror:8")
    k("s_nop 1")
    xlane_sum_16_32(k, [8, 9], [10, 11])
    k("v_lshlrev_b32 v10, 6, v3")
    k("s_lshl_b32 s34, s28, 3")
    k("v_add_u32 v11, s34, v10")
    k("v_cmp_gt_u32 vcc, 8, v2")
    k("s_and_saveexec_b64 s[40:41], vcc")
    k("ds_write_b64 v11, v[8:9]")
    k("s_mov_b64 exec, s[40:41]")
    k("s_waitcnt vmcnt(8)")
    k("v_lshlrev_b32 v15, 16, v15")
    k(f"v_mul_f32 v24, {f2u(-math.log2(math.e)):#x}, v15")
    k("v_exp_f32 v24, v24")
    k("s_nop 0")
    k("v_add_f32 v24, 1.0, v24")
    k("v_rcp_f32 v24, v24")
    k("s_nop 0")
    k("v_mul_f32 v15, v15, v24")
    k("v_cvt_pk_bf16_f32 v15, v15, v15")
    k("v_lshlrev_b32 v15, 16, v15")
    k("s_waitcnt lgkmcnt(0)")
    k("s_barrier")
    for q in range(4):
        k(f"ds_read_b128 v[{48+4*q}:{51+4*q}], v10 offset:{q*16}")
    for p in range(8): k(f"v_readlane_b32 s{52+p}, v15, {p}")
    k("s_waitcnt lgkmcnt(0)")
    k("v_add_f32 v8, v48, v50"); k("v_add_f32 v9, v49, v51")
    for r in range(52, 64, 2):
        k(f"v_add_f32 v8, v8, v{r}"); k(f"v_add_f32 v9, v9, v{r+1}")
    k(f"v_mul_f32 v8, {f2u(1.0/1024):#x}, v8")
    k(f"v_mul_f32 v9, {f2u(1.0/1024):#x}, v9")
    k("v_fma_f32 v9, -v8, v8, v9")
    k("v_max_f32 v9, 0, v9")
    k(f"v_add_f32 v9, {f2u(1e-5):#x}, v9")
    k("v_rsq_f32 v9, v9")
    k("s_nop 0")
    k("v_mul_f32 v8, v8, v9")
    for r in range(32, 48):
        k(f"v_fma_f32 v{r}, v{r}, v9, -v8")
    for q in range(4):
        for d in range(2):
            k(f"v_cvt_pk_bf16_f32 v{16+2*q+d}, v{32+4*q+2*d}, v{32+4*q+2*d+1}")
    for q in range(4):
        k(f"s_mov_b32 s34, {q*8*16384}")
        k(f"buffer_store_dwordx2 v[{16+2*q}:{17+2*q}], v6, s[12:15], s34 offen{sf}")
    for e in range(8): k(f"v_mov_b32 v{32+e}, 0")
    for p in range(8):
        k(f"s_waitcnt vmcnt({7-p+4})")
        for d in range(4):
            k(f"v_lshlrev_b32 v8, 16, v{64+4*p+d}")
            k(f"v_and_b32 v9, 0xffff0000, v{64+4*p+d}")
            k(f"v_fma_f32 v{32+2*d}, v8, s{52+p}, v{32+2*d}")
            k(f"v_fma_f32 v{33+2*d}, v9, s{52+p}, v{33+2*d}")
    k("v_lshlrev_b32 v10, 5, v2")
    k("s_mul_i32 s34, s28, 1536")
    k("s_add_u32 s34, s34, 1024")
    k("v_add_u32 v10, s34, v10")
    k("v_cmp_gt_u32 vcc, 48, v2")
    k("s_and_saveexec_b64 s[40:41], vcc")
    k("ds_write_b128 v10, v[32:35]")
    k("ds_write_b128 v10, v[36:39] offset:16")
    k("s_mov_b64 exec, s[40:41]")
    k("s_waitcnt lgkmcnt(0)")
    k("s_barrier")
    k("v_cmp_gt_u32 vcc, 384, v0")
    k("s_and_saveexec_b64 s[40:41], vcc")
    k(f"s_cbranch_execz {name}_fin")
    k("v_lshlrev_b32 v7, 2, v0")
    for w in range(8):
        k(f"ds_read_b32 v{16+w}, v7 offset:{1024+w*1536}")
    k("s_waitcnt lgkmcnt(0)")
    k("v_add_f32 v16, v16, v17"); k("v_add_f32 v18, v18, v19"); k("v_add_f32 v20, v20, v21"); k("v_add_f32 v22, v22, v23")
    k("v_add_f32 v16, v16, v18"); k("v_add_f32 v20, v20, v22"); k("v_add_f32 v16, v16, v20")
    k(f"s_mul_i32 s37, s35, {6144*4}")
    k("s_mul_i32 s38, s36, 1536")
    k("s_add_u32 s37, s37, s38")
    srd(k, 12, 32, 16*6144*4, off_imm=MODP_OFF)
    k(f"buffer_store_dword v16, v7, s[12:15], s37 offen{sf}")
    k.label(f"{name}_fin")
    st(3)
    st.end(32, 28)
    k("s_endpgm")
    k.label(f"{name}_tab")
    k("v_mov_b32 v0, v2")
    k(f"s_cmp_gt_u32 s28, {5 if flags else 4}")
    k(f"s_cbranch_scc1 {name}_end")
    k("s_waitcnt lgkmcnt(0)")
    if flags:
        k("s_cmp_eq_u32 s28, 5")
        k(f"s_cbranch_scc1 {name}_flg")
    k("s_cmp_eq_u32 s28, 4")
    k(f"s_cbranch_scc1 {name}_tabc")
    k("v_lshrrev_b32 v3, 4, v0")
    k("v_and_b32 v4, 15, v0")
    kb_consts(k)
    srd(k, 12, 32, 32768, off_imm=TB_OFF)
    k("v_lshlrev_b32 v5, 4, v0")
    k("s_lshl_b32 s36, s28, 12")
    k("s_add_u32 s36, s36, 16384")
    for q in range(4):
        k(f"buffer_store_dwordx4 v[{72+4*q}:{75+4*q}], v5, s[12:15], s36 offen offset:{q*1024}")
    k("s_lshr_b32 s36, s28, 1")
    k("s_mul_i32 s36, s36, 6144")
    k("s_add_u32 s36, s36, 4096")
    for q in range(6):
        if q == 4: k("s_add_u32 s36, s36, 4096")
        k(f"buffer_store_dwordx4 v[{48+4*q}:{51+4*q}], v5, s[12:15], s36 offen offset:{(q%4)*1024}")
    k("s_mov_b32 s36, 0")
    for q in range(4):
        k(f"buffer_store_dwordx4 v[{32+4*q}:{35+4*q}], v5, s[12:15], s36 offen offset:{q*1024}")
    k("s_endpgm")
    if flags:
        k.label(f"{name}_flg")
        srd(k, 12, 32, 256*128, off_imm=FLAG_OFF)
        k("v_lshlrev_b32 v5, 4, v0")
        for r in range(4): k(f"v_mov_b32 v{8+r}, 0")
        for q in range(32):
            k(f"s_mov_b32 s36, {q*1024}")
            k("buffer_store_dwordx4 v[8:11], v5, s[12:15], s36 offen")
        k("s_endpgm")
    if helpers:
        k.label(f"{name}_help")
        first, last = codepf
        k("s_getpc_b64 s[56:57]")
        k.label(f"{name}_pch")
        k(f"s_add_u32 s56, s56, {first}-{name}_pch")
        k("s_addc_u32 s57, s57, 0")
        k(f"s_mov_b32 s58, {last}-{first}")
        k("v_lshlrev_b32 v100, 6, v0")
        if htlb:
            k(f"s_load_dwordx2 s[32:33], s[0:1], {KA['ws']}")
            k(f"s_load_dwordx4 s[60:63], s[0:1], {KA['wg']}")
            k(f"s_load_dwordx2 s[64:65], s[0:1], {KA['wd']}")
            k(f"s_load_dwordx2 s[66:67], s[0:1], {KA['out']}")
        for q in range(2):
            if q: k("v_add_u32 v100, 0x8000, v100")
            k("v_cmp_gt_u32 vcc, s58, v100")
            k("s_and_saveexec_b64 s[40:41], vcc")
            k(f"s_cbranch_execz {name}_hcp{q}")
            k("v_mov_b32 v103, s57")
            k("v_add_co_u32 v102, vcc, s56, v100")
            k("s_nop 1")
            k("v_addc_co_u32 v103, vcc, 0, v103, vcc")
            k(f"global_load_dword v{104+q}, v[102:103], off")
            k.label(f"{name}_hcp{q}")
            k("s_mov_b64 exec, s[40:41]")
        if htlb:
            k(f"v_mul_u32_u24 v107, {htlb}, v0")
            k("s_waitcnt lgkmcnt(0)")
            srd(k, 68, 32, 0x2C00000)
            k("buffer_load_dword v108, v107, s[68:71], 0 offen")
            for i, (b, n) in enumerate(((60, D*F*2), (62, D*F*2), (64, D*F*2), (66, S*D*2))):
                srd(k, 68, b, n)
                k(f"buffer_load_dword v{109+i}, v107, s[68:71], 0 offen")
        k("s_endpgm")
    k.label(f"{name}_tabc")
    kc_consts(k)
    srd(k, 12, 32, 18432, off_imm=TC_OFF)
    k("v_lshlrev_b32 v5, 4, v0")
    k("s_mov_b32 s36, 0")
    for q in range(18):
        k(f"buffer_store_dwordx4 v[{32+4*q}:{35+4*q}], v5, s[12:15], s36 offen offset:{(q%4)*1024}")
        if q % 4 == 3: k("s_add_u32 s36, s36, 4096")
    k.label(f"{name}_end")
    k("s_endpgm")
    k.lds = 1024 + 8*1536; k.grid = 257 + helpers; k.block = 512; k.vgpr = 128; k.accum = 128
    return k
```

```python
from mk_all import *
S1 = " sc1"
CP = ("kb_kernel", "code_end_label"); C4 = ("g4_kernel", "code_end_label")
def P(ka={}, kb={}, kc={}, g3={}, g4={}):
    return [gen_ka("ka_kernel", **{**dict(xnt=False, codepf=CP, flags=True), **ka}),
            gen_kb("kb_kernel", **{**dict(sf=S1, table=False, cpf=("kc_kernel", "g3_kernel")), **kb}),
            gen_kc("kc_kernel", **{**dict(xnt=False, cpf=("g3_kernel", "g4_kernel")), **kc}),
            gen_gemm3c("g3_kernel", **{**dict(cpf=C4, peel_first=False, peel_last=True, fuse=True), **g3}),
            gen_gemm4b("g4_kernel", **{**dict(sf=S1), **g4})]
build("k_a.s", P())
build("k_b.s", P(kb=dict(pf=False), kc=dict(pf=False)))
build("k_c.s", P(kb=dict(pf=False)))
build("k_d.s", P(g3=dict(peel_first=True)))
build("k_e.s", P(g3=dict(xmap=1)))
build("k_f.s", P(kc=dict(pfrows=512), kb=dict(pf=False)))
```

```python
from asmlib import *
from layout import *

def gen_gemm4b(name="g4_kernel", NS=4, stamps=False, nomfma=False, wf='', af='', sf='', rd_per=1.0, spin_max=1 << 20, wsflag=True, fine=False, waveflag=False, latex=True, noW=False, noA=False, etmap=0, nords=False, cprio=None, rdper=1, rdskip=0, nobar=False, tagged=False, psleep=2, wcontig=False, bfx=False, fsleep=1):
    k = Kern(name)
    stp = Stamps(k, stamps, 4)
    PA = 1056
    AREG = 16 * PA
    STAGE = AREG + 16 * 1024
    NK = 28
    SRD_W, SRD_A, SRD_O, SRD_X, SRD_M, SRD_PW, SRD_PR, SRD_D = 8, 12, 16, 20, 24, 44, 48, 52
    sW, sKW, sKA, sCNT, sRD, sDM, sH = 28, 29, 30, 31, 40, 41, 56
    k("s_cmp_ge_u32 s2, 256")
    k(f"s_cbranch_scc1 {name}_end")
    stp.start()
    k(f"s_load_dwordx2 s[4:5], s[0:1], {KA['wd']}")
    k(f"s_load_dwordx2 s[6:7], s[0:1], {KA['out']}")
    k(f"s_load_dwordx2 s[32:33], s[0:1], {KA['ws']}")
    k(f"s_load_dwordx2 s[58:59], s[0:1], {KA['dbg']}")
    k("v_lshrrev_b32 v1, 6, v0")
    k("v_and_b32 v0, 63, v0")
    k(f"v_readfirstlane_b32 s{sW}, v1")
    k("s_and_b32 s34, s2, 7")
    k("s_lshr_b32 s35, s2, 3")
    k(f"s_and_b32 s{sH}, s35, 1")
    k("s_lshr_b32 s35, s35, 1")
    if etmap == 0:
        k("s_and_b32 s36, s34, 1")
        k("s_lshl_b32 s36, s36, 2")
        k("s_and_b32 s37, s35, 3")
        k("s_add_u32 s36, s36, s37")
    else:
        k("s_and_b32 s36, s35, 3")
        k("s_lshl_b32 s36, s36, 1")
        k("s_and_b32 s37, s34, 1")
        k("s_add_u32 s36, s36, s37")
    k("s_lshr_b32 s37, s34, 1")
    k("s_lshl_b32 s37, s37, 2")
    k("s_lshr_b32 s38, s35, 2")
    k("s_add_u32 s37, s37, s38")
    k("v_lshrrev_b32 v16, 4, v0")
    k("v_lshlrev_b32 v3, 4, v0")
    k(f"s_cmp_ge_u32 s{sW}, 4")
    k(f"s_cbranch_scc1 {name}_prod")
    vRA, vRB0, vRB2, vRAc, vRB0c, vRB2c = 4, 5, 6, 7, 8, 9
    FR = [32, 96]
    ACC = 160
    def Af(s, ks, a): return FR[s] + (ks * 4 + a) * 4
    def Bf(s, ks, p): return FR[s] + 32 + (ks * 4 + p) * 4
    def acc(p, a): return ACC + (p * 4 + a) * 4
    k("v_and_b32 v17, 1, v16")
    k("v_lshlrev_b32 v17, 2, v17")
    k("v_bfe_u32 v18, v0, 2, 2")
    k("v_add_u32 v17, v17, v18")
    k(f"s_mov_b32 s39, {PA}")
    k("v_mul_lo_u32 v17, v17, s39")
    k("v_lshrrev_b32 v18, 1, v16")
    k("v_lshlrev_b32 v18, 8, v18")
    k("v_add_u32 v17, v17, v18")
    k("v_and_b32 v18, 3, v0")
    k("v_lshlrev_b32 v18, 3, v18")
    k("v_add_u32 v17, v17, v18")
    k(f"s_and_b32 s39, s{sW}, 1")
    k("s_lshl_b32 s39, s39, 7")
    k(f"v_add_u32 v{vRA}, s39, v17")
    k(f"s_lshr_b32 s39, s{sW}, 1")
    k("s_lshl_b32 s39, s39, 13")
    k(f"s_add_u32 s39, s39, {AREG}")
    k(f"s_lshl_b32 s38, s{sH}, 11")
    k("s_add_u32 s42, s39, s38")
    k(f"v_add_u32 v{vRB0}, s42, v3")
    k("s_xor_b32 s38, s38, 2048")
    k("s_add_u32 s42, s39, s38")
    k(f"v_add_u32 v{vRB2}, s42, v3")
    for r in range(4): k(f"v_mov_b32 v{24+r}, 0")
    k("s_nop 1")
    for r in range(0, 64, 16):
        k(f"v_mfma_f32_32x32x16_bf16 v[{ACC+r}:{ACC+r+15}], v[24:27], v[24:27], 0")
    vXO, vGO = 10, 11
    k("v_and_b32 v17, 15, v0")
    k("v_lshlrev_b32 v17, 11, v17")
    k("v_and_b32 v18, 1, v16")
    k("v_lshlrev_b32 v18, 5, v18")
    k("v_add_u32 v17, v17, v18")
    k("v_lshrrev_b32 v18, 1, v16")
    k("v_lshlrev_b32 v18, 4, v18")
    k("v_add_u32 v17, v17, v18")
    k(f"s_and_b32 s39, s{sW}, 1")
    k("s_lshl_b32 s39, s39, 7")
    k(f"s_lshr_b32 s38, s{sW}, 1")
    k("s_lshl_b32 s38, s38, 17")
    k("s_add_u32 s39, s39, s38")
    k(f"s_lshl_b32 s38, s{sH}, 16")
    k("s_add_u32 s39, s39, s38")
    k(f"v_add_u32 v{vXO}, s39, v17")
    k("v_and_b32 v17, 1, v16")
    k("v_lshlrev_b32 v17, 6, v17")
    k("v_lshrrev_b32 v18, 1, v16")
    k("v_lshlrev_b32 v18, 5, v18")
    k("v_add_u32 v17, v17, v18")
    k(f"s_and_b32 s39, s{sW}, 1")
    k("s_lshl_b32 s39, s39, 8")
    k(f"v_add_u32 v{vGO}, s39, v17")
    k("s_waitcnt lgkmcnt(0)")
    if tagged: k(f"s_load_dwordx2 s[96:97], s[32:33], {EPOCH_OFF:#x}")
    k("s_lshl_b32 s39, s37, 18")
    k("s_lshl_b32 s38, s36, 8")
    k("s_add_u32 s39, s39, s38")
    k(f"s_sub_u32 s38, {S*D*2}, s39")
    srd(k, SRD_O, 6, "s38", off_s="s39")
    srd(k, SRD_X, 32, "s38", off_s="s39", off_imm=X1_OFF)
    k("s_lshl_b32 s39, s36, 9")
    srd(k, SRD_M, 32, 512, off_s="s39", off_imm=MODF_OFF + 5 * 4096)
    k("s_lshl_b32 s39, s37, 3")
    k("s_add_u32 s39, s39, s36")
    k("s_lshl_b32 s39, s39, 1")
    k(f"s_xor_b32 s38, s{sH}, 1")
    k("s_add_u32 s38, s38, s39")
    k("s_lshl_b32 s38, s38, 2")
    k(f"s_add_u32 s38, s38, s{sW}")
    k(f"s_lshl_b32 s38, s38, {14 if tagged else 13}")
    srd(k, SRD_PW, 32, 16384 if tagged else 8192, off_s="s38", off_imm=PART_OFF)
    k(f"s_add_u32 s38, s39, s{sH}")
    k("s_lshl_b32 s38, s38, 2")
    k(f"s_add_u32 s38, s38, s{sW}")
    k(f"s_lshl_b32 s38, s38, {14 if tagged else 13}")
    srd(k, SRD_PR, 32, 16384 if tagged else 8192, off_s="s38", off_imm=PART_OFF)
    if wsflag: srd(k, SRD_D, 32, 256*128, off_imm=FLAG_OFF)
    else: srd(k, SRD_D, 58, 256)
    XR = 224
    GB = 240
    def xloads():
        for p in range(2):
            for pp in range(2):
                k(f"s_mov_b32 s38, {p*16*2048}")
                k(f"buffer_load_dwordx4 v[{XR+(p*2+pp)*4}:{XR+(p*2+pp)*4+3}], v{vXO}, s[{SRD_X}:{SRD_X+3}], s38 offen offset:{pp*64}")
        for pp in range(2):
            k(f"buffer_load_dwordx4 v[{GB+pp*8}:{GB+pp*8+3}], v{vGO}, s[{SRD_M}:{SRD_M+3}], 0 offen offset:{pp*128}")
            k(f"buffer_load_dwordx4 v[{GB+pp*8+4}:{GB+pp*8+7}], v{vGO}, s[{SRD_M}:{SRD_M+3}], 0 offen offset:{pp*128+16}")
    if not latex: xloads()
    def reads(setn):
        out = []
        for ks in range(2):
            A = []
            for a in range(4):
                for h in range(2):
                    off = ks * 8 * PA + a * 32 + h * 512
                    A.append(f"ds_read_b64_tr_b16 v[{Af(setn,ks,a)+2*h}:{Af(setn,ks,a)+2*h+1}], v{vRAc} offset:{off}")
            B = []
            for p in range(4):
                base = vRB0c if p < 2 else vRB2c
                off = ks * 4096 + (p & 1) * 1024
                B.append(f"ds_read_b128 v[{Bf(setn,ks,p)}:{Bf(setn,ks,p)+3}], v{base} offset:{off}")
            out += [B[0]] + A[:2] + [B[1]] + A[2:4] + [B[2]] + A[4:6] + [B[3]] + A[6:]
        return out
    def setaddr():
        k(f"v_add_u32 v{vRAc}, s{sRD}, v{vRA}")
        k(f"v_add_u32 v{vRB0c}, s{sRD}, v{vRB0}")
        k(f"v_add_u32 v{vRB2c}, s{sRD}, v{vRB2}")
    k(f"s_mov_b32 s{sRD}, 0")
    setaddr()
    k("s_barrier")
    if not fine: stp(1)
    for r in reads(0): k(r)
    if latex: xloads()
    k(f"s_mov_b32 s{sRD}, {STAGE}")
    setaddr()
    k(f"s_mov_b32 s{sCNT}, {NK//2}")
    if cprio is not None: k(f"s_setprio {cprio}")
    loop = f"{name}_cloop"
    k.label(loop)
    for u in range(2):
        cur = u; nxt = u ^ 1
        rd = reads(nxt)
        order = [(ks, p, a) for ks in range(2) for p in range(4) for a in range(4)]
        k("s_waitcnt lgkmcnt(0)")
        k("s_barrier")
        ri = 0
        for idx, (ks, p, a) in enumerate(order):
            if not nomfma:
                k(f"v_mfma_f32_16x16x32_bf16 v[{acc(p,a)}:{acc(p,a)+3}], v[{Af(cur,ks,a)}:{Af(cur,ks,a)+3}], v[{Bf(cur,ks,p)}:{Bf(cur,ks,p)+3}], v[{acc(p,a)}:{acc(p,a)+3}]")
            if idx >= rdskip:
                for _ in range(rdper):
                    if ri < len(rd):
                        if not nords: k(rd[ri])
                        ri += 1
            if idx == 25:
                k(f"s_add_u32 s{sRD}, s{sRD}, {STAGE}")
                k(f"s_cmp_eq_u32 s{sRD}, {NS*STAGE}")
                k(f"s_cselect_b32 s{sRD}, 0, s{sRD}")
            if idx == 27: setaddr()
    k(f"s_sub_u32 s{sCNT}, s{sCNT}, 1")
    k(f"s_cmp_lg_u32 s{sCNT}, 0")
    k(f"s_cbranch_scc1 {loop}")
    stp(1 if fine else 2)
    if tagged:
        k("s_nop 7")
        k("s_waitcnt lgkmcnt(0)")
        SEND = ACC + 32
        QS, QR = 32, 96
        for j in range(16):
            k(f"v_mov_b64 v[{QS+4*j}:{QS+4*j+1}], v[{SEND+2*j}:{SEND+2*j+1}]")
            k(f"v_mov_b64 v[{QS+4*j+2}:{QS+4*j+3}], s[96:97]")
        for j in range(16):
            if j % 4 == 0: k(f"s_mov_b32 s39, {j*1024}")
            k(f"buffer_store_dwordx4 v[{QS+4*j}:{QS+4*j+3}], v3, s[{SRD_PW}:{SRD_PW+3}], s39 offen offset:{(j%4)*1024} sc1")
        if fine: stp(2)
        k(f"s_mov_b32 s43, {spin_max}")
        k("s_mov_b32 s38, 15360")
        k.label(f"{name}_poll")
        k(f"buffer_load_dwordx4 v[{QR+60}:{QR+63}], v3, s[{SRD_PR}:{SRD_PR+3}], s38 offen sc1")
        k("s_waitcnt vmcnt(0)")
        k(f"v_cmp_eq_u64 vcc, s[96:97], v[{QR+62}:{QR+63}]")
        k("s_cmp_eq_u64 vcc, exec")
        k(f"s_cbranch_scc1 {name}_last")
        k("s_sub_u32 s43, s43, 1")
        k("s_cmp_lg_u32 s43, 0")
        k(f"s_cbranch_scc0 {name}_got")
        k(f"s_sleep {psleep}")
        k(f"s_branch {name}_poll")
        k.label(f"{name}_last")
        for j in range(15):
            if j % 4 == 0: k(f"s_mov_b32 s39, {j*1024}")
            k(f"buffer_load_dwordx4 v[{QR+4*j}:{QR+4*j+3}], v3, s[{SRD_PR}:{SRD_PR+3}], s39 offen offset:{(j%4)*1024} sc1")
        k("s_mov_b64 s[98:99], -1")
        for j in range(15):
            k(f"s_waitcnt vmcnt({14-j})")
            k(f"v_cmp_eq_u64 vcc, s[96:97], v[{QR+4*j+2}:{QR+4*j+3}]")
            k("s_and_b64 s[98:99], s[98:99], vcc")
        k("s_cmp_eq_u64 s[98:99], exec")
        k(f"s_cbranch_scc1 {name}_got")
        k("s_sub_u32 s43, s43, 1")
        k("s_cmp_lg_u32 s43, 0")
        k(f"s_cbranch_scc1 {name}_last")
        k.label(f"{name}_got")
        if fine: stp(3)
        for j in range(16):
            k(f"v_pk_add_f32 v[{ACC+2*j}:{ACC+2*j+1}], v[{ACC+2*j}:{ACC+2*j+1}], v[{QR+4*j}:{QR+4*j+1}]")
    else:
        k("s_nop 7")
        if bfx:
            for q in range(16):
                k(f"v_cvt_pk_bf16_f32 v{32+q}, v{ACC+32+2*q}, v{ACC+32+2*q+1}")
            for j in range(4):
                k(f"buffer_store_dwordx4 v[{32+4*j}:{35+4*j}], v3, s[{SRD_PW}:{SRD_PW+3}], 0 offen offset:{j*1024} sc1")
        else:
            for p in (2, 3):
                for a in range(4):
                    j = (p - 2) * 4 + a
                    so = "0" if j < 4 else "s39"
                    if j == 4: k("s_mov_b32 s39, 4096")
                    k(f"buffer_store_dwordx4 v[{acc(p,a)}:{acc(p,a)+3}], v3, s[{SRD_PW}:{SRD_PW+3}], {so} offen offset:{(j&3)*1024} sc1")
        if waveflag:
            k("s_waitcnt vmcnt(0) lgkmcnt(0)")
            if fine: stp(2)
            k("s_lshl_b32 s38, s2, 7")
            k(f"s_lshl_b32 s39, s{sW}, 4")
            k("s_add_u32 s38, s38, s39")
            k("v_mov_b32 v20, 1")
            k("v_mov_b32 v21, s38")
            k("s_mov_b64 exec, 1")
            k(f"buffer_store_dword v20, v21, s[{SRD_D}:{SRD_D+3}], 0 offen sc1")
            k("s_xor_b32 s38, s38, 1024")
            k("v_mov_b32 v21, s38")
            k(f"s_mov_b32 s43, {spin_max}")
            k.label(f"{name}_poll")
            k(f"buffer_load_dword v22, v21, s[{SRD_D}:{SRD_D+3}], 0 offen sc1")
            k("s_waitcnt vmcnt(0)")
            k("v_readfirstlane_b32 s42, v22")
            k("s_cmp_lg_u32 s42, 0")
            k(f"s_cbranch_scc1 {name}_got")
            k("s_sub_u32 s43, s43, 1")
            k("s_cmp_lg_u32 s43, 0")
            k(f"s_cbranch_scc0 {name}_got")
            k(f"s_sleep {fsleep}") if fsleep else None
            k(f"s_branch {name}_poll")
            k.label(f"{name}_got")
            k("s_mov_b64 exec, -1")
            if fine: stp(3)
        else:
            k("s_waitcnt vmcnt(0) lgkmcnt(0)")
            k("s_barrier")
            if fine: stp(2)
            k(f"s_cmp_lg_u32 s{sW}, 0")
            k(f"s_cbranch_scc1 {name}_nopoll")
            if wsflag:
                k("s_lshl_b32 s38, s2, 7")
                k("v_mov_b32 v20, 1")
                k("v_mov_b32 v21, s38")
                k("s_mov_b64 exec, 1")
                k(f"buffer_store_dword v20, v21, s[{SRD_D}:{SRD_D+3}], 0 offen sc1")
                k("s_xor_b32 s42, s2, 8")
                k("s_lshl_b32 s38, s42, 7")
                k("s_mov_b32 s39, 1")
                k("v_mov_b32 v21, s38")
            else:
                k("s_lshr_b32 s38, s2, 5")
                k("s_lshl_b32 s38, s38, 2")
                k("s_and_b32 s39, s2, 31")
                k("s_lshl_b32 s39, 1, s39")
                k("v_mov_b32 v20, s39")
                k("v_mov_b32 v21, s38")
                k("s_mov_b64 exec, 1")
                k(f"buffer_atomic_add v20, v21, s[{SRD_D}:{SRD_D+3}], 0 offen sc1")
                k("s_xor_b32 s42, s2, 8")
                k("s_lshr_b32 s38, s42, 5")
                k("s_lshl_b32 s38, s38, 2")
                k("s_and_b32 s39, s42, 31")
                k("s_lshl_b32 s39, 1, s39")
                k("v_mov_b32 v21, s38")
            k(f"s_mov_b32 s43, {spin_max}")
            k.label(f"{name}_poll")
            k(f"buffer_load_dword v22, v21, s[{SRD_D}:{SRD_D+3}], 0 offen sc1")
            k("s_waitcnt vmcnt(0)")
            k("v_readfirstlane_b32 s42, v22")
            k("s_and_b32 s42, s42, s39")
            k(f"s_cbranch_scc1 {name}_got")
            k("s_sub_u32 s43, s43, 1")
            k("s_cmp_lg_u32 s43, 0")
            k(f"s_cbranch_scc0 {name}_got")
            k(f"s_sleep {fsleep}") if fsleep else None
            k(f"s_branch {name}_poll")
            k.label(f"{name}_got")
            k("s_mov_b64 exec, -1")
            k.label(f"{name}_nopoll")
            k("s_barrier")
            if fine: stp(3)
        RV = 32
        if bfx:
            for j in range(4):
                k(f"buffer_load_dwordx4 v[{64+4*j}:{67+4*j}], v3, s[{SRD_PR}:{SRD_PR+3}], 0 offen offset:{j*1024} sc1")
            k("s_waitcnt vmcnt(0)")
            for q in range(16):
                k(f"v_lshlrev_b32 v{RV+2*q}, 16, v{64+q}")
                k(f"v_and_b32 v{RV+2*q+1}, 0xffff0000, v{64+q}")
        else:
            for j in range(8):
                so = "0" if j < 4 else "s39"
                if j == 4: k("s_mov_b32 s39, 4096")
                k(f"buffer_load_dwordx4 v[{RV+4*j}:{RV+4*j+3}], v3, s[{SRD_PR}:{SRD_PR+3}], {so} offen offset:{(j&3)*1024} sc1")
    RV = 32
    T = 96
    for p in range(2):
        if not tagged:
            if not bfx: k(f"s_waitcnt vmcnt({4 if p == 0 else 2})")
            for a in range(4):
                for r in range(0, 4, 2):
                    k(f"v_pk_add_f32 v[{acc(p,a)+r}:{acc(p,a)+r+1}], v[{acc(p,a)+r}:{acc(p,a)+r+1}], v[{RV+(p*4+a)*4+r}:{RV+(p*4+a)*4+r+1}]")
        k("s_nop 1")
        for pp in range(2):
            a0, a1 = acc(p, 2*pp), acc(p, 2*pp+1)
            for r in range(4):
                k(f"v_permlane16_swap_b32 v{a0+r}, v{a1+r}")
        for pp in range(2):
            a0, a1 = acc(p, 2*pp), acc(p, 2*pp+1)
            xr = XR + (p*2+pp)*4
            t = T + (p*2+pp) * 8
            for d in range(4):
                k(f"v_lshlrev_b32 v{t+2*d}, 16, v{xr+d}")
                k(f"v_and_b32 v{t+2*d+1}, 0xffff0000, v{xr+d}")
            for e in range(0, 8, 2):
                src = (a0 + e) if e < 4 else (a1 + e - 4)
                k(f"v_pk_fma_f32 v[{t+e}:{t+e+1}], v[{src}:{src+1}], v[{GB+pp*8+e}:{GB+pp*8+e+1}], v[{t+e}:{t+e+1}]")
            for d in range(4):
                k(f"v_cvt_pk_bf16_f32 v{xr+d}, v{t+2*d}, v{t+2*d+1}")
            k(f"s_mov_b32 s38, {p*16*2048}")
            k(f"buffer_store_dwordx4 v[{xr}:{xr+3}], v{vXO}, s[{SRD_O}:{SRD_O+3}], s38 offen offset:{pp*64}{sf}")
    if not fine: stp(3)
    stp.end(32, sW)
    k("s_endpgm")
    k.label(f"{name}_prod")
    vDA = [4, 5, 6, 7]
    vDB = 8
    k(f"s_sub_u32 s{sW}, s{sW}, 4")
    k("v_lshlrev_b32 v17, 3, v16")
    k(f"s_lshl_b32 s39, s{sW}, 1")
    k("v_add_u32 v17, s39, v17")
    k("v_lshlrev_b32 v17, 11, v17")
    k("v_and_b32 v18, 15, v0")
    k("v_lshlrev_b32 v18, 4, v18")
    k(f"v_add_u32 v{vDA[0]}, v17, v18")
    k(f"v_add_u32 v{vDA[1]}, {2048 - PA}, v{vDA[0]}")
    k(f"v_add_u32 v{vDA[2]}, {32*2048}, v{vDA[0]}")
    k(f"v_add_u32 v{vDA[3]}, {33*2048 - PA}, v{vDA[0]}")
    k(f"s_and_b32 s38, s{sW}, 1")
    k("s_lshl_b32 s38, s38, 12")
    k(f"v_add_u32 v{vDB}, s38, v3")
    sBA, sBB = 42, 43
    k(f"s_mul_i32 s{sBA}, s{sW}, {2*PA}")
    k(f"s_lshl_b32 s{sBB}, s{sW}, 12")
    k(f"s_add_u32 s{sBB}, s{sBB}, {AREG}")
    k("s_waitcnt lgkmcnt(0)")
    k("s_lshl_b32 s39, s36, 8")
    k(f"s_mul_i32 s38, s{sH}, {28*64*2048}")
    k("s_add_u32 s39, s39, s38")
    srd(k, SRD_W, 4, 28*64*2048, off_s="s39")
    k(f"s_mul_i32 s39, s37, {2*56*8192}")
    k(f"s_mul_i32 s38, s{sH}, {28*8192}")
    k("s_add_u32 s39, s39, s38")
    k(f"s_lshr_b32 s38, s{sW}, 1")
    k(f"s_mul_i32 s38, s38, {56*8192}")
    k("s_add_u32 s39, s39, s38")
    srd(k, SRD_A, 32, 28*8192, off_s="s39", off_imm=ACT_OFF)
    if wcontig:
        k(f"s_lshl_b32 s39, s{sW}, 11")
        k("s_add_u32 s39, s39, 64")
        k(f"v_add_u32 v{vDA[0]}, s39, v3")
        k(f"v_subrev_u32 v{vDA[1]}, {PA-1024}, v{vDA[0]}")
        k(f"v_add_u32 v{vDA[2]}, 8192, v{vDA[0]}")
        k(f"v_add_u32 v{vDA[3]}, 8192, v{vDA[1]}")
        k("s_lshl_b32 s39, s36, 1")
        k(f"s_add_u32 s39, s39, s{sH}")
        k(f"s_mul_i32 s39, s39, {28*16384}")
        srd(k, SRD_W, 4, 28*16384, off_s="s39")
    k(f"s_mov_b32 s{sKW}, 0")
    k(f"s_mov_b32 s{sKA}, 0")
    if noW: k(f"s_mov_b32 s{SRD_W+2}, 0")
    if noA: k(f"s_mov_b32 s{SRD_A+2}, 0")
    def issue(stg):
        base = stg * STAGE
        k(f"s_add_u32 m0, s{sBA}, {base}")
        k(f"s_add_u32 s44, s{sBA}, {base + 8*PA}")
        k(f"buffer_load_dwordx4 v{vDA[0]}, s[{SRD_W}:{SRD_W+3}], s{sKW} offen{wf} lds")
        k(f"buffer_load_dwordx4 v{vDA[1]}, s[{SRD_W}:{SRD_W+3}], s{sKW} offen offset:{PA}{wf} lds")
        k(f"s_mov_b32 m0, s44")
        k(f"s_add_u32 s45, s{sBB}, {base}")
        k(f"buffer_load_dwordx4 v{vDA[2]}, s[{SRD_W}:{SRD_W+3}], s{sKW} offen{wf} lds")
        k(f"buffer_load_dwordx4 v{vDA[3]}, s[{SRD_W}:{SRD_W+3}], s{sKW} offen offset:{PA}{wf} lds")
        k(f"s_mov_b32 m0, s45")
        k(f"s_add_u32 s{sKW}, s{sKW}, {16384 if wcontig else 64*2048}")
        for q in range(4):
            k(f"buffer_load_dwordx4 v{vDB}, s[{SRD_A}:{SRD_A+3}], s{sKA} offen offset:{q*1024}{af} lds")
        k(f"s_add_u32 s{sKA}, s{sKA}, 8192")
    issue(0); issue(1)
    k("s_waitcnt vmcnt(8)")
    k("s_barrier")
    for stg in range(2, NS): issue(stg)
    k(f"s_mov_b32 s{sCNT}, {NK // NS}")
    ploop = f"{name}_ploop"
    k.label(ploop)
    for u in range(NS):
        k(f"s_waitcnt vmcnt({8*(NS-2)})")
        k("s_barrier")
        issue(u)
    k(f"s_sub_u32 s{sCNT}, s{sCNT}, 1")
    k(f"s_cmp_lg_u32 s{sCNT}, 0")
    k(f"s_cbranch_scc1 {ploop}")
    k.label(f"{name}_end")
    k("s_endpgm")
    k.lds = NS * STAGE
    k.grid = 256
    k.block = 512
    return k
```

```python
from mk_var20 import P, build
build("m_a.s", P())
build("m_b.s", P(g4=dict(bfx=True)))
build("m_c.s", P(g4=dict(fsleep=0)))
build("m_d.s", P(g4=dict(waveflag=True)))
build("m_e.s", P(g4=dict(latex=False)))
```

```python
from asmlib import *
from layout import *
from ka_util import f2u, wave_sum
from kb import cos_sin

KC_C1, KC_C3, KC_TW = 32, 56, 72
def kc_consts(k):
    C1, C3, TW, TC, TS = KC_C1, KC_C3, KC_TW, 104, 112
    k("v_lshrrev_b32 v2, 5, v0")
    k("v_and_b32 v3, 31, v0")
    k("v_lshrrev_b32 v6, 4, v3")
    k("v_lshlrev_b32 v6, 4, v6")
    k("v_bfe_u32 v7, v3, 2, 1")
    k("v_lshl_add_u32 v6, v7, 3, v6")
    k("v_bfe_u32 v7, v3, 3, 1")
    k("v_lshl_add_u32 v6, v7, 2, v6")
    k("v_and_b32 v7, 3, v3")
    k("v_add_u32 v6, v6, v7")
    k("v_lshlrev_b32 v10, 3, v2")
    k("v_mul_u32_u24 v10, v10, v6")
    for e in range(8):
        k("v_and_b32 v11, 31, v10")
        cos_sin(k, TC+e, TS+e, 11, 1.0/32)
        if e < 7: k("v_add_u32 v10, v10, v6")
    k("v_and_b32 v11, 1, v6")
    k("v_sub_u32 v12, 0, v11")
    k("v_and_b32 v12, 0x80008000, v12")
    for d in range(4):
        k(f"v_cvt_pk_bf16_f32 v{C1+d}, v{TC+2*d}, v{TC+2*d+1}")
        k(f"v_cvt_pk_bf16_f32 v{C1+8+d}, v{TS+2*d}, v{TS+2*d+1}")
    for d in range(4):
        k(f"v_xor_b32 v{C1+4+d}, v12, v{C1+d}")
        k(f"v_xor_b32 v{C1+12+d}, v12, v{C1+8+d}")
    for d in range(8):
        k(f"v_xor_b32 v{C1+16+d}, 0x80008000, v{C1+8+d}")
    k("v_lshlrev_b32 v10, 2, v2")
    for e in range(8):
        d2c = 8*(e >> 2) + (e & 3)
        k(f"v_add_u32 v11, {d2c}, v10")
        k("v_mul_u32_u24 v11, v11, v3")
        k("v_and_b32 v11, 31, v11")
        cos_sin(k, TC+e, TS+e, 11, 1.0/32)
    k("v_and_b32 v11, 1, v3")
    k("v_sub_u32 v12, 0, v11")
    k("v_and_b32 v12, 0x80008000, v12")
    for d in range(4):
        k(f"v_cvt_pk_bf16_f32 v{C3+d}, v{TC+2*d}, v{TC+2*d+1}")
        k(f"v_cvt_pk_bf16_f32 v{C3+8+d}, v{TS+2*d}, v{TS+2*d+1}")
    for d in range(4):
        k(f"v_xor_b32 v{C3+4+d}, v12, v{C3+d}")
        k(f"v_xor_b32 v{C3+12+d}, v12, v{C3+8+d}")
    for r in range(16):
        d2c = 8*(r >> 2) + (r & 3)
        k(f"v_add_u32 v11, {d2c}, v10")
        k("v_mul_u32_u24 v11, v11, v6")
        cos_sin(k, TW+r, TW+16+r, 11, 1.0/1024)

def gen_kc(name="kc_kernel", stamps=False, pf=True, sf='', pfrows=0, sf2='', xnt=True, cpf=None, x1lds=False):
    k = Kern(name)
    st = Stamps(k, stamps, 2)
    xntf = " nt" if xnt else ""
    C1, C3, TW = KC_C1, KC_C3, KC_TW
    TBL = 16384
    HST = TBL + 32768
    X1S = HST + 32*528
    k("s_cmp_ge_u32 s2, 256")
    k(f"s_cbranch_scc1 {name}_end")
    st.start()
    k(f"s_load_dwordx2 s[32:33], s[0:1], {KA['ws']}")
    k(f"s_load_dwordx2 s[4:5], s[0:1], {KA['x']}")
    k(f"s_load_dwordx2 s[6:7], s[0:1], {KA['wu']}")
    k(f"s_load_dwordx2 s[42:43], s[0:1], {KA['wg']}")
    k("v_mov_b32 v30, v0")
    k("v_lshrrev_b32 v1, 6, v0")
    k("v_and_b32 v0, 63, v0")
    k("v_readfirstlane_b32 s28, v1")
    k("s_and_b32 s34, s2, 7")
    k("s_lshl_b32 s34, s34, 5")
    k("s_lshr_b32 s35, s2, 3")
    k("s_add_u32 s34, s34, s35")
    k("s_lshl_b32 s34, s34, 2")
    k("v_lshrrev_b32 v2, 2, v0")
    k("v_lshrrev_b32 v4, 4, v0")
    k("v_sub_u32 v3, v0, v4")
    k("v_and_b32 v3, 3, v3")
    k(f"s_mov_b32 s35, {ZROWS*16}")
    k("v_mul_lo_u32 v8, v2, s35")
    k("v_add_u32 v3, s34, v3")
    k("v_lshl_add_u32 v8, v3, 4, v8")
    k("v_lshlrev_b32 v5, 4, v0")
    k("v_lshrrev_b32 v2, 5, v0")
    k("v_and_b32 v3, 31, v0")
    k("v_lshlrev_b32 v4, 6, v3")
    k("v_lshl_add_u32 v4, v2, 4, v4")
    k("s_and_b32 s38, s28, 3")
    k("s_add_u32 s36, s34, s38")
    k("s_sub_u32 s39, 2048, s36")
    k("s_cmp_eq_u32 s36, 0")
    k("s_cselect_b32 s39, 1024, s39")
    k("s_cmp_ge_u32 s28, 4")
    k("s_cselect_b32 s36, s39, s36")
    k("s_lshl_b32 s37, s36, 11")
    k("s_waitcnt lgkmcnt(0)")
    srd(k, 8, 32, 256*ZROWS*16, off_imm=ZS_OFF)
    for q in range(2):
        k(f"s_lshl_b32 s38, s28, 1")
        k(f"s_add_u32 s38, s38, {q}")
        k(f"s_lshl_b32 s39, s38, 10")
        k("s_mov_b32 m0, s39")
        k(f"s_mul_i32 s38, s38, {16*ZROWS*16}")
        k(f"buffer_load_dwordx4 v8, s[8:11], s38 offen lds")
    srd(k, 48, 32, 30720, off_imm=TC_OFF)
    k("s_lshl_b32 s38, s28, 12")
    k(f"s_add_u32 m0, s38, {TBL}")
    k("s_nop 0")
    for q in range(4):
        k(f"buffer_load_dwordx4 v5, s[48:51], s38 offen offset:{q*1024} lds")
    srd(k, 16, 4, 2048, off_s="s37")
    XV = 200
    k(f"buffer_load_dwordx4 v[{XV}:{XV+3}], v4, s[16:19], 0 offen{xntf}")
    k(f"buffer_load_dwordx4 v[{XV+4}:{XV+7}], v4, s[16:19], 0 offen offset:32{xntf}")
    MV = 208
    NPF = 0
    srd(k, 20, 32, 2048, off_s="s37", off_imm=X1_OFF)
    srd(k, 24, 32, S*D*2, off_imm=H2_OFF)
    k("v_lshrrev_b32 v10, 4, v0")
    k("v_bfe_u32 v11, v0, 2, 2")
    k("v_and_b32 v12, 3, v0")
    k("v_and_b32 v13, 1, v10")
    k("v_lshl_add_u32 v16, v13, 2, v12")
    k("v_lshrrev_b32 v14, 1, v10")
    k("v_lshl_add_u32 v14, v14, 3, v11")
    k("v_lshlrev_b32 v14, 9, v14")
    k("v_lshl_add_u32 v14, v16, 6, v14")
    k("v_and_b32 v15, 1, v11")
    k("v_lshl_add_u32 v15, v15, 1, v13")
    k("s_and_b32 s38, s28, 3")
    k("v_add_u32 v15, s38, v15")
    k("v_and_b32 v15, 3, v15")
    k("v_lshl_add_u32 v14, v15, 4, v14")
    k("v_mul_u32_u24 v17, 528, v3")
    k("v_lshl_add_u32 v17, v2, 7, v17")
    k("s_lshl_b32 s38, s28, 4")
    k(f"s_add_u32 s38, s38, {HST}")
    k("v_add_u32 v17, s38, v17")
    k("v_lshrrev_b32 v18, 3, v0")
    k("v_and_b32 v19, 7, v0")
    k("v_lshrrev_b32 v20, 2, v18")
    k("v_and_b32 v21, 3, v18")
    k("v_mul_u32_u24 v22, 528, v20")
    k("v_lshl_add_u32 v22, v21, 7, v22")
    k("v_lshl_add_u32 v22, v19, 4, v22")
    k(f"s_mul_i32 s38, s28, {4*528}")
    k(f"s_add_u32 s38, s38, {HST}")
    k("v_add_u32 v22, s38, v22")
    k("v_and_b32 v24, 3, v19")
    k("v_add_u32 v24, s34, v24")
    k("v_sub_u32 v25, 2048, v24")
    k("v_mov_b32 v26, 1024")
    k("v_cmp_eq_u32 vcc, 0, v24")
    k("s_nop 1")
    k("v_cndmask_b32 v25, v25, v26, vcc")
    k("v_cmp_lt_u32 vcc, 3, v19")
    k("s_nop 1")
    k("v_cndmask_b32 v24, v24, v25, vcc")
    k("v_lshrrev_b32 v25, 8, v24")
    k("v_lshlrev_b32 v23, 19, v25")
    k("v_bfe_u32 v25, v24, 4, 4")
    k("v_lshl_add_u32 v23, v25, 10, v23")
    k("v_and_b32 v25, 15, v24")
    k("v_lshl_add_u32 v23, v25, 4, v23")
    k("v_lshl_add_u32 v23, v20, 14, v23")
    k("v_lshl_add_u32 v23, v21, 8, v23")
    k("s_lshl_b32 s41, s28, 16")
    k("s_cmp_ge_u32 s28, 4")
    k("s_cselect_b32 s40, 0x80008000, 0")
    st(1)
    k(f"s_waitcnt vmcnt(0)")
    k("s_barrier")
    st(2)
    if cpf: code_pf(k, cpf[0], cpf[1], "a", 122, 30, sp=60)
    if pf and pfrows == 0:
        srd(k, 44, 6, D*F*2)
        k("s_lshl_b32 s38, s2, 9")
        k("v_add_u32 v31, s38, v30")
        k("v_lshlrev_b32 v31, 6, v31")
        k("buffer_load_dword v120, v31, s[44:47], 0 offen")
        NPF = 1
    elif pf:
        n = pfrows * 7168 // 64 // 256
        srd(k, 44, 6, pfrows * 7168)
        srd(k, 52, 42, pfrows * 7168)
        k(f"s_mul_i32 s38, s2, {n}")
        k("v_add_u32 v31, s38, v30")
        k("v_lshlrev_b32 v31, 6, v31")
        k(f"v_cmp_gt_u32 vcc, {n}, v30")
        k("v_bfrev_b32 v121, 1")
        k("s_nop 1")
        k("v_cndmask_b32 v31, v121, v31, vcc")
        k("buffer_load_dword v120, v31, s[44:47], 0 offen")
        k("buffer_load_dword v121, v31, s[52:55], 0 offen")
        NPF = 2
    ZF = 104
    for pl in range(2):
        for m in range(2):
            for h in range(2):
                b = ZF + (pl*2 + m)*4 + 2*h
                k(f"ds_read_b64_tr_b16 v[{b}:{b+1}], v14 offset:{h*2048 + m*8192 + pl*8}")
    for q in range(6):
        k(f"ds_read_b128 v[{32+4*q}:{35+4*q}], v5 offset:{TBL + q*1024}")
    k("s_waitcnt lgkmcnt(0)")
    for d in range(8): k(f"v_xor_b32 v{ZF+8+d}, s40, v{ZF+8+d}")
    k("s_and_b32 s38, s28, 3")
    k("s_or_b32 s38, s38, s34")
    k("s_cmp_lg_u32 s38, 0")
    k(f"s_cbranch_scc1 {name}_nosp")
    k("s_cmp_eq_u32 s28, 0")
    k(f"s_cbranch_scc1 {name}_sp0")
    for d in range(8): k(f"v_xor_b32 v{ZF+d}, s40, v{ZF+8+d}")
    k.label(f"{name}_sp0")
    for d in range(8): k(f"v_mov_b32 v{ZF+8+d}, 0")
    k.label(f"{name}_nosp")
    TR, TI = 128, 144
    def mf(d, a, b, c):
        cs = "0" if c is None else f"v[{c}:{c+15}]"
        k(f"v_mfma_f32_32x32x16_bf16 v[{d}:{d+15}], v[{a}:{a+3}], v[{b}:{b+3}], {cs}")
    zr = lambda m: ZF + m*4
    zi = lambda m: ZF + 8 + m*4
    k("s_nop 1")
    mf(TR, zr(0), C1+0, None)
    mf(TI, zr(0), C1+16, None)
    mf(TR, zr(1), C1+4, TR)
    mf(TI, zr(1), C1+20, TI)
    mf(TR, zi(0), C1+8, TR)
    mf(TI, zi(0), C1+0, TI)
    mf(TR, zi(1), C1+12, TR)
    mf(TI, zi(1), C1+4, TI)
    for q in list(range(10, 18)) + list(range(6, 10)):
        k(f"ds_read_b128 v[{32+4*q}:{35+4*q}], v5 offset:{TBL + q*1024}")
    XF = 176
    for d in range(8):
        k(f"v_lshlrev_b32 v{XF+2*d}, 16, v{XV+d}")
        k(f"v_and_b32 v{XF+2*d+1}, 0xffff0000, v{XV+d}")
    k("s_waitcnt lgkmcnt(4)")
    for q in range(12):
        k(f"ds_read_b128 v[{MV+4*q}:{MV+4*q+3}], v5 offset:{TBL + 18432 + q*1024}")
    def pr(b): return f"v[{b}:{b+1}]"
    PRr, PIi = 160, 192
    for q in range(8):
        k(f"v_pk_mul_f32 {pr(PRr+2*q)}, {pr(TR+2*q)}, {pr(TW+2*q)}")
    for q in range(8):
        k(f"v_pk_fma_f32 {pr(PRr+2*q)}, {pr(TI+2*q)}, {pr(TW+16+2*q)}, {pr(PRr+2*q)}")
    for q in range(8):
        k(f"v_pk_mul_f32 {pr(TI+2*q)}, {pr(TI+2*q)}, {pr(TW+2*q)}")
    for q in range(8):
        k(f"v_pk_fma_f32 {pr(TI+2*q)}, {pr(TR+2*q)}, {pr(TW+16+2*q)}, {pr(TI+2*q)} neg_lo:[1,0,0] neg_hi:[1,0,0]")
    PR, PI = 104, 112
    for d in range(8):
        k(f"v_cvt_pk_bf16_f32 v{PR+d}, v{PRr+2*d}, v{PRr+2*d+1}")
        k(f"v_cvt_pk_bf16_f32 v{PI+d}, v{TI+2*d}, v{TI+2*d+1}")
    Y = 128
    k("s_waitcnt lgkmcnt(12)")
    mf(Y, PR+0, C3+0, None)
    mf(Y, PR+4, C3+4, Y)
    mf(Y, PI+0, C3+8, Y)
    mf(Y, PI+4, C3+12, Y)
    k("s_nop 15")
    k("s_waitcnt lgkmcnt(0)")
    for q in range(8):
        k(f"v_pk_fma_f32 {pr(XF+2*q)}, {pr(Y+2*q)}, {pr(MV+2*q)}, {pr(XF+2*q)}")
    for d in range(8):
        k(f"v_cvt_pk_bf16_f32 v{XV+d}, v{XF+2*d}, v{XF+2*d+1}")
    if x1lds:
        k(f"s_lshl_b32 s38, s28, 11")
        k(f"s_add_u32 s38, s38, {X1S}")
        k("v_add_u32 v27, s38, v4")
        k("v_add_u32 v28, s38, v5")
        k(f"ds_write_b128 v27, v[{XV}:{XV+3}]")
        k(f"ds_write_b128 v27, v[{XV+4}:{XV+7}] offset:32")
        k("s_waitcnt lgkmcnt(0)")
        k("ds_read_b128 v[96:99], v28")
        k("ds_read_b128 v[100:103], v28 offset:1024")
        k("s_waitcnt lgkmcnt(1)")
        k(f"buffer_store_dwordx4 v[96:99], v5, s[20:23], 0 offen{sf}")
        k("s_waitcnt lgkmcnt(0)")
        k(f"buffer_store_dwordx4 v[100:103], v5, s[20:23], 0 offen offset:1024{sf}")
    else:
        k(f"buffer_store_dwordx4 v[{XV}:{XV+3}], v4, s[20:23], 0 offen{sf}")
        k(f"buffer_store_dwordx4 v[{XV+4}:{XV+7}], v4, s[20:23], 0 offen offset:32{sf}")
    for d in range(8):
        k(f"v_lshlrev_b32 v{XF+2*d}, 16, v{XV+d}")
        k(f"v_and_b32 v{XF+2*d+1}, 0xffff0000, v{XV+d}")
    k(f"v_pk_add_f32 v[10:11], {pr(XF)}, {pr(XF+2)}")
    k(f"v_pk_mul_f32 v[12:13], {pr(XF)}, {pr(XF)}")
    for q in range(1, 8):
        if q > 1: k(f"v_pk_add_f32 v[10:11], v[10:11], {pr(XF+2*q)}")
        k(f"v_pk_fma_f32 v[12:13], {pr(XF+2*q)}, {pr(XF+2*q)}, v[12:13]")
    k("v_add_f32 v10, v10, v11")
    k("v_add_f32 v12, v12, v13")
    wave_sum(k, [10, 12], [11, 13])
    k(f"v_mul_f32 v10, {f2u(1.0/1024):#x}, v10")
    k(f"v_mul_f32 v12, {f2u(1.0/1024):#x}, v12")
    k("v_fma_f32 v12, -v10, v10, v12")
    k("v_max_f32 v12, 0, v12")
    k(f"v_add_f32 v12, {f2u(1e-5):#x}, v12")
    k("v_rsq_f32 v12, v12")
    k("v_sub_f32 v10, 0, v10")
    bc = "op_sel:[0,0] op_sel_hi:[1,0]"
    for q in range(8): k(f"v_pk_add_f32 {pr(XF+2*q)}, {pr(XF+2*q)}, v[10:11] {bc}")
    for q in range(8): k(f"v_pk_mul_f32 {pr(XF+2*q)}, {pr(XF+2*q)}, v[12:13] {bc}")
    for q in range(8): k(f"v_pk_fma_f32 {pr(XF+2*q)}, {pr(XF+2*q)}, {pr(MV+16+2*q)}, {pr(MV+32+2*q)}")
    for d in range(8):
        k(f"v_cvt_pk_bf16_f32 v{160+d}, v{XF+2*d}, v{XF+2*d+1}")
    k("ds_write_b128 v17, v[160:163]")
    k("ds_write_b128 v17, v[164:167] offset:256")
    k("s_waitcnt lgkmcnt(0)")
    k("s_barrier")
    k("ds_read_b128 v[168:171], v22")
    k(f"ds_read_b128 v[172:175], v22 offset:{2*528}")
    k("s_add_u32 s42, s41, 32768")
    k("s_waitcnt lgkmcnt(1)")
    k(f"buffer_store_dwordx4 v[168:171], v23, s[24:27], s41 offen{sf2}")
    k("s_waitcnt lgkmcnt(0)")
    k(f"buffer_store_dwordx4 v[172:175], v23, s[24:27], s42 offen{sf2}")
    st(3)
    st.end(32, 28)
    k.label(f"{name}_end")
    k("s_endpgm")
    k.lds = HST + 32*528 + (16384 if x1lds else 0); k.grid = 256; k.block = 512
    return k
```

```python
from mk_var20 import P, build
S1 = " sc1"
build("o_a.s", P())
build("o_b.s", P(kc=dict(x1lds=True)))
build("o_c.s", P(kc=dict(x1lds=True, sf=S1, sf2=S1)))
build("o_d.s", P(kc=dict(sf2=S1)))
build("o_e.s", P(ka=dict(sf=S1), kc=dict(x1lds=True, sf=S1, sf2=S1)))
```

```python
from asmlib import *
from layout import *

def gen_gemm4b(name="g4_kernel", NS=4, stamps=False, nomfma=False, wf='', af='', sf='', rd_per=1.0, spin_max=1 << 20, wsflag=True, fine=False, waveflag=False, latex=True, noW=False, noA=False, etmap=0, nords=False, cprio=None, rdper=1, rdskip=0, nobar=False, tagged=False, psleep=2, wcontig=False, bfx=False, fsleep=1, esplit=False):
    k = Kern(name)
    stp = Stamps(k, stamps, 4)
    PA = 1056
    AREG = 16 * PA
    STAGE = AREG + 16 * 1024
    NK = 28
    SRD_W, SRD_A, SRD_O, SRD_X, SRD_M, SRD_PW, SRD_PR, SRD_D = 8, 12, 16, 20, 24, 44, 48, 52
    sW, sKW, sKA, sCNT, sRD, sDM, sH = 28, 29, 30, 31, 40, 41, 56
    k("s_cmp_ge_u32 s2, 256")
    k(f"s_cbranch_scc1 {name}_end")
    stp.start()
    k(f"s_load_dwordx2 s[4:5], s[0:1], {KA['wd']}")
    k(f"s_load_dwordx2 s[6:7], s[0:1], {KA['out']}")
    k(f"s_load_dwordx2 s[32:33], s[0:1], {KA['ws']}")
    k(f"s_load_dwordx2 s[58:59], s[0:1], {KA['dbg']}")
    k("v_lshrrev_b32 v1, 6, v0")
    k("v_and_b32 v0, 63, v0")
    k(f"v_readfirstlane_b32 s{sW}, v1")
    k("s_and_b32 s34, s2, 7")
    k("s_lshr_b32 s35, s2, 3")
    k(f"s_and_b32 s{sH}, s35, 1")
    k("s_lshr_b32 s35, s35, 1")
    if etmap == 0:
        k("s_and_b32 s36, s34, 1")
        k("s_lshl_b32 s36, s36, 2")
        k("s_and_b32 s37, s35, 3")
        k("s_add_u32 s36, s36, s37")
    else:
        k("s_and_b32 s36, s35, 3")
        k("s_lshl_b32 s36, s36, 1")
        k("s_and_b32 s37, s34, 1")
        k("s_add_u32 s36, s36, s37")
    k("s_lshr_b32 s37, s34, 1")
    k("s_lshl_b32 s37, s37, 2")
    k("s_lshr_b32 s38, s35, 2")
    k("s_add_u32 s37, s37, s38")
    k("v_lshrrev_b32 v16, 4, v0")
    k("v_lshlrev_b32 v3, 4, v0")
    k(f"s_cmp_ge_u32 s{sW}, 4")
    k(f"s_cbranch_scc1 {name}_prod")
    vRA, vRB0, vRB2, vRAc, vRB0c, vRB2c = 4, 5, 6, 7, 8, 9
    FR = [32, 96]
    ACC = 160
    def Af(s, ks, a): return FR[s] + (ks * 4 + a) * 4
    def Bf(s, ks, p): return FR[s] + 32 + (ks * 4 + p) * 4
    def acc(p, a): return ACC + (p * 4 + a) * 4
    k("v_and_b32 v17, 1, v16")
    k("v_lshlrev_b32 v17, 2, v17")
    k("v_bfe_u32 v18, v0, 2, 2")
    k("v_add_u32 v17, v17, v18")
    k(f"s_mov_b32 s39, {PA}")
    k("v_mul_lo_u32 v17, v17, s39")
    k("v_lshrrev_b32 v18, 1, v16")
    k("v_lshlrev_b32 v18, 8, v18")
    k("v_add_u32 v17, v17, v18")
    k("v_and_b32 v18, 3, v0")
    k("v_lshlrev_b32 v18, 3, v18")
    k("v_add_u32 v17, v17, v18")
    k(f"s_and_b32 s39, s{sW}, 1")
    k("s_lshl_b32 s39, s39, 7")
    k(f"v_add_u32 v{vRA}, s39, v17")
    k(f"s_lshr_b32 s39, s{sW}, 1")
    k("s_lshl_b32 s39, s39, 13")
    k(f"s_add_u32 s39, s39, {AREG}")
    k(f"s_lshl_b32 s38, s{sH}, 11")
    k("s_add_u32 s42, s39, s38")
    k(f"v_add_u32 v{vRB0}, s42, v3")
    k("s_xor_b32 s38, s38, 2048")
    k("s_add_u32 s42, s39, s38")
    k(f"v_add_u32 v{vRB2}, s42, v3")
    for r in range(4): k(f"v_mov_b32 v{24+r}, 0")
    k("s_nop 1")
    for r in range(0, 64, 16):
        k(f"v_mfma_f32_32x32x16_bf16 v[{ACC+r}:{ACC+r+15}], v[24:27], v[24:27], 0")
    vXO, vGO = 10, 11
    k("v_and_b32 v17, 15, v0")
    k("v_lshlrev_b32 v17, 11, v17")
    k("v_and_b32 v18, 1, v16")
    k("v_lshlrev_b32 v18, 5, v18")
    k("v_add_u32 v17, v17, v18")
    k("v_lshrrev_b32 v18, 1, v16")
    k("v_lshlrev_b32 v18, 4, v18")
    k("v_add_u32 v17, v17, v18")
    k(f"s_and_b32 s39, s{sW}, 1")
    k(f"s_lshl_b32 s39, s39, {10 if esplit else 7}")
    k(f"s_lshr_b32 s38, s{sW}, 1")
    k("s_lshl_b32 s38, s38, 17")
    k("s_add_u32 s39, s39, s38")
    k(f"s_lshl_b32 s38, s{sH}, 16")
    k("s_add_u32 s39, s39, s38")
    k(f"v_add_u32 v{vXO}, s39, v17")
    k("v_and_b32 v17, 1, v16")
    k("v_lshlrev_b32 v17, 6, v17")
    k("v_lshrrev_b32 v18, 1, v16")
    k("v_lshlrev_b32 v18, 5, v18")
    k("v_add_u32 v17, v17, v18")
    k(f"s_and_b32 s39, s{sW}, 1")
    k(f"s_lshl_b32 s39, s39, {11 if esplit else 8}")
    k(f"v_add_u32 v{vGO}, s39, v17")
    k("s_waitcnt lgkmcnt(0)")
    if tagged: k(f"s_load_dwordx2 s[96:97], s[32:33], {EPOCH_OFF:#x}")
    k("s_lshl_b32 s39, s37, 18")
    k(f"s_lshl_b32 s38, s36, {7 if esplit else 8}")
    k("s_add_u32 s39, s39, s38")
    k(f"s_sub_u32 s38, {S*D*2}, s39")
    srd(k, SRD_O, 6, "s38", off_s="s39")
    srd(k, SRD_X, 32, "s38", off_s="s39", off_imm=X1_OFF)
    k(f"s_lshl_b32 s39, s36, {8 if esplit else 9}")
    srd(k, SRD_M, 32, 2048 + 256 if esplit else 512, off_s="s39", off_imm=MODF_OFF + 5 * 4096)
    k("s_lshl_b32 s39, s37, 3")
    k("s_add_u32 s39, s39, s36")
    k("s_lshl_b32 s39, s39, 1")
    k(f"s_xor_b32 s38, s{sH}, 1")
    k("s_add_u32 s38, s38, s39")
    k("s_lshl_b32 s38, s38, 2")
    k(f"s_add_u32 s38, s38, s{sW}")
    k(f"s_lshl_b32 s38, s38, {14 if tagged else 13}")
    srd(k, SRD_PW, 32, 16384 if tagged else 8192, off_s="s38", off_imm=PART_OFF)
    k(f"s_add_u32 s38, s39, s{sH}")
    k("s_lshl_b32 s38, s38, 2")
    k(f"s_add_u32 s38, s38, s{sW}")
    k(f"s_lshl_b32 s38, s38, {14 if tagged else 13}")
    srd(k, SRD_PR, 32, 16384 if tagged else 8192, off_s="s38", off_imm=PART_OFF)
    if wsflag: srd(k, SRD_D, 32, 256*128, off_imm=FLAG_OFF)
    else: srd(k, SRD_D, 58, 256)
    XR = 224
    GB = 240
    def xloads():
        for p in range(2):
            for pp in range(2):
                k(f"s_mov_b32 s38, {p*16*2048}")
                k(f"buffer_load_dwordx4 v[{XR+(p*2+pp)*4}:{XR+(p*2+pp)*4+3}], v{vXO}, s[{SRD_X}:{SRD_X+3}], s38 offen offset:{pp*64}")
        for pp in range(2):
            k(f"buffer_load_dwordx4 v[{GB+pp*8}:{GB+pp*8+3}], v{vGO}, s[{SRD_M}:{SRD_M+3}], 0 offen offset:{pp*128}")
            k(f"buffer_load_dwordx4 v[{GB+pp*8+4}:{GB+pp*8+7}], v{vGO}, s[{SRD_M}:{SRD_M+3}], 0 offen offset:{pp*128+16}")
    if not latex: xloads()
    def reads(setn):
        out = []
        for ks in range(2):
            A = []
            for a in range(4):
                for h in range(2):
                    off = ks * 8 * PA + a * 32 + h * 512
                    A.append(f"ds_read_b64_tr_b16 v[{Af(setn,ks,a)+2*h}:{Af(setn,ks,a)+2*h+1}], v{vRAc} offset:{off}")
            B = []
            for p in range(4):
                base = vRB0c if p < 2 else vRB2c
                off = ks * 4096 + (p & 1) * 1024
                B.append(f"ds_read_b128 v[{Bf(setn,ks,p)}:{Bf(setn,ks,p)+3}], v{base} offset:{off}")
            out += [B[0]] + A[:2] + [B[1]] + A[2:4] + [B[2]] + A[4:6] + [B[3]] + A[6:]
        return out
    def setaddr():
        k(f"v_add_u32 v{vRAc}, s{sRD}, v{vRA}")
        k(f"v_add_u32 v{vRB0c}, s{sRD}, v{vRB0}")
        k(f"v_add_u32 v{vRB2c}, s{sRD}, v{vRB2}")
    k(f"s_mov_b32 s{sRD}, 0")
    setaddr()
    k("s_barrier")
    if not fine: stp(1)
    for r in reads(0): k(r)
    if latex: xloads()
    k(f"s_mov_b32 s{sRD}, {STAGE}")
    setaddr()
    k(f"s_mov_b32 s{sCNT}, {NK//2}")
    if cprio is not None: k(f"s_setprio {cprio}")
    loop = f"{name}_cloop"
    k.label(loop)
    for u in range(2):
        cur = u; nxt = u ^ 1
        rd = reads(nxt)
        order = [(ks, p, a) for ks in range(2) for p in range(4) for a in range(4)]
        k("s_waitcnt lgkmcnt(0)")
        k("s_barrier")
        ri = 0
        for idx, (ks, p, a) in enumerate(order):
            if not nomfma:
                k(f"v_mfma_f32_16x16x32_bf16 v[{acc(p,a)}:{acc(p,a)+3}], v[{Af(cur,ks,a)}:{Af(cur,ks,a)+3}], v[{Bf(cur,ks,p)}:{Bf(cur,ks,p)+3}], v[{acc(p,a)}:{acc(p,a)+3}]")
            if idx >= rdskip:
                for _ in range(rdper):
                    if ri < len(rd):
                        if not nords: k(rd[ri])
                        ri += 1
            if idx == 25:
                k(f"s_add_u32 s{sRD}, s{sRD}, {STAGE}")
                k(f"s_cmp_eq_u32 s{sRD}, {NS*STAGE}")
                k(f"s_cselect_b32 s{sRD}, 0, s{sRD}")
            if idx == 27: setaddr()
    k(f"s_sub_u32 s{sCNT}, s{sCNT}, 1")
    k(f"s_cmp_lg_u32 s{sCNT}, 0")
    k(f"s_cbranch_scc1 {loop}")
    stp(1 if fine else 2)
    if tagged:
        k("s_nop 7")
        k("s_waitcnt lgkmcnt(0)")
        SEND = ACC + 32
        QS, QR = 32, 96
        for j in range(16):
            k(f"v_mov_b64 v[{QS+4*j}:{QS+4*j+1}], v[{SEND+2*j}:{SEND+2*j+1}]")
            k(f"v_mov_b64 v[{QS+4*j+2}:{QS+4*j+3}], s[96:97]")
        for j in range(16):
            if j % 4 == 0: k(f"s_mov_b32 s39, {j*1024}")
            k(f"buffer_store_dwordx4 v[{QS+4*j}:{QS+4*j+3}], v3, s[{SRD_PW}:{SRD_PW+3}], s39 offen offset:{(j%4)*1024} sc1")
        if fine: stp(2)
        k(f"s_mov_b32 s43, {spin_max}")
        k("s_mov_b32 s38, 15360")
        k.label(f"{name}_poll")
        k(f"buffer_load_dwordx4 v[{QR+60}:{QR+63}], v3, s[{SRD_PR}:{SRD_PR+3}], s38 offen sc1")
        k("s_waitcnt vmcnt(0)")
        k(f"v_cmp_eq_u64 vcc, s[96:97], v[{QR+62}:{QR+63}]")
        k("s_cmp_eq_u64 vcc, exec")
        k(f"s_cbranch_scc1 {name}_last")
        k("s_sub_u32 s43, s43, 1")
        k("s_cmp_lg_u32 s43, 0")
        k(f"s_cbranch_scc0 {name}_got")
        k(f"s_sleep {psleep}")
        k(f"s_branch {name}_poll")
        k.label(f"{name}_last")
        for j in range(15):
            if j % 4 == 0: k(f"s_mov_b32 s39, {j*1024}")
            k(f"buffer_load_dwordx4 v[{QR+4*j}:{QR+4*j+3}], v3, s[{SRD_PR}:{SRD_PR+3}], s39 offen offset:{(j%4)*1024} sc1")
        k("s_mov_b64 s[98:99], -1")
        for j in range(15):
            k(f"s_waitcnt vmcnt({14-j})")
            k(f"v_cmp_eq_u64 vcc, s[96:97], v[{QR+4*j+2}:{QR+4*j+3}]")
            k("s_and_b64 s[98:99], s[98:99], vcc")
        k("s_cmp_eq_u64 s[98:99], exec")
        k(f"s_cbranch_scc1 {name}_got")
        k("s_sub_u32 s43, s43, 1")
        k("s_cmp_lg_u32 s43, 0")
        k(f"s_cbranch_scc1 {name}_last")
        k.label(f"{name}_got")
        if fine: stp(3)
        for j in range(16):
            k(f"v_pk_add_f32 v[{ACC+2*j}:{ACC+2*j+1}], v[{ACC+2*j}:{ACC+2*j+1}], v[{QR+4*j}:{QR+4*j+1}]")
    else:
        k("s_nop 7")
        if bfx:
            for q in range(16):
                k(f"v_cvt_pk_bf16_f32 v{32+q}, v{ACC+32+2*q}, v{ACC+32+2*q+1}")
            for j in range(4):
                k(f"buffer_store_dwordx4 v[{32+4*j}:{35+4*j}], v3, s[{SRD_PW}:{SRD_PW+3}], 0 offen offset:{j*1024} sc1")
        else:
            for p in (2, 3):
                for a in range(4):
                    j = (p - 2) * 4 + a
                    so = "0" if j < 4 else "s39"
                    if j == 4: k("s_mov_b32 s39, 4096")
                    k(f"buffer_store_dwordx4 v[{acc(p,a)}:{acc(p,a)+3}], v3, s[{SRD_PW}:{SRD_PW+3}], {so} offen offset:{(j&3)*1024} sc1")
        if waveflag:
            k("s_waitcnt vmcnt(0) lgkmcnt(0)")
            if fine: stp(2)
            k("s_lshl_b32 s38, s2, 7")
            k(f"s_lshl_b32 s39, s{sW}, 4")
            k("s_add_u32 s38, s38, s39")
            k("v_mov_b32 v20, 1")
            k("v_mov_b32 v21, s38")
            k("s_mov_b64 exec, 1")
            k(f"buffer_store_dword v20, v21, s[{SRD_D}:{SRD_D+3}], 0 offen sc1")
            k("s_xor_b32 s38, s38, 1024")
            k("v_mov_b32 v21, s38")
            k(f"s_mov_b32 s43, {spin_max}")
            k.label(f"{name}_poll")
            k(f"buffer_load_dword v22, v21, s[{SRD_D}:{SRD_D+3}], 0 offen sc1")
            k("s_waitcnt vmcnt(0)")
            k("v_readfirstlane_b32 s42, v22")
            k("s_cmp_lg_u32 s42, 0")
            k(f"s_cbranch_scc1 {name}_got")
            k("s_sub_u32 s43, s43, 1")
            k("s_cmp_lg_u32 s43, 0")
            k(f"s_cbranch_scc0 {name}_got")
            k(f"s_sleep {fsleep}") if fsleep else None
            k(f"s_branch {name}_poll")
            k.label(f"{name}_got")
            k("s_mov_b64 exec, -1")
            if fine: stp(3)
        else:
            k("s_waitcnt vmcnt(0) lgkmcnt(0)")
            k("s_barrier")
            if fine: stp(2)
            k(f"s_cmp_lg_u32 s{sW}, 0")
            k(f"s_cbranch_scc1 {name}_nopoll")
            if wsflag:
                k("s_lshl_b32 s38, s2, 7")
                k("v_mov_b32 v20, 1")
                k("v_mov_b32 v21, s38")
                k("s_mov_b64 exec, 1")
                k(f"buffer_store_dword v20, v21, s[{SRD_D}:{SRD_D+3}], 0 offen sc1")
                k("s_xor_b32 s42, s2, 8")
                k("s_lshl_b32 s38, s42, 7")
                k("s_mov_b32 s39, 1")
                k("v_mov_b32 v21, s38")
            else:
                k("s_lshr_b32 s38, s2, 5")
                k("s_lshl_b32 s38, s38, 2")
                k("s_and_b32 s39, s2, 31")
                k("s_lshl_b32 s39, 1, s39")
                k("v_mov_b32 v20, s39")
                k("v_mov_b32 v21, s38")
                k("s_mov_b64 exec, 1")
                k(f"buffer_atomic_add v20, v21, s[{SRD_D}:{SRD_D+3}], 0 offen sc1")
                k("s_xor_b32 s42, s2, 8")
                k("s_lshr_b32 s38, s42, 5")
                k("s_lshl_b32 s38, s38, 2")
                k("s_and_b32 s39, s42, 31")
                k("s_lshl_b32 s39, 1, s39")
                k("v_mov_b32 v21, s38")
            k(f"s_mov_b32 s43, {spin_max}")
            k.label(f"{name}_poll")
            k(f"buffer_load_dword v22, v21, s[{SRD_D}:{SRD_D+3}], 0 offen sc1")
            k("s_waitcnt vmcnt(0)")
            k("v_readfirstlane_b32 s42, v22")
            k("s_and_b32 s42, s42, s39")
            k(f"s_cbranch_scc1 {name}_got")
            k("s_sub_u32 s43, s43, 1")
            k("s_cmp_lg_u32 s43, 0")
            k(f"s_cbranch_scc0 {name}_got")
            k(f"s_sleep {fsleep}") if fsleep else None
            k(f"s_branch {name}_poll")
            k.label(f"{name}_got")
            k("s_mov_b64 exec, -1")
            k.label(f"{name}_nopoll")
            k("s_barrier")
            if fine: stp(3)
        RV = 32
        if bfx:
            for j in range(4):
                k(f"buffer_load_dwordx4 v[{64+4*j}:{67+4*j}], v3, s[{SRD_PR}:{SRD_PR+3}], 0 offen offset:{j*1024} sc1")
            k("s_waitcnt vmcnt(0)")
            for q in range(16):
                k(f"v_lshlrev_b32 v{RV+2*q}, 16, v{64+q}")
                k(f"v_and_b32 v{RV+2*q+1}, 0xffff0000, v{64+q}")
        else:
            for j in range(8):
                so = "0" if j < 4 else "s39"
                if j == 4: k("s_mov_b32 s39, 4096")
                k(f"buffer_load_dwordx4 v[{RV+4*j}:{RV+4*j+3}], v3, s[{SRD_PR}:{SRD_PR+3}], {so} offen offset:{(j&3)*1024} sc1")
    RV = 32
    T = 96
    for p in range(2):
        if not tagged:
            if not bfx: k(f"s_waitcnt vmcnt({4 if p == 0 else 2})")
            for a in range(4):
                for r in range(0, 4, 2):
                    k(f"v_pk_add_f32 v[{acc(p,a)+r}:{acc(p,a)+r+1}], v[{acc(p,a)+r}:{acc(p,a)+r+1}], v[{RV+(p*4+a)*4+r}:{RV+(p*4+a)*4+r+1}]")
        k("s_nop 1")
        for pp in range(2):
            a0, a1 = acc(p, 2*pp), acc(p, 2*pp+1)
            for r in range(4):
                k(f"v_permlane16_swap_b32 v{a0+r}, v{a1+r}")
        for pp in range(2):
            a0, a1 = acc(p, 2*pp), acc(p, 2*pp+1)
            xr = XR + (p*2+pp)*4
            t = T + (p*2+pp) * 8
            for d in range(4):
                k(f"v_lshlrev_b32 v{t+2*d}, 16, v{xr+d}")
                k(f"v_and_b32 v{t+2*d+1}, 0xffff0000, v{xr+d}")
            for e in range(0, 8, 2):
                src = (a0 + e) if e < 4 else (a1 + e - 4)
                k(f"v_pk_fma_f32 v[{t+e}:{t+e+1}], v[{src}:{src+1}], v[{GB+pp*8+e}:{GB+pp*8+e+1}], v[{t+e}:{t+e+1}]")
            for d in range(4):
                k(f"v_cvt_pk_bf16_f32 v{xr+d}, v{t+2*d}, v{t+2*d+1}")
            k(f"s_mov_b32 s38, {p*16*2048}")
            k(f"buffer_store_dwordx4 v[{xr}:{xr+3}], v{vXO}, s[{SRD_O}:{SRD_O+3}], s38 offen offset:{pp*64}{sf}")
    if not fine: stp(3)
    stp.end(32, sW)
    k("s_endpgm")
    k.label(f"{name}_prod")
    vDA = [4, 5, 6, 7]
    vDB = 8
    k(f"s_sub_u32 s{sW}, s{sW}, 4")
    k("v_lshlrev_b32 v17, 3, v16")
    k(f"s_lshl_b32 s39, s{sW}, 1")
    k("v_add_u32 v17, s39, v17")
    k("v_lshlrev_b32 v17, 11, v17")
    if esplit:
        k("v_and_b32 v18, 7, v0")
        k("v_lshlrev_b32 v18, 4, v18")
        k("v_bfe_u32 v19, v0, 3, 1")
        k("v_lshl_add_u32 v18, v19, 10, v18")
    else:
        k("v_and_b32 v18, 15, v0")
        k("v_lshlrev_b32 v18, 4, v18")
    k(f"v_add_u32 v{vDA[0]}, v17, v18")
    k(f"v_add_u32 v{vDA[1]}, {2048 - PA}, v{vDA[0]}")
    k(f"v_add_u32 v{vDA[2]}, {32*2048}, v{vDA[0]}")
    k(f"v_add_u32 v{vDA[3]}, {33*2048 - PA}, v{vDA[0]}")
    k(f"s_and_b32 s38, s{sW}, 1")
    k("s_lshl_b32 s38, s38, 12")
    k(f"v_add_u32 v{vDB}, s38, v3")
    sBA, sBB = 42, 43
    k(f"s_mul_i32 s{sBA}, s{sW}, {2*PA}")
    k(f"s_lshl_b32 s{sBB}, s{sW}, 12")
    k(f"s_add_u32 s{sBB}, s{sBB}, {AREG}")
    k("s_waitcnt lgkmcnt(0)")
    k(f"s_lshl_b32 s39, s36, {7 if esplit else 8}")
    k(f"s_mul_i32 s38, s{sH}, {28*64*2048}")
    k("s_add_u32 s39, s39, s38")
    srd(k, SRD_W, 4, 28*64*2048, off_s="s39")
    k(f"s_mul_i32 s39, s37, {2*56*8192}")
    k(f"s_mul_i32 s38, s{sH}, {28*8192}")
    k("s_add_u32 s39, s39, s38")
    k(f"s_lshr_b32 s38, s{sW}, 1")
    k(f"s_mul_i32 s38, s38, {56*8192}")
    k("s_add_u32 s39, s39, s38")
    srd(k, SRD_A, 32, 28*8192, off_s="s39", off_imm=ACT_OFF)
    if wcontig:
        k(f"s_lshl_b32 s39, s{sW}, 11")
        k("s_add_u32 s39, s39, 64")
        k(f"v_add_u32 v{vDA[0]}, s39, v3")
        k(f"v_subrev_u32 v{vDA[1]}, {PA-1024}, v{vDA[0]}")
        k(f"v_add_u32 v{vDA[2]}, 8192, v{vDA[0]}")
        k(f"v_add_u32 v{vDA[3]}, 8192, v{vDA[1]}")
        k("s_lshl_b32 s39, s36, 1")
        k(f"s_add_u32 s39, s39, s{sH}")
        k(f"s_mul_i32 s39, s39, {28*16384}")
        srd(k, SRD_W, 4, 28*16384, off_s="s39")
    k(f"s_mov_b32 s{sKW}, 0")
    k(f"s_mov_b32 s{sKA}, 0")
    if noW: k(f"s_mov_b32 s{SRD_W+2}, 0")
    if noA: k(f"s_mov_b32 s{SRD_A+2}, 0")
    def issue(stg):
        base = stg * STAGE
        k(f"s_add_u32 m0, s{sBA}, {base}")
        k(f"s_add_u32 s44, s{sBA}, {base + 8*PA}")
        k(f"buffer_load_dwordx4 v{vDA[0]}, s[{SRD_W}:{SRD_W+3}], s{sKW} offen{wf} lds")
        k(f"buffer_load_dwordx4 v{vDA[1]}, s[{SRD_W}:{SRD_W+3}], s{sKW} offen offset:{PA}{wf} lds")
        k(f"s_mov_b32 m0, s44")
        k(f"s_add_u32 s45, s{sBB}, {base}")
        k(f"buffer_load_dwordx4 v{vDA[2]}, s[{SRD_W}:{SRD_W+3}], s{sKW} offen{wf} lds")
        k(f"buffer_load_dwordx4 v{vDA[3]}, s[{SRD_W}:{SRD_W+3}], s{sKW} offen offset:{PA}{wf} lds")
        k(f"s_mov_b32 m0, s45")
        k(f"s_add_u32 s{sKW}, s{sKW}, {16384 if wcontig else 64*2048}")
        for q in range(4):
            k(f"buffer_load_dwordx4 v{vDB}, s[{SRD_A}:{SRD_A+3}], s{sKA} offen offset:{q*1024}{af} lds")
        k(f"s_add_u32 s{sKA}, s{sKA}, 8192")
    issue(0); issue(1)
    k("s_waitcnt vmcnt(8)")
    k("s_barrier")
    for stg in range(2, NS): issue(stg)
    k(f"s_mov_b32 s{sCNT}, {NK // NS}")
    ploop = f"{name}_ploop"
    k.label(ploop)
    for u in range(NS):
        k(f"s_waitcnt vmcnt({8*(NS-2)})")
        k("s_barrier")
        issue(u)
    k(f"s_sub_u32 s{sCNT}, s{sCNT}, 1")
    k(f"s_cmp_lg_u32 s{sCNT}, 0")
    k(f"s_cbranch_scc1 {ploop}")
    k.label(f"{name}_end")
    k("s_endpgm")
    k.lds = NS * STAGE
    k.grid = 256
    k.block = 512
    return k
```

```python
from asmlib import *
from layout import *

def gen_gemm4b(name="g4_kernel", NS=4, stamps=False, nomfma=False, wf='', af='', sf='', rd_per=1.0, spin_max=1 << 20, wsflag=True, fine=False, waveflag=False, latex=True, noW=False, noA=False, etmap=0, nords=False, cprio=None, rdper=1, rdskip=0, nobar=False, tagged=False, psleep=2, wcontig=False, bfx=False, fsleep=1, esplit=False, cdma=False):
    k = Kern(name)
    stp = Stamps(k, stamps, 4)
    PA = 1056
    AREG = 16 * PA
    STAGE = AREG + 16 * 1024
    NK = 28
    SRD_W, SRD_A, SRD_O, SRD_X, SRD_M, SRD_PW, SRD_PR, SRD_D = 8, 12, 16, 20, 24, 44, 48, 52
    sW, sKW, sKA, sCNT, sRD, sDM, sH = 28, 29, 30, 31, 40, 41, 56
    k("s_cmp_ge_u32 s2, 256")
    k(f"s_cbranch_scc1 {name}_end")
    stp.start()
    k(f"s_load_dwordx2 s[4:5], s[0:1], {KA['wd']}")
    k(f"s_load_dwordx2 s[6:7], s[0:1], {KA['out']}")
    k(f"s_load_dwordx2 s[32:33], s[0:1], {KA['ws']}")
    k(f"s_load_dwordx2 s[58:59], s[0:1], {KA['dbg']}")
    k("v_lshrrev_b32 v1, 6, v0")
    k("v_and_b32 v0, 63, v0")
    k(f"v_readfirstlane_b32 s{sW}, v1")
    k("s_and_b32 s34, s2, 7")
    k("s_lshr_b32 s35, s2, 3")
    k(f"s_and_b32 s{sH}, s35, 1")
    k("s_lshr_b32 s35, s35, 1")
    if etmap == 0:
        k("s_and_b32 s36, s34, 1")
        k("s_lshl_b32 s36, s36, 2")
        k("s_and_b32 s37, s35, 3")
        k("s_add_u32 s36, s36, s37")
    else:
        k("s_and_b32 s36, s35, 3")
        k("s_lshl_b32 s36, s36, 1")
        k("s_and_b32 s37, s34, 1")
        k("s_add_u32 s36, s36, s37")
    k("s_lshr_b32 s37, s34, 1")
    k("s_lshl_b32 s37, s37, 2")
    k("s_lshr_b32 s38, s35, 2")
    k("s_add_u32 s37, s37, s38")
    k("v_lshrrev_b32 v16, 4, v0")
    k("v_lshlrev_b32 v3, 4, v0")
    k(f"s_cmp_ge_u32 s{sW}, 4")
    k(f"s_cbranch_scc1 {name}_prod")
    vRA, vRB0, vRB2, vRAc, vRB0c, vRB2c = 4, 5, 6, 7, 8, 9
    FR = [32, 96]
    ACC = 160
    def Af(s, ks, a): return FR[s] + (ks * 4 + a) * 4
    def Bf(s, ks, p): return FR[s] + 32 + (ks * 4 + p) * 4
    def acc(p, a): return ACC + (p * 4 + a) * 4
    k("v_and_b32 v17, 1, v16")
    k("v_lshlrev_b32 v17, 2, v17")
    k("v_bfe_u32 v18, v0, 2, 2")
    k("v_add_u32 v17, v17, v18")
    k(f"s_mov_b32 s39, {PA}")
    k("v_mul_lo_u32 v17, v17, s39")
    k("v_lshrrev_b32 v18, 1, v16")
    k("v_lshlrev_b32 v18, 8, v18")
    k("v_add_u32 v17, v17, v18")
    k("v_and_b32 v18, 3, v0")
    k("v_lshlrev_b32 v18, 3, v18")
    k("v_add_u32 v17, v17, v18")
    k(f"s_and_b32 s39, s{sW}, 1")
    k("s_lshl_b32 s39, s39, 7")
    k(f"v_add_u32 v{vRA}, s39, v17")
    k(f"s_lshr_b32 s39, s{sW}, 1")
    k("s_lshl_b32 s39, s39, 13")
    k(f"s_add_u32 s39, s39, {AREG}")
    k(f"s_lshl_b32 s38, s{sH}, 11")
    k("s_add_u32 s42, s39, s38")
    k(f"v_add_u32 v{vRB0}, s42, v3")
    k("s_xor_b32 s38, s38, 2048")
    k("s_add_u32 s42, s39, s38")
    k(f"v_add_u32 v{vRB2}, s42, v3")
    for r in range(4): k(f"v_mov_b32 v{24+r}, 0")
    k("s_nop 1")
    for r in range(0, 64, 16):
        k(f"v_mfma_f32_32x32x16_bf16 v[{ACC+r}:{ACC+r+15}], v[24:27], v[24:27], 0")
    vXO, vGO = 10, 11
    k("v_and_b32 v17, 15, v0")
    k("v_lshlrev_b32 v17, 11, v17")
    k("v_and_b32 v18, 1, v16")
    k("v_lshlrev_b32 v18, 5, v18")
    k("v_add_u32 v17, v17, v18")
    k("v_lshrrev_b32 v18, 1, v16")
    k("v_lshlrev_b32 v18, 4, v18")
    k("v_add_u32 v17, v17, v18")
    k(f"s_and_b32 s39, s{sW}, 1")
    k(f"s_lshl_b32 s39, s39, {10 if esplit else 7}")
    k(f"s_lshr_b32 s38, s{sW}, 1")
    k("s_lshl_b32 s38, s38, 17")
    k("s_add_u32 s39, s39, s38")
    k(f"s_lshl_b32 s38, s{sH}, 16")
    k("s_add_u32 s39, s39, s38")
    k(f"v_add_u32 v{vXO}, s39, v17")
    k("v_and_b32 v17, 1, v16")
    k("v_lshlrev_b32 v17, 6, v17")
    k("v_lshrrev_b32 v18, 1, v16")
    k("v_lshlrev_b32 v18, 5, v18")
    k("v_add_u32 v17, v17, v18")
    k(f"s_and_b32 s39, s{sW}, 1")
    k(f"s_lshl_b32 s39, s39, {11 if esplit else 8}")
    k(f"v_add_u32 v{vGO}, s39, v17")
    k("s_waitcnt lgkmcnt(0)")
    if tagged: k(f"s_load_dwordx2 s[96:97], s[32:33], {EPOCH_OFF:#x}")
    k("s_lshl_b32 s39, s37, 18")
    k(f"s_lshl_b32 s38, s36, {7 if esplit else 8}")
    k("s_add_u32 s39, s39, s38")
    k(f"s_sub_u32 s38, {S*D*2}, s39")
    srd(k, SRD_O, 6, "s38", off_s="s39")
    srd(k, SRD_X, 32, "s38", off_s="s39", off_imm=X1_OFF)
    k(f"s_lshl_b32 s39, s36, {8 if esplit else 9}")
    srd(k, SRD_M, 32, 2048 + 256 if esplit else 512, off_s="s39", off_imm=MODF_OFF + 5 * 4096)
    k("s_lshl_b32 s39, s37, 3")
    k("s_add_u32 s39, s39, s36")
    k("s_lshl_b32 s39, s39, 1")
    k(f"s_xor_b32 s38, s{sH}, 1")
    k("s_add_u32 s38, s38, s39")
    k("s_lshl_b32 s38, s38, 2")
    k(f"s_add_u32 s38, s38, s{sW}")
    k(f"s_lshl_b32 s38, s38, {14 if tagged else 13}")
    srd(k, SRD_PW, 32, 16384 if tagged else 8192, off_s="s38", off_imm=PART_OFF)
    k(f"s_add_u32 s38, s39, s{sH}")
    k("s_lshl_b32 s38, s38, 2")
    k(f"s_add_u32 s38, s38, s{sW}")
    k(f"s_lshl_b32 s38, s38, {14 if tagged else 13}")
    srd(k, SRD_PR, 32, 16384 if tagged else 8192, off_s="s38", off_imm=PART_OFF)
    if wsflag: srd(k, SRD_D, 32, 256*128, off_imm=FLAG_OFF)
    else: srd(k, SRD_D, 58, 256)
    XR = 224
    GB = 240
    def xloads():
        for p in range(2):
            for pp in range(2):
                k(f"s_mov_b32 s38, {p*16*2048}")
                k(f"buffer_load_dwordx4 v[{XR+(p*2+pp)*4}:{XR+(p*2+pp)*4+3}], v{vXO}, s[{SRD_X}:{SRD_X+3}], s38 offen offset:{pp*64}")
        for pp in range(2):
            k(f"buffer_load_dwordx4 v[{GB+pp*8}:{GB+pp*8+3}], v{vGO}, s[{SRD_M}:{SRD_M+3}], 0 offen offset:{pp*128}")
            k(f"buffer_load_dwordx4 v[{GB+pp*8+4}:{GB+pp*8+7}], v{vGO}, s[{SRD_M}:{SRD_M+3}], 0 offen offset:{pp*128+16}")
    if not latex: xloads()
    def reads(setn):
        out = []
        for ks in range(2):
            A = []
            for a in range(4):
                for h in range(2):
                    off = ks * 8 * PA + a * 32 + h * 512
                    A.append(f"ds_read_b64_tr_b16 v[{Af(setn,ks,a)+2*h}:{Af(setn,ks,a)+2*h+1}], v{vRAc} offset:{off}")
            B = []
            for p in range(4):
                base = vRB0c if p < 2 else vRB2c
                off = ks * 4096 + (p & 1) * 1024
                B.append(f"ds_read_b128 v[{Bf(setn,ks,p)}:{Bf(setn,ks,p)+3}], v{base} offset:{off}")
            out += [B[0]] + A[:2] + [B[1]] + A[2:4] + [B[2]] + A[4:6] + [B[3]] + A[6:]
        return out
    def setaddr():
        k(f"v_add_u32 v{vRAc}, s{sRD}, v{vRA}")
        k(f"v_add_u32 v{vRB0c}, s{sRD}, v{vRB0}")
        k(f"v_add_u32 v{vRB2c}, s{sRD}, v{vRB2}")
    sCD, sCK, sCB, vCD = 66, 67, 68, 12
    def issueC():
        return [f"s_add_u32 m0, s{sCD}, s{sCB}", f"s_add_u32 s{sCD}, s{sCD}, {STAGE}",
                f"buffer_load_dwordx4 v{vCD}, s[{SRD_A}:{SRD_A+3}], s{sCK} offen lds",
                f"buffer_load_dwordx4 v{vCD}, s[{SRD_A}:{SRD_A+3}], s{sCK} offen offset:1024 lds",
                f"s_cmp_eq_u32 s{sCD}, {NS*STAGE}", f"s_cselect_b32 s{sCD}, 0, s{sCD}", f"s_add_u32 s{sCK}, s{sCK}, 8192"]
    if cdma:
        k(f"s_mul_i32 s39, s37, {2*56*8192}")
        k(f"s_mul_i32 s38, s{sH}, {28*8192}")
        k("s_add_u32 s39, s39, s38")
        k(f"s_lshr_b32 s38, s{sW}, 1")
        k(f"s_mul_i32 s38, s38, {56*8192}")
        k("s_add_u32 s39, s39, s38")
        srd(k, SRD_A, 32, 28*8192, off_s="s39", off_imm=ACT_OFF)
        k(f"s_and_b32 s38, s{sW}, 1")
        k("s_lshl_b32 s38, s38, 12")
        k("s_add_u32 s38, s38, 2048")
        k(f"v_add_u32 v{vCD}, s38, v3")
        k(f"s_lshl_b32 s{sCB}, s{sW}, 12")
        k(f"s_add_u32 s{sCB}, s{sCB}, {AREG + 2048}")
        k(f"s_mov_b32 s{sCD}, 0")
        k(f"s_mov_b32 s{sCK}, 0")
        for i in range(2):
            for l in issueC(): k(l)
        xloads()
        k("s_waitcnt vmcnt(10)")
    k(f"s_mov_b32 s{sRD}, 0")
    setaddr()
    k("s_barrier")
    if not fine: stp(1)
    for r in reads(0): k(r)
    if latex and not cdma: xloads()
    if cdma:
        for i in range(2, NS):
            for l in issueC(): k(l)
    k(f"s_mov_b32 s{sRD}, {STAGE}")
    setaddr()
    k(f"s_mov_b32 s{sCNT}, {NK//2}")
    if cprio is not None: k(f"s_setprio {cprio}")
    loop = f"{name}_cloop"
    k.label(loop)
    for u in range(2):
        cur = u; nxt = u ^ 1
        rd = reads(nxt)
        order = [(ks, p, a) for ks in range(2) for p in range(4) for a in range(4)]
        if cdma: k(f"s_waitcnt vmcnt({2*(NS-2)}) lgkmcnt(0)")
        else: k("s_waitcnt lgkmcnt(0)")
        k("s_barrier")
        ri = 0
        ic = issueC() if cdma else []
        for idx, (ks, p, a) in enumerate(order):
            if not nomfma:
                k(f"v_mfma_f32_16x16x32_bf16 v[{acc(p,a)}:{acc(p,a)+3}], v[{Af(cur,ks,a)}:{Af(cur,ks,a)+3}], v[{Bf(cur,ks,p)}:{Bf(cur,ks,p)+3}], v[{acc(p,a)}:{acc(p,a)+3}]")
            if idx >= rdskip:
                for _ in range(rdper):
                    if ri < len(rd):
                        if not nords: k(rd[ri])
                        ri += 1
            if idx == 25:
                k(f"s_add_u32 s{sRD}, s{sRD}, {STAGE}")
                k(f"s_cmp_eq_u32 s{sRD}, {NS*STAGE}")
                k(f"s_cselect_b32 s{sRD}, 0, s{sRD}")
            if idx == 27: setaddr()
            if cdma:
                if idx == 24: k(ic[0]); k(ic[1])
                if idx == 26: k(ic[2])
                if idx == 28: k(ic[3])
                if idx == 29: k(ic[4]); k(ic[5]); k(ic[6])
    k(f"s_sub_u32 s{sCNT}, s{sCNT}, 1")
    k(f"s_cmp_lg_u32 s{sCNT}, 0")
    k(f"s_cbranch_scc1 {loop}")
    stp(1 if fine else 2)
    if tagged:
        k("s_nop 7")
        k("s_waitcnt lgkmcnt(0)")
        SEND = ACC + 32
        QS, QR = 32, 96
        for j in range(16):
            k(f"v_mov_b64 v[{QS+4*j}:{QS+4*j+1}], v[{SEND+2*j}:{SEND+2*j+1}]")
            k(f"v_mov_b64 v[{QS+4*j+2}:{QS+4*j+3}], s[96:97]")
        for j in range(16):
            if j % 4 == 0: k(f"s_mov_b32 s39, {j*1024}")
            k(f"buffer_store_dwordx4 v[{QS+4*j}:{QS+4*j+3}], v3, s[{SRD_PW}:{SRD_PW+3}], s39 offen offset:{(j%4)*1024} sc1")
        if fine: stp(2)
        k(f"s_mov_b32 s43, {spin_max}")
        k("s_mov_b32 s38, 15360")
        k.label(f"{name}_poll")
        k(f"buffer_load_dwordx4 v[{QR+60}:{QR+63}], v3, s[{SRD_PR}:{SRD_PR+3}], s38 offen sc1")
        k("s_waitcnt vmcnt(0)")
        k(f"v_cmp_eq_u64 vcc, s[96:97], v[{QR+62}:{QR+63}]")
        k("s_cmp_eq_u64 vcc, exec")
        k(f"s_cbranch_scc1 {name}_last")
        k("s_sub_u32 s43, s43, 1")
        k("s_cmp_lg_u32 s43, 0")
        k(f"s_cbranch_scc0 {name}_got")
        k(f"s_sleep {psleep}")
        k(f"s_branch {name}_poll")
        k.label(f"{name}_last")
        for j in range(15):
            if j % 4 == 0: k(f"s_mov_b32 s39, {j*1024}")
            k(f"buffer_load_dwordx4 v[{QR+4*j}:{QR+4*j+3}], v3, s[{SRD_PR}:{SRD_PR+3}], s39 offen offset:{(j%4)*1024} sc1")
        k("s_mov_b64 s[98:99], -1")
        for j in range(15):
            k(f"s_waitcnt vmcnt({14-j})")
            k(f"v_cmp_eq_u64 vcc, s[96:97], v[{QR+4*j+2}:{QR+4*j+3}]")
            k("s_and_b64 s[98:99], s[98:99], vcc")
        k("s_cmp_eq_u64 s[98:99], exec")
        k(f"s_cbranch_scc1 {name}_got")
        k("s_sub_u32 s43, s43, 1")
        k("s_cmp_lg_u32 s43, 0")
        k(f"s_cbranch_scc1 {name}_last")
        k.label(f"{name}_got")
        if fine: stp(3)
        for j in range(16):
            k(f"v_pk_add_f32 v[{ACC+2*j}:{ACC+2*j+1}], v[{ACC+2*j}:{ACC+2*j+1}], v[{QR+4*j}:{QR+4*j+1}]")
    else:
        k("s_nop 7")
        if bfx:
            for q in range(16):
                k(f"v_cvt_pk_bf16_f32 v{32+q}, v{ACC+32+2*q}, v{ACC+32+2*q+1}")
            for j in range(4):
                k(f"buffer_store_dwordx4 v[{32+4*j}:{35+4*j}], v3, s[{SRD_PW}:{SRD_PW+3}], 0 offen offset:{j*1024} sc1")
        else:
            for p in (2, 3):
                for a in range(4):
                    j = (p - 2) * 4 + a
                    so = "0" if j < 4 else "s39"
                    if j == 4: k("s_mov_b32 s39, 4096")
                    k(f"buffer_store_dwordx4 v[{acc(p,a)}:{acc(p,a)+3}], v3, s[{SRD_PW}:{SRD_PW+3}], {so} offen offset:{(j&3)*1024} sc1")
        if waveflag:
            k("s_waitcnt vmcnt(0) lgkmcnt(0)")
            if fine: stp(2)
            k("s_lshl_b32 s38, s2, 7")
            k(f"s_lshl_b32 s39, s{sW}, 4")
            k("s_add_u32 s38, s38, s39")
            k("v_mov_b32 v20, 1")
            k("v_mov_b32 v21, s38")
            k("s_mov_b64 exec, 1")
            k(f"buffer_store_dword v20, v21, s[{SRD_D}:{SRD_D+3}], 0 offen sc1")
            k("s_xor_b32 s38, s38, 1024")
            k("v_mov_b32 v21, s38")
            k(f"s_mov_b32 s43, {spin_max}")
            k.label(f"{name}_poll")
            k(f"buffer_load_dword v22, v21, s[{SRD_D}:{SRD_D+3}], 0 offen sc1")
            k("s_waitcnt vmcnt(0)")
            k("v_readfirstlane_b32 s42, v22")
            k("s_cmp_lg_u32 s42, 0")
            k(f"s_cbranch_scc1 {name}_got")
            k("s_sub_u32 s43, s43, 1")
            k("s_cmp_lg_u32 s43, 0")
            k(f"s_cbranch_scc0 {name}_got")
            k(f"s_sleep {fsleep}") if fsleep else None
            k(f"s_branch {name}_poll")
            k.label(f"{name}_got")
            k("s_mov_b64 exec, -1")
            if fine: stp(3)
        else:
            k("s_waitcnt vmcnt(0) lgkmcnt(0)")
            k("s_barrier")
            if fine: stp(2)
            k(f"s_cmp_lg_u32 s{sW}, 0")
            k(f"s_cbranch_scc1 {name}_nopoll")
            if wsflag:
                k("s_lshl_b32 s38, s2, 7")
                k("v_mov_b32 v20, 1")
                k("v_mov_b32 v21, s38")
                k("s_mov_b64 exec, 1")
                k(f"buffer_store_dword v20, v21, s[{SRD_D}:{SRD_D+3}], 0 offen sc1")
                k("s_xor_b32 s42, s2, 8")
                k("s_lshl_b32 s38, s42, 7")
                k("s_mov_b32 s39, 1")
                k("v_mov_b32 v21, s38")
            else:
                k("s_lshr_b32 s38, s2, 5")
                k("s_lshl_b32 s38, s38, 2")
                k("s_and_b32 s39, s2, 31")
                k("s_lshl_b32 s39, 1, s39")
                k("v_mov_b32 v20, s39")
                k("v_mov_b32 v21, s38")
                k("s_mov_b64 exec, 1")
                k(f"buffer_atomic_add v20, v21, s[{SRD_D}:{SRD_D+3}], 0 offen sc1")
                k("s_xor_b32 s42, s2, 8")
                k("s_lshr_b32 s38, s42, 5")
                k("s_lshl_b32 s38, s38, 2")
                k("s_and_b32 s39, s42, 31")
                k("s_lshl_b32 s39, 1, s39")
                k("v_mov_b32 v21, s38")
            k(f"s_mov_b32 s43, {spin_max}")
            k.label(f"{name}_poll")
            k(f"buffer_load_dword v22, v21, s[{SRD_D}:{SRD_D+3}], 0 offen sc1")
            k("s_waitcnt vmcnt(0)")
            k("v_readfirstlane_b32 s42, v22")
            k("s_and_b32 s42, s42, s39")
            k(f"s_cbranch_scc1 {name}_got")
            k("s_sub_u32 s43, s43, 1")
            k("s_cmp_lg_u32 s43, 0")
            k(f"s_cbranch_scc0 {name}_got")
            k(f"s_sleep {fsleep}") if fsleep else None
            k(f"s_branch {name}_poll")
            k.label(f"{name}_got")
            k("s_mov_b64 exec, -1")
            k.label(f"{name}_nopoll")
            k("s_barrier")
            if fine: stp(3)
        RV = 32
        if bfx:
            for j in range(4):
                k(f"buffer_load_dwordx4 v[{64+4*j}:{67+4*j}], v3, s[{SRD_PR}:{SRD_PR+3}], 0 offen offset:{j*1024} sc1")
            k("s_waitcnt vmcnt(0)")
            for q in range(16):
                k(f"v_lshlrev_b32 v{RV+2*q}, 16, v{64+q}")
                k(f"v_and_b32 v{RV+2*q+1}, 0xffff0000, v{64+q}")
        else:
            for j in range(8):
                so = "0" if j < 4 else "s39"
                if j == 4: k("s_mov_b32 s39, 4096")
                k(f"buffer_load_dwordx4 v[{RV+4*j}:{RV+4*j+3}], v3, s[{SRD_PR}:{SRD_PR+3}], {so} offen offset:{(j&3)*1024} sc1")
    RV = 32
    T = 96
    for p in range(2):
        if not tagged:
            if not bfx: k(f"s_waitcnt vmcnt({4 if p == 0 else 2})")
            for a in range(4):
                for r in range(0, 4, 2):
                    k(f"v_pk_add_f32 v[{acc(p,a)+r}:{acc(p,a)+r+1}], v[{acc(p,a)+r}:{acc(p,a)+r+1}], v[{RV+(p*4+a)*4+r}:{RV+(p*4+a)*4+r+1}]")
        k("s_nop 1")
        for pp in range(2):
            a0, a1 = acc(p, 2*pp), acc(p, 2*pp+1)
            for r in range(4):
                k(f"v_permlane16_swap_b32 v{a0+r}, v{a1+r}")
        for pp in range(2):
            a0, a1 = acc(p, 2*pp), acc(p, 2*pp+1)
            xr = XR + (p*2+pp)*4
            t = T + (p*2+pp) * 8
            for d in range(4):
                k(f"v_lshlrev_b32 v{t+2*d}, 16, v{xr+d}")
                k(f"v_and_b32 v{t+2*d+1}, 0xffff0000, v{xr+d}")
            for e in range(0, 8, 2):
                src = (a0 + e) if e < 4 else (a1 + e - 4)
                k(f"v_pk_fma_f32 v[{t+e}:{t+e+1}], v[{src}:{src+1}], v[{GB+pp*8+e}:{GB+pp*8+e+1}], v[{t+e}:{t+e+1}]")
            for d in range(4):
                k(f"v_cvt_pk_bf16_f32 v{xr+d}, v{t+2*d}, v{t+2*d+1}")
            k(f"s_mov_b32 s38, {p*16*2048}")
            k(f"buffer_store_dwordx4 v[{xr}:{xr+3}], v{vXO}, s[{SRD_O}:{SRD_O+3}], s38 offen offset:{pp*64}{sf}")
    if not fine: stp(3)
    stp.end(32, sW)
    k("s_endpgm")
    k.label(f"{name}_prod")
    vDA = [4, 5, 6, 7]
    vDB = 8
    k(f"s_sub_u32 s{sW}, s{sW}, 4")
    k("v_lshlrev_b32 v17, 3, v16")
    k(f"s_lshl_b32 s39, s{sW}, 1")
    k("v_add_u32 v17, s39, v17")
    k("v_lshlrev_b32 v17, 11, v17")
    if esplit:
        k("v_and_b32 v18, 7, v0")
        k("v_lshlrev_b32 v18, 4, v18")
        k("v_bfe_u32 v19, v0, 3, 1")
        k("v_lshl_add_u32 v18, v19, 10, v18")
    else:
        k("v_and_b32 v18, 15, v0")
        k("v_lshlrev_b32 v18, 4, v18")
    k(f"v_add_u32 v{vDA[0]}, v17, v18")
    k(f"v_add_u32 v{vDA[1]}, {2048 - PA}, v{vDA[0]}")
    k(f"v_add_u32 v{vDA[2]}, {32*2048}, v{vDA[0]}")
    k(f"v_add_u32 v{vDA[3]}, {33*2048 - PA}, v{vDA[0]}")
    k(f"s_and_b32 s38, s{sW}, 1")
    k("s_lshl_b32 s38, s38, 12")
    k(f"v_add_u32 v{vDB}, s38, v3")
    sBA, sBB = 42, 43
    k(f"s_mul_i32 s{sBA}, s{sW}, {2*PA}")
    k(f"s_lshl_b32 s{sBB}, s{sW}, 12")
    k(f"s_add_u32 s{sBB}, s{sBB}, {AREG}")
    k("s_waitcnt lgkmcnt(0)")
    k(f"s_lshl_b32 s39, s36, {7 if esplit else 8}")
    k(f"s_mul_i32 s38, s{sH}, {28*64*2048}")
    k("s_add_u32 s39, s39, s38")
    srd(k, SRD_W, 4, 28*64*2048, off_s="s39")
    k(f"s_mul_i32 s39, s37, {2*56*8192}")
    k(f"s_mul_i32 s38, s{sH}, {28*8192}")
    k("s_add_u32 s39, s39, s38")
    k(f"s_lshr_b32 s38, s{sW}, 1")
    k(f"s_mul_i32 s38, s38, {56*8192}")
    k("s_add_u32 s39, s39, s38")
    srd(k, SRD_A, 32, 28*8192, off_s="s39", off_imm=ACT_OFF)
    if wcontig:
        k(f"s_lshl_b32 s39, s{sW}, 11")
        k("s_add_u32 s39, s39, 64")
        k(f"v_add_u32 v{vDA[0]}, s39, v3")
        k(f"v_subrev_u32 v{vDA[1]}, {PA-1024}, v{vDA[0]}")
        k(f"v_add_u32 v{vDA[2]}, 8192, v{vDA[0]}")
        k(f"v_add_u32 v{vDA[3]}, 8192, v{vDA[1]}")
        k("s_lshl_b32 s39, s36, 1")
        k(f"s_add_u32 s39, s39, s{sH}")
        k(f"s_mul_i32 s39, s39, {28*16384}")
        srd(k, SRD_W, 4, 28*16384, off_s="s39")
    k(f"s_mov_b32 s{sKW}, 0")
    k(f"s_mov_b32 s{sKA}, 0")
    if noW: k(f"s_mov_b32 s{SRD_W+2}, 0")
    if noA: k(f"s_mov_b32 s{SRD_A+2}, 0")
    def issue(stg):
        base = stg * STAGE
        k(f"s_add_u32 m0, s{sBA}, {base}")
        k(f"s_add_u32 s44, s{sBA}, {base + 8*PA}")
        k(f"buffer_load_dwordx4 v{vDA[0]}, s[{SRD_W}:{SRD_W+3}], s{sKW} offen{wf} lds")
        k(f"buffer_load_dwordx4 v{vDA[1]}, s[{SRD_W}:{SRD_W+3}], s{sKW} offen offset:{PA}{wf} lds")
        k(f"s_mov_b32 m0, s44")
        k(f"s_add_u32 s45, s{sBB}, {base}")
        k(f"buffer_load_dwordx4 v{vDA[2]}, s[{SRD_W}:{SRD_W+3}], s{sKW} offen{wf} lds")
        k(f"buffer_load_dwordx4 v{vDA[3]}, s[{SRD_W}:{SRD_W+3}], s{sKW} offen offset:{PA}{wf} lds")
        k(f"s_mov_b32 m0, s45")
        k(f"s_add_u32 s{sKW}, s{sKW}, {16384 if wcontig else 64*2048}")
        for q in range(2 if cdma else 4):
            k(f"buffer_load_dwordx4 v{vDB}, s[{SRD_A}:{SRD_A+3}], s{sKA} offen offset:{q*1024}{af} lds")
        k(f"s_add_u32 s{sKA}, s{sKA}, 8192")
    NP = 6 if cdma else 8
    issue(0); issue(1)
    k(f"s_waitcnt vmcnt({NP})")
    k("s_barrier")
    for stg in range(2, NS): issue(stg)
    k(f"s_mov_b32 s{sCNT}, {NK // NS}")
    ploop = f"{name}_ploop"
    k.label(ploop)
    for u in range(NS):
        k(f"s_waitcnt vmcnt({NP*(NS-2)})")
        k("s_barrier")
        issue(u)
    k(f"s_sub_u32 s{sCNT}, s{sCNT}, 1")
    k(f"s_cmp_lg_u32 s{sCNT}, 0")
    k(f"s_cbranch_scc1 {ploop}")
    k.label(f"{name}_end")
    k("s_endpgm")
    k.lds = NS * STAGE
    k.grid = 256
    k.block = 512
    return k
```

```python
import sys
from asmlib import *
from ka import gen_ka
from kb import gen_kb
from kc import gen_kc
from gemm3 import gen_gemm3
from gemm3b import gen_gemm3b
from gemm4 import gen_gemm4
from gemm4b import gen_gemm4b
NAME = "adaLN_cond__spectral_fnet__geglu_ffn__prompt"
ref = open(f"cdna_kernels/{NAME}.s.ref").read().split("\n")
hdr = []
for l in ref:
    if l.startswith("; Override launch") : break
    hdr.append(l)
hdr = "\n".join(hdr)
DOC = """; ---------------------------------------------------------------------------------------------
; ---------------------------------------------------------------------------------------------"""
def build(path, ks):
    txt = build_file(hdr + "\n" + DOC, [(k.name, k.grid, k.block, k.lds) for k in ks], ks)
    open(path, "w").write(txt)
from gemm3c import gen_gemm3c
from gemm4c import gen_gemm4c
def best(stamps=False):
    S1 = " sc1"
    return [gen_ka("ka_kernel", stamps=stamps, xnt=False, codepf=("kb_kernel", "code_end_label"), flags=True, tables=False),
            gen_kb("kb_kernel", stamps=stamps, sf=S1, table=False, ctable=True, cpf=None if stamps else ("kc_kernel", "g3_kernel")),
            gen_kc("kc_kernel", stamps=stamps, xnt=False, cpf=None if stamps else ("g3_kernel", "g4_kernel")),
            gen_gemm3c("g3_kernel", stamps=stamps, cpf=None if stamps else ("g4_kernel", "code_end_label"), peel_first=False, peel_last=True, fuse=True),
            gen_gemm4b("g4_kernel", stamps=stamps, sf=S1)]
if __name__ == "__main__":
    stamps = len(sys.argv) > 2
    out = sys.argv[1] if len(sys.argv) > 1 else f"cdna_kernels/{NAME}.s"
    build(out, best(stamps))
```

```python
from asmlib import *
from layout import *
import math, struct, re
def f2u(x): return struct.unpack("<I", struct.pack("<f", x))[0]

def gen_gemm3c(name="g3_kernel", stamps=False, pf=True, sf=' sc1', sf2=' sc1', dma_frac=(0.1, 0.35, 0.6, 0.85), rd_span=0.6, cpf=None,
               peel_first=True, peel_last=True, fuse=True, xmap=0, repack=False):
    k = Kern(name)
    st = Stamps(k, stamps, 3)
    NS = 4
    BS = 4128
    STAGE = 8 * BS
    NK = 32
    ROWB = F * 2
    P = 4
    SRD_G, SRD_U, SRD_H, SRD_O, SRD_P = 8, 12, 16, 20, 44
    sKW, sKH, sBLK, sCNT, sW = 24, 25, 26, 27, 28
    vDW, vDH, vSt, vPF = 1, 2, 3, 30
    vRA = [4 + i for i in range(NS)]
    vRB = [10 + i for i in range(NS)]
    vRA2 = [20 + i for i in range(NS)]
    FR = [32, 80]
    ACC = 128
    k("s_cmp_ge_u32 s2, 256")
    k(f"s_cbranch_scc1 {name}_end")
    st.start()
    k(f"s_load_dwordx2 s[4:5], s[0:1], {KA['wg']}")
    k(f"s_load_dwordx2 s[6:7], s[0:1], {KA['wu']}")
    k(f"s_load_dwordx2 s[32:33], s[0:1], {KA['ws']}")
    k(f"s_load_dwordx2 s[30:31], s[0:1], {KA['wd']}")
    k("v_lshrrev_b32 v1, 6, v0")
    k("v_mov_b32 v30, v0")
    k("v_and_b32 v0, 63, v0")
    k(f"v_readfirstlane_b32 s{sW}, v1")
    k("s_and_b32 s34, s2, 7")
    k("s_lshr_b32 s35, s2, 3")
    if xmap == 0:
        k("s_and_b32 s36, s34, 1")
        k("s_lshl_b32 s36, s36, 2")
        k("s_and_b32 s37, s35, 3")
        k("s_add_u32 s36, s36, s37")
        k("s_lshr_b32 s37, s34, 1")
        k("s_lshl_b32 s37, s37, 3")
        k("s_lshr_b32 s38, s35, 2")
        k("s_add_u32 s37, s37, s38")
    elif xmap == 1:
        k("s_and_b32 s36, s35, 7")
        k("s_lshl_b32 s37, s34, 2")
        k("s_lshr_b32 s38, s35, 3")
        k("s_add_u32 s37, s37, s38")
    else:
        k("s_and_b32 s36, s34, 3")
        k("s_lshl_b32 s36, s36, 1")
        k("s_and_b32 s37, s35, 1")
        k("s_add_u32 s36, s36, s37")
        k("s_lshr_b32 s37, s34, 2")
        k("s_lshl_b32 s37, s37, 4")
        k("s_lshr_b32 s38, s35, 1")
        k("s_add_u32 s37, s37, s38")
    k("v_lshrrev_b32 v16, 4, v0")
    k("v_and_b32 v17, 1, v16")
    k("v_lshlrev_b32 v17, 4, v17")
    k("v_lshrrev_b32 v18, 1, v16")
    k("v_lshlrev_b32 v18, 2, v18")
    k("v_add_u32 v17, v17, v18")
    k(f"s_lshr_b32 s39, s{sW}, 2")
    k("s_lshl_b32 s39, s39, 3")
    k(f"s_and_b32 s40, s{sW}, 3")
    k("s_add_u32 s39, s39, s40")
    k("v_add_u32 v17, s39, v17")
    k(f"s_mov_b32 s41, {ROWB}")
    k("v_mul_lo_u32 v17, v17, s41")
    k("v_and_b32 v18, 15, v0")
    k("v_lshlrev_b32 v19, 4, v18")
    k(f"v_add_u32 v{vDW}, v17, v19")
    k("v_cmp_lt_u32 vcc, 13, v18")
    k("v_bfrev_b32 v19, 1")
    k("s_nop 0")
    k(f"v_cndmask_b32 v{vDW}, v{vDW}, v19, vcc")
    k(f"s_lshl_b32 s39, s{sW}, 11")
    k(f"v_lshlrev_b32 v{vSt}, 4, v0")
    k(f"v_add_u32 v{vDH}, s39, v{vSt}")
    k(f"s_mul_i32 s{sBLK}, s{sW}, {BS}")
    k("s_mul_i32 s39, s37, 224")
    k(f"s_sub_u32 s40, {D*ROWB}, s39")
    k("s_lshl_b32 s42, s36, 19")
    k("s_waitcnt lgkmcnt(0)")
    st(1)
    srd(k, SRD_G, 4, "s40", off_s="s39")
    srd(k, SRD_U, 6, "s40", off_s="s39")
    srd(k, SRD_H, 32, 1 << 19, off_s="s42", off_imm=H2_OFF)
    k(f"s_mov_b32 s{sKW}, 0")
    k(f"s_mov_b32 s{sKH}, 0")

    def dma_group(stage, part):
        base = (stage % NS) * STAGE
        if part == 0:
            return [f"s_add_u32 m0, s{sBLK}, {base}", f"buffer_load_dwordx4 v{vDW}, s[{SRD_G}:{SRD_G+3}], s{sKW} offen lds"]
        if part == 1:
            return [f"s_add_u32 m0, s{sBLK}, {base+1024}", f"buffer_load_dwordx4 v{vDW}, s[{SRD_U}:{SRD_U+3}], s{sKW} offen lds"]
        if part == 2:
            return [f"s_add_u32 m0, s{sBLK}, {base+2048}", f"buffer_load_dwordx4 v{vDH}, s[{SRD_H}:{SRD_H+3}], s{sKH} offen lds"]
        if part == 3:
            return [None, f"buffer_load_dwordx4 v{vDH}, s[{SRD_H}:{SRD_H+3}], s{sKH} offen offset:1024 lds"]
    def adv():
        return [f"s_add_u32 s{sKW}, s{sKW}, {32*ROWB}", f"s_add_u32 s{sKH}, s{sKH}, 16384"]
    def issue_stage(stg):
        for part in range(4):
            m, ld = dma_group(stg, part)
            if m:
                k(m); k("s_nop 0")
            k(ld)
        for a in adv(): k(a)
    issue_stage(0)
    k("v_and_b32 v17, 1, v16")
    k("v_lshlrev_b32 v17, 2, v17")
    k("v_bfe_u32 v18, v0, 2, 2")
    k("v_add_u32 v17, v17, v18")
    k(f"s_mov_b32 s41, {BS}")
    k("v_mul_lo_u32 v17, v17, s41")
    k("v_lshrrev_b32 v18, 1, v16")
    k("v_lshlrev_b32 v18, 8, v18")
    k("v_add_u32 v17, v17, v18")
    k("v_and_b32 v18, 3, v0")
    k("v_lshlrev_b32 v18, 3, v18")
    k(f"v_add_u32 v{vRA[0]}, v17, v18")
    k(f"s_and_b32 s39, s{sW}, 3")
    k(f"s_mul_i32 s39, s39, {2*BS}")
    k("s_add_u32 s39, s39, 2048")
    k(f"v_add_u32 v{vRB[0]}, s39, v{vSt}")
    for r in range(4): k(f"v_mov_b32 v{24+r}, 0")
    issue_stage(1)
    if not peel_first: issue_stage(2)
    for r in range(0, 128, 16):
        k(f"v_mfma_f32_32x32x16_bf16 v[{ACC+r}:{ACC+r+15}], v[24:27], v[24:27], 0")
    k("s_and_b32 s39, s37, 1")
    k("s_cmp_eq_u32 s39, 0")
    k("s_cselect_b32 s40, 0, 96")
    k("s_cselect_b32 s41, 128, 32")
    k("s_cselect_b32 s42, 192, 0")
    k(f"s_cmp_ge_u32 s{sW}, 4")
    k("s_cselect_b32 s40, s41, s40")
    k(f"v_add_u32 v{vRA2[0]}, s42, v{vRA[0]}")
    k(f"v_add_u32 v{vRA[0]}, s40, v{vRA[0]}")
    for s in range(1, NS):
        k(f"v_add_u32 v{vRA[s]}, {s*STAGE}, v{vRA[0]}")
        k(f"v_add_u32 v{vRA2[s]}, {s*STAGE}, v{vRA2[0]}")
        k(f"v_add_u32 v{vRB[s]}, {s*STAGE}, v{vRB[0]}")
    k(f"v_lshlrev_b32 v{vPF}, 6, v30")
    srd(k, SRD_O, 32, S * F * 2, off_imm=ACT_OFF)
    k("s_mul_i32 s39, s2, 28672")
    srd(k, SRD_P, 30, 28672, off_s="s39")
    k(f"s_waitcnt vmcnt({P if peel_first else 2*P})")
    k("s_barrier")
    st(2)
    k(f"s_cmp_ge_u32 s{sW}, 4")
    k(f"s_cbranch_scc1 {name}_typeB")

    def body(tp):
        nT = 4 if tp == 0 else 3
        nA = 2 * nT
        def Af(s, a): return FR[s] + a * 4
        def Bf(s, p): return FR[s] + 32 + p * 4
        def acc(p, a): return ACC + (p * nA + a) * 4
        def reads(setn, stage):
            A = []
            for a in range(nA):
                gu, j = a // nT, a % nT
                for h in range(2):
                    if tp == 1 and j == 2:
                        off = gu * 1024 + h * 512; base = vRA2[stage]
                    else:
                        off = gu * 1024 + j * 32 + h * 512; base = vRA[stage]
                    A.append(f"ds_read_b64_tr_b16 v[{Af(setn,a)+2*h}:{Af(setn,a)+2*h+1}], v{base} offset:{off}")
            B = []
            for p in range(4):
                off = (p >> 1) * BS + (p & 1) * 1024
                B.append(f"ds_read_b128 v[{Bf(setn,p)}:{Bf(setn,p)+3}], v{vRB[stage]} offset:{off}")
            return [B[0]] + A[:4] + [B[1]] + A[4:8] + [B[2]] + A[8:12] + [B[3]] + A[12:]
        order = [(p, a) for p in range(4) for a in range(nA)]
        nM = len(order)
        def mfma(cur, p, a):
            return f"v_mfma_f32_16x16x32_bf16 v[{acc(p,a)}:{acc(p,a)+3}], v[{Af(cur,a)}:{Af(cur,a)+3}], v[{Bf(cur,p)}:{Bf(cur,p)+3}], v[{acc(p,a)}:{acc(p,a)+3}]"
        def iteration(u, dma_stages, nvm, do_reads=True, barrier=True):
            cur = u & 1; nxt = cur ^ 1
            extra = {}
            if do_reads:
                rd = reads(nxt, (u + 1) % NS)
                for ri, r in enumerate(rd):
                    extra.setdefault(int(ri * rd_span * nM / len(rd)), []).append(r)
            nd = len(dma_stages) * 4
            for si, stg in enumerate(dma_stages):
                for part in range(4):
                    q = si * 4 + part
                    fr = dma_frac[part] if len(dma_stages) == 1 else (0.04 + 0.9 * q / nd)
                    pos = max(1, int(fr * nM))
                    m, ld = dma_group(stg, part)
                    if m: extra.setdefault(pos - 1, []).append(m)
                    extra.setdefault(pos, []).append(ld)
                    if part == 3:
                        extra.setdefault(pos, []).extend(adv())
            if nvm is None: k("s_waitcnt lgkmcnt(0)")
            else: k(f"s_waitcnt vmcnt({nvm}) lgkmcnt(0)")
            if barrier: k("s_barrier")
            for idx, (p, a) in enumerate(order):
                k(mfma(cur, p, a))
                for e in extra.get(idx, []): k(e)
        for r in reads(0, 0): k(r)
        if not peel_first: issue_stage(3)
        ntrips = NK // NS
        if peel_first:
            iteration(0, [2, 3], 0)
            iteration(1, [0, 1], P)
            iteration(2, [2], 2 * P)
            iteration(3, [3], 2 * P)
            ntrips -= 1
        if peel_last: ntrips -= 1
        k(f"s_mov_b32 s{sCNT}, {ntrips}")
        loop = f"{name}_loop{tp}"
        k.label(loop)
        for u in range(NS): iteration(u, [u], 2 * P)
        k(f"s_sub_u32 s{sCNT}, s{sCNT}, 1")
        k(f"s_cmp_lg_u32 s{sCNT}, 0")
        k(f"s_cbranch_scc1 {loop}")
        def epi_setup():
            if cpf: code_pf(k, cpf[0], cpf[1], f"e{tp}", 24, -30, sp=60)
            if repack and tp == 1:
                k(f"v_lshrrev_b32 v24, 2, v{vPF}")
                k("v_subrev_u32 v24, 4096, v24")
                for i in range(7):
                    k(f"s_mov_b32 s41, {i*4096}")
                    k(f"buffer_load_dwordx4 v[{RP+4*i}:{RP+4*i+3}], v24, s[{SRD_P}:{SRD_P+3}], s41 offen")
            elif repack: pass
            elif pf: k(f"buffer_load_dword v31, v{vPF}, s[{SRD_P}:{SRD_P+3}], 0 offen")
            k(f"s_and_b32 s39, s{sW}, 3")
            k("s_lshl_b32 s40, s36, 2")
            k("s_add_u32 s39, s39, s40")
            k(f"s_mul_i32 s39, s39, {56*8192}")
            k("s_mul_i32 s40, s37, 7")
            k("s_and_b32 s41, s37, 1")
            k("s_cmp_eq_u32 s41, 0")
            if tp == 0:
                k("s_cselect_b32 s41, 0, 3")
                k("s_add_u32 s41, s41, s40")
                k("s_lshl_b32 s41, s41, 11")
                k("s_add_u32 s48, s41, s39")
                k("s_add_u32 s49, s48, 4096")
            else:
                k("s_cselect_b32 s41, 4, 1")
                k("s_cselect_b32 s42, 6, 0")
                k("s_add_u32 s41, s41, s40")
                k("s_lshl_b32 s41, s41, 11")
                k("s_add_u32 s48, s41, s39")
                k("s_add_u32 s42, s42, s40")
                k("s_lshr_b32 s41, s42, 1")
                k("s_lshl_b32 s41, s41, 12")
                k("s_and_b32 s42, s42, 1")
                k("s_lshl_b32 s42, s42, 3")
                k("s_add_u32 s41, s41, s42")
                k("s_add_u32 s49, s41, s39")
            for d in range(2):
                k(f"v_mov_b32 v{vC0+d}, {f2u(c0):#x}")
                k(f"v_mov_b32 v{vC1+d}, {f2u(c1):#x}")
                k(f"v_mov_b32 v{vONE+d}, 1.0")
        c0 = -2.0 * math.sqrt(2.0 / math.pi) * math.log2(math.e)
        c1 = c0 * 0.044715
        vC0, vC1, vONE = 16, 18, 28
        def pr(b): return f"v[{b}:{b+1}]"
        RP = 224
        def repack_store():
            srd(k, 52, 32, D*F*2, off_imm=WP_OFF)
            k(f"v_lshrrev_b32 v24, 6, v{vPF}")
            k("v_subrev_u32 v24, 256, v24")
            k("s_mul_i32 s41, s2, 14")
            k("v_bfe_u32 v25, v24, 4, 3")
            k(f"s_mov_b32 s42, {56*16384}")
            k("v_mul_lo_u32 v25, v25, s42")
            k("v_and_b32 v26, 15, v24")
            k("v_lshl_add_u32 v25, v26, 4, v25")
            k("v_lshrrev_b32 v24, 7, v24")
            k("v_add_u32 v24, s41, v24")
            for i in range(7):
                if i: k("v_add_u32 v24, 2, v24")
                k("v_lshrrev_b32 v26, 6, v24")
                k("v_lshl_add_u32 v27, v26, 14, v25")
                k("v_bfe_u32 v26, v24, 5, 1")
                k("v_lshl_add_u32 v27, v26, 13, v27")
                k("v_and_b32 v26, 7, v24")
                k("v_lshl_add_u32 v27, v26, 10, v27")
                k("v_bfe_u32 v26, v24, 3, 2")
                k("v_lshl_add_u32 v27, v26, 8, v27")
                if i == 0: k("s_waitcnt vmcnt(8)")
                k(f"buffer_store_dwordx4 v[{RP+4*i}:{RP+4*i+3}], v27, s[52:55], 0 offen{sf}")
        def epi(p, TB, OB):
            out = []
            gi = 0
            for g0 in range(0, nT, 2):
                jj = list(range(nT))[g0:g0+2]
                pairs = []
                for j in jj:
                    g = acc(p, j); u_ = acc(p, nT + j)
                    pairs += [(g, u_), (g + 2, u_ + 2)]
                T = TB + gi * 8; O = OB + gi * 4; gi += 1
                n = len(pairs)
                for q, (g, u_) in enumerate(pairs): out.append(f"v_pk_mul_f32 {pr(T+2*q)}, {pr(g)}, {pr(g)}")
                for q in range(n): out.append(f"v_pk_fma_f32 {pr(T+2*q)}, {pr(T+2*q)}, {pr(vC1)}, {pr(vC0)}")
                for q, (g, u_) in enumerate(pairs): out.append(f"v_pk_mul_f32 {pr(T+2*q)}, {pr(T+2*q)}, {pr(g)}")
                for q in range(2*n): out.append(f"v_exp_f32 v{T+q}, v{T+q}")
                for q, (g, u_) in enumerate(pairs): out.append(f"v_pk_mul_f32 {pr(u_)}, {pr(g)}, {pr(u_)}")
                for q in range(n): out.append(f"v_pk_add_f32 {pr(T+2*q)}, {pr(T+2*q)}, {pr(vONE)}")
                for q in range(2*n): out.append(f"v_rcp_f32 v{T+q}, v{T+q}")
                out.append("s_nop 0")
                for q, (g, u_) in enumerate(pairs): out.append(f"v_pk_mul_f32 {pr(u_)}, {pr(u_)}, {pr(T+2*q)}")
                for q, (g, u_) in enumerate(pairs): out.append(f"v_cvt_pk_bf16_f32 v{O+q}, v{u_}, v{u_+1}")
                if len(jj) == 2:
                    out.append(f"buffer_store_dwordx4 v[{O}:{O+3}], v{vSt}, s[{SRD_O}:{SRD_O+3}], s{48+g0//2} offen offset:{p*1024}{sf}")
                else:
                    out.append(f"buffer_store_dwordx2 v[{O}:{O+1}], v{vSt}, s[{SRD_O}:{SRD_O+3}], s49 offen offset:{p*1024}{sf2}")
            return out
        if peel_last:
            iteration(0, [], 2 * P)
            iteration(1, [], P)
            iteration(2, [], 0)
            cur = 1
            k("s_waitcnt lgkmcnt(0)")
            st(3)
            epi_setup()
            TBs = [FR[0], FR[0] + 16]
            OBs = [FR[0] + 32, FR[0] + 40]
            if fuse:
                for a in range(nA): k(mfma(cur, 0, a))
                for p in range(1, 4):
                    E = epi(p - 1, TBs[(p - 1) & 1], OBs[(p - 1) & 1])
                    M = [mfma(cur, p, a) for a in range(nA)]
                    k(M[0]); k(M[1]); k("s_nop 5")
                    rest = M[2:]
                    step = max(1, len(E) // (len(rest) + 1))
                    mi = 0
                    for ei, e in enumerate(E):
                        k(e)
                        if (ei + 1) % step == 0 and mi < len(rest):
                            k(rest[mi]); mi += 1
                    while mi < len(rest): k(rest[mi]); mi += 1
                k("s_nop 7")
                for e in epi(3, TBs[1], OBs[1]): k(e)
            else:
                for (p, a) in order: k(mfma(cur, p, a))
                k("s_nop 7")
                for p in range(4):
                    for e in epi(p, TBs[p & 1], OBs[p & 1]): k(e)
        else:
            st(3)
            epi_setup()
            k("s_nop 7")
            for p in range(4):
                for e in epi(p, 32 + (p & 1) * 16, 64 + (p & 1) * 8): k(e)
        if repack and tp == 1: repack_store()
        st.end(32, sW)
        k("s_endpgm")
    body(0)
    k.label(f"{name}_typeB")
    body(1)
    k.label(f"{name}_end")
    k("s_endpgm")
    k.lds = NS * STAGE
    k.grid = 256
    k.block = 512
    return k
```

```python
from asmlib import *
from layout import *

def gen_gemm4b(name="g4_kernel", NS=4, stamps=False, nomfma=False, wf='', af='', sf='', rd_per=1.0, spin_max=1 << 20, wsflag=True, fine=False, waveflag=False, latex=True, noW=False, noA=False, etmap=0, nords=False, cprio=None, rdper=1, rdskip=0, nobar=False, tagged=False, psleep=2, wcontig=False, bfx=False, fsleep=1, esplit=False, cdma=False, wpack=False):
    k = Kern(name)
    stp = Stamps(k, stamps, 4)
    PA = 1056
    AREG = 16 * PA
    STAGE = AREG + 16 * 1024
    NK = 28
    SRD_W, SRD_A, SRD_O, SRD_X, SRD_M, SRD_PW, SRD_PR, SRD_D = 8, 12, 16, 20, 24, 44, 48, 52
    sW, sKW, sKA, sCNT, sRD, sDM, sH = 28, 29, 30, 31, 40, 41, 56
    k("s_cmp_ge_u32 s2, 256")
    k(f"s_cbranch_scc1 {name}_end")
    stp.start()
    k(f"s_load_dwordx2 s[4:5], s[0:1], {KA['wd']}")
    k(f"s_load_dwordx2 s[6:7], s[0:1], {KA['out']}")
    k(f"s_load_dwordx2 s[32:33], s[0:1], {KA['ws']}")
    k(f"s_load_dwordx2 s[58:59], s[0:1], {KA['dbg']}")
    k("v_lshrrev_b32 v1, 6, v0")
    k("v_and_b32 v0, 63, v0")
    k(f"v_readfirstlane_b32 s{sW}, v1")
    k("s_and_b32 s34, s2, 7")
    k("s_lshr_b32 s35, s2, 3")
    k(f"s_and_b32 s{sH}, s35, 1")
    k("s_lshr_b32 s35, s35, 1")
    if etmap == 0:
        k("s_and_b32 s36, s34, 1")
        k("s_lshl_b32 s36, s36, 2")
        k("s_and_b32 s37, s35, 3")
        k("s_add_u32 s36, s36, s37")
    else:
        k("s_and_b32 s36, s35, 3")
        k("s_lshl_b32 s36, s36, 1")
        k("s_and_b32 s37, s34, 1")
        k("s_add_u32 s36, s36, s37")
    k("s_lshr_b32 s37, s34, 1")
    k("s_lshl_b32 s37, s37, 2")
    k("s_lshr_b32 s38, s35, 2")
    k("s_add_u32 s37, s37, s38")
    k("v_lshrrev_b32 v16, 4, v0")
    k("v_lshlrev_b32 v3, 4, v0")
    k(f"s_cmp_ge_u32 s{sW}, 4")
    k(f"s_cbranch_scc1 {name}_prod")
    vRA, vRB0, vRB2, vRAc, vRB0c, vRB2c = 4, 5, 6, 7, 8, 9
    FR = [32, 96]
    ACC = 160
    def Af(s, ks, a): return FR[s] + (ks * 4 + a) * 4
    def Bf(s, ks, p): return FR[s] + 32 + (ks * 4 + p) * 4
    def acc(p, a): return ACC + (p * 4 + a) * 4
    k("v_and_b32 v17, 1, v16")
    k("v_lshlrev_b32 v17, 2, v17")
    k("v_bfe_u32 v18, v0, 2, 2")
    k("v_add_u32 v17, v17, v18")
    k(f"s_mov_b32 s39, {PA}")
    k("v_mul_lo_u32 v17, v17, s39")
    k("v_lshrrev_b32 v18, 1, v16")
    k("v_lshlrev_b32 v18, 8, v18")
    k("v_add_u32 v17, v17, v18")
    k("v_and_b32 v18, 3, v0")
    k("v_lshlrev_b32 v18, 3, v18")
    k("v_add_u32 v17, v17, v18")
    k(f"s_and_b32 s39, s{sW}, 1")
    k("s_lshl_b32 s39, s39, 7")
    k(f"v_add_u32 v{vRA}, s39, v17")
    k(f"s_lshr_b32 s39, s{sW}, 1")
    k("s_lshl_b32 s39, s39, 13")
    k(f"s_add_u32 s39, s39, {AREG}")
    k(f"s_lshl_b32 s38, s{sH}, 11")
    k("s_add_u32 s42, s39, s38")
    k(f"v_add_u32 v{vRB0}, s42, v3")
    k("s_xor_b32 s38, s38, 2048")
    k("s_add_u32 s42, s39, s38")
    k(f"v_add_u32 v{vRB2}, s42, v3")
    for r in range(4): k(f"v_mov_b32 v{24+r}, 0")
    k("s_nop 1")
    for r in range(0, 64, 16):
        k(f"v_mfma_f32_32x32x16_bf16 v[{ACC+r}:{ACC+r+15}], v[24:27], v[24:27], 0")
    vXO, vGO = 10, 11
    k("v_and_b32 v17, 15, v0")
    k("v_lshlrev_b32 v17, 11, v17")
    k("v_and_b32 v18, 1, v16")
    k("v_lshlrev_b32 v18, 5, v18")
    k("v_add_u32 v17, v17, v18")
    k("v_lshrrev_b32 v18, 1, v16")
    k("v_lshlrev_b32 v18, 4, v18")
    k("v_add_u32 v17, v17, v18")
    k(f"s_and_b32 s39, s{sW}, 1")
    k(f"s_lshl_b32 s39, s39, {10 if esplit else 7}")
    k(f"s_lshr_b32 s38, s{sW}, 1")
    k("s_lshl_b32 s38, s38, 17")
    k("s_add_u32 s39, s39, s38")
    k(f"s_lshl_b32 s38, s{sH}, 16")
    k("s_add_u32 s39, s39, s38")
    k(f"v_add_u32 v{vXO}, s39, v17")
    k("v_and_b32 v17, 1, v16")
    k("v_lshlrev_b32 v17, 6, v17")
    k("v_lshrrev_b32 v18, 1, v16")
    k("v_lshlrev_b32 v18, 5, v18")
    k("v_add_u32 v17, v17, v18")
    k(f"s_and_b32 s39, s{sW}, 1")
    k(f"s_lshl_b32 s39, s39, {11 if esplit else 8}")
    k(f"v_add_u32 v{vGO}, s39, v17")
    k("s_waitcnt lgkmcnt(0)")
    if tagged: k(f"s_load_dwordx2 s[96:97], s[32:33], {EPOCH_OFF:#x}")
    k("s_lshl_b32 s39, s37, 18")
    k(f"s_lshl_b32 s38, s36, {7 if esplit else 8}")
    k("s_add_u32 s39, s39, s38")
    k(f"s_sub_u32 s38, {S*D*2}, s39")
    srd(k, SRD_O, 6, "s38", off_s="s39")
    srd(k, SRD_X, 32, "s38", off_s="s39", off_imm=X1_OFF)
    k(f"s_lshl_b32 s39, s36, {8 if esplit else 9}")
    srd(k, SRD_M, 32, 2048 + 256 if esplit else 512, off_s="s39", off_imm=MODF_OFF + 5 * 4096)
    k("s_lshl_b32 s39, s37, 3")
    k("s_add_u32 s39, s39, s36")
    k("s_lshl_b32 s39, s39, 1")
    k(f"s_xor_b32 s38, s{sH}, 1")
    k("s_add_u32 s38, s38, s39")
    k("s_lshl_b32 s38, s38, 2")
    k(f"s_add_u32 s38, s38, s{sW}")
    k(f"s_lshl_b32 s38, s38, {14 if tagged else 13}")
    srd(k, SRD_PW, 32, 16384 if tagged else 8192, off_s="s38", off_imm=PART_OFF)
    k(f"s_add_u32 s38, s39, s{sH}")
    k("s_lshl_b32 s38, s38, 2")
    k(f"s_add_u32 s38, s38, s{sW}")
    k(f"s_lshl_b32 s38, s38, {14 if tagged else 13}")
    srd(k, SRD_PR, 32, 16384 if tagged else 8192, off_s="s38", off_imm=PART_OFF)
    if wsflag: srd(k, SRD_D, 32, 256*128, off_imm=FLAG_OFF)
    else: srd(k, SRD_D, 58, 256)
    XR = 224
    GB = 240
    def xloads():
        for p in range(2):
            for pp in range(2):
                k(f"s_mov_b32 s38, {p*16*2048}")
                k(f"buffer_load_dwordx4 v[{XR+(p*2+pp)*4}:{XR+(p*2+pp)*4+3}], v{vXO}, s[{SRD_X}:{SRD_X+3}], s38 offen offset:{pp*64}")
        for pp in range(2):
            k(f"buffer_load_dwordx4 v[{GB+pp*8}:{GB+pp*8+3}], v{vGO}, s[{SRD_M}:{SRD_M+3}], 0 offen offset:{pp*128}")
            k(f"buffer_load_dwordx4 v[{GB+pp*8+4}:{GB+pp*8+7}], v{vGO}, s[{SRD_M}:{SRD_M+3}], 0 offen offset:{pp*128+16}")
    if not latex: xloads()
    def reads(setn):
        out = []
        for ks in range(2):
            A = []
            for a in range(4):
                for h in range(2):
                    off = ks * 8 * PA + a * 32 + h * 512
                    A.append(f"ds_read_b64_tr_b16 v[{Af(setn,ks,a)+2*h}:{Af(setn,ks,a)+2*h+1}], v{vRAc} offset:{off}")
            B = []
            for p in range(4):
                base = vRB0c if p < 2 else vRB2c
                off = ks * 4096 + (p & 1) * 1024
                B.append(f"ds_read_b128 v[{Bf(setn,ks,p)}:{Bf(setn,ks,p)+3}], v{base} offset:{off}")
            out += [B[0]] + A[:2] + [B[1]] + A[2:4] + [B[2]] + A[4:6] + [B[3]] + A[6:]
        return out
    def setaddr():
        k(f"v_add_u32 v{vRAc}, s{sRD}, v{vRA}")
        k(f"v_add_u32 v{vRB0c}, s{sRD}, v{vRB0}")
        k(f"v_add_u32 v{vRB2c}, s{sRD}, v{vRB2}")
    sCD, sCK, sCB, vCD = 66, 67, 68, 12
    def issueC():
        return [f"s_add_u32 m0, s{sCD}, s{sCB}", f"s_add_u32 s{sCD}, s{sCD}, {STAGE}",
                f"buffer_load_dwordx4 v{vCD}, s[{SRD_A}:{SRD_A+3}], s{sCK} offen lds",
                f"buffer_load_dwordx4 v{vCD}, s[{SRD_A}:{SRD_A+3}], s{sCK} offen offset:1024 lds",
                f"s_cmp_eq_u32 s{sCD}, {NS*STAGE}", f"s_cselect_b32 s{sCD}, 0, s{sCD}", f"s_add_u32 s{sCK}, s{sCK}, 8192"]
    if cdma:
        k(f"s_mul_i32 s39, s37, {2*56*8192}")
        k(f"s_mul_i32 s38, s{sH}, {28*8192}")
        k("s_add_u32 s39, s39, s38")
        k(f"s_lshr_b32 s38, s{sW}, 1")
        k(f"s_mul_i32 s38, s38, {56*8192}")
        k("s_add_u32 s39, s39, s38")
        srd(k, SRD_A, 32, 28*8192, off_s="s39", off_imm=ACT_OFF)
        k(f"s_and_b32 s38, s{sW}, 1")
        k("s_lshl_b32 s38, s38, 12")
        k("s_add_u32 s38, s38, 2048")
        k(f"v_add_u32 v{vCD}, s38, v3")
        k(f"s_lshl_b32 s{sCB}, s{sW}, 12")
        k(f"s_add_u32 s{sCB}, s{sCB}, {AREG + 2048}")
        k(f"s_mov_b32 s{sCD}, 0")
        k(f"s_mov_b32 s{sCK}, 0")
        for i in range(2):
            for l in issueC(): k(l)
        xloads()
        k("s_waitcnt vmcnt(10)")
    k(f"s_mov_b32 s{sRD}, 0")
    setaddr()
    k("s_barrier")
    if not fine: stp(1)
    for r in reads(0): k(r)
    if latex and not cdma: xloads()
    if cdma:
        for i in range(2, NS):
            for l in issueC(): k(l)
    k(f"s_mov_b32 s{sRD}, {STAGE}")
    setaddr()
    k(f"s_mov_b32 s{sCNT}, {NK//2}")
    if cprio is not None: k(f"s_setprio {cprio}")
    loop = f"{name}_cloop"
    k.label(loop)
    for u in range(2):
        cur = u; nxt = u ^ 1
        rd = reads(nxt)
        order = [(ks, p, a) for ks in range(2) for p in range(4) for a in range(4)]
        if cdma: k(f"s_waitcnt vmcnt({2*(NS-2)}) lgkmcnt(0)")
        else: k("s_waitcnt lgkmcnt(0)")
        k("s_barrier")
        ri = 0
        ic = issueC() if cdma else []
        for idx, (ks, p, a) in enumerate(order):
            if not nomfma:
                k(f"v_mfma_f32_16x16x32_bf16 v[{acc(p,a)}:{acc(p,a)+3}], v[{Af(cur,ks,a)}:{Af(cur,ks,a)+3}], v[{Bf(cur,ks,p)}:{Bf(cur,ks,p)+3}], v[{acc(p,a)}:{acc(p,a)+3}]")
            if idx >= rdskip:
                for _ in range(rdper):
                    if ri < len(rd):
                        if not nords: k(rd[ri])
                        ri += 1
            if idx == 25:
                k(f"s_add_u32 s{sRD}, s{sRD}, {STAGE}")
                k(f"s_cmp_eq_u32 s{sRD}, {NS*STAGE}")
                k(f"s_cselect_b32 s{sRD}, 0, s{sRD}")
            if idx == 27: setaddr()
            if cdma:
                if idx == 24: k(ic[0]); k(ic[1])
                if idx == 26: k(ic[2])
                if idx == 28: k(ic[3])
                if idx == 29: k(ic[4]); k(ic[5]); k(ic[6])
    k(f"s_sub_u32 s{sCNT}, s{sCNT}, 1")
    k(f"s_cmp_lg_u32 s{sCNT}, 0")
    k(f"s_cbranch_scc1 {loop}")
    stp(1 if fine else 2)
    if tagged:
        k("s_nop 7")
        k("s_waitcnt lgkmcnt(0)")
        SEND = ACC + 32
        QS, QR = 32, 96
        for j in range(16):
            k(f"v_mov_b64 v[{QS+4*j}:{QS+4*j+1}], v[{SEND+2*j}:{SEND+2*j+1}]")
            k(f"v_mov_b64 v[{QS+4*j+2}:{QS+4*j+3}], s[96:97]")
        for j in range(16):
            if j % 4 == 0: k(f"s_mov_b32 s39, {j*1024}")
            k(f"buffer_store_dwordx4 v[{QS+4*j}:{QS+4*j+3}], v3, s[{SRD_PW}:{SRD_PW+3}], s39 offen offset:{(j%4)*1024} sc1")
        if fine: stp(2)
        k(f"s_mov_b32 s43, {spin_max}")
        k("s_mov_b32 s38, 15360")
        k.label(f"{name}_poll")
        k(f"buffer_load_dwordx4 v[{QR+60}:{QR+63}], v3, s[{SRD_PR}:{SRD_PR+3}], s38 offen sc1")
        k("s_waitcnt vmcnt(0)")
        k(f"v_cmp_eq_u64 vcc, s[96:97], v[{QR+62}:{QR+63}]")
        k("s_cmp_eq_u64 vcc, exec")
        k(f"s_cbranch_scc1 {name}_last")
        k("s_sub_u32 s43, s43, 1")
        k("s_cmp_lg_u32 s43, 0")
        k(f"s_cbranch_scc0 {name}_got")
        k(f"s_sleep {psleep}")
        k(f"s_branch {name}_poll")
        k.label(f"{name}_last")
        for j in range(15):
            if j % 4 == 0: k(f"s_mov_b32 s39, {j*1024}")
            k(f"buffer_load_dwordx4 v[{QR+4*j}:{QR+4*j+3}], v3, s[{SRD_PR}:{SRD_PR+3}], s39 offen offset:{(j%4)*1024} sc1")
        k("s_mov_b64 s[98:99], -1")
        for j in range(15):
            k(f"s_waitcnt vmcnt({14-j})")
            k(f"v_cmp_eq_u64 vcc, s[96:97], v[{QR+4*j+2}:{QR+4*j+3}]")
            k("s_and_b64 s[98:99], s[98:99], vcc")
        k("s_cmp_eq_u64 s[98:99], exec")
        k(f"s_cbranch_scc1 {name}_got")
        k("s_sub_u32 s43, s43, 1")
        k("s_cmp_lg_u32 s43, 0")
        k(f"s_cbranch_scc1 {name}_last")
        k.label(f"{name}_got")
        if fine: stp(3)
        for j in range(16):
            k(f"v_pk_add_f32 v[{ACC+2*j}:{ACC+2*j+1}], v[{ACC+2*j}:{ACC+2*j+1}], v[{QR+4*j}:{QR+4*j+1}]")
    else:
        k("s_nop 7")
        if bfx:
            for q in range(16):
                k(f"v_cvt_pk_bf16_f32 v{32+q}, v{ACC+32+2*q}, v{ACC+32+2*q+1}")
            for j in range(4):
                k(f"buffer_store_dwordx4 v[{32+4*j}:{35+4*j}], v3, s[{SRD_PW}:{SRD_PW+3}], 0 offen offset:{j*1024} sc1")
        else:
            for p in (2, 3):
                for a in range(4):
                    j = (p - 2) * 4 + a
                    so = "0" if j < 4 else "s39"
                    if j == 4: k("s_mov_b32 s39, 4096")
                    k(f"buffer_store_dwordx4 v[{acc(p,a)}:{acc(p,a)+3}], v3, s[{SRD_PW}:{SRD_PW+3}], {so} offen offset:{(j&3)*1024} sc1")
        if waveflag:
            k("s_waitcnt vmcnt(0) lgkmcnt(0)")
            if fine: stp(2)
            k("s_lshl_b32 s38, s2, 7")
            k(f"s_lshl_b32 s39, s{sW}, 4")
            k("s_add_u32 s38, s38, s39")
            k("v_mov_b32 v20, 1")
            k("v_mov_b32 v21, s38")
            k("s_mov_b64 exec, 1")
            k(f"buffer_store_dword v20, v21, s[{SRD_D}:{SRD_D+3}], 0 offen sc1")
            k("s_xor_b32 s38, s38, 1024")
            k("v_mov_b32 v21, s38")
            k(f"s_mov_b32 s43, {spin_max}")
            k.label(f"{name}_poll")
            k(f"buffer_load_dword v22, v21, s[{SRD_D}:{SRD_D+3}], 0 offen sc1")
            k("s_waitcnt vmcnt(0)")
            k("v_readfirstlane_b32 s42, v22")
            k("s_cmp_lg_u32 s42, 0")
            k(f"s_cbranch_scc1 {name}_got")
            k("s_sub_u32 s43, s43, 1")
            k("s_cmp_lg_u32 s43, 0")
            k(f"s_cbranch_scc0 {name}_got")
            k(f"s_sleep {fsleep}") if fsleep else None
            k(f"s_branch {name}_poll")
            k.label(f"{name}_got")
            k("s_mov_b64 exec, -1")
            if fine: stp(3)
        else:
            k("s_waitcnt vmcnt(0) lgkmcnt(0)")
            k("s_barrier")
            if fine: stp(2)
            k(f"s_cmp_lg_u32 s{sW}, 0")
            k(f"s_cbranch_scc1 {name}_nopoll")
            if wsflag:
                k("s_lshl_b32 s38, s2, 7")
                k("v_mov_b32 v20, 1")
                k("v_mov_b32 v21, s38")
                k("s_mov_b64 exec, 1")
                k(f"buffer_store_dword v20, v21, s[{SRD_D}:{SRD_D+3}], 0 offen sc1")
                k("s_xor_b32 s42, s2, 8")
                k("s_lshl_b32 s38, s42, 7")
                k("s_mov_b32 s39, 1")
                k("v_mov_b32 v21, s38")
            else:
                k("s_lshr_b32 s38, s2, 5")
                k("s_lshl_b32 s38, s38, 2")
                k("s_and_b32 s39, s2, 31")
                k("s_lshl_b32 s39, 1, s39")
                k("v_mov_b32 v20, s39")
                k("v_mov_b32 v21, s38")
                k("s_mov_b64 exec, 1")
                k(f"buffer_atomic_add v20, v21, s[{SRD_D}:{SRD_D+3}], 0 offen sc1")
                k("s_xor_b32 s42, s2, 8")
                k("s_lshr_b32 s38, s42, 5")
                k("s_lshl_b32 s38, s38, 2")
                k("s_and_b32 s39, s42, 31")
                k("s_lshl_b32 s39, 1, s39")
                k("v_mov_b32 v21, s38")
            k(f"s_mov_b32 s43, {spin_max}")
            k.label(f"{name}_poll")
            k(f"buffer_load_dword v22, v21, s[{SRD_D}:{SRD_D+3}], 0 offen sc1")
            k("s_waitcnt vmcnt(0)")
            k("v_readfirstlane_b32 s42, v22")
            k("s_and_b32 s42, s42, s39")
            k(f"s_cbranch_scc1 {name}_got")
            k("s_sub_u32 s43, s43, 1")
            k("s_cmp_lg_u32 s43, 0")
            k(f"s_cbranch_scc0 {name}_got")
            k(f"s_sleep {fsleep}") if fsleep else None
            k(f"s_branch {name}_poll")
            k.label(f"{name}_got")
            k("s_mov_b64 exec, -1")
            k.label(f"{name}_nopoll")
            k("s_barrier")
            if fine: stp(3)
        RV = 32
        if bfx:
            for j in range(4):
                k(f"buffer_load_dwordx4 v[{64+4*j}:{67+4*j}], v3, s[{SRD_PR}:{SRD_PR+3}], 0 offen offset:{j*1024} sc1")
            k("s_waitcnt vmcnt(0)")
            for q in range(16):
                k(f"v_lshlrev_b32 v{RV+2*q}, 16, v{64+q}")
                k(f"v_and_b32 v{RV+2*q+1}, 0xffff0000, v{64+q}")
        else:
            for j in range(8):
                so = "0" if j < 4 else "s39"
                if j == 4: k("s_mov_b32 s39, 4096")
                k(f"buffer_load_dwordx4 v[{RV+4*j}:{RV+4*j+3}], v3, s[{SRD_PR}:{SRD_PR+3}], {so} offen offset:{(j&3)*1024} sc1")
    RV = 32
    T = 96
    for p in range(2):
        if not tagged:
            if not bfx: k(f"s_waitcnt vmcnt({4 if p == 0 else 2})")
            for a in range(4):
                for r in range(0, 4, 2):
                    k(f"v_pk_add_f32 v[{acc(p,a)+r}:{acc(p,a)+r+1}], v[{acc(p,a)+r}:{acc(p,a)+r+1}], v[{RV+(p*4+a)*4+r}:{RV+(p*4+a)*4+r+1}]")
        k("s_nop 1")
        for pp in range(2):
            a0, a1 = acc(p, 2*pp), acc(p, 2*pp+1)
            for r in range(4):
                k(f"v_permlane16_swap_b32 v{a0+r}, v{a1+r}")
        for pp in range(2):
            a0, a1 = acc(p, 2*pp), acc(p, 2*pp+1)
            xr = XR + (p*2+pp)*4
            t = T + (p*2+pp) * 8
            for d in range(4):
                k(f"v_lshlrev_b32 v{t+2*d}, 16, v{xr+d}")
                k(f"v_and_b32 v{t+2*d+1}, 0xffff0000, v{xr+d}")
            for e in range(0, 8, 2):
                src = (a0 + e) if e < 4 else (a1 + e - 4)
                k(f"v_pk_fma_f32 v[{t+e}:{t+e+1}], v[{src}:{src+1}], v[{GB+pp*8+e}:{GB+pp*8+e+1}], v[{t+e}:{t+e+1}]")
            for d in range(4):
                k(f"v_cvt_pk_bf16_f32 v{xr+d}, v{t+2*d}, v{t+2*d+1}")
            k(f"s_mov_b32 s38, {p*16*2048}")
            k(f"buffer_store_dwordx4 v[{xr}:{xr+3}], v{vXO}, s[{SRD_O}:{SRD_O+3}], s38 offen offset:{pp*64}{sf}")
    if not fine: stp(3)
    stp.end(32, sW)
    k("s_endpgm")
    k.label(f"{name}_prod")
    vDA = [4, 5, 6, 7]
    vDB = 8
    k(f"s_sub_u32 s{sW}, s{sW}, 4")
    k("v_lshlrev_b32 v17, 3, v16")
    k(f"s_lshl_b32 s39, s{sW}, 1")
    k("v_add_u32 v17, s39, v17")
    k("v_lshlrev_b32 v17, 11, v17")
    if esplit:
        k("v_and_b32 v18, 7, v0")
        k("v_lshlrev_b32 v18, 4, v18")
        k("v_bfe_u32 v19, v0, 3, 1")
        k("v_lshl_add_u32 v18, v19, 10, v18")
    else:
        k("v_and_b32 v18, 15, v0")
        k("v_lshlrev_b32 v18, 4, v18")
    k(f"v_add_u32 v{vDA[0]}, v17, v18")
    k(f"v_add_u32 v{vDA[1]}, {2048 - PA}, v{vDA[0]}")
    k(f"v_add_u32 v{vDA[2]}, {32*2048}, v{vDA[0]}")
    k(f"v_add_u32 v{vDA[3]}, {33*2048 - PA}, v{vDA[0]}")
    k(f"s_and_b32 s38, s{sW}, 1")
    k("s_lshl_b32 s38, s38, 12")
    k(f"v_add_u32 v{vDB}, s38, v3")
    sBA, sBB = 42, 43
    k(f"s_mul_i32 s{sBA}, s{sW}, {2*PA}")
    k(f"s_lshl_b32 s{sBB}, s{sW}, 12")
    k(f"s_add_u32 s{sBB}, s{sBB}, {AREG}")
    k("s_waitcnt lgkmcnt(0)")
    k(f"s_lshl_b32 s39, s36, {7 if esplit else 8}")
    k(f"s_mul_i32 s38, s{sH}, {28*64*2048}")
    k("s_add_u32 s39, s39, s38")
    srd(k, SRD_W, 4, 28*64*2048, off_s="s39")
    k(f"s_mul_i32 s39, s37, {2*56*8192}")
    k(f"s_mul_i32 s38, s{sH}, {28*8192}")
    k("s_add_u32 s39, s39, s38")
    k(f"s_lshr_b32 s38, s{sW}, 1")
    k(f"s_mul_i32 s38, s38, {56*8192}")
    k("s_add_u32 s39, s39, s38")
    srd(k, SRD_A, 32, 28*8192, off_s="s39", off_imm=ACT_OFF)
    if wpack:
        k(f"s_lshl_b32 s39, s{sW}, 11")
        k(f"v_add_u32 v{vDA[0]}, s39, v3")
        k(f"v_add_u32 v{vDA[2]}, 8192, v{vDA[0]}")
        k(f"s_mul_i32 s39, s36, {56*16384}")
        k(f"s_mul_i32 s38, s{sH}, {28*16384}")
        k("s_add_u32 s39, s39, s38")
        srd(k, SRD_W, 32, 28*16384, off_s="s39", off_imm=WP_OFF)
    if wcontig:
        k(f"s_lshl_b32 s39, s{sW}, 11")
        k("s_add_u32 s39, s39, 64")
        k(f"v_add_u32 v{vDA[0]}, s39, v3")
        k(f"v_subrev_u32 v{vDA[1]}, {PA-1024}, v{vDA[0]}")
        k(f"v_add_u32 v{vDA[2]}, 8192, v{vDA[0]}")
        k(f"v_add_u32 v{vDA[3]}, 8192, v{vDA[1]}")
        k("s_lshl_b32 s39, s36, 1")
        k(f"s_add_u32 s39, s39, s{sH}")
        k(f"s_mul_i32 s39, s39, {28*16384}")
        srd(k, SRD_W, 4, 28*16384, off_s="s39")
    k(f"s_mov_b32 s{sKW}, 0")
    k(f"s_mov_b32 s{sKA}, 0")
    if noW: k(f"s_mov_b32 s{SRD_W+2}, 0")
    if noA: k(f"s_mov_b32 s{SRD_A+2}, 0")
    def issue(stg):
        base = stg * STAGE
        if wpack:
            k(f"s_add_u32 m0, s{sBA}, {base}")
            k(f"s_add_u32 s44, s{sBA}, {base + PA - 1024}")
            k(f"buffer_load_dwordx4 v{vDA[0]}, s[{SRD_W}:{SRD_W+3}], s{sKW} offen lds")
            k(f"s_mov_b32 m0, s44")
            k(f"s_add_u32 s44, s{sBA}, {base + 8*PA}")
            k(f"buffer_load_dwordx4 v{vDA[0]}, s[{SRD_W}:{SRD_W+3}], s{sKW} offen offset:1024 lds")
            k(f"s_mov_b32 m0, s44")
            k(f"s_add_u32 s44, s{sBA}, {base + 9*PA - 1024}")
            k(f"buffer_load_dwordx4 v{vDA[2]}, s[{SRD_W}:{SRD_W+3}], s{sKW} offen lds")
            k(f"s_mov_b32 m0, s44")
            k(f"s_add_u32 s45, s{sBB}, {base}")
            k(f"buffer_load_dwordx4 v{vDA[2]}, s[{SRD_W}:{SRD_W+3}], s{sKW} offen offset:1024 lds")
            k(f"s_mov_b32 m0, s45")
            k(f"s_add_u32 s{sKW}, s{sKW}, 16384")
            for q in range(4):
                k(f"buffer_load_dwordx4 v{vDB}, s[{SRD_A}:{SRD_A+3}], s{sKA} offen offset:{q*1024}{af} lds")
            k(f"s_add_u32 s{sKA}, s{sKA}, 8192")
            return
        k(f"s_add_u32 m0, s{sBA}, {base}")
        k(f"s_add_u32 s44, s{sBA}, {base + 8*PA}")
        k(f"buffer_load_dwordx4 v{vDA[0]}, s[{SRD_W}:{SRD_W+3}], s{sKW} offen{wf} lds")
        k(f"buffer_load_dwordx4 v{vDA[1]}, s[{SRD_W}:{SRD_W+3}], s{sKW} offen offset:{PA}{wf} lds")
        k(f"s_mov_b32 m0, s44")
        k(f"s_add_u32 s45, s{sBB}, {base}")
        k(f"buffer_load_dwordx4 v{vDA[2]}, s[{SRD_W}:{SRD_W+3}], s{sKW} offen{wf} lds")
        k(f"buffer_load_dwordx4 v{vDA[3]}, s[{SRD_W}:{SRD_W+3}], s{sKW} offen offset:{PA}{wf} lds")
        k(f"s_mov_b32 m0, s45")
        k(f"s_add_u32 s{sKW}, s{sKW}, {16384 if wcontig else 64*2048}")
        for q in range(2 if cdma else 4):
            k(f"buffer_load_dwordx4 v{vDB}, s[{SRD_A}:{SRD_A+3}], s{sKA} offen offset:{q*1024}{af} lds")
        k(f"s_add_u32 s{sKA}, s{sKA}, 8192")
    NP = 6 if cdma else 8
    issue(0); issue(1)
    k(f"s_waitcnt vmcnt({NP})")
    k("s_barrier")
    for stg in range(2, NS): issue(stg)
    k(f"s_mov_b32 s{sCNT}, {NK // NS}")
    ploop = f"{name}_ploop"
    k.label(ploop)
    for u in range(NS):
        k(f"s_waitcnt vmcnt({NP*(NS-2)})")
        k("s_barrier")
        issue(u)
    k(f"s_sub_u32 s{sCNT}, s{sCNT}, 1")
    k(f"s_cmp_lg_u32 s{sCNT}, 0")
    k(f"s_cbranch_scc1 {ploop}")
    k.label(f"{name}_end")
    k("s_endpgm")
    k.lds = NS * STAGE
    k.grid = 256
    k.block = 512
    return k
```

```python
from asmlib import *
from layout import *
import math, struct
from ka_util import *
from kb import kb_consts
from kc import kc_consts

def gen_ka(name="ka_kernel", nt=True, stamps=False, sf='', xnt=True, codepf=None, selfpf=False, tlbpf=0, helpers=0, htlb=0, flags=False, tables=True):
    k = Kern(name)
    st = Stamps(k, stamps, 0)
    ntf = " nt" if nt else ""
    xntf = " nt" if xnt else ""
    NG = 257 if tables else 256
    k(f"s_cmp_ge_u32 s2, {NG + helpers}")
    k(f"s_cbranch_scc1 {name}_end")
    if helpers:
        k("s_cmp_ge_u32 s2, 257")
        k(f"s_cbranch_scc1 {name}_help")
    if selfpf:
        k("s_cmp_ge_u32 s2, 8")
        k(f"s_cbranch_scc1 {name}_nospf")
        k("s_getpc_b64 s[56:57]")
        k.label(f"{name}_pc0")
        k(f"s_mov_b32 s58, {codepf[0]}-{name}_pc0")
        k("v_lshlrev_b32 v100, 6, v0")
        k("v_cmp_gt_u32 vcc, s58, v100")
        k("s_and_saveexec_b64 s[40:41], vcc")
        k("v_mov_b32 v103, s57")
        k("v_add_co_u32 v102, vcc, s56, v100")
        k("s_nop 1")
        k("v_addc_co_u32 v103, vcc, 0, v103, vcc")
        k(f"s_cbranch_execz {name}_spf1")
        k("global_load_dword v106, v[102:103], off")
        k.label(f"{name}_spf1")
        k("s_mov_b64 exec, s[40:41]")
        k.label(f"{name}_nospf")
    st.start()
    k(f"s_load_dwordx2 s[32:33], s[0:1], {KA['ws']}")
    k("v_lshrrev_b32 v1, 6, v0")
    k("v_and_b32 v2, 63, v0")
    k("v_readfirstlane_b32 s28, v1")
    if tables:
        k("s_cmp_eq_u32 s2, 256")
        k(f"s_cbranch_scc1 {name}_tab")
    if codepf and not helpers:
        first, last = codepf
        k("s_cmp_ge_u32 s2, 8")
        k(f"s_cbranch_scc1 {name}_nocpf")
        k("s_getpc_b64 s[56:57]")
        k.label(f"{name}_pc")
        k(f"s_add_u32 s56, s56, {first}-{name}_pc")
        k("s_addc_u32 s57, s57, 0")
        k(f"s_mov_b32 s58, {last}-{first}")
        k("v_lshlrev_b32 v100, 6, v0")
        for q in range(2):
            if q: k("v_add_u32 v100, 0x8000, v100")
            k("v_cmp_gt_u32 vcc, s58, v100")
            k("s_and_saveexec_b64 s[40:41], vcc")
            k(f"s_cbranch_execz {name}_cpf{q}")
            k("v_mov_b32 v103, s57")
            k("v_add_co_u32 v102, vcc, s56, v100")
            k("s_nop 1")
            k("v_addc_co_u32 v103, vcc, 0, v103, vcc")
            k(f"global_load_dword v{104+q}, v[102:103], off")
            k.label(f"{name}_cpf{q}")
            k("s_mov_b64 exec, s[40:41]")
        k.label(f"{name}_nocpf")
    k(f"s_load_dwordx2 s[4:5], s[0:1], {KA['x']}")
    k(f"s_load_dwordx2 s[6:7], s[0:1], {KA['wmod']}")
    k(f"s_load_dwordx2 s[42:43], s[0:1], {KA['c']}")
    k("v_and_b32 v3, 7, v2")
    k("v_lshrrev_b32 v4, 3, v2")
    k("v_lshlrev_b32 v5, 11, v3")
    k("v_lshlrev_b32 v6, 3, v4")
    k("v_add_u32 v5, v5, v6")
    k("s_lshl_b32 s34, s28, 8")
    k("v_add_u32 v5, s34, v5")
    k("s_lshr_b32 s35, s2, 3")
    k("s_and_b32 s36, s35, 3")
    k("s_lshr_b32 s37, s35, 3")
    k("s_and_b32 s37, s37, 1")
    k("s_lshl_b32 s37, s37, 2")
    k("s_or_b32 s36, s36, s37")
    k("s_lshl_b32 s36, s36, 2")
    k("s_and_b32 s37, s2, 7")
    k("s_lshl_b32 s37, s37, 3")
    k("s_add_u32 s36, s36, s37")
    k("v_add_u32 v6, s36, v3")
    k("v_and_b32 v6, 63, v6")
    k("s_lshl_b32 s35, s35, 6")
    k("v_add_u32 v6, s35, v6")
    k("v_lshlrev_b32 v6, 3, v6")
    k("v_lshlrev_b32 v7, 14, v4")
    k("v_add_u32 v6, v6, v7")
    k("s_lshl_b32 s38, s28, 19")
    k("v_add_u32 v6, s38, v6")
    k("v_lshlrev_b32 v12, 4, v2")
    k("v_cmp_gt_u32 vcc, 48, v2")
    k("v_bfrev_b32 v13, 1")
    k(f"s_mul_i32 s39, s28, {8*12288}")
    k("v_add_u32 v12, s39, v12")
    k("v_cndmask_b32 v12, v13, v12, vcc")
    k("v_lshlrev_b32 v14, 1, v2")
    k("s_waitcnt lgkmcnt(0)")
    st(1)
    if flags and not tables:
        k("s_cmp_ge_u32 s2, 36")
        k(f"s_cbranch_scc1 {name}_noflg")
        k("s_cmp_lg_u32 s28, 7")
        k(f"s_cbranch_scc1 {name}_noflg")
        srd(k, 16, 32, 256*128 + 4096, off_imm=FLAG_OFF)
        for r in range(4): k(f"v_mov_b32 v{112+r}, 0")
        k("v_lshlrev_b32 v116, 4, v2")
        k("s_lshl_b32 s34, s2, 10")
        k("buffer_store_dwordx4 v[112:115], v116, s[16:19], s34 offen")
        k.label(f"{name}_noflg")
    if tlbpf:
        k("s_cmp_ge_u32 s2, 8")
        k(f"s_cbranch_scc1 {name}_notlb")
        k(f"s_load_dwordx4 s[60:63], s[0:1], {KA['wg']}")
        k(f"s_load_dwordx2 s[64:65], s[0:1], {KA['wd']}")
        k(f"s_load_dwordx2 s[66:67], s[0:1], {KA['out']}")
        k(f"v_mul_u32_u24 v107, {tlbpf}, v0")
        srd(k, 68, 32, 0x2C00000)
        k("buffer_load_dword v108, v107, s[68:71], 0 offen")
        k("s_waitcnt lgkmcnt(0)")
        for i, (b, n) in enumerate(((60, D*F*2), (62, D*F*2), (64, D*F*2), (66, S*D*2))):
            srd(k, 68, b, n)
            k(f"buffer_load_dword v{109+i}, v107, s[68:71], 0 offen")
        k.label(f"{name}_notlb")
    k("s_lshl_b32 s34, s2, 14")
    srd(k, 8, 4, 16384, off_s="s34")
    for q in range(4):
        k(f"buffer_load_dwordx2 v[{16+2*q}:{17+2*q}], v5, s[8:11], 0 offen offset:{q*64}{xntf}")
    k("s_lshr_b32 s35, s2, 4")
    k("s_and_b32 s36, s2, 15")
    k(f"s_mul_i32 s37, s35, {64*12288}")
    k("s_mul_i32 s38, s36, 768")
    k("s_add_u32 s37, s37, s38")
    k(f"s_sub_u32 s38, {1024*12288}, s37")
    srd(k, 44, 6, "s38", off_s="s37")
    k("s_lshl_b32 s37, s35, 7")
    k("s_lshl_b32 s38, s28, 4")
    k("s_add_u32 s37, s37, s38")
    srd(k, 48, 42, 16, off_s="s37")
    k("buffer_load_ushort v15, v14, s[48:51], 0 offen")
    for p in range(8):
        k(f"s_mov_b32 s37, {p*12288}")
        k(f"buffer_load_dwordx4 v[{64+4*p}:{67+4*p}], v12, s[44:47], s37 offen{ntf}")
    srd(k, 12, 32, S * D * 2, off_imm=XS_OFF)
    k("v_mov_b32 v8, 0"); k("v_mov_b32 v9, 0")
    for q in range(4):
        k(f"s_waitcnt vmcnt({3-q+9})")
        for d in range(2):
            src = 16 + 2*q + d; dst = 32 + 4*q + 2*d
            k(f"v_lshlrev_b32 v{dst}, 16, v{src}")
            k(f"v_and_b32 v{dst+1}, 0xffff0000, v{src}")
        for e in range(4):
            r = 32 + 4*q + e
            k(f"v_add_f32 v8, v8, v{r}")
            k(f"v_fma_f32 v9, v{r}, v{r}, v9")
    st(2)
    dpp_add(k, [8, 9], "row_ror:8")
    k("s_nop 1")
    xlane_sum_16_32(k, [8, 9], [10, 11])
    k("v_lshlrev_b32 v10, 6, v3")
    k("s_lshl_b32 s34, s28, 3")
    k("v_add_u32 v11, s34, v10")
    k("v_cmp_gt_u32 vcc, 8, v2")
    k("s_and_saveexec_b64 s[40:41], vcc")
    k("ds_write_b64 v11, v[8:9]")
    k("s_mov_b64 exec, s[40:41]")
    k("s_waitcnt vmcnt(8)")
    k("v_lshlrev_b32 v15, 16, v15")
    k(f"v_mul_f32 v24, {f2u(-math.log2(math.e)):#x}, v15")
    k("v_exp_f32 v24, v24")
    k("s_nop 0")
    k("v_add_f32 v24, 1.0, v24")
    k("v_rcp_f32 v24, v24")
    k("s_nop 0")
    k("v_mul_f32 v15, v15, v24")
    k("v_cvt_pk_bf16_f32 v15, v15, v15")
    k("v_lshlrev_b32 v15, 16, v15")
    k("s_waitcnt lgkmcnt(0)")
    k("s_barrier")
    for q in range(4):
        k(f"ds_read_b128 v[{48+4*q}:{51+4*q}], v10 offset:{q*16}")
    for p in range(8): k(f"v_readlane_b32 s{52+p}, v15, {p}")
    k("s_waitcnt lgkmcnt(0)")
    k("v_add_f32 v8, v48, v50"); k("v_add_f32 v9, v49, v51")
    for r in range(52, 64, 2):
        k(f"v_add_f32 v8, v8, v{r}"); k(f"v_add_f32 v9, v9, v{r+1}")
    k(f"v_mul_f32 v8, {f2u(1.0/1024):#x}, v8")
    k(f"v_mul_f32 v9, {f2u(1.0/1024):#x}, v9")
    k("v_fma_f32 v9, -v8, v8, v9")
    k("v_max_f32 v9, 0, v9")
    k(f"v_add_f32 v9, {f2u(1e-5):#x}, v9")
    k("v_rsq_f32 v9, v9")
    k("s_nop 0")
    k("v_mul_f32 v8, v8, v9")
    for r in range(32, 48):
        k(f"v_fma_f32 v{r}, v{r}, v9, -v8")
    for q in range(4):
        for d in range(2):
            k(f"v_cvt_pk_bf16_f32 v{16+2*q+d}, v{32+4*q+2*d}, v{32+4*q+2*d+1}")
    for q in range(4):
        k(f"s_mov_b32 s34, {q*8*16384}")
        k(f"buffer_store_dwordx2 v[{16+2*q}:{17+2*q}], v6, s[12:15], s34 offen{sf}")
    for e in range(8): k(f"v_mov_b32 v{32+e}, 0")
    for p in range(8):
        k(f"s_waitcnt vmcnt({7-p+4})")
        for d in range(4):
            k(f"v_lshlrev_b32 v8, 16, v{64+4*p+d}")
            k(f"v_and_b32 v9, 0xffff0000, v{64+4*p+d}")
            k(f"v_fma_f32 v{32+2*d}, v8, s{52+p}, v{32+2*d}")
            k(f"v_fma_f32 v{33+2*d}, v9, s{52+p}, v{33+2*d}")
    k("v_lshlrev_b32 v10, 5, v2")
    k("s_mul_i32 s34, s28, 1536")
    k("s_add_u32 s34, s34, 1024")
    k("v_add_u32 v10, s34, v10")
    k("v_cmp_gt_u32 vcc, 48, v2")
    k("s_and_saveexec_b64 s[40:41], vcc")
    k("ds_write_b128 v10, v[32:35]")
    k("ds_write_b128 v10, v[36:39] offset:16")
    k("s_mov_b64 exec, s[40:41]")
    k("s_waitcnt lgkmcnt(0)")
    k("s_barrier")
    k("v_cmp_gt_u32 vcc, 384, v0")
    k("s_and_saveexec_b64 s[40:41], vcc")
    k(f"s_cbranch_execz {name}_fin")
    k("v_lshlrev_b32 v7, 2, v0")
    for w in range(8):
        k(f"ds_read_b32 v{16+w}, v7 offset:{1024+w*1536}")
    k("s_waitcnt lgkmcnt(0)")
    k("v_add_f32 v16, v16, v17"); k("v_add_f32 v18, v18, v19"); k("v_add_f32 v20, v20, v21"); k("v_add_f32 v22, v22, v23")
    k("v_add_f32 v16, v16, v18"); k("v_add_f32 v20, v20, v22"); k("v_add_f32 v16, v16, v20")
    k(f"s_mul_i32 s37, s35, {6144*4}")
    k("s_mul_i32 s38, s36, 1536")
    k("s_add_u32 s37, s37, s38")
    srd(k, 12, 32, 16*6144*4, off_imm=MODP_OFF)
    k(f"buffer_store_dword v16, v7, s[12:15], s37 offen{sf}")
    k.label(f"{name}_fin")
    st(3)
    st.end(32, 28)
    k("s_endpgm")
    if tables:
        k.label(f"{name}_tab")
        k("v_mov_b32 v0, v2")
        k(f"s_cmp_gt_u32 s28, {5 if flags else 4}")
        k(f"s_cbranch_scc1 {name}_end")
        k("s_waitcnt lgkmcnt(0)")
        if flags:
            k("s_cmp_eq_u32 s28, 5")
            k(f"s_cbranch_scc1 {name}_flg")
        k("s_cmp_eq_u32 s28, 4")
        k(f"s_cbranch_scc1 {name}_tabc")
        k("v_lshrrev_b32 v3, 4, v0")
        k("v_and_b32 v4, 15, v0")
        kb_consts(k)
        srd(k, 12, 32, 32768, off_imm=TB_OFF)
        k("v_lshlrev_b32 v5, 4, v0")
        k("s_lshl_b32 s36, s28, 12")
        k("s_add_u32 s36, s36, 16384")
        for q in range(4):
            k(f"buffer_store_dwordx4 v[{72+4*q}:{75+4*q}], v5, s[12:15], s36 offen offset:{q*1024}")
        k("s_lshr_b32 s36, s28, 1")
        k("s_mul_i32 s36, s36, 6144")
        k("s_add_u32 s36, s36, 4096")
        for q in range(6):
            if q == 4: k("s_add_u32 s36, s36, 4096")
            k(f"buffer_store_dwordx4 v[{48+4*q}:{51+4*q}], v5, s[12:15], s36 offen offset:{(q%4)*1024}")
        k("s_mov_b32 s36, 0")
        for q in range(4):
            k(f"buffer_store_dwordx4 v[{32+4*q}:{35+4*q}], v5, s[12:15], s36 offen offset:{q*1024}")
        k("s_endpgm")
        if flags:
            k.label(f"{name}_flg")
            srd(k, 12, 32, 256*128, off_imm=FLAG_OFF)
            k("v_lshlrev_b32 v5, 4, v0")
            for r in range(4): k(f"v_mov_b32 v{8+r}, 0")
            for q in range(32):
                k(f"s_mov_b32 s36, {q*1024}")
                k("buffer_store_dwordx4 v[8:11], v5, s[12:15], s36 offen")
            k("s_endpgm")
        if helpers:
            k.label(f"{name}_help")
            first, last = codepf
            k("s_getpc_b64 s[56:57]")
            k.label(f"{name}_pch")
            k(f"s_add_u32 s56, s56, {first}-{name}_pch")
            k("s_addc_u32 s57, s57, 0")
            k(f"s_mov_b32 s58, {last}-{first}")
            k("v_lshlrev_b32 v100, 6, v0")
            if htlb:
                k(f"s_load_dwordx2 s[32:33], s[0:1], {KA['ws']}")
                k(f"s_load_dwordx4 s[60:63], s[0:1], {KA['wg']}")
                k(f"s_load_dwordx2 s[64:65], s[0:1], {KA['wd']}")
                k(f"s_load_dwordx2 s[66:67], s[0:1], {KA['out']}")
            for q in range(2):
                if q: k("v_add_u32 v100, 0x8000, v100")
                k("v_cmp_gt_u32 vcc, s58, v100")
                k("s_and_saveexec_b64 s[40:41], vcc")
                k(f"s_cbranch_execz {name}_hcp{q}")
                k("v_mov_b32 v103, s57")
                k("v_add_co_u32 v102, vcc, s56, v100")
                k("s_nop 1")
                k("v_addc_co_u32 v103, vcc, 0, v103, vcc")
                k(f"global_load_dword v{104+q}, v[102:103], off")
                k.label(f"{name}_hcp{q}")
                k("s_mov_b64 exec, s[40:41]")
            if htlb:
                k(f"v_mul_u32_u24 v107, {htlb}, v0")
                k("s_waitcnt lgkmcnt(0)")
                srd(k, 68, 32, 0x2C00000)
                k("buffer_load_dword v108, v107, s[68:71], 0 offen")
                for i, (b, n) in enumerate(((60, D*F*2), (62, D*F*2), (64, D*F*2), (66, S*D*2))):
                    srd(k, 68, b, n)
                    k(f"buffer_load_dword v{109+i}, v107, s[68:71], 0 offen")
            k("s_endpgm")
        k.label(f"{name}_tabc")
        kc_consts(k)
        srd(k, 12, 32, 18432, off_imm=TC_OFF)
        k("v_lshlrev_b32 v5, 4, v0")
        k("s_mov_b32 s36, 0")
        for q in range(18):
            k(f"buffer_store_dwordx4 v[{32+4*q}:{35+4*q}], v5, s[12:15], s36 offen offset:{(q%4)*1024}")
            if q % 4 == 3: k("s_add_u32 s36, s36, 4096")
    k.label(f"{name}_end")
    k("s_endpgm")
    k.lds = 1024 + 8*1536; k.grid = NG + helpers; k.block = 512; k.vgpr = 128; k.accum = 128
    return k
```

```python
from asmlib import *
from layout import *
from ka_util import f2u, dpp_add, xlane_sum_16_32
import math

def cos_sin(k, dc, ds, n, scale):
    k(f"v_cvt_f32_u32 v{ds}, v{n}")
    k(f"v_mul_f32 v{ds}, {f2u(scale):#x}, v{ds}")
    k(f"v_cos_f32 v{dc}, v{ds}")
    k(f"v_sin_f32 v{ds}, v{ds}")

KB_C1, KB_C3, KB_TW = 32, 48, 72
def kb_consts(k):
    C1, C3, TW, TC, TS = KB_C1, KB_C3, KB_TW, 100, 108
    k("v_lshlrev_b32 v24, 3, v3")
    k("v_mul_u32_u24 v24, v24, v4")
    for e in range(8):
        k("v_and_b32 v25, 31, v24")
        cos_sin(k, TC+e, TS+e, 25, 1.0/32)
        if e < 7: k("v_add_u32 v24, v24, v4")
    k("s_nop 0")
    for d in range(4):
        k(f"v_cvt_pk_bf16_f32 v{C1+d}, v{TC+2*d}, v{TC+2*d+1}")
        k(f"v_cvt_pk_bf16_f32 v{C1+8+d}, -v{TS+2*d}, -v{TS+2*d+1}")
    for d in range(4):
        k(f"v_xor_b32 v{C1+4+d}, 0x80000000, v{C1+d}")
        k(f"v_xor_b32 v{C1+12+d}, 0x80000000, v{C1+8+d}")
    k("s_lshr_b32 s36, s28, 1")
    k("s_lshl_b32 s36, s36, 4")
    k("v_add_u32 v26, s36, v4")
    for e in range(8):
        s2c = 16*(e >> 2) + 4*(e & 3)
        k(f"v_add_u32 v25, {s2c}, v3")
        k("v_mul_u32_u24 v25, v25, v26")
        k("v_and_b32 v25, 63, v25")
        cos_sin(k, TC+e, TS+e, 25, 1.0/64)
    k("v_and_b32 v25, 1, v26")
    k("v_sub_u32 v27, 0, v25")
    k("v_and_b32 v27, 0x80008000, v27")
    for d in range(4):
        k(f"v_cvt_pk_bf16_f32 v{C3+d}, v{TC+2*d}, v{TC+2*d+1}")
        k(f"v_cvt_pk_bf16_f32 v{C3+8+d}, v{TS+2*d}, v{TS+2*d+1}")
    for d in range(4):
        k(f"v_xor_b32 v{C3+4+d}, v27, v{C3+d}")
        k(f"v_xor_b32 v{C3+12+d}, v27, v{C3+8+d}")
    for d in range(8):
        k(f"v_xor_b32 v{C3+16+d}, 0x80008000, v{C3+8+d}")
    k("s_lshl_b32 s36, s28, 4")
    for tau in range(4):
        k(f"v_add_u32 v25, s36, v3")
        if tau: k(f"v_add_u32 v25, {4*tau}, v25")
        for th in range(2):
            k(f"v_add_u32 v27, {16*th}, v4")
            k("v_mul_u32_u24 v27, v25, v27")
            b = TW + (tau*2 + th)*2
            cos_sin(k, b, b+1, 27, 1.0/2048)

def gen_kb(name="kb_kernel", stamps=False, pf=True, sf='', table=True, pfn=2, cpf=None, ctable=False, pfs=6):
    k = Kern(name)
    st = Stamps(k, stamps, 1)
    TOFF = 16384
    C1, C3, TW = KB_C1, KB_C3, KB_TW
    k(f"s_cmp_ge_u32 s2, {257 if ctable else 256}")
    k(f"s_cbranch_scc1 {name}_end")
    if ctable:
        k("s_cmp_eq_u32 s2, 256")
        k(f"s_cbranch_scc1 {name}_ctab")
    st.start()
    k(f"s_load_dwordx2 s[32:33], s[0:1], {KA['ws']}")
    k(f"s_load_dwordx2 s[4:5], s[0:1], {KA['wg']}")
    k("v_mov_b32 v30, v0")
    k("v_lshrrev_b32 v1, 6, v0")
    k("v_and_b32 v0, 63, v0")
    k("v_readfirstlane_b32 s28, v1")
    k("s_and_b32 s34, s2, 7")
    k("s_lshl_b32 s34, s34, 5")
    k("s_lshr_b32 s35, s2, 3")
    k("s_add_u32 s34, s34, s35")
    k("v_lshlrev_b32 v2, 4, v0")
    k("v_lshrrev_b32 v3, 4, v0")
    k("v_and_b32 v4, 15, v0")
    k("s_lshl_b32 s36, s28, 12")
    k("v_add_u32 v5, s36, v2")
    k("s_lshl_b32 s37, s34, 4")
    k("v_lshrrev_b32 v6, 2, v0")
    k("v_mul_u32_u24 v6, 24576, v6")
    k("v_and_b32 v7, 3, v0")
    k("v_lshl_add_u32 v6, v7, 2, v6")
    k("v_add_u32 v6, s37, v6")
    k("v_add_u32 v7, 4096, v6")
    k("s_mul_i32 s37, s2, 24")
    k("s_mul_i32 s38, s28, 6")
    k("s_add_u32 s37, s37, s38")
    k("v_add_u32 v16, s37, v3")
    k("v_mul_u32_u24 v17, 24576, v4")
    k("v_lshl_add_u32 v17, v16, 2, v17")
    k("s_waitcnt lgkmcnt(0)")
    k("s_lshl_b32 s35, s34, 14")
    srd(k, 8, 32, 16384, off_s="s35", off_imm=XS_OFF)
    k("s_mov_b32 m0, s36")
    srd(k, 56, 32, 32768, off_imm=TB_OFF)
    for q in range(4):
        k(f"buffer_load_dwordx4 v5, s[8:11], 0 offen offset:{q*1024} lds")
    TBL = 49152
    if table:
        k("s_lshl_b32 s36, s28, 13")
        for hq in range(2):
            k(f"s_add_u32 m0, s36, {TBL + hq*4096}")
            k(f"s_add_u32 s37, s36, {hq*4096}")
            for q in range(4):
                k(f"buffer_load_dwordx4 v2, s[56:59], s37 offen offset:{q*1024} lds")
    srd(k, 12, 32, 16*6144*4, off_imm=MODP_OFF)
    k("buffer_load_dword v8, v6, s[12:15], 0 offen")
    k("buffer_load_dword v12, v7, s[12:15], 0 offen")
    k("buffer_load_dword v20, v17, s[12:15], 0 offen")
    k("buffer_load_dword v21, v17, s[12:15], 0 offen offset:16")
    NPF = 0
    k(f"s_mul_i32 s35, s34, {ZROWS*16}")
    srd(k, 16, 32, ZROWS*16, off_s="s35", off_imm=ZS_OFF)
    RA = 88
    k("v_bfe_u32 v25, v0, 2, 2")
    k("v_and_b32 v26, 3, v0")
    k("v_lshlrev_b32 v27, 12, v3")
    k("v_lshlrev_b32 v28, 9, v25")
    k("v_add_u32 v27, v27, v28")
    k("v_lshlrev_b32 v28, 2, v25")
    k("v_add_u32 v28, v28, v26")
    k("v_and_b32 v29, 1, v3")
    k("v_lshlrev_b32 v29, 4, v29")
    k("v_add_u32 v28, v28, v29")
    k("s_lshl_b32 s36, s28, 4")
    k("v_add_u32 v28, s36, v28")
    for tau in range(4):
        k(f"v_add_u32 v29, {4*tau}, v28")
        k("v_and_b32 v29, 63, v29")
        k(f"v_lshl_add_u32 v{RA+tau}, v29, 3, v27")
    k("s_lshr_b32 s36, s28, 1")
    k("s_lshl_b32 s36, s36, 10")
    k("s_and_b32 s37, s28, 1")
    k("s_lshl_b32 s37, s37, 3")
    k("s_add_u32 s36, s36, s37")
    k(f"s_add_u32 s36, s36, {TOFF}")
    k("v_add_u32 v92, s36, v2")
    k("s_and_b32 s36, s28, 1")
    k("s_lshl_b32 s36, s36, 12")
    k(f"s_add_u32 s36, s36, {TOFF}")
    k("v_add_u32 v93, s36, v2")
    k("s_and_b32 s36, s28, 1")
    k("s_lshl_b32 s36, s36, 4")
    k("s_lshr_b32 s37, s28, 1")
    k("s_lshl_b32 s37, s37, 9")
    k("s_add_u32 s36, s36, s37")
    k("v_lshlrev_b32 v94, 7, v3")
    k("v_add_u32 v94, v94, v4")
    k("v_add_u32 v94, s36, v94")
    k("v_lshlrev_b32 v94, 4, v94")
    k("v_and_b32 v25, 1, v3")
    k("v_lshlrev_b32 v25, 31, v25")
    k("v_lshrrev_b32 v26, 16, v25")
    k("v_or_b32 v25, v25, v26")
    k("v_or_b32 v25, 0x3f803f80, v25")
    k("v_cmp_eq_u32 vcc, 0, v4")
    k("s_nop 1")
    k("v_cndmask_b32 v25, 0, v25, vcc")
    NC = 240
    for d in range(4): k(f"v_mov_b32 v{NC+d}, v25")
    if not table: kb_consts(k)
    st(1)
    k(f"s_waitcnt vmcnt(0)")
    k("s_barrier")
    st(2)
    if cpf: code_pf(k, cpf[0], cpf[1], "a", 116, 30, sp=60)
    if pf:
        srd(k, 24, 4, D*F*2)
        k("s_lshl_b32 s37, s2, 8")
        k("v_add_u32 v31, s37, v30")
        k(f"v_lshlrev_b32 v31, {pfs}, v31")
        if pfs == 7: pfn = 1
        for i in range(pfn):
            k(f"s_mov_b32 s37, {65536*64*i}")
            k(f"buffer_load_dword v{96+i}, v31, s[24:27], s37 offen")
        NPF = pfn
    if table:
        k("s_lshr_b32 s36, s28, 1")
        k("s_mul_i32 s36, s36, 6144")
        k("v_add_u32 v98, s36, v2")
        k("s_lshl_b32 s36, s28, 12")
        k(f"s_add_u32 s36, s36, {TBL+16384}")
        k("v_add_u32 v99, s36, v2")
        for q in range(4): k(f"ds_read_b128 v[{C1+4*q}:{C1+4*q+3}], v2 offset:{TBL+q*1024}")
    AF = 100
    for tau in range(4):
        for h in range(2):
            k(f"ds_read_b64_tr_b16 v[{AF+4*tau+2*h}:{AF+4*tau+2*h+1}], v{RA+tau} offset:{h*2048}")
    ACC = 128
    def a1(tau, th, ri): return ACC + ((tau*2 + th)*2 + ri)*4
    if table:
        for q in range(4): k(f"ds_read_b128 v[{TW+4*q}:{TW+4*q+3}], v99 offset:{q*1024}")
    for tau in range(4):
        k(f"s_waitcnt lgkmcnt({6-2*tau+(4 if table else 0)})")
        for th in range(2):
            for ri in range(2):
                cb = C1 + ri*8 + th*4
                k(f"v_mfma_f32_16x16x32_bf16 v[{a1(tau,th,ri)}:{a1(tau,th,ri)+3}], v[{AF+4*tau}:{AF+4*tau+3}], v[{cb}:{cb+3}], 0")
    if table:
        for q in range(6): k(f"ds_read_b128 v[{C3+4*q}:{C3+4*q+3}], v98 offset:{TBL+4096+q*1024}")
    dpp_add(k, [8, 12], "row_ror:4")
    dpp_add(k, [8, 12], "row_ror:8")
    k("s_nop 1")
    xlane_sum_16_32(k, [8, 12], [9, 13])
    for r in (8, 12):
        k(f"v_cvt_pk_bf16_f32 v{r}, v{r}, v{r}")
        k(f"v_lshlrev_b32 v{r}, 16, v{r}")
    k("v_add_f32 v13, 1.0, v12")
    k("v_cvt_pk_bf16_f32 v13, v13, v13")
    k("v_lshlrev_b32 v13, 16, v13")
    k(f"v_mul_f32 v8, {f2u(2048.0):#x}, v8")
    if table: k("s_waitcnt lgkmcnt(6)")
    R2 = 192
    def r2(tau, th): return R2 + (tau*2 + th)*4
    def pr(b): return f"v[{b}:{b+1}]"
    TT = 224
    for tau in range(4):
        for th in range(2):
            cs = TW + (tau*2 + th)*2
            tr = a1(tau, th, 0); ti = a1(tau, th, 1); o = r2(tau, th)
            bc = "op_sel:[0,0] op_sel_hi:[1,0]"
            for hq in range(2):
                k(f"v_pk_mul_f32 {pr(o+2*hq)}, {pr(tr+2*hq)}, {pr(cs)} {bc}")
                k(f"v_pk_mul_f32 {pr(TT+2*hq)}, {pr(ti+2*hq)}, {pr(cs)} {bc}")
            bs = "op_sel:[0,1,0] op_sel_hi:[1,1,1]"
            for hq in range(2):
                k(f"v_pk_fma_f32 {pr(o+2*hq)}, {pr(ti+2*hq)}, {pr(cs)}, {pr(o+2*hq)} {bs}")
                k(f"v_pk_fma_f32 {pr(ti+2*hq)}, {pr(tr+2*hq)}, {pr(cs)}, {pr(TT+2*hq)} {bs} neg_lo:[1,0,0] neg_hi:[1,0,0]")
    for dd in range(4):
        k(f"v_readlane_b32 s{44+dd}, v13, {dd}")
        k(f"v_readlane_b32 s{48+dd}, v8, {dd}")
    pk = 8
    idx = 0
    for dd in range(4):
        for th in range(2):
            for ri in range(2):
                p = 100 + (idx % 8) * 2; idx += 1
                src = (lambda tau: r2(tau, th) + dd) if ri == 0 else (lambda tau: a1(tau, th, 1) + dd)
                k(f"v_cvt_pk_bf16_f32 v{p}, v{src(0)}, v{src(1)}")
                k(f"v_cvt_pk_bf16_f32 v{p+1}, v{src(2)}, v{src(3)}")
                k(f"ds_write_b64 v92, v[{p}:{p+1}] offset:{((dd*2+th)*2+ri)*2048}")
    k("s_waitcnt lgkmcnt(0)")
    k("s_barrier")
    BF = 128
    def bfr(dd, ri, m): return BF + ((dd*2 + ri)*2 + m)*4
    for dd in range(4):
        for ri in range(2):
            for m in range(2):
                off = dd*8192 + ri*2048 + m*1024
                k(f"ds_read_b128 v[{bfr(dd,ri,m)}:{bfr(dd,ri,m)+3}], v93 offset:{off}")
    Z = 192
    def z(dd, ri): return Z + (dd*2 + ri)*4
    NQ = 224
    k("v_cmp_eq_u32 vcc, 0, v94")
    for dd in range(4): k(f"v_mov_b32 v{26+dd}, s{48+dd}")
    k("s_nop 1")
    for dd in range(4): k(f"v_cndmask_b32 v{26+dd}, 0, v{26+dd}, vcc")
    def mf(d, a, b, c):
        cs = "0" if c is None else f"v[{c}:{c+3}]"
        k(f"v_mfma_f32_16x16x32_bf16 v[{d}:{d+3}], v[{a}:{a+3}], v[{b}:{b+3}], {cs}")
    for dd in range(4):
        k(f"s_waitcnt lgkmcnt({12-4*dd})")
        mf(z(dd,0), C3+0, bfr(dd,0,0), None)
        mf(z(dd,1), C3+0, bfr(dd,1,0), None)
        mf(NQ+4*dd, NC, bfr(dd,0,0), None)
        mf(z(dd,0), C3+4, bfr(dd,0,1), z(dd,0))
        mf(z(dd,1), C3+4, bfr(dd,1,1), z(dd,1))
        mf(NQ+4*dd, NC, bfr(dd,0,1), NQ+4*dd)
        mf(z(dd,0), C3+8, bfr(dd,1,0), z(dd,0))
        mf(z(dd,1), C3+16, bfr(dd,0,0), z(dd,1))
        mf(z(dd,0), C3+12, bfr(dd,1,1), z(dd,0))
        mf(z(dd,1), C3+20, bfr(dd,0,1), z(dd,1))
    k("s_nop 7")
    k("v_cmp_eq_u32 vcc, 0, v94")
    k("s_nop 1")
    for dd in range(4): k(f"v_cndmask_b32 v{z(dd,1)}, v{z(dd,1)}, v{NQ+4*dd}, vcc")
    for dd in range(4):
        k(f"v_fma_f32 v{z(dd,0)}, v{z(dd,0)}, s{44+dd}, v{26+dd}")
        for r in range(1, 4): k(f"v_mul_f32 v{z(dd,0)+r}, s{44+dd}, v{z(dd,0)+r}")
        for r in range(4): k(f"v_mul_f32 v{z(dd,1)+r}, s{44+dd}, v{z(dd,1)+r}")
    for r in range(4):
        o = 100 + 4*r
        k(f"v_cvt_pk_bf16_f32 v{o}, v{z(0,0)+r}, v{z(1,0)+r}")
        k(f"v_cvt_pk_bf16_f32 v{o+1}, v{z(2,0)+r}, v{z(3,0)+r}")
        k(f"v_cvt_pk_bf16_f32 v{o+2}, v{z(0,1)+r}, v{z(1,1)+r}")
        k(f"v_cvt_pk_bf16_f32 v{o+3}, v{z(2,1)+r}, v{z(3,1)+r}")
        k(f"buffer_store_dwordx4 v[{o}:{o+3}], v94, s[16:19], 0 offen offset:{r*512}{sf}")
    for ctrl in ("quad_perm:[1,0,3,2]", "quad_perm:[2,3,0,1]", "row_half_mirror", "row_mirror"):
        dpp_add(k, [20, 21], ctrl)
    srd(k, 20, 32, 6144*4, off_imm=MODF_OFF)
    srd(k, 52, 32, 12288, off_imm=MODC_OFF)
    for q in range(2):
        val, idx = 20 + q, 16
        if q == 1: k("v_add_u32 v16, 4, v16")
        k(f"v_cvt_pk_bf16_f32 v{val}, v{val}, v{val}")
        k(f"v_lshlrev_b32 v{val}, 16, v{val}")
        k(f"v_add_f32 v22, 1.0, v{val}")
        k("v_cvt_pk_bf16_f32 v22, v22, v22")
        k("v_lshlrev_b32 v22, 16, v22")
        k("v_lshrrev_b32 v23, 10, v16")
        k("v_cmp_eq_u32 vcc, 1, v23")
        k("v_cmp_eq_u32 s[40:41], 4, v23")
        k("s_or_b64 vcc, vcc, s[40:41]")
        k("s_nop 1")
        k(f"v_cndmask_b32 v{val}, v{val}, v22, vcc")
        k("v_cmp_eq_u32 vcc, 0, v4")
        if q == 1:
            k("v_cmp_gt_u32 s[40:41], 2, v3")
            k("s_and_b64 vcc, vcc, s[40:41]")
        k("s_and_saveexec_b64 s[42:43], vcc")
        k("v_lshlrev_b32 v24, 2, v16")
        k(f"buffer_store_dword v{val}, v24, s[20:23], 0 offen")
        k("v_and_b32 v25, 1023, v16")
        k("v_lshrrev_b32 v26, 5, v25")
        k("v_bfe_u32 v27, v25, 3, 1")
        k("v_lshl_add_u32 v26, v27, 5, v26")
        k("v_lshlrev_b32 v26, 4, v26")
        k("v_and_b32 v27, 3, v25")
        k("v_lshl_add_u32 v26, v27, 2, v26")
        k("v_bfe_u32 v27, v25, 4, 1")
        k("v_bfe_u32 v28, v25, 2, 1")
        k("v_lshl_add_u32 v27, v27, 1, v28")
        k("v_lshl_add_u32 v26, v27, 10, v26")
        k("v_mov_b32 v27, 0x10000")
        k("v_cmp_eq_u32 vcc, 2, v23")
        k("s_nop 1")
        k("v_cndmask_b32 v27, v27, 0, vcc")
        k("v_mov_b32 v28, 4096")
        k("v_cmp_eq_u32 vcc, 4, v23")
        k("s_nop 1")
        k("v_cndmask_b32 v27, v27, v28, vcc")
        k("v_mov_b32 v28, 8192")
        k("v_cmp_eq_u32 vcc, 3, v23")
        k("s_nop 1")
        k("v_cndmask_b32 v27, v27, v28, vcc")
        k("v_add_u32 v26, v26, v27")
        k(f"buffer_store_dword v{val}, v26, s[52:55], 0 offen")
        k("s_mov_b64 exec, s[42:43]")
    st(3)
    k.label(f"{name}_fin")
    st.end(32, 28)
    if ctable:
        k("s_endpgm")
        k.label(f"{name}_ctab")
        from kc import kc_consts
        k(f"s_load_dwordx2 s[32:33], s[0:1], {KA['ws']}")
        k("v_cmp_gt_u32 vcc, 64, v0")
        k("s_and_saveexec_b64 s[40:41], vcc")
        k(f"s_cbranch_execz {name}_end")
        kc_consts(k)
        k("s_waitcnt lgkmcnt(0)")
        srd(k, 12, 32, 18432, off_imm=TC_OFF)
        k("v_lshlrev_b32 v5, 4, v0")
        k("s_mov_b32 s36, 0")
        for q in range(18):
            k(f"buffer_store_dwordx4 v[{32+4*q}:{35+4*q}], v5, s[12:15], s36 offen offset:{(q%4)*1024}")
            if q % 4 == 3: k("s_add_u32 s36, s36, 4096")
    k.label(f"{name}_end")
    k("s_endpgm")
    k.lds = 49152 + (32768 if table else 0); k.grid = 257 if ctable else 256; k.block = 256
    return k
```

```python
from asmlib import *
from layout import *
import math, struct, re
def f2u(x): return struct.unpack("<I", struct.pack("<f", x))[0]

def gen_gemm3c(name="g3_kernel", stamps=False, pf=True, sf=' sc1', sf2=' sc1', dma_frac=(0.1, 0.35, 0.6, 0.85), rd_span=0.6, cpf=None,
               peel_first=True, peel_last=True, fuse=True, xmap=0, repack=False, pfs=6):
    k = Kern(name)
    st = Stamps(k, stamps, 3)
    NS = 4
    BS = 4128
    STAGE = 8 * BS
    NK = 32
    ROWB = F * 2
    P = 4
    SRD_G, SRD_U, SRD_H, SRD_O, SRD_P = 8, 12, 16, 20, 44
    sKW, sKH, sBLK, sCNT, sW = 24, 25, 26, 27, 28
    vDW, vDH, vSt, vPF = 1, 2, 3, 30
    vRA = [4 + i for i in range(NS)]
    vRB = [10 + i for i in range(NS)]
    vRA2 = [20 + i for i in range(NS)]
    FR = [32, 80]
    ACC = 128
    k("s_cmp_ge_u32 s2, 256")
    k(f"s_cbranch_scc1 {name}_end")
    st.start()
    k(f"s_load_dwordx2 s[4:5], s[0:1], {KA['wg']}")
    k(f"s_load_dwordx2 s[6:7], s[0:1], {KA['wu']}")
    k(f"s_load_dwordx2 s[32:33], s[0:1], {KA['ws']}")
    k(f"s_load_dwordx2 s[30:31], s[0:1], {KA['wd']}")
    k("v_lshrrev_b32 v1, 6, v0")
    k("v_mov_b32 v30, v0")
    k("v_and_b32 v0, 63, v0")
    k(f"v_readfirstlane_b32 s{sW}, v1")
    k("s_and_b32 s34, s2, 7")
    k("s_lshr_b32 s35, s2, 3")
    if xmap == 0:
        k("s_and_b32 s36, s34, 1")
        k("s_lshl_b32 s36, s36, 2")
        k("s_and_b32 s37, s35, 3")
        k("s_add_u32 s36, s36, s37")
        k("s_lshr_b32 s37, s34, 1")
        k("s_lshl_b32 s37, s37, 3")
        k("s_lshr_b32 s38, s35, 2")
        k("s_add_u32 s37, s37, s38")
    elif xmap == 1:
        k("s_and_b32 s36, s35, 7")
        k("s_lshl_b32 s37, s34, 2")
        k("s_lshr_b32 s38, s35, 3")
        k("s_add_u32 s37, s37, s38")
    else:
        k("s_and_b32 s36, s34, 3")
        k("s_lshl_b32 s36, s36, 1")
        k("s_and_b32 s37, s35, 1")
        k("s_add_u32 s36, s36, s37")
        k("s_lshr_b32 s37, s34, 2")
        k("s_lshl_b32 s37, s37, 4")
        k("s_lshr_b32 s38, s35, 1")
        k("s_add_u32 s37, s37, s38")
    k("v_lshrrev_b32 v16, 4, v0")
    k("v_and_b32 v17, 1, v16")
    k("v_lshlrev_b32 v17, 4, v17")
    k("v_lshrrev_b32 v18, 1, v16")
    k("v_lshlrev_b32 v18, 2, v18")
    k("v_add_u32 v17, v17, v18")
    k(f"s_lshr_b32 s39, s{sW}, 2")
    k("s_lshl_b32 s39, s39, 3")
    k(f"s_and_b32 s40, s{sW}, 3")
    k("s_add_u32 s39, s39, s40")
    k("v_add_u32 v17, s39, v17")
    k(f"s_mov_b32 s41, {ROWB}")
    k("v_mul_lo_u32 v17, v17, s41")
    k("v_and_b32 v18, 15, v0")
    k("v_lshlrev_b32 v19, 4, v18")
    k(f"v_add_u32 v{vDW}, v17, v19")
    k("v_cmp_lt_u32 vcc, 13, v18")
    k("v_bfrev_b32 v19, 1")
    k("s_nop 0")
    k(f"v_cndmask_b32 v{vDW}, v{vDW}, v19, vcc")
    k(f"s_lshl_b32 s39, s{sW}, 11")
    k(f"v_lshlrev_b32 v{vSt}, 4, v0")
    k(f"v_add_u32 v{vDH}, s39, v{vSt}")
    k(f"s_mul_i32 s{sBLK}, s{sW}, {BS}")
    k("s_mul_i32 s39, s37, 224")
    k(f"s_sub_u32 s40, {D*ROWB}, s39")
    k("s_lshl_b32 s42, s36, 19")
    k("s_waitcnt lgkmcnt(0)")
    st(1)
    srd(k, SRD_G, 4, "s40", off_s="s39")
    srd(k, SRD_U, 6, "s40", off_s="s39")
    srd(k, SRD_H, 32, 1 << 19, off_s="s42", off_imm=H2_OFF)
    k(f"s_mov_b32 s{sKW}, 0")
    k(f"s_mov_b32 s{sKH}, 0")

    def dma_group(stage, part):
        base = (stage % NS) * STAGE
        if part == 0:
            return [f"s_add_u32 m0, s{sBLK}, {base}", f"buffer_load_dwordx4 v{vDW}, s[{SRD_G}:{SRD_G+3}], s{sKW} offen lds"]
        if part == 1:
            return [f"s_add_u32 m0, s{sBLK}, {base+1024}", f"buffer_load_dwordx4 v{vDW}, s[{SRD_U}:{SRD_U+3}], s{sKW} offen lds"]
        if part == 2:
            return [f"s_add_u32 m0, s{sBLK}, {base+2048}", f"buffer_load_dwordx4 v{vDH}, s[{SRD_H}:{SRD_H+3}], s{sKH} offen lds"]
        if part == 3:
            return [None, f"buffer_load_dwordx4 v{vDH}, s[{SRD_H}:{SRD_H+3}], s{sKH} offen offset:1024 lds"]
    def adv():
        return [f"s_add_u32 s{sKW}, s{sKW}, {32*ROWB}", f"s_add_u32 s{sKH}, s{sKH}, 16384"]
    def issue_stage(stg):
        for part in range(4):
            m, ld = dma_group(stg, part)
            if m:
                k(m); k("s_nop 0")
            k(ld)
        for a in adv(): k(a)
    issue_stage(0)
    k("v_and_b32 v17, 1, v16")
    k("v_lshlrev_b32 v17, 2, v17")
    k("v_bfe_u32 v18, v0, 2, 2")
    k("v_add_u32 v17, v17, v18")
    k(f"s_mov_b32 s41, {BS}")
    k("v_mul_lo_u32 v17, v17, s41")
    k("v_lshrrev_b32 v18, 1, v16")
    k("v_lshlrev_b32 v18, 8, v18")
    k("v_add_u32 v17, v17, v18")
    k("v_and_b32 v18, 3, v0")
    k("v_lshlrev_b32 v18, 3, v18")
    k(f"v_add_u32 v{vRA[0]}, v17, v18")
    k(f"s_and_b32 s39, s{sW}, 3")
    k(f"s_mul_i32 s39, s39, {2*BS}")
    k("s_add_u32 s39, s39, 2048")
    k(f"v_add_u32 v{vRB[0]}, s39, v{vSt}")
    for r in range(4): k(f"v_mov_b32 v{24+r}, 0")
    issue_stage(1)
    if not peel_first: issue_stage(2)
    for r in range(0, 128, 16):
        k(f"v_mfma_f32_32x32x16_bf16 v[{ACC+r}:{ACC+r+15}], v[24:27], v[24:27], 0")
    k("s_and_b32 s39, s37, 1")
    k("s_cmp_eq_u32 s39, 0")
    k("s_cselect_b32 s40, 0, 96")
    k("s_cselect_b32 s41, 128, 32")
    k("s_cselect_b32 s42, 192, 0")
    k(f"s_cmp_ge_u32 s{sW}, 4")
    k("s_cselect_b32 s40, s41, s40")
    k(f"v_add_u32 v{vRA2[0]}, s42, v{vRA[0]}")
    k(f"v_add_u32 v{vRA[0]}, s40, v{vRA[0]}")
    for s in range(1, NS):
        k(f"v_add_u32 v{vRA[s]}, {s*STAGE}, v{vRA[0]}")
        k(f"v_add_u32 v{vRA2[s]}, {s*STAGE}, v{vRA2[0]}")
        k(f"v_add_u32 v{vRB[s]}, {s*STAGE}, v{vRB[0]}")
    k(f"v_lshlrev_b32 v{vPF}, 6, v30")
    srd(k, SRD_O, 32, S * F * 2, off_imm=ACT_OFF)
    k("s_mul_i32 s39, s2, 28672")
    srd(k, SRD_P, 30, 28672, off_s="s39")
    k(f"s_waitcnt vmcnt({P if peel_first else 2*P})")
    k("s_barrier")
    st(2)
    k(f"s_cmp_ge_u32 s{sW}, 4")
    k(f"s_cbranch_scc1 {name}_typeB")

    def body(tp):
        nT = 4 if tp == 0 else 3
        nA = 2 * nT
        def Af(s, a): return FR[s] + a * 4
        def Bf(s, p): return FR[s] + 32 + p * 4
        def acc(p, a): return ACC + (p * nA + a) * 4
        def reads(setn, stage):
            A = []
            for a in range(nA):
                gu, j = a // nT, a % nT
                for h in range(2):
                    if tp == 1 and j == 2:
                        off = gu * 1024 + h * 512; base = vRA2[stage]
                    else:
                        off = gu * 1024 + j * 32 + h * 512; base = vRA[stage]
                    A.append(f"ds_read_b64_tr_b16 v[{Af(setn,a)+2*h}:{Af(setn,a)+2*h+1}], v{base} offset:{off}")
            B = []
            for p in range(4):
                off = (p >> 1) * BS + (p & 1) * 1024
                B.append(f"ds_read_b128 v[{Bf(setn,p)}:{Bf(setn,p)+3}], v{vRB[stage]} offset:{off}")
            return [B[0]] + A[:4] + [B[1]] + A[4:8] + [B[2]] + A[8:12] + [B[3]] + A[12:]
        order = [(p, a) for p in range(4) for a in range(nA)]
        nM = len(order)
        def mfma(cur, p, a):
            return f"v_mfma_f32_16x16x32_bf16 v[{acc(p,a)}:{acc(p,a)+3}], v[{Af(cur,a)}:{Af(cur,a)+3}], v[{Bf(cur,p)}:{Bf(cur,p)+3}], v[{acc(p,a)}:{acc(p,a)+3}]"
        def iteration(u, dma_stages, nvm, do_reads=True, barrier=True):
            cur = u & 1; nxt = cur ^ 1
            extra = {}
            if do_reads:
                rd = reads(nxt, (u + 1) % NS)
                for ri, r in enumerate(rd):
                    extra.setdefault(int(ri * rd_span * nM / len(rd)), []).append(r)
            nd = len(dma_stages) * 4
            for si, stg in enumerate(dma_stages):
                for part in range(4):
                    q = si * 4 + part
                    fr = dma_frac[part] if len(dma_stages) == 1 else (0.04 + 0.9 * q / nd)
                    pos = max(1, int(fr * nM))
                    m, ld = dma_group(stg, part)
                    if m: extra.setdefault(pos - 1, []).append(m)
                    extra.setdefault(pos, []).append(ld)
                    if part == 3:
                        extra.setdefault(pos, []).extend(adv())
            if nvm is None: k("s_waitcnt lgkmcnt(0)")
            else: k(f"s_waitcnt vmcnt({nvm}) lgkmcnt(0)")
            if barrier: k("s_barrier")
            for idx, (p, a) in enumerate(order):
                k(mfma(cur, p, a))
                for e in extra.get(idx, []): k(e)
        for r in reads(0, 0): k(r)
        if not peel_first: issue_stage(3)
        ntrips = NK // NS
        if peel_first:
            iteration(0, [2, 3], 0)
            iteration(1, [0, 1], P)
            iteration(2, [2], 2 * P)
            iteration(3, [3], 2 * P)
            ntrips -= 1
        if peel_last: ntrips -= 1
        k(f"s_mov_b32 s{sCNT}, {ntrips}")
        loop = f"{name}_loop{tp}"
        k.label(loop)
        for u in range(NS): iteration(u, [u], 2 * P)
        k(f"s_sub_u32 s{sCNT}, s{sCNT}, 1")
        k(f"s_cmp_lg_u32 s{sCNT}, 0")
        k(f"s_cbranch_scc1 {loop}")
        def epi_setup():
            if cpf: code_pf(k, cpf[0], cpf[1], f"e{tp}", 24, -30, sp=60)
            if repack and tp == 1:
                k(f"v_lshrrev_b32 v24, 2, v{vPF}")
                k("v_subrev_u32 v24, 4096, v24")
                for i in range(7):
                    k(f"s_mov_b32 s41, {i*4096}")
                    k(f"buffer_load_dwordx4 v[{RP+4*i}:{RP+4*i+3}], v24, s[{SRD_P}:{SRD_P+3}], s41 offen")
            elif repack: pass
            elif pf and pfs == 7:
                k(f"v_lshlrev_b32 v31, 1, v{vPF}")
                k(f"buffer_load_dword v31, v31, s[{SRD_P}:{SRD_P+3}], 0 offen")
            elif pf: k(f"buffer_load_dword v31, v{vPF}, s[{SRD_P}:{SRD_P+3}], 0 offen")
            k(f"s_and_b32 s39, s{sW}, 3")
            k("s_lshl_b32 s40, s36, 2")
            k("s_add_u32 s39, s39, s40")
            k(f"s_mul_i32 s39, s39, {56*8192}")
            k("s_mul_i32 s40, s37, 7")
            k("s_and_b32 s41, s37, 1")
            k("s_cmp_eq_u32 s41, 0")
            if tp == 0:
                k("s_cselect_b32 s41, 0, 3")
                k("s_add_u32 s41, s41, s40")
                k("s_lshl_b32 s41, s41, 11")
                k("s_add_u32 s48, s41, s39")
                k("s_add_u32 s49, s48, 4096")
            else:
                k("s_cselect_b32 s41, 4, 1")
                k("s_cselect_b32 s42, 6, 0")
                k("s_add_u32 s41, s41, s40")
                k("s_lshl_b32 s41, s41, 11")
                k("s_add_u32 s48, s41, s39")
                k("s_add_u32 s42, s42, s40")
                k("s_lshr_b32 s41, s42, 1")
                k("s_lshl_b32 s41, s41, 12")
                k("s_and_b32 s42, s42, 1")
                k("s_lshl_b32 s42, s42, 3")
                k("s_add_u32 s41, s41, s42")
                k("s_add_u32 s49, s41, s39")
            for d in range(2):
                k(f"v_mov_b32 v{vC0+d}, {f2u(c0):#x}")
                k(f"v_mov_b32 v{vC1+d}, {f2u(c1):#x}")
                k(f"v_mov_b32 v{vONE+d}, 1.0")
        c0 = -2.0 * math.sqrt(2.0 / math.pi) * math.log2(math.e)
        c1 = c0 * 0.044715
        vC0, vC1, vONE = 16, 18, 28
        def pr(b): return f"v[{b}:{b+1}]"
        RP = 224
        def repack_store():
            srd(k, 52, 32, D*F*2, off_imm=WP_OFF)
            k(f"v_lshrrev_b32 v24, 6, v{vPF}")
            k("v_subrev_u32 v24, 256, v24")
            k("s_mul_i32 s41, s2, 14")
            k("v_bfe_u32 v25, v24, 4, 3")
            k(f"s_mov_b32 s42, {56*16384}")
            k("v_mul_lo_u32 v25, v25, s42")
            k("v_and_b32 v26, 15, v24")
            k("v_lshl_add_u32 v25, v26, 4, v25")
            k("v_lshrrev_b32 v24, 7, v24")
            k("v_add_u32 v24, s41, v24")
            for i in range(7):
                if i: k("v_add_u32 v24, 2, v24")
                k("v_lshrrev_b32 v26, 6, v24")
                k("v_lshl_add_u32 v27, v26, 14, v25")
                k("v_bfe_u32 v26, v24, 5, 1")
                k("v_lshl_add_u32 v27, v26, 13, v27")
                k("v_and_b32 v26, 7, v24")
                k("v_lshl_add_u32 v27, v26, 10, v27")
                k("v_bfe_u32 v26, v24, 3, 2")
                k("v_lshl_add_u32 v27, v26, 8, v27")
                if i == 0: k("s_waitcnt vmcnt(8)")
                k(f"buffer_store_dwordx4 v[{RP+4*i}:{RP+4*i+3}], v27, s[52:55], 0 offen{sf}")
        def epi(p, TB, OB):
            out = []
            gi = 0
            for g0 in range(0, nT, 2):
                jj = list(range(nT))[g0:g0+2]
                pairs = []
                for j in jj:
                    g = acc(p, j); u_ = acc(p, nT + j)
                    pairs += [(g, u_), (g + 2, u_ + 2)]
                T = TB + gi * 8; O = OB + gi * 4; gi += 1
                n = len(pairs)
                for q, (g, u_) in enumerate(pairs): out.append(f"v_pk_mul_f32 {pr(T+2*q)}, {pr(g)}, {pr(g)}")
                for q in range(n): out.append(f"v_pk_fma_f32 {pr(T+2*q)}, {pr(T+2*q)}, {pr(vC1)}, {pr(vC0)}")
                for q, (g, u_) in enumerate(pairs): out.append(f"v_pk_mul_f32 {pr(T+2*q)}, {pr(T+2*q)}, {pr(g)}")
                for q in range(2*n): out.append(f"v_exp_f32 v{T+q}, v{T+q}")
                for q, (g, u_) in enumerate(pairs): out.append(f"v_pk_mul_f32 {pr(u_)}, {pr(g)}, {pr(u_)}")
                for q in range(n): out.append(f"v_pk_add_f32 {pr(T+2*q)}, {pr(T+2*q)}, {pr(vONE)}")
                for q in range(2*n): out.append(f"v_rcp_f32 v{T+q}, v{T+q}")
                out.append("s_nop 0")
                for q, (g, u_) in enumerate(pairs): out.append(f"v_pk_mul_f32 {pr(u_)}, {pr(u_)}, {pr(T+2*q)}")
                for q, (g, u_) in enumerate(pairs): out.append(f"v_cvt_pk_bf16_f32 v{O+q}, v{u_}, v{u_+1}")
                if len(jj) == 2:
                    out.append(f"buffer_store_dwordx4 v[{O}:{O+3}], v{vSt}, s[{SRD_O}:{SRD_O+3}], s{48+g0//2} offen offset:{p*1024}{sf}")
                else:
                    out.append(f"buffer_store_dwordx2 v[{O}:{O+1}], v{vSt}, s[{SRD_O}:{SRD_O+3}], s49 offen offset:{p*1024}{sf2}")
            return out
        if peel_last:
            iteration(0, [], 2 * P)
            iteration(1, [], P)
            iteration(2, [], 0)
            cur = 1
            k("s_waitcnt lgkmcnt(0)")
            st(3)
            epi_setup()
            TBs = [FR[0], FR[0] + 16]
            OBs = [FR[0] + 32, FR[0] + 40]
            if fuse:
                for a in range(nA): k(mfma(cur, 0, a))
                for p in range(1, 4):
                    E = epi(p - 1, TBs[(p - 1) & 1], OBs[(p - 1) & 1])
                    M = [mfma(cur, p, a) for a in range(nA)]
                    k(M[0]); k(M[1]); k("s_nop 5")
                    rest = M[2:]
                    step = max(1, len(E) // (len(rest) + 1))
                    mi = 0
                    for ei, e in enumerate(E):
                        k(e)
                        if (ei + 1) % step == 0 and mi < len(rest):
                            k(rest[mi]); mi += 1
                    while mi < len(rest): k(rest[mi]); mi += 1
                k("s_nop 7")
                for e in epi(3, TBs[1], OBs[1]): k(e)
            else:
                for (p, a) in order: k(mfma(cur, p, a))
                k("s_nop 7")
                for p in range(4):
                    for e in epi(p, TBs[p & 1], OBs[p & 1]): k(e)
        else:
            st(3)
            epi_setup()
            k("s_nop 7")
            for p in range(4):
                for e in epi(p, 32 + (p & 1) * 16, 64 + (p & 1) * 8): k(e)
        if repack and tp == 1: repack_store()
        st.end(32, sW)
        k("s_endpgm")
    body(0)
    k.label(f"{name}_typeB")
    body(1)
    k.label(f"{name}_end")
    k("s_endpgm")
    k.lds = NS * STAGE
    k.grid = 256
    k.block = 512
    return k
```

```python
from asmlib import *
from layout import *
from ka_util import f2u, wave_sum
from kb import cos_sin

KC_C1, KC_C3, KC_TW = 32, 56, 72
def kc_consts(k):
    C1, C3, TW, TC, TS = KC_C1, KC_C3, KC_TW, 104, 112
    k("v_lshrrev_b32 v2, 5, v0")
    k("v_and_b32 v3, 31, v0")
    k("v_lshrrev_b32 v6, 4, v3")
    k("v_lshlrev_b32 v6, 4, v6")
    k("v_bfe_u32 v7, v3, 2, 1")
    k("v_lshl_add_u32 v6, v7, 3, v6")
    k("v_bfe_u32 v7, v3, 3, 1")
    k("v_lshl_add_u32 v6, v7, 2, v6")
    k("v_and_b32 v7, 3, v3")
    k("v_add_u32 v6, v6, v7")
    k("v_lshlrev_b32 v10, 3, v2")
    k("v_mul_u32_u24 v10, v10, v6")
    for e in range(8):
        k("v_and_b32 v11, 31, v10")
        cos_sin(k, TC+e, TS+e, 11, 1.0/32)
        if e < 7: k("v_add_u32 v10, v10, v6")
    k("v_and_b32 v11, 1, v6")
    k("v_sub_u32 v12, 0, v11")
    k("v_and_b32 v12, 0x80008000, v12")
    for d in range(4):
        k(f"v_cvt_pk_bf16_f32 v{C1+d}, v{TC+2*d}, v{TC+2*d+1}")
        k(f"v_cvt_pk_bf16_f32 v{C1+8+d}, v{TS+2*d}, v{TS+2*d+1}")
    for d in range(4):
        k(f"v_xor_b32 v{C1+4+d}, v12, v{C1+d}")
        k(f"v_xor_b32 v{C1+12+d}, v12, v{C1+8+d}")
    for d in range(8):
        k(f"v_xor_b32 v{C1+16+d}, 0x80008000, v{C1+8+d}")
    k("v_lshlrev_b32 v10, 2, v2")
    for e in range(8):
        d2c = 8*(e >> 2) + (e & 3)
        k(f"v_add_u32 v11, {d2c}, v10")
        k("v_mul_u32_u24 v11, v11, v3")
        k("v_and_b32 v11, 31, v11")
        cos_sin(k, TC+e, TS+e, 11, 1.0/32)
    k("v_and_b32 v11, 1, v3")
    k("v_sub_u32 v12, 0, v11")
    k("v_and_b32 v12, 0x80008000, v12")
    for d in range(4):
        k(f"v_cvt_pk_bf16_f32 v{C3+d}, v{TC+2*d}, v{TC+2*d+1}")
        k(f"v_cvt_pk_bf16_f32 v{C3+8+d}, v{TS+2*d}, v{TS+2*d+1}")
    for d in range(4):
        k(f"v_xor_b32 v{C3+4+d}, v12, v{C3+d}")
        k(f"v_xor_b32 v{C3+12+d}, v12, v{C3+8+d}")
    for r in range(16):
        d2c = 8*(r >> 2) + (r & 3)
        k(f"v_add_u32 v11, {d2c}, v10")
        k("v_mul_u32_u24 v11, v11, v6")
        cos_sin(k, TW+r, TW+16+r, 11, 1.0/1024)

def gen_kc(name="kc_kernel", stamps=False, pf=True, sf='', pfrows=0, sf2='', xnt=True, cpf=None, x1lds=False, pfs=6):
    k = Kern(name)
    st = Stamps(k, stamps, 2)
    xntf = " nt" if xnt else ""
    C1, C3, TW = KC_C1, KC_C3, KC_TW
    TBL = 16384
    HST = TBL + 32768
    X1S = HST + 32*528
    k("s_cmp_ge_u32 s2, 256")
    k(f"s_cbranch_scc1 {name}_end")
    st.start()
    k(f"s_load_dwordx2 s[32:33], s[0:1], {KA['ws']}")
    k(f"s_load_dwordx2 s[4:5], s[0:1], {KA['x']}")
    k(f"s_load_dwordx2 s[6:7], s[0:1], {KA['wu']}")
    k(f"s_load_dwordx2 s[42:43], s[0:1], {KA['wg']}")
    k("v_mov_b32 v30, v0")
    k("v_lshrrev_b32 v1, 6, v0")
    k("v_and_b32 v0, 63, v0")
    k("v_readfirstlane_b32 s28, v1")
    k("s_and_b32 s34, s2, 7")
    k("s_lshl_b32 s34, s34, 5")
    k("s_lshr_b32 s35, s2, 3")
    k("s_add_u32 s34, s34, s35")
    k("s_lshl_b32 s34, s34, 2")
    k("v_lshrrev_b32 v2, 2, v0")
    k("v_lshrrev_b32 v4, 4, v0")
    k("v_sub_u32 v3, v0, v4")
    k("v_and_b32 v3, 3, v3")
    k(f"s_mov_b32 s35, {ZROWS*16}")
    k("v_mul_lo_u32 v8, v2, s35")
    k("v_add_u32 v3, s34, v3")
    k("v_lshl_add_u32 v8, v3, 4, v8")
    k("v_lshlrev_b32 v5, 4, v0")
    k("v_lshrrev_b32 v2, 5, v0")
    k("v_and_b32 v3, 31, v0")
    k("v_lshlrev_b32 v4, 6, v3")
    k("v_lshl_add_u32 v4, v2, 4, v4")
    k("s_and_b32 s38, s28, 3")
    k("s_add_u32 s36, s34, s38")
    k("s_sub_u32 s39, 2048, s36")
    k("s_cmp_eq_u32 s36, 0")
    k("s_cselect_b32 s39, 1024, s39")
    k("s_cmp_ge_u32 s28, 4")
    k("s_cselect_b32 s36, s39, s36")
    k("s_lshl_b32 s37, s36, 11")
    k("s_waitcnt lgkmcnt(0)")
    srd(k, 8, 32, 256*ZROWS*16, off_imm=ZS_OFF)
    for q in range(2):
        k(f"s_lshl_b32 s38, s28, 1")
        k(f"s_add_u32 s38, s38, {q}")
        k(f"s_lshl_b32 s39, s38, 10")
        k("s_mov_b32 m0, s39")
        k(f"s_mul_i32 s38, s38, {16*ZROWS*16}")
        k(f"buffer_load_dwordx4 v8, s[8:11], s38 offen lds")
    srd(k, 48, 32, 30720, off_imm=TC_OFF)
    k("s_lshl_b32 s38, s28, 12")
    k(f"s_add_u32 m0, s38, {TBL}")
    k("s_nop 0")
    for q in range(4):
        k(f"buffer_load_dwordx4 v5, s[48:51], s38 offen offset:{q*1024} lds")
    srd(k, 16, 4, 2048, off_s="s37")
    XV = 200
    k(f"buffer_load_dwordx4 v[{XV}:{XV+3}], v4, s[16:19], 0 offen{xntf}")
    k(f"buffer_load_dwordx4 v[{XV+4}:{XV+7}], v4, s[16:19], 0 offen offset:32{xntf}")
    MV = 208
    NPF = 0
    srd(k, 20, 32, 2048, off_s="s37", off_imm=X1_OFF)
    srd(k, 24, 32, S*D*2, off_imm=H2_OFF)
    k("v_lshrrev_b32 v10, 4, v0")
    k("v_bfe_u32 v11, v0, 2, 2")
    k("v_and_b32 v12, 3, v0")
    k("v_and_b32 v13, 1, v10")
    k("v_lshl_add_u32 v16, v13, 2, v12")
    k("v_lshrrev_b32 v14, 1, v10")
    k("v_lshl_add_u32 v14, v14, 3, v11")
    k("v_lshlrev_b32 v14, 9, v14")
    k("v_lshl_add_u32 v14, v16, 6, v14")
    k("v_and_b32 v15, 1, v11")
    k("v_lshl_add_u32 v15, v15, 1, v13")
    k("s_and_b32 s38, s28, 3")
    k("v_add_u32 v15, s38, v15")
    k("v_and_b32 v15, 3, v15")
    k("v_lshl_add_u32 v14, v15, 4, v14")
    k("v_mul_u32_u24 v17, 528, v3")
    k("v_lshl_add_u32 v17, v2, 7, v17")
    k("s_lshl_b32 s38, s28, 4")
    k(f"s_add_u32 s38, s38, {HST}")
    k("v_add_u32 v17, s38, v17")
    k("v_lshrrev_b32 v18, 3, v0")
    k("v_and_b32 v19, 7, v0")
    k("v_lshrrev_b32 v20, 2, v18")
    k("v_and_b32 v21, 3, v18")
    k("v_mul_u32_u24 v22, 528, v20")
    k("v_lshl_add_u32 v22, v21, 7, v22")
    k("v_lshl_add_u32 v22, v19, 4, v22")
    k(f"s_mul_i32 s38, s28, {4*528}")
    k(f"s_add_u32 s38, s38, {HST}")
    k("v_add_u32 v22, s38, v22")
    k("v_and_b32 v24, 3, v19")
    k("v_add_u32 v24, s34, v24")
    k("v_sub_u32 v25, 2048, v24")
    k("v_mov_b32 v26, 1024")
    k("v_cmp_eq_u32 vcc, 0, v24")
    k("s_nop 1")
    k("v_cndmask_b32 v25, v25, v26, vcc")
    k("v_cmp_lt_u32 vcc, 3, v19")
    k("s_nop 1")
    k("v_cndmask_b32 v24, v24, v25, vcc")
    k("v_lshrrev_b32 v25, 8, v24")
    k("v_lshlrev_b32 v23, 19, v25")
    k("v_bfe_u32 v25, v24, 4, 4")
    k("v_lshl_add_u32 v23, v25, 10, v23")
    k("v_and_b32 v25, 15, v24")
    k("v_lshl_add_u32 v23, v25, 4, v23")
    k("v_lshl_add_u32 v23, v20, 14, v23")
    k("v_lshl_add_u32 v23, v21, 8, v23")
    k("s_lshl_b32 s41, s28, 16")
    k("s_cmp_ge_u32 s28, 4")
    k("s_cselect_b32 s40, 0x80008000, 0")
    st(1)
    k(f"s_waitcnt vmcnt(0)")
    k("s_barrier")
    st(2)
    if cpf: code_pf(k, cpf[0], cpf[1], "a", 122, 30, sp=60)
    if pf and pfrows == 0:
        srd(k, 44, 6, D*F*2)
        k("s_lshl_b32 s38, s2, 9")
        k("v_add_u32 v31, s38, v30")
        if pfs == 7:
            k("s_mul_i32 s38, s2, 224")
            k("v_add_u32 v31, s38, v30")
            k("v_lshlrev_b32 v31, 7, v31")
            k("v_cmp_gt_u32 vcc, 224, v30")
            k("v_bfrev_b32 v121, 1")
            k("s_nop 1")
            k("v_cndmask_b32 v31, v121, v31, vcc")
        else:
            k("v_lshlrev_b32 v31, 6, v31")
        k("buffer_load_dword v120, v31, s[44:47], 0 offen")
        NPF = 1
    elif pf:
        n = pfrows * 7168 // 64 // 256
        srd(k, 44, 6, pfrows * 7168)
        srd(k, 52, 42, pfrows * 7168)
        k(f"s_mul_i32 s38, s2, {n}")
        k("v_add_u32 v31, s38, v30")
        k("v_lshlrev_b32 v31, 6, v31")
        k(f"v_cmp_gt_u32 vcc, {n}, v30")
        k("v_bfrev_b32 v121, 1")
        k("s_nop 1")
        k("v_cndmask_b32 v31, v121, v31, vcc")
        k("buffer_load_dword v120, v31, s[44:47], 0 offen")
        k("buffer_load_dword v121, v31, s[52:55], 0 offen")
        NPF = 2
    ZF = 104
    for pl in range(2):
        for m in range(2):
            for h in range(2):
                b = ZF + (pl*2 + m)*4 + 2*h
                k(f"ds_read_b64_tr_b16 v[{b}:{b+1}], v14 offset:{h*2048 + m*8192 + pl*8}")
    for q in range(6):
        k(f"ds_read_b128 v[{32+4*q}:{35+4*q}], v5 offset:{TBL + q*1024}")
    k("s_waitcnt lgkmcnt(0)")
    for d in range(8): k(f"v_xor_b32 v{ZF+8+d}, s40, v{ZF+8+d}")
    k("s_and_b32 s38, s28, 3")
    k("s_or_b32 s38, s38, s34")
    k("s_cmp_lg_u32 s38, 0")
    k(f"s_cbranch_scc1 {name}_nosp")
    k("s_cmp_eq_u32 s28, 0")
    k(f"s_cbranch_scc1 {name}_sp0")
    for d in range(8): k(f"v_xor_b32 v{ZF+d}, s40, v{ZF+8+d}")
    k.label(f"{name}_sp0")
    for d in range(8): k(f"v_mov_b32 v{ZF+8+d}, 0")
    k.label(f"{name}_nosp")
    TR, TI = 128, 144
    def mf(d, a, b, c):
        cs = "0" if c is None else f"v[{c}:{c+15}]"
        k(f"v_mfma_f32_32x32x16_bf16 v[{d}:{d+15}], v[{a}:{a+3}], v[{b}:{b+3}], {cs}")
    zr = lambda m: ZF + m*4
    zi = lambda m: ZF + 8 + m*4
    k("s_nop 1")
    mf(TR, zr(0), C1+0, None)
    mf(TI, zr(0), C1+16, None)
    mf(TR, zr(1), C1+4, TR)
    mf(TI, zr(1), C1+20, TI)
    mf(TR, zi(0), C1+8, TR)
    mf(TI, zi(0), C1+0, TI)
    mf(TR, zi(1), C1+12, TR)
    mf(TI, zi(1), C1+4, TI)
    for q in list(range(10, 18)) + list(range(6, 10)):
        k(f"ds_read_b128 v[{32+4*q}:{35+4*q}], v5 offset:{TBL + q*1024}")
    XF = 176
    for d in range(8):
        k(f"v_lshlrev_b32 v{XF+2*d}, 16, v{XV+d}")
        k(f"v_and_b32 v{XF+2*d+1}, 0xffff0000, v{XV+d}")
    k("s_waitcnt lgkmcnt(4)")
    for q in range(12):
        k(f"ds_read_b128 v[{MV+4*q}:{MV+4*q+3}], v5 offset:{TBL + 18432 + q*1024}")
    def pr(b): return f"v[{b}:{b+1}]"
    PRr, PIi = 160, 192
    for q in range(8):
        k(f"v_pk_mul_f32 {pr(PRr+2*q)}, {pr(TR+2*q)}, {pr(TW+2*q)}")
    for q in range(8):
        k(f"v_pk_fma_f32 {pr(PRr+2*q)}, {pr(TI+2*q)}, {pr(TW+16+2*q)}, {pr(PRr+2*q)}")
    for q in range(8):
        k(f"v_pk_mul_f32 {pr(TI+2*q)}, {pr(TI+2*q)}, {pr(TW+2*q)}")
    for q in range(8):
        k(f"v_pk_fma_f32 {pr(TI+2*q)}, {pr(TR+2*q)}, {pr(TW+16+2*q)}, {pr(TI+2*q)} neg_lo:[1,0,0] neg_hi:[1,0,0]")
    PR, PI = 104, 112
    for d in range(8):
        k(f"v_cvt_pk_bf16_f32 v{PR+d}, v{PRr+2*d}, v{PRr+2*d+1}")
        k(f"v_cvt_pk_bf16_f32 v{PI+d}, v{TI+2*d}, v{TI+2*d+1}")
    Y = 128
    k("s_waitcnt lgkmcnt(12)")
    mf(Y, PR+0, C3+0, None)
    mf(Y, PR+4, C3+4, Y)
    mf(Y, PI+0, C3+8, Y)
    mf(Y, PI+4, C3+12, Y)
    k("s_nop 15")
    k("s_waitcnt lgkmcnt(0)")
    for q in range(8):
        k(f"v_pk_fma_f32 {pr(XF+2*q)}, {pr(Y+2*q)}, {pr(MV+2*q)}, {pr(XF+2*q)}")
    for d in range(8):
        k(f"v_cvt_pk_bf16_f32 v{XV+d}, v{XF+2*d}, v{XF+2*d+1}")
    if x1lds:
        k(f"s_lshl_b32 s38, s28, 11")
        k(f"s_add_u32 s38, s38, {X1S}")
        k("v_add_u32 v27, s38, v4")
        k("v_add_u32 v28, s38, v5")
        k(f"ds_write_b128 v27, v[{XV}:{XV+3}]")
        k(f"ds_write_b128 v27, v[{XV+4}:{XV+7}] offset:32")
        k("s_waitcnt lgkmcnt(0)")
        k("ds_read_b128 v[96:99], v28")
        k("ds_read_b128 v[100:103], v28 offset:1024")
        k("s_waitcnt lgkmcnt(1)")
        k(f"buffer_store_dwordx4 v[96:99], v5, s[20:23], 0 offen{sf}")
        k("s_waitcnt lgkmcnt(0)")
        k(f"buffer_store_dwordx4 v[100:103], v5, s[20:23], 0 offen offset:1024{sf}")
    else:
        k(f"buffer_store_dwordx4 v[{XV}:{XV+3}], v4, s[20:23], 0 offen{sf}")
        k(f"buffer_store_dwordx4 v[{XV+4}:{XV+7}], v4, s[20:23], 0 offen offset:32{sf}")
    for d in range(8):
        k(f"v_lshlrev_b32 v{XF+2*d}, 16, v{XV+d}")
        k(f"v_and_b32 v{XF+2*d+1}, 0xffff0000, v{XV+d}")
    k(f"v_pk_add_f32 v[10:11], {pr(XF)}, {pr(XF+2)}")
    k(f"v_pk_mul_f32 v[12:13], {pr(XF)}, {pr(XF)}")
    for q in range(1, 8):
        if q > 1: k(f"v_pk_add_f32 v[10:11], v[10:11], {pr(XF+2*q)}")
        k(f"v_pk_fma_f32 v[12:13], {pr(XF+2*q)}, {pr(XF+2*q)}, v[12:13]")
    k("v_add_f32 v10, v10, v11")
    k("v_add_f32 v12, v12, v13")
    wave_sum(k, [10, 12], [11, 13])
    k(f"v_mul_f32 v10, {f2u(1.0/1024):#x}, v10")
    k(f"v_mul_f32 v12, {f2u(1.0/1024):#x}, v12")
    k("v_fma_f32 v12, -v10, v10, v12")
    k("v_max_f32 v12, 0, v12")
    k(f"v_add_f32 v12, {f2u(1e-5):#x}, v12")
    k("v_rsq_f32 v12, v12")
    k("v_sub_f32 v10, 0, v10")
    bc = "op_sel:[0,0] op_sel_hi:[1,0]"
    for q in range(8): k(f"v_pk_add_f32 {pr(XF+2*q)}, {pr(XF+2*q)}, v[10:11] {bc}")
    for q in range(8): k(f"v_pk_mul_f32 {pr(XF+2*q)}, {pr(XF+2*q)}, v[12:13] {bc}")
    for q in range(8): k(f"v_pk_fma_f32 {pr(XF+2*q)}, {pr(XF+2*q)}, {pr(MV+16+2*q)}, {pr(MV+32+2*q)}")
    for d in range(8):
        k(f"v_cvt_pk_bf16_f32 v{160+d}, v{XF+2*d}, v{XF+2*d+1}")
    k("ds_write_b128 v17, v[160:163]")
    k("ds_write_b128 v17, v[164:167] offset:256")
    k("s_waitcnt lgkmcnt(0)")
    k("s_barrier")
    k("ds_read_b128 v[168:171], v22")
    k(f"ds_read_b128 v[172:175], v22 offset:{2*528}")
    k("s_add_u32 s42, s41, 32768")
    k("s_waitcnt lgkmcnt(1)")
    k(f"buffer_store_dwordx4 v[168:171], v23, s[24:27], s41 offen{sf2}")
    k("s_waitcnt lgkmcnt(0)")
    k(f"buffer_store_dwordx4 v[172:175], v23, s[24:27], s42 offen{sf2}")
    st(3)
    st.end(32, 28)
    k.label(f"{name}_end")
    k("s_endpgm")
    k.lds = HST + 32*528 + (16384 if x1lds else 0); k.grid = 256; k.block = 512
    return k
```

```python
from mk_var20 import P, build
B = dict(ka=dict(tables=False))
build("p_a.s", P(ka=dict(tables=False), kb=dict(ctable=True)))
build("p_b.s", P(ka=dict(tables=False), kb=dict(ctable=True, pfs=7), kc=dict(pfs=7), g3=dict(pfs=7)))
```

```python
from asmlib import *
from layout import *
import math, struct, re
def f2u(x): return struct.unpack("<I", struct.pack("<f", x))[0]

def gen_gemm3c(name="g3_kernel", stamps=False, pf=True, sf=' sc1', sf2=' sc1', dma_frac=(0.1, 0.35, 0.6, 0.85), rd_span=0.6, cpf=None,
               peel_first=True, peel_last=True, fuse=True, xmap=0, repack=False, pfs=6, cont=None):
    k = Kern(name)
    st = Stamps(k, stamps, 3)
    NS = 4
    BS = 4128
    STAGE = 8 * BS
    NK = 32
    ROWB = F * 2
    P = 4
    SRD_G, SRD_U, SRD_H, SRD_O, SRD_P = 8, 12, 16, 20, 44
    sKW, sKH, sBLK, sCNT, sW = 24, 25, 26, 27, 28
    vDW, vDH, vSt, vPF = 1, 2, 3, 30
    vRA = [4 + i for i in range(NS)]
    vRB = [10 + i for i in range(NS)]
    vRA2 = [20 + i for i in range(NS)]
    FR = [32, 80]
    ACC = 128
    k("s_cmp_ge_u32 s2, 256")
    k(f"s_cbranch_scc1 {name}_end")
    st.start()
    k(f"s_load_dwordx2 s[4:5], s[0:1], {KA['wg']}")
    k(f"s_load_dwordx2 s[6:7], s[0:1], {KA['wu']}")
    k(f"s_load_dwordx2 s[32:33], s[0:1], {KA['ws']}")
    k(f"s_load_dwordx2 s[30:31], s[0:1], {KA['wd']}")
    k("v_lshrrev_b32 v1, 6, v0")
    k("v_mov_b32 v30, v0")
    k("v_and_b32 v0, 63, v0")
    k(f"v_readfirstlane_b32 s{sW}, v1")
    k("s_and_b32 s34, s2, 7")
    k("s_lshr_b32 s35, s2, 3")
    if xmap == 0:
        k("s_and_b32 s36, s34, 1")
        k("s_lshl_b32 s36, s36, 2")
        k("s_and_b32 s37, s35, 3")
        k("s_add_u32 s36, s36, s37")
        k("s_lshr_b32 s37, s34, 1")
        k("s_lshl_b32 s37, s37, 3")
        k("s_lshr_b32 s38, s35, 2")
        k("s_add_u32 s37, s37, s38")
    elif xmap == 1:
        k("s_and_b32 s36, s35, 7")
        k("s_lshl_b32 s37, s34, 2")
        k("s_lshr_b32 s38, s35, 3")
        k("s_add_u32 s37, s37, s38")
    else:
        k("s_and_b32 s36, s34, 3")
        k("s_lshl_b32 s36, s36, 1")
        k("s_and_b32 s37, s35, 1")
        k("s_add_u32 s36, s36, s37")
        k("s_lshr_b32 s37, s34, 2")
        k("s_lshl_b32 s37, s37, 4")
        k("s_lshr_b32 s38, s35, 1")
        k("s_add_u32 s37, s37, s38")
    k("v_lshrrev_b32 v16, 4, v0")
    k("v_and_b32 v17, 1, v16")
    k("v_lshlrev_b32 v17, 4, v17")
    k("v_lshrrev_b32 v18, 1, v16")
    k("v_lshlrev_b32 v18, 2, v18")
    k("v_add_u32 v17, v17, v18")
    k(f"s_lshr_b32 s39, s{sW}, 2")
    k("s_lshl_b32 s39, s39, 3")
    k(f"s_and_b32 s40, s{sW}, 3")
    k("s_add_u32 s39, s39, s40")
    k("v_add_u32 v17, s39, v17")
    k(f"s_mov_b32 s41, {ROWB}")
    k("v_mul_lo_u32 v17, v17, s41")
    k("v_and_b32 v18, 15, v0")
    k("v_lshlrev_b32 v19, 4, v18")
    k(f"v_add_u32 v{vDW}, v17, v19")
    k("v_cmp_lt_u32 vcc, 13, v18")
    k("v_bfrev_b32 v19, 1")
    k("s_nop 0")
    k(f"v_cndmask_b32 v{vDW}, v{vDW}, v19, vcc")
    k(f"s_lshl_b32 s39, s{sW}, 11")
    k(f"v_lshlrev_b32 v{vSt}, 4, v0")
    k(f"v_add_u32 v{vDH}, s39, v{vSt}")
    k(f"s_mul_i32 s{sBLK}, s{sW}, {BS}")
    k("s_mul_i32 s39, s37, 224")
    k(f"s_sub_u32 s40, {D*ROWB}, s39")
    k("s_lshl_b32 s42, s36, 19")
    k("s_waitcnt lgkmcnt(0)")
    st(1)
    srd(k, SRD_G, 4, "s40", off_s="s39")
    srd(k, SRD_U, 6, "s40", off_s="s39")
    srd(k, SRD_H, 32, 1 << 19, off_s="s42", off_imm=H2_OFF)
    k(f"s_mov_b32 s{sKW}, 0")
    k(f"s_mov_b32 s{sKH}, 0")

    def dma_group(stage, part):
        base = (stage % NS) * STAGE
        if part == 0:
            return [f"s_add_u32 m0, s{sBLK}, {base}", f"buffer_load_dwordx4 v{vDW}, s[{SRD_G}:{SRD_G+3}], s{sKW} offen lds"]
        if part == 1:
            return [f"s_add_u32 m0, s{sBLK}, {base+1024}", f"buffer_load_dwordx4 v{vDW}, s[{SRD_U}:{SRD_U+3}], s{sKW} offen lds"]
        if part == 2:
            return [f"s_add_u32 m0, s{sBLK}, {base+2048}", f"buffer_load_dwordx4 v{vDH}, s[{SRD_H}:{SRD_H+3}], s{sKH} offen lds"]
        if part == 3:
            return [None, f"buffer_load_dwordx4 v{vDH}, s[{SRD_H}:{SRD_H+3}], s{sKH} offen offset:1024 lds"]
    def adv():
        return [f"s_add_u32 s{sKW}, s{sKW}, {32*ROWB}", f"s_add_u32 s{sKH}, s{sKH}, 16384"]
    def issue_stage(stg):
        for part in range(4):
            m, ld = dma_group(stg, part)
            if m:
                k(m); k("s_nop 0")
            k(ld)
        for a in adv(): k(a)
    issue_stage(0)
    k("v_and_b32 v17, 1, v16")
    k("v_lshlrev_b32 v17, 2, v17")
    k("v_bfe_u32 v18, v0, 2, 2")
    k("v_add_u32 v17, v17, v18")
    k(f"s_mov_b32 s41, {BS}")
    k("v_mul_lo_u32 v17, v17, s41")
    k("v_lshrrev_b32 v18, 1, v16")
    k("v_lshlrev_b32 v18, 8, v18")
    k("v_add_u32 v17, v17, v18")
    k("v_and_b32 v18, 3, v0")
    k("v_lshlrev_b32 v18, 3, v18")
    k(f"v_add_u32 v{vRA[0]}, v17, v18")
    k(f"s_and_b32 s39, s{sW}, 3")
    k(f"s_mul_i32 s39, s39, {2*BS}")
    k("s_add_u32 s39, s39, 2048")
    k(f"v_add_u32 v{vRB[0]}, s39, v{vSt}")
    for r in range(4): k(f"v_mov_b32 v{24+r}, 0")
    issue_stage(1)
    if not peel_first: issue_stage(2)
    for r in range(0, 128, 16):
        k(f"v_mfma_f32_32x32x16_bf16 v[{ACC+r}:{ACC+r+15}], v[24:27], v[24:27], 0")
    k("s_and_b32 s39, s37, 1")
    k("s_cmp_eq_u32 s39, 0")
    k("s_cselect_b32 s40, 0, 96")
    k("s_cselect_b32 s41, 128, 32")
    k("s_cselect_b32 s42, 192, 0")
    k(f"s_cmp_ge_u32 s{sW}, 4")
    k("s_cselect_b32 s40, s41, s40")
    k(f"v_add_u32 v{vRA2[0]}, s42, v{vRA[0]}")
    k(f"v_add_u32 v{vRA[0]}, s40, v{vRA[0]}")
    for s in range(1, NS):
        k(f"v_add_u32 v{vRA[s]}, {s*STAGE}, v{vRA[0]}")
        k(f"v_add_u32 v{vRA2[s]}, {s*STAGE}, v{vRA2[0]}")
        k(f"v_add_u32 v{vRB[s]}, {s*STAGE}, v{vRB[0]}")
    k(f"v_lshlrev_b32 v{vPF}, 6, v30")
    srd(k, SRD_O, 32, S * F * 2, off_imm=ACT_OFF)
    k("s_mul_i32 s39, s2, 28672")
    srd(k, SRD_P, 30, 28672, off_s="s39")
    k(f"s_waitcnt vmcnt({P if peel_first else 2*P})")
    k("s_barrier")
    st(2)
    k(f"s_cmp_ge_u32 s{sW}, 4")
    k(f"s_cbranch_scc1 {name}_typeB")

    def body(tp):
        nT = 4 if tp == 0 else 3
        nA = 2 * nT
        def Af(s, a): return FR[s] + a * 4
        def Bf(s, p): return FR[s] + 32 + p * 4
        def acc(p, a): return ACC + (p * nA + a) * 4
        def reads(setn, stage):
            A = []
            for a in range(nA):
                gu, j = a // nT, a % nT
                for h in range(2):
                    if tp == 1 and j == 2:
                        off = gu * 1024 + h * 512; base = vRA2[stage]
                    else:
                        off = gu * 1024 + j * 32 + h * 512; base = vRA[stage]
                    A.append(f"ds_read_b64_tr_b16 v[{Af(setn,a)+2*h}:{Af(setn,a)+2*h+1}], v{base} offset:{off}")
            B = []
            for p in range(4):
                off = (p >> 1) * BS + (p & 1) * 1024
                B.append(f"ds_read_b128 v[{Bf(setn,p)}:{Bf(setn,p)+3}], v{vRB[stage]} offset:{off}")
            return [B[0]] + A[:4] + [B[1]] + A[4:8] + [B[2]] + A[8:12] + [B[3]] + A[12:]
        order = [(p, a) for p in range(4) for a in range(nA)]
        nM = len(order)
        def mfma(cur, p, a):
            return f"v_mfma_f32_16x16x32_bf16 v[{acc(p,a)}:{acc(p,a)+3}], v[{Af(cur,a)}:{Af(cur,a)+3}], v[{Bf(cur,p)}:{Bf(cur,p)+3}], v[{acc(p,a)}:{acc(p,a)+3}]"
        def iteration(u, dma_stages, nvm, do_reads=True, barrier=True):
            cur = u & 1; nxt = cur ^ 1
            extra = {}
            if do_reads:
                rd = reads(nxt, (u + 1) % NS)
                for ri, r in enumerate(rd):
                    extra.setdefault(int(ri * rd_span * nM / len(rd)), []).append(r)
            nd = len(dma_stages) * 4
            for si, stg in enumerate(dma_stages):
                for part in range(4):
                    q = si * 4 + part
                    fr = dma_frac[part] if len(dma_stages) == 1 else (0.04 + 0.9 * q / nd)
                    pos = max(1, int(fr * nM))
                    m, ld = dma_group(stg, part)
                    if m: extra.setdefault(pos - 1, []).append(m)
                    extra.setdefault(pos, []).append(ld)
                    if part == 3:
                        extra.setdefault(pos, []).extend(adv())
            if nvm is None: k("s_waitcnt lgkmcnt(0)")
            else: k(f"s_waitcnt vmcnt({nvm}) lgkmcnt(0)")
            if barrier: k("s_barrier")
            for idx, (p, a) in enumerate(order):
                k(mfma(cur, p, a))
                for e in extra.get(idx, []): k(e)
        for r in reads(0, 0): k(r)
        if not peel_first: issue_stage(3)
        ntrips = NK // NS
        if peel_first:
            iteration(0, [2, 3], 0)
            iteration(1, [0, 1], P)
            iteration(2, [2], 2 * P)
            iteration(3, [3], 2 * P)
            ntrips -= 1
        if peel_last: ntrips -= 1
        k(f"s_mov_b32 s{sCNT}, {ntrips}")
        loop = f"{name}_loop{tp}"
        k.label(loop)
        for u in range(NS): iteration(u, [u], 2 * P)
        k(f"s_sub_u32 s{sCNT}, s{sCNT}, 1")
        k(f"s_cmp_lg_u32 s{sCNT}, 0")
        k(f"s_cbranch_scc1 {loop}")
        def epi_setup():
            if cpf: code_pf(k, cpf[0], cpf[1], f"e{tp}", 24, -30, sp=60)
            if repack and tp == 1:
                k(f"v_lshrrev_b32 v24, 2, v{vPF}")
                k("v_subrev_u32 v24, 4096, v24")
                for i in range(7):
                    k(f"s_mov_b32 s41, {i*4096}")
                    k(f"buffer_load_dwordx4 v[{RP+4*i}:{RP+4*i+3}], v24, s[{SRD_P}:{SRD_P+3}], s41 offen")
            elif repack: pass
            elif pf and pfs == 7:
                k(f"v_lshlrev_b32 v31, 1, v{vPF}")
                k(f"buffer_load_dword v31, v31, s[{SRD_P}:{SRD_P+3}], 0 offen")
            elif pf: k(f"buffer_load_dword v31, v{vPF}, s[{SRD_P}:{SRD_P+3}], 0 offen")
            k(f"s_and_b32 s39, s{sW}, 3")
            k("s_lshl_b32 s40, s36, 2")
            k("s_add_u32 s39, s39, s40")
            k(f"s_mul_i32 s39, s39, {56*8192}")
            k("s_mul_i32 s40, s37, 7")
            k("s_and_b32 s41, s37, 1")
            k("s_cmp_eq_u32 s41, 0")
            if tp == 0:
                k("s_cselect_b32 s41, 0, 3")
                k("s_add_u32 s41, s41, s40")
                k("s_lshl_b32 s41, s41, 11")
                k("s_add_u32 s48, s41, s39")
                k("s_add_u32 s49, s48, 4096")
            else:
                k("s_cselect_b32 s41, 4, 1")
                k("s_cselect_b32 s42, 6, 0")
                k("s_add_u32 s41, s41, s40")
                k("s_lshl_b32 s41, s41, 11")
                k("s_add_u32 s48, s41, s39")
                k("s_add_u32 s42, s42, s40")
                k("s_lshr_b32 s41, s42, 1")
                k("s_lshl_b32 s41, s41, 12")
                k("s_and_b32 s42, s42, 1")
                k("s_lshl_b32 s42, s42, 3")
                k("s_add_u32 s41, s41, s42")
                k("s_add_u32 s49, s41, s39")
            for d in range(2):
                k(f"v_mov_b32 v{vC0+d}, {f2u(c0):#x}")
                k(f"v_mov_b32 v{vC1+d}, {f2u(c1):#x}")
                k(f"v_mov_b32 v{vONE+d}, 1.0")
        c0 = -2.0 * math.sqrt(2.0 / math.pi) * math.log2(math.e)
        c1 = c0 * 0.044715
        vC0, vC1, vONE = 16, 18, 28
        def pr(b): return f"v[{b}:{b+1}]"
        RP = 224
        def repack_store():
            srd(k, 52, 32, D*F*2, off_imm=WP_OFF)
            k(f"v_lshrrev_b32 v24, 6, v{vPF}")
            k("v_subrev_u32 v24, 256, v24")
            k("s_mul_i32 s41, s2, 14")
            k("v_bfe_u32 v25, v24, 4, 3")
            k(f"s_mov_b32 s42, {56*16384}")
            k("v_mul_lo_u32 v25, v25, s42")
            k("v_and_b32 v26, 15, v24")
            k("v_lshl_add_u32 v25, v26, 4, v25")
            k("v_lshrrev_b32 v24, 7, v24")
            k("v_add_u32 v24, s41, v24")
            for i in range(7):
                if i: k("v_add_u32 v24, 2, v24")
                k("v_lshrrev_b32 v26, 6, v24")
                k("v_lshl_add_u32 v27, v26, 14, v25")
                k("v_bfe_u32 v26, v24, 5, 1")
                k("v_lshl_add_u32 v27, v26, 13, v27")
                k("v_and_b32 v26, 7, v24")
                k("v_lshl_add_u32 v27, v26, 10, v27")
                k("v_bfe_u32 v26, v24, 3, 2")
                k("v_lshl_add_u32 v27, v26, 8, v27")
                if i == 0: k("s_waitcnt vmcnt(8)")
                k(f"buffer_store_dwordx4 v[{RP+4*i}:{RP+4*i+3}], v27, s[52:55], 0 offen{sf}")
        def epi(p, TB, OB):
            out = []
            gi = 0
            for g0 in range(0, nT, 2):
                jj = list(range(nT))[g0:g0+2]
                pairs = []
                for j in jj:
                    g = acc(p, j); u_ = acc(p, nT + j)
                    pairs += [(g, u_), (g + 2, u_ + 2)]
                T = TB + gi * 8; O = OB + gi * 4; gi += 1
                n = len(pairs)
                for q, (g, u_) in enumerate(pairs): out.append(f"v_pk_mul_f32 {pr(T+2*q)}, {pr(g)}, {pr(g)}")
                for q in range(n): out.append(f"v_pk_fma_f32 {pr(T+2*q)}, {pr(T+2*q)}, {pr(vC1)}, {pr(vC0)}")
                for q, (g, u_) in enumerate(pairs): out.append(f"v_pk_mul_f32 {pr(T+2*q)}, {pr(T+2*q)}, {pr(g)}")
                for q in range(2*n): out.append(f"v_exp_f32 v{T+q}, v{T+q}")
                for q, (g, u_) in enumerate(pairs): out.append(f"v_pk_mul_f32 {pr(u_)}, {pr(g)}, {pr(u_)}")
                for q in range(n): out.append(f"v_pk_add_f32 {pr(T+2*q)}, {pr(T+2*q)}, {pr(vONE)}")
                for q in range(2*n): out.append(f"v_rcp_f32 v{T+q}, v{T+q}")
                out.append("s_nop 0")
                for q, (g, u_) in enumerate(pairs): out.append(f"v_pk_mul_f32 {pr(u_)}, {pr(u_)}, {pr(T+2*q)}")
                for q, (g, u_) in enumerate(pairs): out.append(f"v_cvt_pk_bf16_f32 v{O+q}, v{u_}, v{u_+1}")
                if len(jj) == 2:
                    out.append(f"buffer_store_dwordx4 v[{O}:{O+3}], v{vSt}, s[{SRD_O}:{SRD_O+3}], s{48+g0//2} offen offset:{p*1024}{sf}")
                else:
                    out.append(f"buffer_store_dwordx2 v[{O}:{O+1}], v{vSt}, s[{SRD_O}:{SRD_O+3}], s49 offen offset:{p*1024}{sf2}")
            return out
        if peel_last:
            iteration(0, [], 2 * P)
            iteration(1, [], P)
            iteration(2, [], 0)
            cur = 1
            k("s_waitcnt lgkmcnt(0)")
            st(3)
            epi_setup()
            TBs = [FR[0], FR[0] + 16]
            OBs = [FR[0] + 32, FR[0] + 40]
            if fuse:
                for a in range(nA): k(mfma(cur, 0, a))
                for p in range(1, 4):
                    E = epi(p - 1, TBs[(p - 1) & 1], OBs[(p - 1) & 1])
                    M = [mfma(cur, p, a) for a in range(nA)]
                    k(M[0]); k(M[1]); k("s_nop 5")
                    rest = M[2:]
                    step = max(1, len(E) // (len(rest) + 1))
                    mi = 0
                    for ei, e in enumerate(E):
                        k(e)
                        if (ei + 1) % step == 0 and mi < len(rest):
                            k(rest[mi]); mi += 1
                    while mi < len(rest): k(rest[mi]); mi += 1
                k("s_nop 7")
                for e in epi(3, TBs[1], OBs[1]): k(e)
            else:
                for (p, a) in order: k(mfma(cur, p, a))
                k("s_nop 7")
                for p in range(4):
                    for e in epi(p, TBs[p & 1], OBs[p & 1]): k(e)
        else:
            st(3)
            epi_setup()
            k("s_nop 7")
            for p in range(4):
                for e in epi(p, 32 + (p & 1) * 16, 64 + (p & 1) * 8): k(e)
        if repack and tp == 1: repack_store()
        if cont:
            k(f"s_branch {name}_p2")
        else:
            st.end(32, sW)
            k("s_endpgm")
    body(0)
    k.label(f"{name}_typeB")
    body(1)
    if cont:
        k.label(f"{name}_p2")
        cont(k)
    k.label(f"{name}_end")
    k("s_endpgm")
    k.lds = max(NS * STAGE, getattr(k, 'lds2', 0))
    k.grid = 256
    k.block = 512
    return k
```

```python
from asmlib import *
from layout import *

def gen_gemm4b(name="g4_kernel", NS=4, stamps=False, nomfma=False, wf='', af='', sf='', rd_per=1.0, spin_max=1 << 20, wsflag=True, fine=False, waveflag=False, latex=True, noW=False, noA=False, etmap=0, nords=False, cprio=None, rdper=1, rdskip=0, nobar=False, tagged=False, psleep=2, wcontig=False, bfx=False, fsleep=1, esplit=False, cdma=False, wpack=False, into=None):
    fused = into is not None
    k = into if fused else Kern(name)
    if fused: name = name + "_f"
    stp = Stamps(k, stamps, 4)
    PA = 1056
    AREG = 16 * PA
    STAGE = AREG + 16 * 1024
    NK = 28
    SRD_W, SRD_A, SRD_O, SRD_X, SRD_M, SRD_PW, SRD_PR, SRD_D = 8, 12, 16, 20, 24, 44, 48, 52
    sW, sKW, sKA, sCNT, sRD, sDM, sH = 28, 29, 30, 31, 40, 41, 56
    if not fused:
        k("s_cmp_ge_u32 s2, 256")
        k(f"s_cbranch_scc1 {name}_end")
        stp.start()
        k(f"s_load_dwordx2 s[4:5], s[0:1], {KA['wd']}")
        k(f"s_load_dwordx2 s[6:7], s[0:1], {KA['out']}")
        k(f"s_load_dwordx2 s[32:33], s[0:1], {KA['ws']}")
        k(f"s_load_dwordx2 s[58:59], s[0:1], {KA['dbg']}")
        k("v_lshrrev_b32 v1, 6, v0")
        k("v_and_b32 v0, 63, v0")
        k(f"v_readfirstlane_b32 s{sW}, v1")
    else:
        k(f"s_load_dwordx2 s[4:5], s[0:1], {KA['wd']}")
        k(f"s_load_dwordx2 s[6:7], s[0:1], {KA['out']}")
        k("s_lshl_b32 s38, s36, 1")
        k("s_lshr_b32 s39, s37, 4")
        k("s_add_u32 s38, s38, s39")
        k("s_lshl_b32 s38, s38, 7")
        srd(k, 60, 32, 2048, off_imm=CNT_OFF)
        k("s_waitcnt vmcnt(0) lgkmcnt(0)")
        k("s_barrier")
        k(f"s_cmp_lg_u32 s{sW}, 0")
        k(f"s_cbranch_scc1 {name}_nosig")
        k("v_mov_b32 v20, 1")
        k("v_mov_b32 v21, s38")
        k("s_mov_b64 exec, 1")
        k("buffer_atomic_add v20, v21, s[60:63], 0 offen sc1")
        k("s_mov_b64 exec, -1")
        k.label(f"{name}_nosig")
    k("s_and_b32 s34, s2, 7")
    k("s_lshr_b32 s35, s2, 3")
    k(f"s_and_b32 s{sH}, s35, 1")
    k("s_lshr_b32 s35, s35, 1")
    if etmap == 0:
        k("s_and_b32 s36, s34, 1")
        k("s_lshl_b32 s36, s36, 2")
        k("s_and_b32 s37, s35, 3")
        k("s_add_u32 s36, s36, s37")
    else:
        k("s_and_b32 s36, s35, 3")
        k("s_lshl_b32 s36, s36, 1")
        k("s_and_b32 s37, s34, 1")
        k("s_add_u32 s36, s36, s37")
    k("s_lshr_b32 s37, s34, 1")
    k("s_lshl_b32 s37, s37, 2")
    k("s_lshr_b32 s38, s35, 2")
    k("s_add_u32 s37, s37, s38")
    k("v_lshrrev_b32 v16, 4, v0")
    k("v_lshlrev_b32 v3, 4, v0")
    k(f"s_cmp_ge_u32 s{sW}, 4")
    k(f"s_cbranch_scc1 {name}_prod")
    vRA, vRB0, vRB2, vRAc, vRB0c, vRB2c = 4, 5, 6, 7, 8, 9
    FR = [32, 96]
    ACC = 160
    def Af(s, ks, a): return FR[s] + (ks * 4 + a) * 4
    def Bf(s, ks, p): return FR[s] + 32 + (ks * 4 + p) * 4
    def acc(p, a): return ACC + (p * 4 + a) * 4
    k("v_and_b32 v17, 1, v16")
    k("v_lshlrev_b32 v17, 2, v17")
    k("v_bfe_u32 v18, v0, 2, 2")
    k("v_add_u32 v17, v17, v18")
    k(f"s_mov_b32 s39, {PA}")
    k("v_mul_lo_u32 v17, v17, s39")
    k("v_lshrrev_b32 v18, 1, v16")
    k("v_lshlrev_b32 v18, 8, v18")
    k("v_add_u32 v17, v17, v18")
    k("v_and_b32 v18, 3, v0")
    k("v_lshlrev_b32 v18, 3, v18")
    k("v_add_u32 v17, v17, v18")
    k(f"s_and_b32 s39, s{sW}, 1")
    k("s_lshl_b32 s39, s39, 7")
    k(f"v_add_u32 v{vRA}, s39, v17")
    k(f"s_lshr_b32 s39, s{sW}, 1")
    k("s_lshl_b32 s39, s39, 13")
    k(f"s_add_u32 s39, s39, {AREG}")
    k(f"s_lshl_b32 s38, s{sH}, 11")
    k("s_add_u32 s42, s39, s38")
    k(f"v_add_u32 v{vRB0}, s42, v3")
    k("s_xor_b32 s38, s38, 2048")
    k("s_add_u32 s42, s39, s38")
    k(f"v_add_u32 v{vRB2}, s42, v3")
    for r in range(4): k(f"v_mov_b32 v{24+r}, 0")
    k("s_nop 1")
    for r in range(0, 64, 16):
        k(f"v_mfma_f32_32x32x16_bf16 v[{ACC+r}:{ACC+r+15}], v[24:27], v[24:27], 0")
    vXO, vGO = 10, 11
    k("v_and_b32 v17, 15, v0")
    k("v_lshlrev_b32 v17, 11, v17")
    k("v_and_b32 v18, 1, v16")
    k("v_lshlrev_b32 v18, 5, v18")
    k("v_add_u32 v17, v17, v18")
    k("v_lshrrev_b32 v18, 1, v16")
    k("v_lshlrev_b32 v18, 4, v18")
    k("v_add_u32 v17, v17, v18")
    k(f"s_and_b32 s39, s{sW}, 1")
    k(f"s_lshl_b32 s39, s39, {10 if esplit else 7}")
    k(f"s_lshr_b32 s38, s{sW}, 1")
    k("s_lshl_b32 s38, s38, 17")
    k("s_add_u32 s39, s39, s38")
    k(f"s_lshl_b32 s38, s{sH}, 16")
    k("s_add_u32 s39, s39, s38")
    k(f"v_add_u32 v{vXO}, s39, v17")
    k("v_and_b32 v17, 1, v16")
    k("v_lshlrev_b32 v17, 6, v17")
    k("v_lshrrev_b32 v18, 1, v16")
    k("v_lshlrev_b32 v18, 5, v18")
    k("v_add_u32 v17, v17, v18")
    k(f"s_and_b32 s39, s{sW}, 1")
    k(f"s_lshl_b32 s39, s39, {11 if esplit else 8}")
    k(f"v_add_u32 v{vGO}, s39, v17")
    k("s_waitcnt lgkmcnt(0)")
    if tagged: k(f"s_load_dwordx2 s[96:97], s[32:33], {EPOCH_OFF:#x}")
    k("s_lshl_b32 s39, s37, 18")
    k(f"s_lshl_b32 s38, s36, {7 if esplit else 8}")
    k("s_add_u32 s39, s39, s38")
    k(f"s_sub_u32 s38, {S*D*2}, s39")
    srd(k, SRD_O, 6, "s38", off_s="s39")
    srd(k, SRD_X, 32, "s38", off_s="s39", off_imm=X1_OFF)
    k(f"s_lshl_b32 s39, s36, {8 if esplit else 9}")
    srd(k, SRD_M, 32, 2048 + 256 if esplit else 512, off_s="s39", off_imm=MODF_OFF + 5 * 4096)
    k("s_lshl_b32 s39, s37, 3")
    k("s_add_u32 s39, s39, s36")
    k("s_lshl_b32 s39, s39, 1")
    k(f"s_xor_b32 s38, s{sH}, 1")
    k("s_add_u32 s38, s38, s39")
    k("s_lshl_b32 s38, s38, 2")
    k(f"s_add_u32 s38, s38, s{sW}")
    k(f"s_lshl_b32 s38, s38, {14 if tagged else 13}")
    srd(k, SRD_PW, 32, 16384 if tagged else 8192, off_s="s38", off_imm=PART_OFF)
    k(f"s_add_u32 s38, s39, s{sH}")
    k("s_lshl_b32 s38, s38, 2")
    k(f"s_add_u32 s38, s38, s{sW}")
    k(f"s_lshl_b32 s38, s38, {14 if tagged else 13}")
    srd(k, SRD_PR, 32, 16384 if tagged else 8192, off_s="s38", off_imm=PART_OFF)
    if wsflag: srd(k, SRD_D, 32, 256*128, off_imm=FLAG_OFF)
    else: srd(k, SRD_D, 58, 256)
    XR = 224
    GB = 240
    def xloads():
        for p in range(2):
            for pp in range(2):
                k(f"s_mov_b32 s38, {p*16*2048}")
                k(f"buffer_load_dwordx4 v[{XR+(p*2+pp)*4}:{XR+(p*2+pp)*4+3}], v{vXO}, s[{SRD_X}:{SRD_X+3}], s38 offen offset:{pp*64}")
        for pp in range(2):
            k(f"buffer_load_dwordx4 v[{GB+pp*8}:{GB+pp*8+3}], v{vGO}, s[{SRD_M}:{SRD_M+3}], 0 offen offset:{pp*128}")
            k(f"buffer_load_dwordx4 v[{GB+pp*8+4}:{GB+pp*8+7}], v{vGO}, s[{SRD_M}:{SRD_M+3}], 0 offen offset:{pp*128+16}")
    if not latex: xloads()
    def reads(setn):
        out = []
        for ks in range(2):
            A = []
            for a in range(4):
                for h in range(2):
                    off = ks * 8 * PA + a * 32 + h * 512
                    A.append(f"ds_read_b64_tr_b16 v[{Af(setn,ks,a)+2*h}:{Af(setn,ks,a)+2*h+1}], v{vRAc} offset:{off}")
            B = []
            for p in range(4):
                base = vRB0c if p < 2 else vRB2c
                off = ks * 4096 + (p & 1) * 1024
                B.append(f"ds_read_b128 v[{Bf(setn,ks,p)}:{Bf(setn,ks,p)+3}], v{base} offset:{off}")
            out += [B[0]] + A[:2] + [B[1]] + A[2:4] + [B[2]] + A[4:6] + [B[3]] + A[6:]
        return out
    def setaddr():
        k(f"v_add_u32 v{vRAc}, s{sRD}, v{vRA}")
        k(f"v_add_u32 v{vRB0c}, s{sRD}, v{vRB0}")
        k(f"v_add_u32 v{vRB2c}, s{sRD}, v{vRB2}")
    sCD, sCK, sCB, vCD = 66, 67, 68, 12
    def issueC():
        return [f"s_add_u32 m0, s{sCD}, s{sCB}", f"s_add_u32 s{sCD}, s{sCD}, {STAGE}",
                f"buffer_load_dwordx4 v{vCD}, s[{SRD_A}:{SRD_A+3}], s{sCK} offen lds",
                f"buffer_load_dwordx4 v{vCD}, s[{SRD_A}:{SRD_A+3}], s{sCK} offen offset:1024 lds",
                f"s_cmp_eq_u32 s{sCD}, {NS*STAGE}", f"s_cselect_b32 s{sCD}, 0, s{sCD}", f"s_add_u32 s{sCK}, s{sCK}, 8192"]
    if cdma:
        k(f"s_mul_i32 s39, s37, {2*56*8192}")
        k(f"s_mul_i32 s38, s{sH}, {28*8192}")
        k("s_add_u32 s39, s39, s38")
        k(f"s_lshr_b32 s38, s{sW}, 1")
        k(f"s_mul_i32 s38, s38, {56*8192}")
        k("s_add_u32 s39, s39, s38")
        srd(k, SRD_A, 32, 28*8192, off_s="s39", off_imm=ACT_OFF)
        k(f"s_and_b32 s38, s{sW}, 1")
        k("s_lshl_b32 s38, s38, 12")
        k("s_add_u32 s38, s38, 2048")
        k(f"v_add_u32 v{vCD}, s38, v3")
        k(f"s_lshl_b32 s{sCB}, s{sW}, 12")
        k(f"s_add_u32 s{sCB}, s{sCB}, {AREG + 2048}")
        k(f"s_mov_b32 s{sCD}, 0")
        k(f"s_mov_b32 s{sCK}, 0")
        for i in range(2):
            for l in issueC(): k(l)
        xloads()
        k("s_waitcnt vmcnt(10)")
    k(f"s_mov_b32 s{sRD}, 0")
    setaddr()
    if fused: k("s_barrier")
    k("s_barrier")
    if not fine: stp(1)
    for r in reads(0): k(r)
    if latex and not cdma: xloads()
    if cdma:
        for i in range(2, NS):
            for l in issueC(): k(l)
    k(f"s_mov_b32 s{sRD}, {STAGE}")
    setaddr()
    k(f"s_mov_b32 s{sCNT}, {NK//2}")
    if cprio is not None: k(f"s_setprio {cprio}")
    loop = f"{name}_cloop"
    k.label(loop)
    for u in range(2):
        cur = u; nxt = u ^ 1
        rd = reads(nxt)
        order = [(ks, p, a) for ks in range(2) for p in range(4) for a in range(4)]
        if cdma: k(f"s_waitcnt vmcnt({2*(NS-2)}) lgkmcnt(0)")
        else: k("s_waitcnt lgkmcnt(0)")
        k("s_barrier")
        ri = 0
        ic = issueC() if cdma else []
        for idx, (ks, p, a) in enumerate(order):
            if not nomfma:
                k(f"v_mfma_f32_16x16x32_bf16 v[{acc(p,a)}:{acc(p,a)+3}], v[{Af(cur,ks,a)}:{Af(cur,ks,a)+3}], v[{Bf(cur,ks,p)}:{Bf(cur,ks,p)+3}], v[{acc(p,a)}:{acc(p,a)+3}]")
            if idx >= rdskip:
                for _ in range(rdper):
                    if ri < len(rd):
                        if not nords: k(rd[ri])
                        ri += 1
            if idx == 25:
                k(f"s_add_u32 s{sRD}, s{sRD}, {STAGE}")
                k(f"s_cmp_eq_u32 s{sRD}, {NS*STAGE}")
                k(f"s_cselect_b32 s{sRD}, 0, s{sRD}")
            if idx == 27: setaddr()
            if cdma:
                if idx == 24: k(ic[0]); k(ic[1])
                if idx == 26: k(ic[2])
                if idx == 28: k(ic[3])
                if idx == 29: k(ic[4]); k(ic[5]); k(ic[6])
    k(f"s_sub_u32 s{sCNT}, s{sCNT}, 1")
    k(f"s_cmp_lg_u32 s{sCNT}, 0")
    k(f"s_cbranch_scc1 {loop}")
    stp(1 if fine else 2)
    if tagged:
        k("s_nop 7")
        k("s_waitcnt lgkmcnt(0)")
        SEND = ACC + 32
        QS, QR = 32, 96
        for j in range(16):
            k(f"v_mov_b64 v[{QS+4*j}:{QS+4*j+1}], v[{SEND+2*j}:{SEND+2*j+1}]")
            k(f"v_mov_b64 v[{QS+4*j+2}:{QS+4*j+3}], s[96:97]")
        for j in range(16):
            if j % 4 == 0: k(f"s_mov_b32 s39, {j*1024}")
            k(f"buffer_store_dwordx4 v[{QS+4*j}:{QS+4*j+3}], v3, s[{SRD_PW}:{SRD_PW+3}], s39 offen offset:{(j%4)*1024} sc1")
        if fine: stp(2)
        k(f"s_mov_b32 s43, {spin_max}")
        k("s_mov_b32 s38, 15360")
        k.label(f"{name}_poll")
        k(f"buffer_load_dwordx4 v[{QR+60}:{QR+63}], v3, s[{SRD_PR}:{SRD_PR+3}], s38 offen sc1")
        k("s_waitcnt vmcnt(0)")
        k(f"v_cmp_eq_u64 vcc, s[96:97], v[{QR+62}:{QR+63}]")
        k("s_cmp_eq_u64 vcc, exec")
        k(f"s_cbranch_scc1 {name}_last")
        k("s_sub_u32 s43, s43, 1")
        k("s_cmp_lg_u32 s43, 0")
        k(f"s_cbranch_scc0 {name}_got")
        k(f"s_sleep {psleep}")
        k(f"s_branch {name}_poll")
        k.label(f"{name}_last")
        for j in range(15):
            if j % 4 == 0: k(f"s_mov_b32 s39, {j*1024}")
            k(f"buffer_load_dwordx4 v[{QR+4*j}:{QR+4*j+3}], v3, s[{SRD_PR}:{SRD_PR+3}], s39 offen offset:{(j%4)*1024} sc1")
        k("s_mov_b64 s[98:99], -1")
        for j in range(15):
            k(f"s_waitcnt vmcnt({14-j})")
            k(f"v_cmp_eq_u64 vcc, s[96:97], v[{QR+4*j+2}:{QR+4*j+3}]")
            k("s_and_b64 s[98:99], s[98:99], vcc")
        k("s_cmp_eq_u64 s[98:99], exec")
        k(f"s_cbranch_scc1 {name}_got")
        k("s_sub_u32 s43, s43, 1")
        k("s_cmp_lg_u32 s43, 0")
        k(f"s_cbranch_scc1 {name}_last")
        k.label(f"{name}_got")
        if fine: stp(3)
        for j in range(16):
            k(f"v_pk_add_f32 v[{ACC+2*j}:{ACC+2*j+1}], v[{ACC+2*j}:{ACC+2*j+1}], v[{QR+4*j}:{QR+4*j+1}]")
    else:
        k("s_nop 7")
        if bfx:
            for q in range(16):
                k(f"v_cvt_pk_bf16_f32 v{32+q}, v{ACC+32+2*q}, v{ACC+32+2*q+1}")
            for j in range(4):
                k(f"buffer_store_dwordx4 v[{32+4*j}:{35+4*j}], v3, s[{SRD_PW}:{SRD_PW+3}], 0 offen offset:{j*1024} sc1")
        else:
            for p in (2, 3):
                for a in range(4):
                    j = (p - 2) * 4 + a
                    so = "0" if j < 4 else "s39"
                    if j == 4: k("s_mov_b32 s39, 4096")
                    k(f"buffer_store_dwordx4 v[{acc(p,a)}:{acc(p,a)+3}], v3, s[{SRD_PW}:{SRD_PW+3}], {so} offen offset:{(j&3)*1024} sc1")
        if waveflag:
            k("s_waitcnt vmcnt(0) lgkmcnt(0)")
            if fine: stp(2)
            k("s_lshl_b32 s38, s2, 7")
            k(f"s_lshl_b32 s39, s{sW}, 4")
            k("s_add_u32 s38, s38, s39")
            k("v_mov_b32 v20, 1")
            k("v_mov_b32 v21, s38")
            k("s_mov_b64 exec, 1")
            k(f"buffer_store_dword v20, v21, s[{SRD_D}:{SRD_D+3}], 0 offen sc1")
            k("s_xor_b32 s38, s38, 1024")
            k("v_mov_b32 v21, s38")
            k(f"s_mov_b32 s43, {spin_max}")
            k.label(f"{name}_poll")
            k(f"buffer_load_dword v22, v21, s[{SRD_D}:{SRD_D+3}], 0 offen sc1")
            k("s_waitcnt vmcnt(0)")
            k("v_readfirstlane_b32 s42, v22")
            k("s_cmp_lg_u32 s42, 0")
            k(f"s_cbranch_scc1 {name}_got")
            k("s_sub_u32 s43, s43, 1")
            k("s_cmp_lg_u32 s43, 0")
            k(f"s_cbranch_scc0 {name}_got")
            k(f"s_sleep {fsleep}") if fsleep else None
            k(f"s_branch {name}_poll")
            k.label(f"{name}_got")
            k("s_mov_b64 exec, -1")
            if fine: stp(3)
        else:
            k("s_waitcnt vmcnt(0) lgkmcnt(0)")
            k("s_barrier")
            if fine: stp(2)
            k(f"s_cmp_lg_u32 s{sW}, 0")
            k(f"s_cbranch_scc1 {name}_nopoll")
            if wsflag:
                k("s_lshl_b32 s38, s2, 7")
                k("v_mov_b32 v20, 1")
                k("v_mov_b32 v21, s38")
                k("s_mov_b64 exec, 1")
                k(f"buffer_store_dword v20, v21, s[{SRD_D}:{SRD_D+3}], 0 offen sc1")
                k("s_xor_b32 s42, s2, 8")
                k("s_lshl_b32 s38, s42, 7")
                k("s_mov_b32 s39, 1")
                k("v_mov_b32 v21, s38")
            else:
                k("s_lshr_b32 s38, s2, 5")
                k("s_lshl_b32 s38, s38, 2")
                k("s_and_b32 s39, s2, 31")
                k("s_lshl_b32 s39, 1, s39")
                k("v_mov_b32 v20, s39")
                k("v_mov_b32 v21, s38")
                k("s_mov_b64 exec, 1")
                k(f"buffer_atomic_add v20, v21, s[{SRD_D}:{SRD_D+3}], 0 offen sc1")
                k("s_xor_b32 s42, s2, 8")
                k("s_lshr_b32 s38, s42, 5")
                k("s_lshl_b32 s38, s38, 2")
                k("s_and_b32 s39, s42, 31")
                k("s_lshl_b32 s39, 1, s39")
                k("v_mov_b32 v21, s38")
            k(f"s_mov_b32 s43, {spin_max}")
            k.label(f"{name}_poll")
            k(f"buffer_load_dword v22, v21, s[{SRD_D}:{SRD_D+3}], 0 offen sc1")
            k("s_waitcnt vmcnt(0)")
            k("v_readfirstlane_b32 s42, v22")
            k("s_and_b32 s42, s42, s39")
            k(f"s_cbranch_scc1 {name}_got")
            k("s_sub_u32 s43, s43, 1")
            k("s_cmp_lg_u32 s43, 0")
            k(f"s_cbranch_scc0 {name}_got")
            k(f"s_sleep {fsleep}") if fsleep else None
            k(f"s_branch {name}_poll")
            k.label(f"{name}_got")
            k("s_mov_b64 exec, -1")
            k.label(f"{name}_nopoll")
            k("s_barrier")
            if fine: stp(3)
        RV = 32
        if bfx:
            for j in range(4):
                k(f"buffer_load_dwordx4 v[{64+4*j}:{67+4*j}], v3, s[{SRD_PR}:{SRD_PR+3}], 0 offen offset:{j*1024} sc1")
            k("s_waitcnt vmcnt(0)")
            for q in range(16):
                k(f"v_lshlrev_b32 v{RV+2*q}, 16, v{64+q}")
                k(f"v_and_b32 v{RV+2*q+1}, 0xffff0000, v{64+q}")
        else:
            for j in range(8):
                so = "0" if j < 4 else "s39"
                if j == 4: k("s_mov_b32 s39, 4096")
                k(f"buffer_load_dwordx4 v[{RV+4*j}:{RV+4*j+3}], v3, s[{SRD_PR}:{SRD_PR+3}], {so} offen offset:{(j&3)*1024} sc1")
    RV = 32
    T = 96
    for p in range(2):
        if not tagged:
            if not bfx: k(f"s_waitcnt vmcnt({4 if p == 0 else 2})")
            for a in range(4):
                for r in range(0, 4, 2):
                    k(f"v_pk_add_f32 v[{acc(p,a)+r}:{acc(p,a)+r+1}], v[{acc(p,a)+r}:{acc(p,a)+r+1}], v[{RV+(p*4+a)*4+r}:{RV+(p*4+a)*4+r+1}]")
        k("s_nop 1")
        for pp in range(2):
            a0, a1 = acc(p, 2*pp), acc(p, 2*pp+1)
            for r in range(4):
                k(f"v_permlane16_swap_b32 v{a0+r}, v{a1+r}")
        for pp in range(2):
            a0, a1 = acc(p, 2*pp), acc(p, 2*pp+1)
            xr = XR + (p*2+pp)*4
            t = T + (p*2+pp) * 8
            for d in range(4):
                k(f"v_lshlrev_b32 v{t+2*d}, 16, v{xr+d}")
                k(f"v_and_b32 v{t+2*d+1}, 0xffff0000, v{xr+d}")
            for e in range(0, 8, 2):
                src = (a0 + e) if e < 4 else (a1 + e - 4)
                k(f"v_pk_fma_f32 v[{t+e}:{t+e+1}], v[{src}:{src+1}], v[{GB+pp*8+e}:{GB+pp*8+e+1}], v[{t+e}:{t+e+1}]")
            for d in range(4):
                k(f"v_cvt_pk_bf16_f32 v{xr+d}, v{t+2*d}, v{t+2*d+1}")
            k(f"s_mov_b32 s38, {p*16*2048}")
            k(f"buffer_store_dwordx4 v[{xr}:{xr+3}], v{vXO}, s[{SRD_O}:{SRD_O+3}], s38 offen offset:{pp*64}{sf}")
    if not fine: stp(3)
    stp.end(32, sW)
    k("s_endpgm")
    k.label(f"{name}_prod")
    vDA = [4, 5, 6, 7]
    vDB = 8
    k(f"s_sub_u32 s{sW}, s{sW}, 4")
    k("v_lshlrev_b32 v17, 3, v16")
    k(f"s_lshl_b32 s39, s{sW}, 1")
    k("v_add_u32 v17, s39, v17")
    k("v_lshlrev_b32 v17, 11, v17")
    if esplit:
        k("v_and_b32 v18, 7, v0")
        k("v_lshlrev_b32 v18, 4, v18")
        k("v_bfe_u32 v19, v0, 3, 1")
        k("v_lshl_add_u32 v18, v19, 10, v18")
    else:
        k("v_and_b32 v18, 15, v0")
        k("v_lshlrev_b32 v18, 4, v18")
    k(f"v_add_u32 v{vDA[0]}, v17, v18")
    k(f"v_add_u32 v{vDA[1]}, {2048 - PA}, v{vDA[0]}")
    k(f"v_add_u32 v{vDA[2]}, {32*2048}, v{vDA[0]}")
    k(f"v_add_u32 v{vDA[3]}, {33*2048 - PA}, v{vDA[0]}")
    k(f"s_and_b32 s38, s{sW}, 1")
    k("s_lshl_b32 s38, s38, 12")
    k(f"v_add_u32 v{vDB}, s38, v3")
    sBA, sBB = 42, 43
    k(f"s_mul_i32 s{sBA}, s{sW}, {2*PA}")
    k(f"s_lshl_b32 s{sBB}, s{sW}, 12")
    k(f"s_add_u32 s{sBB}, s{sBB}, {AREG}")
    k("s_waitcnt lgkmcnt(0)")
    k(f"s_lshl_b32 s39, s36, {7 if esplit else 8}")
    k(f"s_mul_i32 s38, s{sH}, {28*64*2048}")
    k("s_add_u32 s39, s39, s38")
    srd(k, SRD_W, 4, 28*64*2048, off_s="s39")
    k(f"s_mul_i32 s39, s37, {2*56*8192}")
    k(f"s_mul_i32 s38, s{sH}, {28*8192}")
    k("s_add_u32 s39, s39, s38")
    k(f"s_lshr_b32 s38, s{sW}, 1")
    k(f"s_mul_i32 s38, s38, {56*8192}")
    k("s_add_u32 s39, s39, s38")
    srd(k, SRD_A, 32, 28*8192, off_s="s39", off_imm=ACT_OFF)
    if wpack:
        k(f"s_lshl_b32 s39, s{sW}, 11")
        k(f"v_add_u32 v{vDA[0]}, s39, v3")
        k(f"v_add_u32 v{vDA[2]}, 8192, v{vDA[0]}")
        k(f"s_mul_i32 s39, s36, {56*16384}")
        k(f"s_mul_i32 s38, s{sH}, {28*16384}")
        k("s_add_u32 s39, s39, s38")
        srd(k, SRD_W, 32, 28*16384, off_s="s39", off_imm=WP_OFF)
    if wcontig:
        k(f"s_lshl_b32 s39, s{sW}, 11")
        k("s_add_u32 s39, s39, 64")
        k(f"v_add_u32 v{vDA[0]}, s39, v3")
        k(f"v_subrev_u32 v{vDA[1]}, {PA-1024}, v{vDA[0]}")
        k(f"v_add_u32 v{vDA[2]}, 8192, v{vDA[0]}")
        k(f"v_add_u32 v{vDA[3]}, 8192, v{vDA[1]}")
        k("s_lshl_b32 s39, s36, 1")
        k(f"s_add_u32 s39, s39, s{sH}")
        k(f"s_mul_i32 s39, s39, {28*16384}")
        srd(k, SRD_W, 4, 28*16384, off_s="s39")
    k(f"s_mov_b32 s{sKW}, 0")
    k(f"s_mov_b32 s{sKA}, 0")
    if noW: k(f"s_mov_b32 s{SRD_W+2}, 0")
    if noA: k(f"s_mov_b32 s{SRD_A+2}, 0")
    def issue(stg):
        base = stg * STAGE
        if wpack:
            k(f"s_add_u32 m0, s{sBA}, {base}")
            k(f"s_add_u32 s44, s{sBA}, {base + PA - 1024}")
            k(f"buffer_load_dwordx4 v{vDA[0]}, s[{SRD_W}:{SRD_W+3}], s{sKW} offen lds")
            k(f"s_mov_b32 m0, s44")
            k(f"s_add_u32 s44, s{sBA}, {base + 8*PA}")
            k(f"buffer_load_dwordx4 v{vDA[0]}, s[{SRD_W}:{SRD_W+3}], s{sKW} offen offset:1024 lds")
            k(f"s_mov_b32 m0, s44")
            k(f"s_add_u32 s44, s{sBA}, {base + 9*PA - 1024}")
            k(f"buffer_load_dwordx4 v{vDA[2]}, s[{SRD_W}:{SRD_W+3}], s{sKW} offen lds")
            k(f"s_mov_b32 m0, s44")
            k(f"s_add_u32 s45, s{sBB}, {base}")
            k(f"buffer_load_dwordx4 v{vDA[2]}, s[{SRD_W}:{SRD_W+3}], s{sKW} offen offset:1024 lds")
            k(f"s_mov_b32 m0, s45")
            k(f"s_add_u32 s{sKW}, s{sKW}, 16384")
            for q in range(4):
                k(f"buffer_load_dwordx4 v{vDB}, s[{SRD_A}:{SRD_A+3}], s{sKA} offen offset:{q*1024}{af} lds")
            k(f"s_add_u32 s{sKA}, s{sKA}, 8192")
            return
        k(f"s_add_u32 m0, s{sBA}, {base}")
        k(f"s_add_u32 s44, s{sBA}, {base + 8*PA}")
        k(f"buffer_load_dwordx4 v{vDA[0]}, s[{SRD_W}:{SRD_W+3}], s{sKW} offen{wf} lds")
        k(f"buffer_load_dwordx4 v{vDA[1]}, s[{SRD_W}:{SRD_W+3}], s{sKW} offen offset:{PA}{wf} lds")
        k(f"s_mov_b32 m0, s44")
        k(f"s_add_u32 s45, s{sBB}, {base}")
        k(f"buffer_load_dwordx4 v{vDA[2]}, s[{SRD_W}:{SRD_W+3}], s{sKW} offen{wf} lds")
        k(f"buffer_load_dwordx4 v{vDA[3]}, s[{SRD_W}:{SRD_W+3}], s{sKW} offen offset:{PA}{wf} lds")
        k(f"s_mov_b32 m0, s45")
        k(f"s_add_u32 s{sKW}, s{sKW}, {16384 if wcontig else 64*2048}")
        for q in range(2 if cdma else 4):
            k(f"buffer_load_dwordx4 v{vDB}, s[{SRD_A}:{SRD_A+3}], s{sKA} offen offset:{q*1024}{af} lds")
        k(f"s_add_u32 s{sKA}, s{sKA}, 8192")
    NP = 6 if cdma else 8
    ploop = f"{name}_ploop"
    if fused:
        def issueW(stg):
            base = stg * STAGE
            k(f"s_add_u32 m0, s{sBA}, {base}")
            k(f"s_add_u32 s44, s{sBA}, {base + 8*PA}")
            k(f"buffer_load_dwordx4 v{vDA[0]}, s[{SRD_W}:{SRD_W+3}], s{sKW} offen lds")
            k(f"buffer_load_dwordx4 v{vDA[1]}, s[{SRD_W}:{SRD_W+3}], s{sKW} offen offset:{PA} lds")
            k(f"s_mov_b32 m0, s44")
            k(f"s_add_u32 s45, s{sBB}, {base}")
            k(f"buffer_load_dwordx4 v{vDA[2]}, s[{SRD_W}:{SRD_W+3}], s{sKW} offen lds")
            k(f"buffer_load_dwordx4 v{vDA[3]}, s[{SRD_W}:{SRD_W+3}], s{sKW} offen offset:{PA} lds")
            k(f"s_add_u32 s{sKW}, s{sKW}, {64*2048}")
        def issueA(stg):
            k(f"s_add_u32 m0, s{sBB}, {stg * STAGE}")
            k("s_nop 0")
            for q in range(4):
                k(f"buffer_load_dwordx4 v{vDB}, s[{SRD_A}:{SRD_A+3}], s{sKA} offen offset:{q*1024}{af} lds")
            k(f"s_add_u32 s{sKA}, s{sKA}, 8192")
        for stg in range(NS): issueW(stg)
        k(f"s_cmp_lg_u32 s{sW}, 0")
        k(f"s_cbranch_scc1 {name}_nodep")
        k("s_lshr_b32 s38, s37, 1")
        k("s_lshl_b32 s38, s38, 1")
        k(f"s_add_u32 s38, s38, s{sH}")
        k("s_lshl_b32 s38, s38, 7")
        k("v_mov_b32 v21, s38")
        k(f"s_mov_b32 s46, {spin_max}")
        k.label(f"{name}_dep")
        k("buffer_load_dword v22, v21, s[60:63], 0 offen sc1")
        k("s_waitcnt vmcnt(0)")
        k("v_readfirstlane_b32 s47, v22")
        k("s_cmp_ge_u32 s47, 16")
        k(f"s_cbranch_scc1 {name}_nodep")
        k("s_sub_u32 s46, s46, 1")
        k("s_cmp_lg_u32 s46, 0")
        k(f"s_cbranch_scc0 {name}_nodep")
        k("s_sleep 1")
        k(f"s_branch {name}_dep")
        k.label(f"{name}_nodep")
        k("s_barrier")
        for stg in range(NS): issueA(stg)
        k("s_waitcnt vmcnt(12)")
        k("s_barrier")
        for u, nv in ((0, 8), (1, 12), (2, 16), (3, 16)):
            k(f"s_waitcnt vmcnt({nv})")
            k("s_barrier")
            issue(u)
        k(f"s_mov_b32 s{sCNT}, {NK // NS - 1}")
    else:
        issue(0); issue(1)
        k(f"s_waitcnt vmcnt({NP})")
        k("s_barrier")
        for stg in range(2, NS): issue(stg)
        k(f"s_mov_b32 s{sCNT}, {NK // NS}")
    k.label(ploop)
    for u in range(NS):
        k(f"s_waitcnt vmcnt({NP*(NS-2)})")
        k("s_barrier")
        issue(u)
    k(f"s_sub_u32 s{sCNT}, s{sCNT}, 1")
    k(f"s_cmp_lg_u32 s{sCNT}, 0")
    k(f"s_cbranch_scc1 {ploop}")
    if fused:
        k.lds2 = NS * STAGE
        return k
    k.label(f"{name}_end")
    k("s_endpgm")
    k.lds = NS * STAGE
    k.grid = 256
    k.block = 512
    return k
```

```python
from mk_all import *
S1 = " sc1"
def mk(fused):
    ka = gen_ka("ka_kernel", xnt=False, codepf=("kb_kernel", "code_end_label"), flags=True, tables=False)
    kb = gen_kb("kb_kernel", sf=S1, table=False, ctable=True, cpf=("kc_kernel", "g3_kernel"))
    if fused:
        kc = gen_kc("kc_kernel", xnt=False, cpf=("g3_kernel", "code_end_label"))
        g = gen_gemm3c("g3_kernel", cpf=None, peel_first=False, peel_last=True, fuse=True, cont=lambda k: gen_gemm4b("g4", into=k, sf=S1))
        return [ka, kb, kc, g]
    return best()
build("fu_a.s", mk(False))
build("fu_b.s", mk(True))
```

```python
from asmlib import *
from layout import *
import math, struct, re
def f2u(x): return struct.unpack("<I", struct.pack("<f", x))[0]

def gen_gemm3c(name="g3_kernel", stamps=False, pf=True, sf=' sc1', sf2=' sc1', dma_frac=(0.1, 0.35, 0.6, 0.85), rd_span=0.6, cpf=None,
               peel_first=True, peel_last=True, fuse=True, xmap=0, repack=False, pfs=6, cont=None, into=None, hf=''):
    k = into if into is not None else Kern(name)
    st = Stamps(k, stamps, 3)
    NS = 4
    BS = 4128
    STAGE = 8 * BS
    NK = 32
    ROWB = F * 2
    P = 4
    SRD_G, SRD_U, SRD_H, SRD_O, SRD_P = 8, 12, 16, 20, 44
    sKW, sKH, sBLK, sCNT, sW = 24, 25, 26, 27, 28
    vDW, vDH, vSt, vPF = 1, 2, 3, 30
    vRA = [4 + i for i in range(NS)]
    vRB = [10 + i for i in range(NS)]
    vRA2 = [20 + i for i in range(NS)]
    FR = [32, 80]
    ACC = 128
    if into is None:
        k("s_cmp_ge_u32 s2, 256")
        k(f"s_cbranch_scc1 {name}_end")
        st.start()
        k(f"s_load_dwordx2 s[32:33], s[0:1], {KA['ws']}")
        k("v_lshrrev_b32 v1, 6, v0")
        k("v_mov_b32 v30, v0")
        k("v_and_b32 v0, 63, v0")
        k(f"v_readfirstlane_b32 s{sW}, v1")
    k(f"s_load_dwordx2 s[4:5], s[0:1], {KA['wg']}")
    k(f"s_load_dwordx2 s[6:7], s[0:1], {KA['wu']}")
    k(f"s_load_dwordx2 s[30:31], s[0:1], {KA['wd']}")
    k("s_and_b32 s34, s2, 7")
    k("s_lshr_b32 s35, s2, 3")
    if xmap == 0:
        k("s_and_b32 s36, s34, 1")
        k("s_lshl_b32 s36, s36, 2")
        k("s_and_b32 s37, s35, 3")
        k("s_add_u32 s36, s36, s37")
        k("s_lshr_b32 s37, s34, 1")
        k("s_lshl_b32 s37, s37, 3")
        k("s_lshr_b32 s38, s35, 2")
        k("s_add_u32 s37, s37, s38")
    elif xmap == 1:
        k("s_and_b32 s36, s35, 7")
        k("s_lshl_b32 s37, s34, 2")
        k("s_lshr_b32 s38, s35, 3")
        k("s_add_u32 s37, s37, s38")
    else:
        k("s_and_b32 s36, s34, 3")
        k("s_lshl_b32 s36, s36, 1")
        k("s_and_b32 s37, s35, 1")
        k("s_add_u32 s36, s36, s37")
        k("s_lshr_b32 s37, s34, 2")
        k("s_lshl_b32 s37, s37, 4")
        k("s_lshr_b32 s38, s35, 1")
        k("s_add_u32 s37, s37, s38")
    k("v_lshrrev_b32 v16, 4, v0")
    k("v_and_b32 v17, 1, v16")
    k("v_lshlrev_b32 v17, 4, v17")
    k("v_lshrrev_b32 v18, 1, v16")
    k("v_lshlrev_b32 v18, 2, v18")
    k("v_add_u32 v17, v17, v18")
    k(f"s_lshr_b32 s39, s{sW}, 2")
    k("s_lshl_b32 s39, s39, 3")
    k(f"s_and_b32 s40, s{sW}, 3")
    k("s_add_u32 s39, s39, s40")
    k("v_add_u32 v17, s39, v17")
    k(f"s_mov_b32 s41, {ROWB}")
    k("v_mul_lo_u32 v17, v17, s41")
    k("v_and_b32 v18, 15, v0")
    k("v_lshlrev_b32 v19, 4, v18")
    k(f"v_add_u32 v{vDW}, v17, v19")
    k("v_cmp_lt_u32 vcc, 13, v18")
    k("v_bfrev_b32 v19, 1")
    k("s_nop 0")
    k(f"v_cndmask_b32 v{vDW}, v{vDW}, v19, vcc")
    k(f"s_lshl_b32 s39, s{sW}, 11")
    k(f"v_lshlrev_b32 v{vSt}, 4, v0")
    k(f"v_add_u32 v{vDH}, s39, v{vSt}")
    k(f"s_mul_i32 s{sBLK}, s{sW}, {BS}")
    k("s_mul_i32 s39, s37, 224")
    k(f"s_sub_u32 s40, {D*ROWB}, s39")
    k("s_lshl_b32 s42, s36, 19")
    k("s_waitcnt lgkmcnt(0)")
    st(1)
    srd(k, SRD_G, 4, "s40", off_s="s39")
    srd(k, SRD_U, 6, "s40", off_s="s39")
    srd(k, SRD_H, 32, 1 << 19, off_s="s42", off_imm=H2_OFF)
    k(f"s_mov_b32 s{sKW}, 0")
    k(f"s_mov_b32 s{sKH}, 0")

    def dma_group(stage, part):
        base = (stage % NS) * STAGE
        if part == 0:
            return [f"s_add_u32 m0, s{sBLK}, {base}", f"buffer_load_dwordx4 v{vDW}, s[{SRD_G}:{SRD_G+3}], s{sKW} offen lds"]
        if part == 1:
            return [f"s_add_u32 m0, s{sBLK}, {base+1024}", f"buffer_load_dwordx4 v{vDW}, s[{SRD_U}:{SRD_U+3}], s{sKW} offen lds"]
        if part == 2:
            return [f"s_add_u32 m0, s{sBLK}, {base+2048}", f"buffer_load_dwordx4 v{vDH}, s[{SRD_H}:{SRD_H+3}], s{sKH} offen{hf} lds"]
        if part == 3:
            return [None, f"buffer_load_dwordx4 v{vDH}, s[{SRD_H}:{SRD_H+3}], s{sKH} offen offset:1024{hf} lds"]
    def adv():
        return [f"s_add_u32 s{sKW}, s{sKW}, {32*ROWB}", f"s_add_u32 s{sKH}, s{sKH}, 16384"]
    def issue_stage(stg):
        for part in range(4):
            m, ld = dma_group(stg, part)
            if m:
                k(m); k("s_nop 0")
            k(ld)
        for a in adv(): k(a)
    def issue_part(stg, parts):
        for part in parts:
            m, ld = dma_group(stg, part)
            if m:
                k(m); k("s_nop 0")
            k(ld)
    if into is None:
        issue_stage(0)
    else:
        assert not peel_first
        for stg in range(3):
            issue_part(stg, (0, 1)); k(adv()[0])
    k("v_and_b32 v17, 1, v16")
    k("v_lshlrev_b32 v17, 2, v17")
    k("v_bfe_u32 v18, v0, 2, 2")
    k("v_add_u32 v17, v17, v18")
    k(f"s_mov_b32 s41, {BS}")
    k("v_mul_lo_u32 v17, v17, s41")
    k("v_lshrrev_b32 v18, 1, v16")
    k("v_lshlrev_b32 v18, 8, v18")
    k("v_add_u32 v17, v17, v18")
    k("v_and_b32 v18, 3, v0")
    k("v_lshlrev_b32 v18, 3, v18")
    k(f"v_add_u32 v{vRA[0]}, v17, v18")
    k(f"s_and_b32 s39, s{sW}, 3")
    k(f"s_mul_i32 s39, s39, {2*BS}")
    k("s_add_u32 s39, s39, 2048")
    k(f"v_add_u32 v{vRB[0]}, s39, v{vSt}")
    for r in range(4): k(f"v_mov_b32 v{24+r}, 0")
    if into is None:
        issue_stage(1)
        if not peel_first: issue_stage(2)
    else:
        k(f"s_cmp_lg_u32 s{sW}, 0")
        k(f"s_cbranch_scc1 {name}_nodep")
        k("s_lshl_b32 s38, s36, 7")
        k("v_mov_b32 v21, s38")
        k("s_cmp_ge_u32 s36, 4")
        k("s_cselect_b32 s39, 65, 64")
        k("s_mov_b32 s46, 0x100000")
        k.label(f"{name}_dep")
        k("buffer_load_dword v22, v21, s[60:63], 0 offen sc1")
        k("s_waitcnt vmcnt(0)")
        k("v_readfirstlane_b32 s47, v22")
        k("s_cmp_ge_u32 s47, s39")
        k(f"s_cbranch_scc1 {name}_nodep")
        k("s_sub_u32 s46, s46, 1")
        k("s_cmp_lg_u32 s46, 0")
        k(f"s_cbranch_scc0 {name}_nodep")
        k("s_sleep 1")
        k(f"s_branch {name}_dep")
        k.label(f"{name}_nodep")
        k("s_barrier")
        for stg in range(3):
            issue_part(stg, (2, 3)); k(adv()[1])
    for r in range(0, 128, 16):
        k(f"v_mfma_f32_32x32x16_bf16 v[{ACC+r}:{ACC+r+15}], v[24:27], v[24:27], 0")
    k("s_and_b32 s39, s37, 1")
    k("s_cmp_eq_u32 s39, 0")
    k("s_cselect_b32 s40, 0, 96")
    k("s_cselect_b32 s41, 128, 32")
    k("s_cselect_b32 s42, 192, 0")
    k(f"s_cmp_ge_u32 s{sW}, 4")
    k("s_cselect_b32 s40, s41, s40")
    k(f"v_add_u32 v{vRA2[0]}, s42, v{vRA[0]}")
    k(f"v_add_u32 v{vRA[0]}, s40, v{vRA[0]}")
    for s in range(1, NS):
        k(f"v_add_u32 v{vRA[s]}, {s*STAGE}, v{vRA[0]}")
        k(f"v_add_u32 v{vRA2[s]}, {s*STAGE}, v{vRA2[0]}")
        k(f"v_add_u32 v{vRB[s]}, {s*STAGE}, v{vRB[0]}")
    k(f"v_lshlrev_b32 v{vPF}, 6, v30")
    srd(k, SRD_O, 32, S * F * 2, off_imm=ACT_OFF)
    k("s_mul_i32 s39, s2, 28672")
    srd(k, SRD_P, 30, 28672, off_s="s39")
    if into is None: k(f"s_waitcnt vmcnt({P if peel_first else 2*P})")
    else: k("s_waitcnt vmcnt(2)")
    k("s_barrier")
    st(2)
    k(f"s_cmp_ge_u32 s{sW}, 4")
    k(f"s_cbranch_scc1 {name}_typeB")

    def body(tp):
        nT = 4 if tp == 0 else 3
        nA = 2 * nT
        def Af(s, a): return FR[s] + a * 4
        def Bf(s, p): return FR[s] + 32 + p * 4
        def acc(p, a): return ACC + (p * nA + a) * 4
        def reads(setn, stage):
            A = []
            for a in range(nA):
                gu, j = a // nT, a % nT
                for h in range(2):
                    if tp == 1 and j == 2:
                        off = gu * 1024 + h * 512; base = vRA2[stage]
                    else:
                        off = gu * 1024 + j * 32 + h * 512; base = vRA[stage]
                    A.append(f"ds_read_b64_tr_b16 v[{Af(setn,a)+2*h}:{Af(setn,a)+2*h+1}], v{base} offset:{off}")
            B = []
            for p in range(4):
                off = (p >> 1) * BS + (p & 1) * 1024
                B.append(f"ds_read_b128 v[{Bf(setn,p)}:{Bf(setn,p)+3}], v{vRB[stage]} offset:{off}")
            return [B[0]] + A[:4] + [B[1]] + A[4:8] + [B[2]] + A[8:12] + [B[3]] + A[12:]
        order = [(p, a) for p in range(4) for a in range(nA)]
        nM = len(order)
        def mfma(cur, p, a):
            return f"v_mfma_f32_16x16x32_bf16 v[{acc(p,a)}:{acc(p,a)+3}], v[{Af(cur,a)}:{Af(cur,a)+3}], v[{Bf(cur,p)}:{Bf(cur,p)+3}], v[{acc(p,a)}:{acc(p,a)+3}]"
        def iteration(u, dma_stages, nvm, do_reads=True, barrier=True):
            cur = u & 1; nxt = cur ^ 1
            extra = {}
            if do_reads:
                rd = reads(nxt, (u + 1) % NS)
                for ri, r in enumerate(rd):
                    extra.setdefault(int(ri * rd_span * nM / len(rd)), []).append(r)
            nd = len(dma_stages) * 4
            for si, stg in enumerate(dma_stages):
                for part in range(4):
                    q = si * 4 + part
                    fr = dma_frac[part] if len(dma_stages) == 1 else (0.04 + 0.9 * q / nd)
                    pos = max(1, int(fr * nM))
                    m, ld = dma_group(stg, part)
                    if m: extra.setdefault(pos - 1, []).append(m)
                    extra.setdefault(pos, []).append(ld)
                    if part == 3:
                        extra.setdefault(pos, []).extend(adv())
            if nvm is None: k("s_waitcnt lgkmcnt(0)")
            else: k(f"s_waitcnt vmcnt({nvm}) lgkmcnt(0)")
            if barrier: k("s_barrier")
            for idx, (p, a) in enumerate(order):
                k(mfma(cur, p, a))
                for e in extra.get(idx, []): k(e)
        for r in reads(0, 0): k(r)
        if not peel_first: issue_stage(3)
        ntrips = NK // NS
        if peel_first:
            iteration(0, [2, 3], 0)
            iteration(1, [0, 1], P)
            iteration(2, [2], 2 * P)
            iteration(3, [3], 2 * P)
            ntrips -= 1
        if peel_last: ntrips -= 1
        k(f"s_mov_b32 s{sCNT}, {ntrips}")
        loop = f"{name}_loop{tp}"
        k.label(loop)
        for u in range(NS): iteration(u, [u], 2 * P)
        k(f"s_sub_u32 s{sCNT}, s{sCNT}, 1")
        k(f"s_cmp_lg_u32 s{sCNT}, 0")
        k(f"s_cbranch_scc1 {loop}")
        def epi_setup():
            if cpf: code_pf(k, cpf[0], cpf[1], f"e{tp}", 24, -30, sp=60)
            if repack and tp == 1:
                k(f"v_lshrrev_b32 v24, 2, v{vPF}")
                k("v_subrev_u32 v24, 4096, v24")
                for i in range(7):
                    k(f"s_mov_b32 s41, {i*4096}")
                    k(f"buffer_load_dwordx4 v[{RP+4*i}:{RP+4*i+3}], v24, s[{SRD_P}:{SRD_P+3}], s41 offen")
            elif repack: pass
            elif pf and pfs == 7:
                k(f"v_lshlrev_b32 v31, 1, v{vPF}")
                k(f"buffer_load_dword v31, v31, s[{SRD_P}:{SRD_P+3}], 0 offen")
            elif pf: k(f"buffer_load_dword v31, v{vPF}, s[{SRD_P}:{SRD_P+3}], 0 offen")
            k(f"s_and_b32 s39, s{sW}, 3")
            k("s_lshl_b32 s40, s36, 2")
            k("s_add_u32 s39, s39, s40")
            k(f"s_mul_i32 s39, s39, {56*8192}")
            k("s_mul_i32 s40, s37, 7")
            k("s_and_b32 s41, s37, 1")
            k("s_cmp_eq_u32 s41, 0")
            if tp == 0:
                k("s_cselect_b32 s41, 0, 3")
                k("s_add_u32 s41, s41, s40")
                k("s_lshl_b32 s41, s41, 11")
                k("s_add_u32 s48, s41, s39")
                k("s_add_u32 s49, s48, 4096")
            else:
                k("s_cselect_b32 s41, 4, 1")
                k("s_cselect_b32 s42, 6, 0")
                k("s_add_u32 s41, s41, s40")
                k("s_lshl_b32 s41, s41, 11")
                k("s_add_u32 s48, s41, s39")
                k("s_add_u32 s42, s42, s40")
                k("s_lshr_b32 s41, s42, 1")
                k("s_lshl_b32 s41, s41, 12")
                k("s_and_b32 s42, s42, 1")
                k("s_lshl_b32 s42, s42, 3")
                k("s_add_u32 s41, s41, s42")
                k("s_add_u32 s49, s41, s39")
            for d in range(2):
                k(f"v_mov_b32 v{vC0+d}, {f2u(c0):#x}")
                k(f"v_mov_b32 v{vC1+d}, {f2u(c1):#x}")
                k(f"v_mov_b32 v{vONE+d}, 1.0")
        c0 = -2.0 * math.sqrt(2.0 / math.pi) * math.log2(math.e)
        c1 = c0 * 0.044715
        vC0, vC1, vONE = 16, 18, 28
        def pr(b): return f"v[{b}:{b+1}]"
        RP = 224
        def repack_store():
            srd(k, 52, 32, D*F*2, off_imm=WP_OFF)
            k(f"v_lshrrev_b32 v24, 6, v{vPF}")
            k("v_subrev_u32 v24, 256, v24")
            k("s_mul_i32 s41, s2, 14")
            k("v_bfe_u32 v25, v24, 4, 3")
            k(f"s_mov_b32 s42, {56*16384}")
            k("v_mul_lo_u32 v25, v25, s42")
            k("v_and_b32 v26, 15, v24")
            k("v_lshl_add_u32 v25, v26, 4, v25")
            k("v_lshrrev_b32 v24, 7, v24")
            k("v_add_u32 v24, s41, v24")
            for i in range(7):
                if i: k("v_add_u32 v24, 2, v24")
                k("v_lshrrev_b32 v26, 6, v24")
                k("v_lshl_add_u32 v27, v26, 14, v25")
                k("v_bfe_u32 v26, v24, 5, 1")
                k("v_lshl_add_u32 v27, v26, 13, v27")
                k("v_and_b32 v26, 7, v24")
                k("v_lshl_add_u32 v27, v26, 10, v27")
                k("v_bfe_u32 v26, v24, 3, 2")
                k("v_lshl_add_u32 v27, v26, 8, v27")
                if i == 0: k("s_waitcnt vmcnt(8)")
                k(f"buffer_store_dwordx4 v[{RP+4*i}:{RP+4*i+3}], v27, s[52:55], 0 offen{sf}")
        def epi(p, TB, OB):
            out = []
            gi = 0
            for g0 in range(0, nT, 2):
                jj = list(range(nT))[g0:g0+2]
                pairs = []
                for j in jj:
                    g = acc(p, j); u_ = acc(p, nT + j)
                    pairs += [(g, u_), (g + 2, u_ + 2)]
                T = TB + gi * 8; O = OB + gi * 4; gi += 1
                n = len(pairs)
                for q, (g, u_) in enumerate(pairs): out.append(f"v_pk_mul_f32 {pr(T+2*q)}, {pr(g)}, {pr(g)}")
                for q in range(n): out.append(f"v_pk_fma_f32 {pr(T+2*q)}, {pr(T+2*q)}, {pr(vC1)}, {pr(vC0)}")
                for q, (g, u_) in enumerate(pairs): out.append(f"v_pk_mul_f32 {pr(T+2*q)}, {pr(T+2*q)}, {pr(g)}")
                for q in range(2*n): out.append(f"v_exp_f32 v{T+q}, v{T+q}")
                for q, (g, u_) in enumerate(pairs): out.append(f"v_pk_mul_f32 {pr(u_)}, {pr(g)}, {pr(u_)}")
                for q in range(n): out.append(f"v_pk_add_f32 {pr(T+2*q)}, {pr(T+2*q)}, {pr(vONE)}")
                for q in range(2*n): out.append(f"v_rcp_f32 v{T+q}, v{T+q}")
                out.append("s_nop 0")
                for q, (g, u_) in enumerate(pairs): out.append(f"v_pk_mul_f32 {pr(u_)}, {pr(u_)}, {pr(T+2*q)}")
                for q, (g, u_) in enumerate(pairs): out.append(f"v_cvt_pk_bf16_f32 v{O+q}, v{u_}, v{u_+1}")
                if len(jj) == 2:
                    out.append(f"buffer_store_dwordx4 v[{O}:{O+3}], v{vSt}, s[{SRD_O}:{SRD_O+3}], s{48+g0//2} offen offset:{p*1024}{sf}")
                else:
                    out.append(f"buffer_store_dwordx2 v[{O}:{O+1}], v{vSt}, s[{SRD_O}:{SRD_O+3}], s49 offen offset:{p*1024}{sf2}")
            return out
        if peel_last:
            iteration(0, [], 2 * P)
            iteration(1, [], P)
            iteration(2, [], 0)
            cur = 1
            k("s_waitcnt lgkmcnt(0)")
            st(3)
            epi_setup()
            TBs = [FR[0], FR[0] + 16]
            OBs = [FR[0] + 32, FR[0] + 40]
            if fuse:
                for a in range(nA): k(mfma(cur, 0, a))
                for p in range(1, 4):
                    E = epi(p - 1, TBs[(p - 1) & 1], OBs[(p - 1) & 1])
                    M = [mfma(cur, p, a) for a in range(nA)]
                    k(M[0]); k(M[1]); k("s_nop 5")
                    rest = M[2:]
                    step = max(1, len(E) // (len(rest) + 1))
                    mi = 0
                    for ei, e in enumerate(E):
                        k(e)
                        if (ei + 1) % step == 0 and mi < len(rest):
                            k(rest[mi]); mi += 1
                    while mi < len(rest): k(rest[mi]); mi += 1
                k("s_nop 7")
                for e in epi(3, TBs[1], OBs[1]): k(e)
            else:
                for (p, a) in order: k(mfma(cur, p, a))
                k("s_nop 7")
                for p in range(4):
                    for e in epi(p, TBs[p & 1], OBs[p & 1]): k(e)
        else:
            st(3)
            epi_setup()
            k("s_nop 7")
            for p in range(4):
                for e in epi(p, 32 + (p & 1) * 16, 64 + (p & 1) * 8): k(e)
        if repack and tp == 1: repack_store()
        if cont:
            k(f"s_branch {name}_p2")
        else:
            st.end(32, sW)
            k("s_endpgm")
    body(0)
    k.label(f"{name}_typeB")
    body(1)
    if cont:
        k.label(f"{name}_p2")
        cont(k)
    if into is not None:
        k.lds2 = max(NS * STAGE, getattr(k, 'lds2', 0))
        return k
    k.label(f"{name}_end")
    k("s_endpgm")
    k.lds = max(NS * STAGE, getattr(k, 'lds2', 0))
    k.grid = 256
    k.block = 512
    return k
```

```python
from asmlib import *
from layout import *
from ka_util import f2u, wave_sum
from kb import cos_sin

KC_C1, KC_C3, KC_TW = 32, 56, 72
def kc_consts(k):
    C1, C3, TW, TC, TS = KC_C1, KC_C3, KC_TW, 104, 112
    k("v_lshrrev_b32 v2, 5, v0")
    k("v_and_b32 v3, 31, v0")
    k("v_lshrrev_b32 v6, 4, v3")
    k("v_lshlrev_b32 v6, 4, v6")
    k("v_bfe_u32 v7, v3, 2, 1")
    k("v_lshl_add_u32 v6, v7, 3, v6")
    k("v_bfe_u32 v7, v3, 3, 1")
    k("v_lshl_add_u32 v6, v7, 2, v6")
    k("v_and_b32 v7, 3, v3")
    k("v_add_u32 v6, v6, v7")
    k("v_lshlrev_b32 v10, 3, v2")
    k("v_mul_u32_u24 v10, v10, v6")
    for e in range(8):
        k("v_and_b32 v11, 31, v10")
        cos_sin(k, TC+e, TS+e, 11, 1.0/32)
        if e < 7: k("v_add_u32 v10, v10, v6")
    k("v_and_b32 v11, 1, v6")
    k("v_sub_u32 v12, 0, v11")
    k("v_and_b32 v12, 0x80008000, v12")
    for d in range(4):
        k(f"v_cvt_pk_bf16_f32 v{C1+d}, v{TC+2*d}, v{TC+2*d+1}")
        k(f"v_cvt_pk_bf16_f32 v{C1+8+d}, v{TS+2*d}, v{TS+2*d+1}")
    for d in range(4):
        k(f"v_xor_b32 v{C1+4+d}, v12, v{C1+d}")
        k(f"v_xor_b32 v{C1+12+d}, v12, v{C1+8+d}")
    for d in range(8):
        k(f"v_xor_b32 v{C1+16+d}, 0x80008000, v{C1+8+d}")
    k("v_lshlrev_b32 v10, 2, v2")
    for e in range(8):
        d2c = 8*(e >> 2) + (e & 3)
        k(f"v_add_u32 v11, {d2c}, v10")
        k("v_mul_u32_u24 v11, v11, v3")
        k("v_and_b32 v11, 31, v11")
        cos_sin(k, TC+e, TS+e, 11, 1.0/32)
    k("v_and_b32 v11, 1, v3")
    k("v_sub_u32 v12, 0, v11")
    k("v_and_b32 v12, 0x80008000, v12")
    for d in range(4):
        k(f"v_cvt_pk_bf16_f32 v{C3+d}, v{TC+2*d}, v{TC+2*d+1}")
        k(f"v_cvt_pk_bf16_f32 v{C3+8+d}, v{TS+2*d}, v{TS+2*d+1}")
    for d in range(4):
        k(f"v_xor_b32 v{C3+4+d}, v12, v{C3+d}")
        k(f"v_xor_b32 v{C3+12+d}, v12, v{C3+8+d}")
    for r in range(16):
        d2c = 8*(r >> 2) + (r & 3)
        k(f"v_add_u32 v11, {d2c}, v10")
        k("v_mul_u32_u24 v11, v11, v6")
        cos_sin(k, TW+r, TW+16+r, 11, 1.0/1024)

def gen_kc(name="kc_kernel", stamps=False, pf=True, sf='', pfrows=0, sf2='', xnt=True, cpf=None, x1lds=False, pfs=6, cont=None):
    k = Kern(name)
    st = Stamps(k, stamps, 2)
    xntf = " nt" if xnt else ""
    C1, C3, TW = KC_C1, KC_C3, KC_TW
    TBL = 16384
    HST = TBL + 32768
    X1S = HST + 32*528
    k("s_cmp_ge_u32 s2, 256")
    k(f"s_cbranch_scc1 {name}_end")
    st.start()
    k(f"s_load_dwordx2 s[32:33], s[0:1], {KA['ws']}")
    k(f"s_load_dwordx2 s[4:5], s[0:1], {KA['x']}")
    k(f"s_load_dwordx2 s[6:7], s[0:1], {KA['wu']}")
    k(f"s_load_dwordx2 s[42:43], s[0:1], {KA['wg']}")
    k("v_mov_b32 v30, v0")
    k("v_lshrrev_b32 v1, 6, v0")
    k("v_and_b32 v0, 63, v0")
    k("v_readfirstlane_b32 s28, v1")
    k("s_and_b32 s34, s2, 7")
    k("s_lshl_b32 s34, s34, 5")
    k("s_lshr_b32 s35, s2, 3")
    k("s_add_u32 s34, s34, s35")
    k("s_lshl_b32 s34, s34, 2")
    k("v_lshrrev_b32 v2, 2, v0")
    k("v_lshrrev_b32 v4, 4, v0")
    k("v_sub_u32 v3, v0, v4")
    k("v_and_b32 v3, 3, v3")
    k(f"s_mov_b32 s35, {ZROWS*16}")
    k("v_mul_lo_u32 v8, v2, s35")
    k("v_add_u32 v3, s34, v3")
    k("v_lshl_add_u32 v8, v3, 4, v8")
    k("v_lshlrev_b32 v5, 4, v0")
    k("v_lshrrev_b32 v2, 5, v0")
    k("v_and_b32 v3, 31, v0")
    k("v_lshlrev_b32 v4, 6, v3")
    k("v_lshl_add_u32 v4, v2, 4, v4")
    k("s_and_b32 s38, s28, 3")
    k("s_add_u32 s36, s34, s38")
    k("s_sub_u32 s39, 2048, s36")
    k("s_cmp_eq_u32 s36, 0")
    k("s_cselect_b32 s39, 1024, s39")
    k("s_cmp_ge_u32 s28, 4")
    k("s_cselect_b32 s36, s39, s36")
    k("s_lshl_b32 s37, s36, 11")
    k("s_waitcnt lgkmcnt(0)")
    srd(k, 8, 32, 256*ZROWS*16, off_imm=ZS_OFF)
    for q in range(2):
        k(f"s_lshl_b32 s38, s28, 1")
        k(f"s_add_u32 s38, s38, {q}")
        k(f"s_lshl_b32 s39, s38, 10")
        k("s_mov_b32 m0, s39")
        k(f"s_mul_i32 s38, s38, {16*ZROWS*16}")
        k(f"buffer_load_dwordx4 v8, s[8:11], s38 offen lds")
    srd(k, 48, 32, 30720, off_imm=TC_OFF)
    k("s_lshl_b32 s38, s28, 12")
    k(f"s_add_u32 m0, s38, {TBL}")
    k("s_nop 0")
    for q in range(4):
        k(f"buffer_load_dwordx4 v5, s[48:51], s38 offen offset:{q*1024} lds")
    srd(k, 16, 4, 2048, off_s="s37")
    XV = 200
    k(f"buffer_load_dwordx4 v[{XV}:{XV+3}], v4, s[16:19], 0 offen{xntf}")
    k(f"buffer_load_dwordx4 v[{XV+4}:{XV+7}], v4, s[16:19], 0 offen offset:32{xntf}")
    MV = 208
    NPF = 0
    srd(k, 20, 32, 2048, off_s="s37", off_imm=X1_OFF)
    srd(k, 24, 32, S*D*2, off_imm=H2_OFF)
    k("v_lshrrev_b32 v10, 4, v0")
    k("v_bfe_u32 v11, v0, 2, 2")
    k("v_and_b32 v12, 3, v0")
    k("v_and_b32 v13, 1, v10")
    k("v_lshl_add_u32 v16, v13, 2, v12")
    k("v_lshrrev_b32 v14, 1, v10")
    k("v_lshl_add_u32 v14, v14, 3, v11")
    k("v_lshlrev_b32 v14, 9, v14")
    k("v_lshl_add_u32 v14, v16, 6, v14")
    k("v_and_b32 v15, 1, v11")
    k("v_lshl_add_u32 v15, v15, 1, v13")
    k("s_and_b32 s38, s28, 3")
    k("v_add_u32 v15, s38, v15")
    k("v_and_b32 v15, 3, v15")
    k("v_lshl_add_u32 v14, v15, 4, v14")
    k("v_mul_u32_u24 v17, 528, v3")
    k("v_lshl_add_u32 v17, v2, 7, v17")
    k("s_lshl_b32 s38, s28, 4")
    k(f"s_add_u32 s38, s38, {HST}")
    k("v_add_u32 v17, s38, v17")
    k("v_lshrrev_b32 v18, 3, v0")
    k("v_and_b32 v19, 7, v0")
    k("v_lshrrev_b32 v20, 2, v18")
    k("v_and_b32 v21, 3, v18")
    k("v_mul_u32_u24 v22, 528, v20")
    k("v_lshl_add_u32 v22, v21, 7, v22")
    k("v_lshl_add_u32 v22, v19, 4, v22")
    k(f"s_mul_i32 s38, s28, {4*528}")
    k(f"s_add_u32 s38, s38, {HST}")
    k("v_add_u32 v22, s38, v22")
    k("v_and_b32 v24, 3, v19")
    k("v_add_u32 v24, s34, v24")
    k("v_sub_u32 v25, 2048, v24")
    k("v_mov_b32 v26, 1024")
    k("v_cmp_eq_u32 vcc, 0, v24")
    k("s_nop 1")
    k("v_cndmask_b32 v25, v25, v26, vcc")
    k("v_cmp_lt_u32 vcc, 3, v19")
    k("s_nop 1")
    k("v_cndmask_b32 v24, v24, v25, vcc")
    k("v_lshrrev_b32 v25, 8, v24")
    k("v_lshlrev_b32 v23, 19, v25")
    k("v_bfe_u32 v25, v24, 4, 4")
    k("v_lshl_add_u32 v23, v25, 10, v23")
    k("v_and_b32 v25, 15, v24")
    k("v_lshl_add_u32 v23, v25, 4, v23")
    k("v_lshl_add_u32 v23, v20, 14, v23")
    k("v_lshl_add_u32 v23, v21, 8, v23")
    k("s_lshl_b32 s41, s28, 16")
    k("s_cmp_ge_u32 s28, 4")
    k("s_cselect_b32 s40, 0x80008000, 0")
    st(1)
    k(f"s_waitcnt vmcnt(0)")
    k("s_barrier")
    st(2)
    if cpf: code_pf(k, cpf[0], cpf[1], "a", 122, 30, sp=60)
    if pf and pfrows == 0:
        srd(k, 44, 6, D*F*2)
        k("s_lshl_b32 s38, s2, 9")
        k("v_add_u32 v31, s38, v30")
        if pfs == 7:
            k("s_mul_i32 s38, s2, 224")
            k("v_add_u32 v31, s38, v30")
            k("v_lshlrev_b32 v31, 7, v31")
            k("v_cmp_gt_u32 vcc, 224, v30")
            k("v_bfrev_b32 v121, 1")
            k("s_nop 1")
            k("v_cndmask_b32 v31, v121, v31, vcc")
        else:
            k("v_lshlrev_b32 v31, 6, v31")
        k("buffer_load_dword v120, v31, s[44:47], 0 offen")
        NPF = 1
    elif pf:
        n = pfrows * 7168 // 64 // 256
        srd(k, 44, 6, pfrows * 7168)
        srd(k, 52, 42, pfrows * 7168)
        k(f"s_mul_i32 s38, s2, {n}")
        k("v_add_u32 v31, s38, v30")
        k("v_lshlrev_b32 v31, 6, v31")
        k(f"v_cmp_gt_u32 vcc, {n}, v30")
        k("v_bfrev_b32 v121, 1")
        k("s_nop 1")
        k("v_cndmask_b32 v31, v121, v31, vcc")
        k("buffer_load_dword v120, v31, s[44:47], 0 offen")
        k("buffer_load_dword v121, v31, s[52:55], 0 offen")
        NPF = 2
    ZF = 104
    for pl in range(2):
        for m in range(2):
            for h in range(2):
                b = ZF + (pl*2 + m)*4 + 2*h
                k(f"ds_read_b64_tr_b16 v[{b}:{b+1}], v14 offset:{h*2048 + m*8192 + pl*8}")
    for q in range(6):
        k(f"ds_read_b128 v[{32+4*q}:{35+4*q}], v5 offset:{TBL + q*1024}")
    k("s_waitcnt lgkmcnt(0)")
    for d in range(8): k(f"v_xor_b32 v{ZF+8+d}, s40, v{ZF+8+d}")
    k("s_and_b32 s38, s28, 3")
    k("s_or_b32 s38, s38, s34")
    k("s_cmp_lg_u32 s38, 0")
    k(f"s_cbranch_scc1 {name}_nosp")
    k("s_cmp_eq_u32 s28, 0")
    k(f"s_cbranch_scc1 {name}_sp0")
    for d in range(8): k(f"v_xor_b32 v{ZF+d}, s40, v{ZF+8+d}")
    k.label(f"{name}_sp0")
    for d in range(8): k(f"v_mov_b32 v{ZF+8+d}, 0")
    k.label(f"{name}_nosp")
    TR, TI = 128, 144
    def mf(d, a, b, c):
        cs = "0" if c is None else f"v[{c}:{c+15}]"
        k(f"v_mfma_f32_32x32x16_bf16 v[{d}:{d+15}], v[{a}:{a+3}], v[{b}:{b+3}], {cs}")
    zr = lambda m: ZF + m*4
    zi = lambda m: ZF + 8 + m*4
    k("s_nop 1")
    mf(TR, zr(0), C1+0, None)
    mf(TI, zr(0), C1+16, None)
    mf(TR, zr(1), C1+4, TR)
    mf(TI, zr(1), C1+20, TI)
    mf(TR, zi(0), C1+8, TR)
    mf(TI, zi(0), C1+0, TI)
    mf(TR, zi(1), C1+12, TR)
    mf(TI, zi(1), C1+4, TI)
    for q in list(range(10, 18)) + list(range(6, 10)):
        k(f"ds_read_b128 v[{32+4*q}:{35+4*q}], v5 offset:{TBL + q*1024}")
    XF = 176
    for d in range(8):
        k(f"v_lshlrev_b32 v{XF+2*d}, 16, v{XV+d}")
        k(f"v_and_b32 v{XF+2*d+1}, 0xffff0000, v{XV+d}")
    k("s_waitcnt lgkmcnt(4)")
    for q in range(12):
        k(f"ds_read_b128 v[{MV+4*q}:{MV+4*q+3}], v5 offset:{TBL + 18432 + q*1024}")
    def pr(b): return f"v[{b}:{b+1}]"
    PRr, PIi = 160, 192
    for q in range(8):
        k(f"v_pk_mul_f32 {pr(PRr+2*q)}, {pr(TR+2*q)}, {pr(TW+2*q)}")
    for q in range(8):
        k(f"v_pk_fma_f32 {pr(PRr+2*q)}, {pr(TI+2*q)}, {pr(TW+16+2*q)}, {pr(PRr+2*q)}")
    for q in range(8):
        k(f"v_pk_mul_f32 {pr(TI+2*q)}, {pr(TI+2*q)}, {pr(TW+2*q)}")
    for q in range(8):
        k(f"v_pk_fma_f32 {pr(TI+2*q)}, {pr(TR+2*q)}, {pr(TW+16+2*q)}, {pr(TI+2*q)} neg_lo:[1,0,0] neg_hi:[1,0,0]")
    PR, PI = 104, 112
    for d in range(8):
        k(f"v_cvt_pk_bf16_f32 v{PR+d}, v{PRr+2*d}, v{PRr+2*d+1}")
        k(f"v_cvt_pk_bf16_f32 v{PI+d}, v{TI+2*d}, v{TI+2*d+1}")
    Y = 128
    k("s_waitcnt lgkmcnt(12)")
    mf(Y, PR+0, C3+0, None)
    mf(Y, PR+4, C3+4, Y)
    mf(Y, PI+0, C3+8, Y)
    mf(Y, PI+4, C3+12, Y)
    k("s_nop 15")
    k("s_waitcnt lgkmcnt(0)")
    for q in range(8):
        k(f"v_pk_fma_f32 {pr(XF+2*q)}, {pr(Y+2*q)}, {pr(MV+2*q)}, {pr(XF+2*q)}")
    for d in range(8):
        k(f"v_cvt_pk_bf16_f32 v{XV+d}, v{XF+2*d}, v{XF+2*d+1}")
    if x1lds:
        k(f"s_lshl_b32 s38, s28, 11")
        k(f"s_add_u32 s38, s38, {X1S}")
        k("v_add_u32 v27, s38, v4")
        k("v_add_u32 v28, s38, v5")
        k(f"ds_write_b128 v27, v[{XV}:{XV+3}]")
        k(f"ds_write_b128 v27, v[{XV+4}:{XV+7}] offset:32")
        k("s_waitcnt lgkmcnt(0)")
        k("ds_read_b128 v[96:99], v28")
        k("ds_read_b128 v[100:103], v28 offset:1024")
        k("s_waitcnt lgkmcnt(1)")
        k(f"buffer_store_dwordx4 v[96:99], v5, s[20:23], 0 offen{sf}")
        k("s_waitcnt lgkmcnt(0)")
        k(f"buffer_store_dwordx4 v[100:103], v5, s[20:23], 0 offen offset:1024{sf}")
    else:
        k(f"buffer_store_dwordx4 v[{XV}:{XV+3}], v4, s[20:23], 0 offen{sf}")
        k(f"buffer_store_dwordx4 v[{XV+4}:{XV+7}], v4, s[20:23], 0 offen offset:32{sf}")
    for d in range(8):
        k(f"v_lshlrev_b32 v{XF+2*d}, 16, v{XV+d}")
        k(f"v_and_b32 v{XF+2*d+1}, 0xffff0000, v{XV+d}")
    k(f"v_pk_add_f32 v[10:11], {pr(XF)}, {pr(XF+2)}")
    k(f"v_pk_mul_f32 v[12:13], {pr(XF)}, {pr(XF)}")
    for q in range(1, 8):
        if q > 1: k(f"v_pk_add_f32 v[10:11], v[10:11], {pr(XF+2*q)}")
        k(f"v_pk_fma_f32 v[12:13], {pr(XF+2*q)}, {pr(XF+2*q)}, v[12:13]")
    k("v_add_f32 v10, v10, v11")
    k("v_add_f32 v12, v12, v13")
    wave_sum(k, [10, 12], [11, 13])
    k(f"v_mul_f32 v10, {f2u(1.0/1024):#x}, v10")
    k(f"v_mul_f32 v12, {f2u(1.0/1024):#x}, v12")
    k("v_fma_f32 v12, -v10, v10, v12")
    k("v_max_f32 v12, 0, v12")
    k(f"v_add_f32 v12, {f2u(1e-5):#x}, v12")
    k("v_rsq_f32 v12, v12")
    k("v_sub_f32 v10, 0, v10")
    bc = "op_sel:[0,0] op_sel_hi:[1,0]"
    for q in range(8): k(f"v_pk_add_f32 {pr(XF+2*q)}, {pr(XF+2*q)}, v[10:11] {bc}")
    for q in range(8): k(f"v_pk_mul_f32 {pr(XF+2*q)}, {pr(XF+2*q)}, v[12:13] {bc}")
    for q in range(8): k(f"v_pk_fma_f32 {pr(XF+2*q)}, {pr(XF+2*q)}, {pr(MV+16+2*q)}, {pr(MV+32+2*q)}")
    for d in range(8):
        k(f"v_cvt_pk_bf16_f32 v{160+d}, v{XF+2*d}, v{XF+2*d+1}")
    k("ds_write_b128 v17, v[160:163]")
    k("ds_write_b128 v17, v[164:167] offset:256")
    k("s_waitcnt lgkmcnt(0)")
    k("s_barrier")
    k("ds_read_b128 v[168:171], v22")
    k(f"ds_read_b128 v[172:175], v22 offset:{2*528}")
    k("s_add_u32 s42, s41, 32768")
    k("s_waitcnt lgkmcnt(1)")
    k(f"buffer_store_dwordx4 v[168:171], v23, s[24:27], s41 offen{sf2}")
    k("s_waitcnt lgkmcnt(0)")
    k(f"buffer_store_dwordx4 v[172:175], v23, s[24:27], s42 offen{sf2}")
    st(3)
    if cont:
        srd(k, 60, 32, 1024, off_imm=CNTH_OFF)
        k("s_waitcnt vmcnt(0) lgkmcnt(0)")
        k("s_barrier")
        k("s_cmp_lg_u32 s28, 0")
        k(f"s_cbranch_scc1 {name}_nosig")
        k("s_lshr_b32 s38, s34, 8")
        k("s_sub_u32 s39, 2045, s34")
        k("s_lshr_b32 s39, s39, 8")
        k("s_sub_u32 s40, 2048, s34")
        k("s_cmp_eq_u32 s34, 0")
        k("s_cselect_b32 s40, 1024, s40")
        k("s_lshr_b32 s40, s40, 8")
        k("s_cmp_eq_u32 s40, s39")
        k("s_cselect_b32 s40, 64, s40")
        k("v_mov_b32 v20, 1")
        k("v_mov_b32 v21, s38")
        k("v_writelane_b32 v21, s39, 1")
        k("v_writelane_b32 v21, s40, 2")
        k("v_lshlrev_b32 v21, 7, v21")
        k("s_mov_b64 exec, 7")
        k("buffer_atomic_add v20, v21, s[60:63], 0 offen sc1")
        k("s_mov_b64 exec, -1")
        k.label(f"{name}_nosig")
        cont(k)
    else:
        st.end(32, 28)
    k.label(f"{name}_end")
    k("s_endpgm")
    k.lds = max(HST + 32*528 + (16384 if x1lds else 0), getattr(k, 'lds2', 0)); k.grid = 256; k.block = 512
    return k
```

```python
from mk_all import *
S1 = " sc1"
def mk(level, af='', hf=''):
    ka = gen_ka("ka_kernel", xnt=False, codepf=("kb_kernel", "code_end_label"), flags=True, tables=False)
    g4 = lambda k: gen_gemm4b("g4", into=k, sf=S1, af=af)
    if level == 0: return best()
    if level == 1:
        kb = gen_kb("kb_kernel", sf=S1, table=False, ctable=True, cpf=("kc_kernel", "g3_kernel"))
        kc = gen_kc("kc_kernel", xnt=False, cpf=("g3_kernel", "code_end_label"))
        g = gen_gemm3c("g3_kernel", cpf=None, peel_first=False, peel_last=True, fuse=True, cont=g4)
        return [ka, kb, kc, g]
    if level == 2:
        kb = gen_kb("kb_kernel", sf=S1, table=False, ctable=True, cpf=("kc_kernel", "code_end_label"))
        g3 = lambda k: gen_gemm3c("g3", into=k, cpf=None, peel_first=False, peel_last=True, fuse=True, cont=g4, hf=hf)
        kc = gen_kc("kc_kernel", xnt=False, x1lds=True, sf=S1, sf2=S1, cont=g3)
        return [ka, kb, kc]
if __name__ == "__main__":
    build("fu_a.s", mk(0))
    build("fu_b.s", mk(1))
    build("fu_c.s", mk(1, af=S1))
    build("fu_d.s", mk(2))
    build("fu_e.s", mk(2, af=S1, hf=S1))
```

```python
from asmlib import *
from layout import *
from ka_util import f2u, dpp_add, xlane_sum_16_32
import math

def cos_sin(k, dc, ds, n, scale):
    k(f"v_cvt_f32_u32 v{ds}, v{n}")
    k(f"v_mul_f32 v{ds}, {f2u(scale):#x}, v{ds}")
    k(f"v_cos_f32 v{dc}, v{ds}")
    k(f"v_sin_f32 v{ds}, v{ds}")

KB_C1, KB_C3, KB_TW = 32, 48, 72
def kb_consts(k):
    C1, C3, TW, TC, TS = KB_C1, KB_C3, KB_TW, 100, 108
    k("v_lshlrev_b32 v24, 3, v3")
    k("v_mul_u32_u24 v24, v24, v4")
    for e in range(8):
        k("v_and_b32 v25, 31, v24")
        cos_sin(k, TC+e, TS+e, 25, 1.0/32)
        if e < 7: k("v_add_u32 v24, v24, v4")
    k("s_nop 0")
    for d in range(4):
        k(f"v_cvt_pk_bf16_f32 v{C1+d}, v{TC+2*d}, v{TC+2*d+1}")
        k(f"v_cvt_pk_bf16_f32 v{C1+8+d}, -v{TS+2*d}, -v{TS+2*d+1}")
    for d in range(4):
        k(f"v_xor_b32 v{C1+4+d}, 0x80000000, v{C1+d}")
        k(f"v_xor_b32 v{C1+12+d}, 0x80000000, v{C1+8+d}")
    k("s_lshr_b32 s36, s28, 1")
    k("s_lshl_b32 s36, s36, 4")
    k("v_add_u32 v26, s36, v4")
    for e in range(8):
        s2c = 16*(e >> 2) + 4*(e & 3)
        k(f"v_add_u32 v25, {s2c}, v3")
        k("v_mul_u32_u24 v25, v25, v26")
        k("v_and_b32 v25, 63, v25")
        cos_sin(k, TC+e, TS+e, 25, 1.0/64)
    k("v_and_b32 v25, 1, v26")
    k("v_sub_u32 v27, 0, v25")
    k("v_and_b32 v27, 0x80008000, v27")
    for d in range(4):
        k(f"v_cvt_pk_bf16_f32 v{C3+d}, v{TC+2*d}, v{TC+2*d+1}")
        k(f"v_cvt_pk_bf16_f32 v{C3+8+d}, v{TS+2*d}, v{TS+2*d+1}")
    for d in range(4):
        k(f"v_xor_b32 v{C3+4+d}, v27, v{C3+d}")
        k(f"v_xor_b32 v{C3+12+d}, v27, v{C3+8+d}")
    for d in range(8):
        k(f"v_xor_b32 v{C3+16+d}, 0x80008000, v{C3+8+d}")
    k("s_lshl_b32 s36, s28, 4")
    for tau in range(4):
        k(f"v_add_u32 v25, s36, v3")
        if tau: k(f"v_add_u32 v25, {4*tau}, v25")
        for th in range(2):
            k(f"v_add_u32 v27, {16*th}, v4")
            k("v_mul_u32_u24 v27, v25, v27")
            b = TW + (tau*2 + th)*2
            cos_sin(k, b, b+1, 27, 1.0/2048)

def gen_kb(name="kb_kernel", stamps=False, pf=True, sf='', table=True, pfn=2, cpf=None, ctable=False, pfs=6, cont=None, KTBL=49152):
    k = Kern(name)
    st = Stamps(k, stamps, 1)
    TOFF = 16384
    C1, C3, TW = KB_C1, KB_C3, KB_TW
    k(f"s_cmp_ge_u32 s2, {257 if ctable else 256}")
    k(f"s_cbranch_scc1 {name}_end")
    if ctable:
        k("s_cmp_eq_u32 s2, 256")
        k(f"s_cbranch_scc1 {name}_ctab")
    st.start()
    k(f"s_load_dwordx2 s[32:33], s[0:1], {KA['ws']}")
    k(f"s_load_dwordx2 s[4:5], s[0:1], {KA['wg']}")
    k("v_mov_b32 v30, v0")
    k("v_lshrrev_b32 v1, 6, v0")
    k("v_and_b32 v0, 63, v0")
    k("v_readfirstlane_b32 s28, v1")
    if cont:
        k("s_cmp_ge_u32 s28, 4")
        k(f"s_cbranch_scc1 {name}_side")
    k("s_and_b32 s34, s2, 7")
    k("s_lshl_b32 s34, s34, 5")
    k("s_lshr_b32 s35, s2, 3")
    k("s_add_u32 s34, s34, s35")
    k("v_lshlrev_b32 v2, 4, v0")
    k("v_lshrrev_b32 v3, 4, v0")
    k("v_and_b32 v4, 15, v0")
    k("s_lshl_b32 s36, s28, 12")
    k("v_add_u32 v5, s36, v2")
    k("s_lshl_b32 s37, s34, 4")
    k("v_lshrrev_b32 v6, 2, v0")
    k("v_mul_u32_u24 v6, 24576, v6")
    k("v_and_b32 v7, 3, v0")
    k("v_lshl_add_u32 v6, v7, 2, v6")
    k("v_add_u32 v6, s37, v6")
    k("v_add_u32 v7, 4096, v6")
    k("s_mul_i32 s37, s2, 24")
    k("s_mul_i32 s38, s28, 6")
    k("s_add_u32 s37, s37, s38")
    k("v_add_u32 v16, s37, v3")
    k("v_mul_u32_u24 v17, 24576, v4")
    k("v_lshl_add_u32 v17, v16, 2, v17")
    k("s_waitcnt lgkmcnt(0)")
    k("s_lshl_b32 s35, s34, 14")
    srd(k, 8, 32, 16384, off_s="s35", off_imm=XS_OFF)
    k("s_mov_b32 m0, s36")
    srd(k, 56, 32, 32768, off_imm=TB_OFF)
    for q in range(4):
        k(f"buffer_load_dwordx4 v5, s[8:11], 0 offen offset:{q*1024} lds")
    TBL = 49152
    if table:
        k("s_lshl_b32 s36, s28, 13")
        for hq in range(2):
            k(f"s_add_u32 m0, s36, {TBL + hq*4096}")
            k(f"s_add_u32 s37, s36, {hq*4096}")
            for q in range(4):
                k(f"buffer_load_dwordx4 v2, s[56:59], s37 offen offset:{q*1024} lds")
    srd(k, 12, 32, 16*6144*4, off_imm=MODP_OFF)
    k("buffer_load_dword v8, v6, s[12:15], 0 offen")
    k("buffer_load_dword v12, v7, s[12:15], 0 offen")
    k("buffer_load_dword v20, v17, s[12:15], 0 offen")
    k("buffer_load_dword v21, v17, s[12:15], 0 offen offset:16")
    NPF = 0
    k(f"s_mul_i32 s35, s34, {ZROWS*16}")
    srd(k, 16, 32, ZROWS*16, off_s="s35", off_imm=ZS_OFF)
    RA = 88
    k("v_bfe_u32 v25, v0, 2, 2")
    k("v_and_b32 v26, 3, v0")
    k("v_lshlrev_b32 v27, 12, v3")
    k("v_lshlrev_b32 v28, 9, v25")
    k("v_add_u32 v27, v27, v28")
    k("v_lshlrev_b32 v28, 2, v25")
    k("v_add_u32 v28, v28, v26")
    k("v_and_b32 v29, 1, v3")
    k("v_lshlrev_b32 v29, 4, v29")
    k("v_add_u32 v28, v28, v29")
    k("s_lshl_b32 s36, s28, 4")
    k("v_add_u32 v28, s36, v28")
    for tau in range(4):
        k(f"v_add_u32 v29, {4*tau}, v28")
        k("v_and_b32 v29, 63, v29")
        k(f"v_lshl_add_u32 v{RA+tau}, v29, 3, v27")
    k("s_lshr_b32 s36, s28, 1")
    k("s_lshl_b32 s36, s36, 10")
    k("s_and_b32 s37, s28, 1")
    k("s_lshl_b32 s37, s37, 3")
    k("s_add_u32 s36, s36, s37")
    k(f"s_add_u32 s36, s36, {TOFF}")
    k("v_add_u32 v92, s36, v2")
    k("s_and_b32 s36, s28, 1")
    k("s_lshl_b32 s36, s36, 12")
    k(f"s_add_u32 s36, s36, {TOFF}")
    k("v_add_u32 v93, s36, v2")
    k("s_and_b32 s36, s28, 1")
    k("s_lshl_b32 s36, s36, 4")
    k("s_lshr_b32 s37, s28, 1")
    k("s_lshl_b32 s37, s37, 9")
    k("s_add_u32 s36, s36, s37")
    k("v_lshlrev_b32 v94, 7, v3")
    k("v_add_u32 v94, v94, v4")
    k("v_add_u32 v94, s36, v94")
    k("v_lshlrev_b32 v94, 4, v94")
    k("v_and_b32 v25, 1, v3")
    k("v_lshlrev_b32 v25, 31, v25")
    k("v_lshrrev_b32 v26, 16, v25")
    k("v_or_b32 v25, v25, v26")
    k("v_or_b32 v25, 0x3f803f80, v25")
    k("v_cmp_eq_u32 vcc, 0, v4")
    k("s_nop 1")
    k("v_cndmask_b32 v25, 0, v25, vcc")
    NC = 240
    for d in range(4): k(f"v_mov_b32 v{NC+d}, v25")
    if not table: kb_consts(k)
    st(1)
    k(f"s_waitcnt vmcnt(0)")
    k("s_barrier")
    st(2)
    if cpf: code_pf(k, cpf[0], cpf[1], "a", 116, 30, sp=60)
    if pf:
        srd(k, 24, 4, D*F*2)
        k("s_lshl_b32 s37, s2, 8")
        k("v_add_u32 v31, s37, v30")
        k(f"v_lshlrev_b32 v31, {pfs}, v31")
        if pfs == 7: pfn = 1
        for i in range(pfn):
            k(f"s_mov_b32 s37, {65536*64*i}")
            k(f"buffer_load_dword v{96+i}, v31, s[24:27], s37 offen")
        NPF = pfn
    if table:
        k("s_lshr_b32 s36, s28, 1")
        k("s_mul_i32 s36, s36, 6144")
        k("v_add_u32 v98, s36, v2")
        k("s_lshl_b32 s36, s28, 12")
        k(f"s_add_u32 s36, s36, {TBL+16384}")
        k("v_add_u32 v99, s36, v2")
        for q in range(4): k(f"ds_read_b128 v[{C1+4*q}:{C1+4*q+3}], v2 offset:{TBL+q*1024}")
    AF = 100
    for tau in range(4):
        for h in range(2):
            k(f"ds_read_b64_tr_b16 v[{AF+4*tau+2*h}:{AF+4*tau+2*h+1}], v{RA+tau} offset:{h*2048}")
    ACC = 128
    def a1(tau, th, ri): return ACC + ((tau*2 + th)*2 + ri)*4
    if table:
        for q in range(4): k(f"ds_read_b128 v[{TW+4*q}:{TW+4*q+3}], v99 offset:{q*1024}")
    for tau in range(4):
        k(f"s_waitcnt lgkmcnt({6-2*tau+(4 if table else 0)})")
        for th in range(2):
            for ri in range(2):
                cb = C1 + ri*8 + th*4
                k(f"v_mfma_f32_16x16x32_bf16 v[{a1(tau,th,ri)}:{a1(tau,th,ri)+3}], v[{AF+4*tau}:{AF+4*tau+3}], v[{cb}:{cb+3}], 0")
    if table:
        for q in range(6): k(f"ds_read_b128 v[{C3+4*q}:{C3+4*q+3}], v98 offset:{TBL+4096+q*1024}")
    dpp_add(k, [8, 12], "row_ror:4")
    dpp_add(k, [8, 12], "row_ror:8")
    k("s_nop 1")
    xlane_sum_16_32(k, [8, 12], [9, 13])
    for r in (8, 12):
        k(f"v_cvt_pk_bf16_f32 v{r}, v{r}, v{r}")
        k(f"v_lshlrev_b32 v{r}, 16, v{r}")
    k("v_add_f32 v13, 1.0, v12")
    k("v_cvt_pk_bf16_f32 v13, v13, v13")
    k("v_lshlrev_b32 v13, 16, v13")
    k(f"v_mul_f32 v8, {f2u(2048.0):#x}, v8")
    if table: k("s_waitcnt lgkmcnt(6)")
    R2 = 192
    def r2(tau, th): return R2 + (tau*2 + th)*4
    def pr(b): return f"v[{b}:{b+1}]"
    TT = 224
    for tau in range(4):
        for th in range(2):
            cs = TW + (tau*2 + th)*2
            tr = a1(tau, th, 0); ti = a1(tau, th, 1); o = r2(tau, th)
            bc = "op_sel:[0,0] op_sel_hi:[1,0]"
            for hq in range(2):
                k(f"v_pk_mul_f32 {pr(o+2*hq)}, {pr(tr+2*hq)}, {pr(cs)} {bc}")
                k(f"v_pk_mul_f32 {pr(TT+2*hq)}, {pr(ti+2*hq)}, {pr(cs)} {bc}")
            bs = "op_sel:[0,1,0] op_sel_hi:[1,1,1]"
            for hq in range(2):
                k(f"v_pk_fma_f32 {pr(o+2*hq)}, {pr(ti+2*hq)}, {pr(cs)}, {pr(o+2*hq)} {bs}")
                k(f"v_pk_fma_f32 {pr(ti+2*hq)}, {pr(tr+2*hq)}, {pr(cs)}, {pr(TT+2*hq)} {bs} neg_lo:[1,0,0] neg_hi:[1,0,0]")
    for dd in range(4):
        k(f"v_readlane_b32 s{44+dd}, v13, {dd}")
        k(f"v_readlane_b32 s{48+dd}, v8, {dd}")
    pk = 8
    idx = 0
    for dd in range(4):
        for th in range(2):
            for ri in range(2):
                p = 100 + (idx % 8) * 2; idx += 1
                src = (lambda tau: r2(tau, th) + dd) if ri == 0 else (lambda tau: a1(tau, th, 1) + dd)
                k(f"v_cvt_pk_bf16_f32 v{p}, v{src(0)}, v{src(1)}")
                k(f"v_cvt_pk_bf16_f32 v{p+1}, v{src(2)}, v{src(3)}")
                k(f"ds_write_b64 v92, v[{p}:{p+1}] offset:{((dd*2+th)*2+ri)*2048}")
    k("s_waitcnt lgkmcnt(0)")
    k("s_barrier")
    BF = 128
    def bfr(dd, ri, m): return BF + ((dd*2 + ri)*2 + m)*4
    for dd in range(4):
        for ri in range(2):
            for m in range(2):
                off = dd*8192 + ri*2048 + m*1024
                k(f"ds_read_b128 v[{bfr(dd,ri,m)}:{bfr(dd,ri,m)+3}], v93 offset:{off}")
    Z = 192
    def z(dd, ri): return Z + (dd*2 + ri)*4
    NQ = 224
    k("v_cmp_eq_u32 vcc, 0, v94")
    for dd in range(4): k(f"v_mov_b32 v{26+dd}, s{48+dd}")
    k("s_nop 1")
    for dd in range(4): k(f"v_cndmask_b32 v{26+dd}, 0, v{26+dd}, vcc")
    def mf(d, a, b, c):
        cs = "0" if c is None else f"v[{c}:{c+3}]"
        k(f"v_mfma_f32_16x16x32_bf16 v[{d}:{d+3}], v[{a}:{a+3}], v[{b}:{b+3}], {cs}")
    for dd in range(4):
        k(f"s_waitcnt lgkmcnt({12-4*dd})")
        mf(z(dd,0), C3+0, bfr(dd,0,0), None)
        mf(z(dd,1), C3+0, bfr(dd,1,0), None)
        mf(NQ+4*dd, NC, bfr(dd,0,0), None)
        mf(z(dd,0), C3+4, bfr(dd,0,1), z(dd,0))
        mf(z(dd,1), C3+4, bfr(dd,1,1), z(dd,1))
        mf(NQ+4*dd, NC, bfr(dd,0,1), NQ+4*dd)
        mf(z(dd,0), C3+8, bfr(dd,1,0), z(dd,0))
        mf(z(dd,1), C3+16, bfr(dd,0,0), z(dd,1))
        mf(z(dd,0), C3+12, bfr(dd,1,1), z(dd,0))
        mf(z(dd,1), C3+20, bfr(dd,0,1), z(dd,1))
    k("s_nop 7")
    k("v_cmp_eq_u32 vcc, 0, v94")
    k("s_nop 1")
    for dd in range(4): k(f"v_cndmask_b32 v{z(dd,1)}, v{z(dd,1)}, v{NQ+4*dd}, vcc")
    for dd in range(4):
        k(f"v_fma_f32 v{z(dd,0)}, v{z(dd,0)}, s{44+dd}, v{26+dd}")
        for r in range(1, 4): k(f"v_mul_f32 v{z(dd,0)+r}, s{44+dd}, v{z(dd,0)+r}")
        for r in range(4): k(f"v_mul_f32 v{z(dd,1)+r}, s{44+dd}, v{z(dd,1)+r}")
    for r in range(4):
        o = 100 + 4*r
        k(f"v_cvt_pk_bf16_f32 v{o}, v{z(0,0)+r}, v{z(1,0)+r}")
        k(f"v_cvt_pk_bf16_f32 v{o+1}, v{z(2,0)+r}, v{z(3,0)+r}")
        k(f"v_cvt_pk_bf16_f32 v{o+2}, v{z(0,1)+r}, v{z(1,1)+r}")
        k(f"v_cvt_pk_bf16_f32 v{o+3}, v{z(2,1)+r}, v{z(3,1)+r}")
        k(f"buffer_store_dwordx4 v[{o}:{o+3}], v94, s[16:19], 0 offen offset:{r*512}{sf}")
    for ctrl in ("quad_perm:[1,0,3,2]", "quad_perm:[2,3,0,1]", "row_half_mirror", "row_mirror"):
        dpp_add(k, [20, 21], ctrl)
    srd(k, 20, 32, 6144*4, off_imm=MODF_OFF)
    srd(k, 52, 32, 12288, off_imm=MODC_OFF)
    for q in range(2):
        val, idx = 20 + q, 16
        if q == 1: k("v_add_u32 v16, 4, v16")
        k(f"v_cvt_pk_bf16_f32 v{val}, v{val}, v{val}")
        k(f"v_lshlrev_b32 v{val}, 16, v{val}")
        k(f"v_add_f32 v22, 1.0, v{val}")
        k("v_cvt_pk_bf16_f32 v22, v22, v22")
        k("v_lshlrev_b32 v22, 16, v22")
        k("v_lshrrev_b32 v23, 10, v16")
        k("v_cmp_eq_u32 vcc, 1, v23")
        k("v_cmp_eq_u32 s[40:41], 4, v23")
        k("s_or_b64 vcc, vcc, s[40:41]")
        k("s_nop 1")
        k(f"v_cndmask_b32 v{val}, v{val}, v22, vcc")
        k("v_cmp_eq_u32 vcc, 0, v4")
        if q == 1:
            k("v_cmp_gt_u32 s[40:41], 2, v3")
            k("s_and_b64 vcc, vcc, s[40:41]")
        k("s_and_saveexec_b64 s[42:43], vcc")
        k("v_lshlrev_b32 v24, 2, v16")
        k(f"buffer_store_dword v{val}, v24, s[20:23], 0 offen{sf if cont else str()}")
        k("v_and_b32 v25, 1023, v16")
        k("v_lshrrev_b32 v26, 5, v25")
        k("v_bfe_u32 v27, v25, 3, 1")
        k("v_lshl_add_u32 v26, v27, 5, v26")
        k("v_lshlrev_b32 v26, 4, v26")
        k("v_and_b32 v27, 3, v25")
        k("v_lshl_add_u32 v26, v27, 2, v26")
        k("v_bfe_u32 v27, v25, 4, 1")
        k("v_bfe_u32 v28, v25, 2, 1")
        k("v_lshl_add_u32 v27, v27, 1, v28")
        k("v_lshl_add_u32 v26, v27, 10, v26")
        k("v_mov_b32 v27, 0x10000")
        k("v_cmp_eq_u32 vcc, 2, v23")
        k("s_nop 1")
        k("v_cndmask_b32 v27, v27, 0, vcc")
        k("v_mov_b32 v28, 4096")
        k("v_cmp_eq_u32 vcc, 4, v23")
        k("s_nop 1")
        k("v_cndmask_b32 v27, v27, v28, vcc")
        k("v_mov_b32 v28, 8192")
        k("v_cmp_eq_u32 vcc, 3, v23")
        k("s_nop 1")
        k("v_cndmask_b32 v27, v27, v28, vcc")
        k("v_add_u32 v26, v26, v27")
        k(f"buffer_store_dword v{val}, v26, s[52:55], 0 offen{sf if cont else str()}")
        k("s_mov_b64 exec, s[42:43]")
    st(3)
    k.label(f"{name}_fin")
    if cont:
        k(f"s_branch {name}_join")
        k.label(f"{name}_side")
        k("s_cmp_lg_u32 s28, 4")
        k(f"s_cbranch_scc1 {name}_side2")
        from kc import kc_consts
        kc_consts(k)
        k("v_lshlrev_b32 v5, 4, v0")
        k(f"v_add_u32 v5, {KTBL}, v5")
        for q in range(18):
            k(f"ds_write_b128 v5, v[{32+4*q}:{35+4*q}] offset:{q*1024}")
        k.label(f"{name}_side2")
        k("s_waitcnt lgkmcnt(0)")
        k("s_barrier")
        k("s_barrier")
        k.label(f"{name}_join")
        srd(k, 60, 32, 1024, off_imm=CNTB_OFF)
        k("s_waitcnt vmcnt(0) lgkmcnt(0)")
        k("s_barrier")
        k("s_cmp_lg_u32 s28, 0")
        k(f"s_cbranch_scc1 {name}_nosig")
        k("s_and_b32 s38, s2, 7")
        k("s_lshl_b32 s38, s38, 7")
        k("v_mov_b32 v20, 1")
        k("v_mov_b32 v21, s38")
        k("s_mov_b64 exec, 1")
        k("buffer_atomic_add v20, v21, s[60:63], 0 offen sc1")
        k("s_mov_b64 exec, -1")
        k.label(f"{name}_nosig")
        cont(k)
    st.end(32, 28)
    if ctable:
        k("s_endpgm")
        k.label(f"{name}_ctab")
        from kc import kc_consts
        k(f"s_load_dwordx2 s[32:33], s[0:1], {KA['ws']}")
        k("v_cmp_gt_u32 vcc, 64, v0")
        k("s_and_saveexec_b64 s[40:41], vcc")
        k(f"s_cbranch_execz {name}_end")
        kc_consts(k)
        k("s_waitcnt lgkmcnt(0)")
        srd(k, 12, 32, 18432, off_imm=TC_OFF)
        k("v_lshlrev_b32 v5, 4, v0")
        k("s_mov_b32 s36, 0")
        for q in range(18):
            k(f"buffer_store_dwordx4 v[{32+4*q}:{35+4*q}], v5, s[12:15], s36 offen offset:{(q%4)*1024}")
            if q % 4 == 3: k("s_add_u32 s36, s36, 4096")
    k.label(f"{name}_end")
    k("s_endpgm")
    k.lds = max(49152 + (32768 if table else 0), getattr(k, 'lds2', 0)); k.grid = 257 if ctable else 256; k.block = 512 if cont else 256
    return k
```

```python
from asmlib import *
from layout import *
from ka_util import f2u, wave_sum
from kb import cos_sin

KC_C1, KC_C3, KC_TW = 32, 56, 72
def kc_consts(k):
    C1, C3, TW, TC, TS = KC_C1, KC_C3, KC_TW, 104, 112
    k("v_lshrrev_b32 v2, 5, v0")
    k("v_and_b32 v3, 31, v0")
    k("v_lshrrev_b32 v6, 4, v3")
    k("v_lshlrev_b32 v6, 4, v6")
    k("v_bfe_u32 v7, v3, 2, 1")
    k("v_lshl_add_u32 v6, v7, 3, v6")
    k("v_bfe_u32 v7, v3, 3, 1")
    k("v_lshl_add_u32 v6, v7, 2, v6")
    k("v_and_b32 v7, 3, v3")
    k("v_add_u32 v6, v6, v7")
    k("v_lshlrev_b32 v10, 3, v2")
    k("v_mul_u32_u24 v10, v10, v6")
    for e in range(8):
        k("v_and_b32 v11, 31, v10")
        cos_sin(k, TC+e, TS+e, 11, 1.0/32)
        if e < 7: k("v_add_u32 v10, v10, v6")
    k("v_and_b32 v11, 1, v6")
    k("v_sub_u32 v12, 0, v11")
    k("v_and_b32 v12, 0x80008000, v12")
    for d in range(4):
        k(f"v_cvt_pk_bf16_f32 v{C1+d}, v{TC+2*d}, v{TC+2*d+1}")
        k(f"v_cvt_pk_bf16_f32 v{C1+8+d}, v{TS+2*d}, v{TS+2*d+1}")
    for d in range(4):
        k(f"v_xor_b32 v{C1+4+d}, v12, v{C1+d}")
        k(f"v_xor_b32 v{C1+12+d}, v12, v{C1+8+d}")
    for d in range(8):
        k(f"v_xor_b32 v{C1+16+d}, 0x80008000, v{C1+8+d}")
    k("v_lshlrev_b32 v10, 2, v2")
    for e in range(8):
        d2c = 8*(e >> 2) + (e & 3)
        k(f"v_add_u32 v11, {d2c}, v10")
        k("v_mul_u32_u24 v11, v11, v3")
        k("v_and_b32 v11, 31, v11")
        cos_sin(k, TC+e, TS+e, 11, 1.0/32)
    k("v_and_b32 v11, 1, v3")
    k("v_sub_u32 v12, 0, v11")
    k("v_and_b32 v12, 0x80008000, v12")
    for d in range(4):
        k(f"v_cvt_pk_bf16_f32 v{C3+d}, v{TC+2*d}, v{TC+2*d+1}")
        k(f"v_cvt_pk_bf16_f32 v{C3+8+d}, v{TS+2*d}, v{TS+2*d+1}")
    for d in range(4):
        k(f"v_xor_b32 v{C3+4+d}, v12, v{C3+d}")
        k(f"v_xor_b32 v{C3+12+d}, v12, v{C3+8+d}")
    for r in range(16):
        d2c = 8*(r >> 2) + (r & 3)
        k(f"v_add_u32 v11, {d2c}, v10")
        k("v_mul_u32_u24 v11, v11, v6")
        cos_sin(k, TW+r, TW+16+r, 11, 1.0/1024)

def gen_kc(name="kc_kernel", stamps=False, pf=True, sf='', pfrows=0, sf2='', xnt=True, cpf=None, x1lds=False, pfs=6, cont=None, into=None):
    k = into if into is not None else Kern(name)
    st = Stamps(k, stamps, 2)
    xntf = " nt" if xnt else ""
    C1, C3, TW = KC_C1, KC_C3, KC_TW
    TBL = 16384 if into is None else 49152
    HST = TBL + 32768
    X1S = HST + 32*528
    if into is None:
        k("s_cmp_ge_u32 s2, 256")
        k(f"s_cbranch_scc1 {name}_end")
        st.start()
        k(f"s_load_dwordx2 s[32:33], s[0:1], {KA['ws']}")
        k("v_mov_b32 v30, v0")
        k("v_lshrrev_b32 v1, 6, v0")
        k("v_and_b32 v0, 63, v0")
        k("v_readfirstlane_b32 s28, v1")
    k(f"s_load_dwordx2 s[4:5], s[0:1], {KA['x']}")
    k(f"s_load_dwordx2 s[6:7], s[0:1], {KA['wu']}")
    k(f"s_load_dwordx2 s[42:43], s[0:1], {KA['wg']}")
    k("s_and_b32 s34, s2, 7")
    k("s_lshl_b32 s34, s34, 5")
    k("s_lshr_b32 s35, s2, 3")
    k("s_add_u32 s34, s34, s35")
    k("s_lshl_b32 s34, s34, 2")
    k("v_lshrrev_b32 v2, 2, v0")
    k("v_lshrrev_b32 v4, 4, v0")
    k("v_sub_u32 v3, v0, v4")
    k("v_and_b32 v3, 3, v3")
    k(f"s_mov_b32 s35, {ZROWS*16}")
    k("v_mul_lo_u32 v8, v2, s35")
    k("v_add_u32 v3, s34, v3")
    k("v_lshl_add_u32 v8, v3, 4, v8")
    k("v_lshlrev_b32 v5, 4, v0")
    k(f"v_add_u32 v29, {TBL}, v5")
    k("v_lshrrev_b32 v2, 5, v0")
    k("v_and_b32 v3, 31, v0")
    k("v_lshlrev_b32 v4, 6, v3")
    k("v_lshl_add_u32 v4, v2, 4, v4")
    k("s_and_b32 s38, s28, 3")
    k("s_add_u32 s36, s34, s38")
    k("s_sub_u32 s39, 2048, s36")
    k("s_cmp_eq_u32 s36, 0")
    k("s_cselect_b32 s39, 1024, s39")
    k("s_cmp_ge_u32 s28, 4")
    k("s_cselect_b32 s36, s39, s36")
    k("s_lshl_b32 s37, s36, 11")
    k("s_waitcnt lgkmcnt(0)")
    XV = 200
    if into is not None:
        srd(k, 16, 4, 2048, off_s="s37")
        k(f"buffer_load_dwordx4 v[{XV}:{XV+3}], v4, s[16:19], 0 offen{xntf}")
        k(f"buffer_load_dwordx4 v[{XV+4}:{XV+7}], v4, s[16:19], 0 offen offset:32{xntf}")
        k("s_cmp_lg_u32 s28, 0")
        k(f"s_cbranch_scc1 {name}_nodep")
        k("v_lshlrev_b32 v21, 7, v0")
        k("s_mov_b32 s46, 0x100000")
        k("s_mov_b64 exec, 0xff")
        k.label(f"{name}_dep")
        k("buffer_load_dword v22, v21, s[60:63], 0 offen sc1")
        k("s_waitcnt vmcnt(0)")
        k("v_cmp_le_u32 vcc, 32, v22")
        k("s_cmp_eq_u64 vcc, exec")
        k(f"s_cbranch_scc1 {name}_got")
        k("s_sub_u32 s46, s46, 1")
        k("s_cmp_lg_u32 s46, 0")
        k(f"s_cbranch_scc0 {name}_got")
        k("s_sleep 1")
        k(f"s_branch {name}_dep")
        k.label(f"{name}_got")
        k("s_mov_b64 exec, -1")
        k.label(f"{name}_nodep")
        k("s_barrier")
        srd(k, 8, 32, 256*ZROWS*16, off_imm=ZS_OFF)
        for q in range(2):
            k(f"s_lshl_b32 s38, s28, 1")
            k(f"s_add_u32 s38, s38, {q}")
            k(f"s_lshl_b32 s39, s38, 10")
            k("s_mov_b32 m0, s39")
            k(f"s_mul_i32 s38, s38, {16*ZROWS*16}")
            k(f"buffer_load_dwordx4 v8, s[8:11], s38 offen sc1 lds")
        srd(k, 48, 32, 12288, off_imm=MODC_OFF)
        k("s_lshl_b32 s38, s28, 10")
        k(f"s_add_u32 m0, s38, {TBL + 18432}")
        k("s_nop 0")
        k("buffer_load_dwordx4 v5, s[48:51], s38 offen sc1 lds")
        k("s_add_u32 s38, s38, 8192")
        k(f"s_add_u32 m0, s38, {TBL + 18432}")
        k("s_nop 0")
        k("buffer_load_dwordx4 v5, s[48:51], s38 offen sc1 lds")
    else:
        srd(k, 8, 32, 256*ZROWS*16, off_imm=ZS_OFF)
        for q in range(2):
            k(f"s_lshl_b32 s38, s28, 1")
            k(f"s_add_u32 s38, s38, {q}")
            k(f"s_lshl_b32 s39, s38, 10")
            k("s_mov_b32 m0, s39")
            k(f"s_mul_i32 s38, s38, {16*ZROWS*16}")
            k(f"buffer_load_dwordx4 v8, s[8:11], s38 offen lds")
        srd(k, 48, 32, 30720, off_imm=TC_OFF)
        k("s_lshl_b32 s38, s28, 12")
        k(f"s_add_u32 m0, s38, {TBL}")
        k("s_nop 0")
        for q in range(4):
            k(f"buffer_load_dwordx4 v5, s[48:51], s38 offen offset:{q*1024} lds")
        srd(k, 16, 4, 2048, off_s="s37")
        k(f"buffer_load_dwordx4 v[{XV}:{XV+3}], v4, s[16:19], 0 offen{xntf}")
        k(f"buffer_load_dwordx4 v[{XV+4}:{XV+7}], v4, s[16:19], 0 offen offset:32{xntf}")
    MV = 208
    NPF = 0
    srd(k, 20, 32, 2048, off_s="s37", off_imm=X1_OFF)
    srd(k, 24, 32, S*D*2, off_imm=H2_OFF)
    k("v_lshrrev_b32 v10, 4, v0")
    k("v_bfe_u32 v11, v0, 2, 2")
    k("v_and_b32 v12, 3, v0")
    k("v_and_b32 v13, 1, v10")
    k("v_lshl_add_u32 v16, v13, 2, v12")
    k("v_lshrrev_b32 v14, 1, v10")
    k("v_lshl_add_u32 v14, v14, 3, v11")
    k("v_lshlrev_b32 v14, 9, v14")
    k("v_lshl_add_u32 v14, v16, 6, v14")
    k("v_and_b32 v15, 1, v11")
    k("v_lshl_add_u32 v15, v15, 1, v13")
    k("s_and_b32 s38, s28, 3")
    k("v_add_u32 v15, s38, v15")
    k("v_and_b32 v15, 3, v15")
    k("v_lshl_add_u32 v14, v15, 4, v14")
    k("v_mul_u32_u24 v17, 528, v3")
    k("v_lshl_add_u32 v17, v2, 7, v17")
    k("s_lshl_b32 s38, s28, 4")
    k(f"s_add_u32 s38, s38, {HST}")
    k("v_add_u32 v17, s38, v17")
    k("v_lshrrev_b32 v18, 3, v0")
    k("v_and_b32 v19, 7, v0")
    k("v_lshrrev_b32 v20, 2, v18")
    k("v_and_b32 v21, 3, v18")
    k("v_mul_u32_u24 v22, 528, v20")
    k("v_lshl_add_u32 v22, v21, 7, v22")
    k("v_lshl_add_u32 v22, v19, 4, v22")
    k(f"s_mul_i32 s38, s28, {4*528}")
    k(f"s_add_u32 s38, s38, {HST}")
    k("v_add_u32 v22, s38, v22")
    k("v_and_b32 v24, 3, v19")
    k("v_add_u32 v24, s34, v24")
    k("v_sub_u32 v25, 2048, v24")
    k("v_mov_b32 v26, 1024")
    k("v_cmp_eq_u32 vcc, 0, v24")
    k("s_nop 1")
    k("v_cndmask_b32 v25, v25, v26, vcc")
    k("v_cmp_lt_u32 vcc, 3, v19")
    k("s_nop 1")
    k("v_cndmask_b32 v24, v24, v25, vcc")
    k("v_lshrrev_b32 v25, 8, v24")
    k("v_lshlrev_b32 v23, 19, v25")
    k("v_bfe_u32 v25, v24, 4, 4")
    k("v_lshl_add_u32 v23, v25, 10, v23")
    k("v_and_b32 v25, 15, v24")
    k("v_lshl_add_u32 v23, v25, 4, v23")
    k("v_lshl_add_u32 v23, v20, 14, v23")
    k("v_lshl_add_u32 v23, v21, 8, v23")
    k("s_lshl_b32 s41, s28, 16")
    k("s_cmp_ge_u32 s28, 4")
    k("s_cselect_b32 s40, 0x80008000, 0")
    st(1)
    k(f"s_waitcnt vmcnt(0)")
    k("s_barrier")
    st(2)
    if cpf: code_pf(k, cpf[0], cpf[1], "a", 122, 30, sp=60)
    if pf and pfrows == 0:
        srd(k, 44, 6, D*F*2)
        k("s_lshl_b32 s38, s2, 9")
        k("v_add_u32 v31, s38, v30")
        if pfs == 7:
            k("s_mul_i32 s38, s2, 224")
            k("v_add_u32 v31, s38, v30")
            k("v_lshlrev_b32 v31, 7, v31")
            k("v_cmp_gt_u32 vcc, 224, v30")
            k("v_bfrev_b32 v121, 1")
            k("s_nop 1")
            k("v_cndmask_b32 v31, v121, v31, vcc")
        else:
            k("v_lshlrev_b32 v31, 6, v31")
        k("buffer_load_dword v120, v31, s[44:47], 0 offen")
        NPF = 1
    elif pf:
        n = pfrows * 7168 // 64 // 256
        srd(k, 44, 6, pfrows * 7168)
        srd(k, 52, 42, pfrows * 7168)
        k(f"s_mul_i32 s38, s2, {n}")
        k("v_add_u32 v31, s38, v30")
        k("v_lshlrev_b32 v31, 6, v31")
        k(f"v_cmp_gt_u32 vcc, {n}, v30")
        k("v_bfrev_b32 v121, 1")
        k("s_nop 1")
        k("v_cndmask_b32 v31, v121, v31, vcc")
        k("buffer_load_dword v120, v31, s[44:47], 0 offen")
        k("buffer_load_dword v121, v31, s[52:55], 0 offen")
        NPF = 2
    ZF = 104
    for pl in range(2):
        for m in range(2):
            for h in range(2):
                b = ZF + (pl*2 + m)*4 + 2*h
                k(f"ds_read_b64_tr_b16 v[{b}:{b+1}], v14 offset:{h*2048 + m*8192 + pl*8}")
    for q in range(6):
        k(f"ds_read_b128 v[{32+4*q}:{35+4*q}], v29 offset:{q*1024}")
    k("s_waitcnt lgkmcnt(0)")
    for d in range(8): k(f"v_xor_b32 v{ZF+8+d}, s40, v{ZF+8+d}")
    k("s_and_b32 s38, s28, 3")
    k("s_or_b32 s38, s38, s34")
    k("s_cmp_lg_u32 s38, 0")
    k(f"s_cbranch_scc1 {name}_nosp")
    k("s_cmp_eq_u32 s28, 0")
    k(f"s_cbranch_scc1 {name}_sp0")
    for d in range(8): k(f"v_xor_b32 v{ZF+d}, s40, v{ZF+8+d}")
    k.label(f"{name}_sp0")
    for d in range(8): k(f"v_mov_b32 v{ZF+8+d}, 0")
    k.label(f"{name}_nosp")
    TR, TI = 128, 144
    def mf(d, a, b, c):
        cs = "0" if c is None else f"v[{c}:{c+15}]"
        k(f"v_mfma_f32_32x32x16_bf16 v[{d}:{d+15}], v[{a}:{a+3}], v[{b}:{b+3}], {cs}")
    zr = lambda m: ZF + m*4
    zi = lambda m: ZF + 8 + m*4
    k("s_nop 1")
    mf(TR, zr(0), C1+0, None)
    mf(TI, zr(0), C1+16, None)
    mf(TR, zr(1), C1+4, TR)
    mf(TI, zr(1), C1+20, TI)
    mf(TR, zi(0), C1+8, TR)
    mf(TI, zi(0), C1+0, TI)
    mf(TR, zi(1), C1+12, TR)
    mf(TI, zi(1), C1+4, TI)
    for q in list(range(10, 18)) + list(range(6, 10)):
        k(f"ds_read_b128 v[{32+4*q}:{35+4*q}], v29 offset:{q*1024}")
    XF = 176
    for d in range(8):
        k(f"v_lshlrev_b32 v{XF+2*d}, 16, v{XV+d}")
        k(f"v_and_b32 v{XF+2*d+1}, 0xffff0000, v{XV+d}")
    k("s_waitcnt lgkmcnt(4)")
    for q in range(12):
        k(f"ds_read_b128 v[{MV+4*q}:{MV+4*q+3}], v29 offset:{18432 + q*1024}")
    def pr(b): return f"v[{b}:{b+1}]"
    PRr, PIi = 160, 192
    for q in range(8):
        k(f"v_pk_mul_f32 {pr(PRr+2*q)}, {pr(TR+2*q)}, {pr(TW+2*q)}")
    for q in range(8):
        k(f"v_pk_fma_f32 {pr(PRr+2*q)}, {pr(TI+2*q)}, {pr(TW+16+2*q)}, {pr(PRr+2*q)}")
    for q in range(8):
        k(f"v_pk_mul_f32 {pr(TI+2*q)}, {pr(TI+2*q)}, {pr(TW+2*q)}")
    for q in range(8):
        k(f"v_pk_fma_f32 {pr(TI+2*q)}, {pr(TR+2*q)}, {pr(TW+16+2*q)}, {pr(TI+2*q)} neg_lo:[1,0,0] neg_hi:[1,0,0]")
    PR, PI = 104, 112
    for d in range(8):
        k(f"v_cvt_pk_bf16_f32 v{PR+d}, v{PRr+2*d}, v{PRr+2*d+1}")
        k(f"v_cvt_pk_bf16_f32 v{PI+d}, v{TI+2*d}, v{TI+2*d+1}")
    Y = 128
    k("s_waitcnt lgkmcnt(12)")
    mf(Y, PR+0, C3+0, None)
    mf(Y, PR+4, C3+4, Y)
    mf(Y, PI+0, C3+8, Y)
    mf(Y, PI+4, C3+12, Y)
    k("s_nop 15")
    k("s_waitcnt lgkmcnt(0)")
    for q in range(8):
        k(f"v_pk_fma_f32 {pr(XF+2*q)}, {pr(Y+2*q)}, {pr(MV+2*q)}, {pr(XF+2*q)}")
    for d in range(8):
        k(f"v_cvt_pk_bf16_f32 v{XV+d}, v{XF+2*d}, v{XF+2*d+1}")
    if x1lds:
        k(f"s_lshl_b32 s38, s28, 11")
        k(f"s_add_u32 s38, s38, {X1S}")
        k("v_add_u32 v27, s38, v4")
        k("v_add_u32 v28, s38, v5")
        k(f"ds_write_b128 v27, v[{XV}:{XV+3}]")
        k(f"ds_write_b128 v27, v[{XV+4}:{XV+7}] offset:32")
        k("s_waitcnt lgkmcnt(0)")
        k("ds_read_b128 v[96:99], v28")
        k("ds_read_b128 v[100:103], v28 offset:1024")
        k("s_waitcnt lgkmcnt(1)")
        k(f"buffer_store_dwordx4 v[96:99], v5, s[20:23], 0 offen{sf}")
        k("s_waitcnt lgkmcnt(0)")
        k(f"buffer_store_dwordx4 v[100:103], v5, s[20:23], 0 offen offset:1024{sf}")
    else:
        k(f"buffer_store_dwordx4 v[{XV}:{XV+3}], v4, s[20:23], 0 offen{sf}")
        k(f"buffer_store_dwordx4 v[{XV+4}:{XV+7}], v4, s[20:23], 0 offen offset:32{sf}")
    for d in range(8):
        k(f"v_lshlrev_b32 v{XF+2*d}, 16, v{XV+d}")
        k(f"v_and_b32 v{XF+2*d+1}, 0xffff0000, v{XV+d}")
    k(f"v_pk_add_f32 v[10:11], {pr(XF)}, {pr(XF+2)}")
    k(f"v_pk_mul_f32 v[12:13], {pr(XF)}, {pr(XF)}")
    for q in range(1, 8):
        if q > 1: k(f"v_pk_add_f32 v[10:11], v[10:11], {pr(XF+2*q)}")
        k(f"v_pk_fma_f32 v[12:13], {pr(XF+2*q)}, {pr(XF+2*q)}, v[12:13]")
    k("v_add_f32 v10, v10, v11")
    k("v_add_f32 v12, v12, v13")
    wave_sum(k, [10, 12], [11, 13])
    k(f"v_mul_f32 v10, {f2u(1.0/1024):#x}, v10")
    k(f"v_mul_f32 v12, {f2u(1.0/1024):#x}, v12")
    k("v_fma_f32 v12, -v10, v10, v12")
    k("v_max_f32 v12, 0, v12")
    k(f"v_add_f32 v12, {f2u(1e-5):#x}, v12")
    k("v_rsq_f32 v12, v12")
    k("v_sub_f32 v10, 0, v10")
    bc = "op_sel:[0,0] op_sel_hi:[1,0]"
    for q in range(8): k(f"v_pk_add_f32 {pr(XF+2*q)}, {pr(XF+2*q)}, v[10:11] {bc}")
    for q in range(8): k(f"v_pk_mul_f32 {pr(XF+2*q)}, {pr(XF+2*q)}, v[12:13] {bc}")
    for q in range(8): k(f"v_pk_fma_f32 {pr(XF+2*q)}, {pr(XF+2*q)}, {pr(MV+16+2*q)}, {pr(MV+32+2*q)}")
    for d in range(8):
        k(f"v_cvt_pk_bf16_f32 v{160+d}, v{XF+2*d}, v{XF+2*d+1}")
    k("ds_write_b128 v17, v[160:163]")
    k("ds_write_b128 v17, v[164:167] offset:256")
    k("s_waitcnt lgkmcnt(0)")
    k("s_barrier")
    k("ds_read_b128 v[168:171], v22")
    k(f"ds_read_b128 v[172:175], v22 offset:{2*528}")
    k("s_add_u32 s42, s41, 32768")
    k("s_waitcnt lgkmcnt(1)")
    k(f"buffer_store_dwordx4 v[168:171], v23, s[24:27], s41 offen{sf2}")
    k("s_waitcnt lgkmcnt(0)")
    k(f"buffer_store_dwordx4 v[172:175], v23, s[24:27], s42 offen{sf2}")
    st(3)
    if cont:
        srd(k, 60, 32, 1024, off_imm=CNTH_OFF)
        k("s_waitcnt vmcnt(0) lgkmcnt(0)")
        k("s_barrier")
        k("s_cmp_lg_u32 s28, 0")
        k(f"s_cbranch_scc1 {name}_nosig")
        k("s_lshr_b32 s38, s34, 8")
        k("s_sub_u32 s39, 2045, s34")
        k("s_lshr_b32 s39, s39, 8")
        k("s_sub_u32 s40, 2048, s34")
        k("s_cmp_eq_u32 s34, 0")
        k("s_cselect_b32 s40, 1024, s40")
        k("s_lshr_b32 s40, s40, 8")
        k("s_cmp_eq_u32 s40, s39")
        k("s_cselect_b32 s40, 64, s40")
        k("v_mov_b32 v20, 1")
        k("v_mov_b32 v21, s38")
        k("v_writelane_b32 v21, s39, 1")
        k("v_writelane_b32 v21, s40, 2")
        k("v_lshlrev_b32 v21, 7, v21")
        k("s_mov_b64 exec, 7")
        k("buffer_atomic_add v20, v21, s[60:63], 0 offen sc1")
        k("s_mov_b64 exec, -1")
        k.label(f"{name}_nosig")
        cont(k)
    else:
        st.end(32, 28)
    if into is not None:
        k.lds2 = max(HST + 32*528 + (16384 if x1lds else 0), getattr(k, 'lds2', 0))
        return k
    k.label(f"{name}_end")
    k("s_endpgm")
    k.lds = max(HST + 32*528 + (16384 if x1lds else 0), getattr(k, 'lds2', 0)); k.grid = 256; k.block = 512
    return k
```

```python
from mk_all import *
S1 = " sc1"
def mk(level, af='', hf=''):
    ka = gen_ka("ka_kernel", xnt=False, codepf=("kb_kernel", "code_end_label"), flags=True, tables=False)
    g4 = lambda k: gen_gemm4b("g4", into=k, sf=S1, af=af)
    if level == 0: return best()
    if level == 1:
        kb = gen_kb("kb_kernel", sf=S1, table=False, ctable=True, cpf=("kc_kernel", "g3_kernel"))
        kc = gen_kc("kc_kernel", xnt=False, cpf=("g3_kernel", "code_end_label"))
        g = gen_gemm3c("g3_kernel", cpf=None, peel_first=False, peel_last=True, fuse=True, cont=g4)
        return [ka, kb, kc, g]
    if level == 2:
        kb = gen_kb("kb_kernel", sf=S1, table=False, ctable=True, cpf=("kc_kernel", "code_end_label"))
        g3 = lambda k: gen_gemm3c("g3", into=k, cpf=None, peel_first=False, peel_last=True, fuse=True, cont=g4, hf=hf)
        kc = gen_kc("kc_kernel", xnt=False, x1lds=True, sf=S1, sf2=S1, cont=g3)
        return [ka, kb, kc]
    if level == 3:
        g3 = lambda k: gen_gemm3c("g3", into=k, cpf=None, peel_first=False, peel_last=True, fuse=True, cont=g4, hf=hf)
        kc = lambda k: gen_kc("kc", into=k, xnt=False, x1lds=True, sf=S1, sf2=S1, cont=g3)
        kb = gen_kb("kb_kernel", sf=S1, table=False, ctable=False, cont=kc, cpf=None)
        return [ka, kb]
if __name__ == "__main__":
    build("fu_a.s", mk(0))
    build("fu_b.s", mk(1))
    build("fu_c.s", mk(1, af=S1))
    build("fu_d.s", mk(2))
    build("fu_e.s", mk(2, af=S1, hf=S1))
    build("fu_f.s", mk(3, af=S1, hf=S1))
```

```python
from asmlib import *
from layout import *
import math, struct
from ka_util import *
from kb import kb_consts
from kc import kc_consts

def gen_ka(name="ka_kernel", nt=True, stamps=False, sf='', xnt=True, codepf=None, selfpf=False, tlbpf=0, helpers=0, htlb=0, flags=False, tables=True):
    k = Kern(name)
    st = Stamps(k, stamps, 0)
    ntf = " nt" if nt else ""
    xntf = " nt" if xnt else ""
    NG = 257 if tables else 256
    k(f"s_cmp_ge_u32 s2, {NG + helpers}")
    k(f"s_cbranch_scc1 {name}_end")
    if helpers:
        k("s_cmp_ge_u32 s2, 257")
        k(f"s_cbranch_scc1 {name}_help")
    if selfpf:
        k("s_cmp_ge_u32 s2, 8")
        k(f"s_cbranch_scc1 {name}_nospf")
        k("s_getpc_b64 s[56:57]")
        k.label(f"{name}_pc0")
        k(f"s_mov_b32 s58, {codepf[0]}-{name}_pc0")
        k("v_lshlrev_b32 v100, 6, v0")
        k("v_cmp_gt_u32 vcc, s58, v100")
        k("s_and_saveexec_b64 s[40:41], vcc")
        k("v_mov_b32 v103, s57")
        k("v_add_co_u32 v102, vcc, s56, v100")
        k("s_nop 1")
        k("v_addc_co_u32 v103, vcc, 0, v103, vcc")
        k(f"s_cbranch_execz {name}_spf1")
        k("global_load_dword v106, v[102:103], off")
        k.label(f"{name}_spf1")
        k("s_mov_b64 exec, s[40:41]")
        k.label(f"{name}_nospf")
    st.start()
    k(f"s_load_dwordx2 s[32:33], s[0:1], {KA['ws']}")
    k("v_lshrrev_b32 v1, 6, v0")
    k("v_and_b32 v2, 63, v0")
    k("v_readfirstlane_b32 s28, v1")
    if tables:
        k("s_cmp_eq_u32 s2, 256")
        k(f"s_cbranch_scc1 {name}_tab")
    if codepf and not helpers:
        first, last = codepf
        k("s_cmp_ge_u32 s2, 8")
        k(f"s_cbranch_scc1 {name}_nocpf")
        k("s_getpc_b64 s[56:57]")
        k.label(f"{name}_pc")
        k(f"s_add_u32 s56, s56, {first}-{name}_pc")
        k("s_addc_u32 s57, s57, 0")
        k(f"s_mov_b32 s58, {last}-{first}")
        k("v_lshlrev_b32 v100, 6, v0")
        for q in range(2):
            if q: k("v_add_u32 v100, 0x8000, v100")
            k("v_cmp_gt_u32 vcc, s58, v100")
            k("s_and_saveexec_b64 s[40:41], vcc")
            k(f"s_cbranch_execz {name}_cpf{q}")
            k("v_mov_b32 v103, s57")
            k("v_add_co_u32 v102, vcc, s56, v100")
            k("s_nop 1")
            k("v_addc_co_u32 v103, vcc, 0, v103, vcc")
            k(f"global_load_dword v{104+q}, v[102:103], off")
            k.label(f"{name}_cpf{q}")
            k("s_mov_b64 exec, s[40:41]")
        k.label(f"{name}_nocpf")
    k(f"s_load_dwordx2 s[4:5], s[0:1], {KA['x']}")
    k(f"s_load_dwordx2 s[6:7], s[0:1], {KA['wmod']}")
    k(f"s_load_dwordx2 s[42:43], s[0:1], {KA['c']}")
    k("v_and_b32 v3, 7, v2")
    k("v_lshrrev_b32 v4, 3, v2")
    k("v_lshlrev_b32 v5, 11, v3")
    k("v_lshlrev_b32 v6, 3, v4")
    k("v_add_u32 v5, v5, v6")
    k("s_lshl_b32 s34, s28, 8")
    k("v_add_u32 v5, s34, v5")
    k("s_lshr_b32 s35, s2, 3")
    k("s_and_b32 s36, s35, 3")
    k("s_lshr_b32 s37, s35, 3")
    k("s_and_b32 s37, s37, 1")
    k("s_lshl_b32 s37, s37, 2")
    k("s_or_b32 s36, s36, s37")
    k("s_lshl_b32 s36, s36, 2")
    k("s_and_b32 s37, s2, 7")
    k("s_lshl_b32 s37, s37, 3")
    k("s_add_u32 s36, s36, s37")
    k("v_add_u32 v6, s36, v3")
    k("v_and_b32 v6, 63, v6")
    k("s_lshl_b32 s35, s35, 6")
    k("v_add_u32 v6, s35, v6")
    k("v_lshlrev_b32 v6, 3, v6")
    k("v_lshlrev_b32 v7, 14, v4")
    k("v_add_u32 v6, v6, v7")
    k("s_lshl_b32 s38, s28, 19")
    k("v_add_u32 v6, s38, v6")
    k("v_lshlrev_b32 v12, 4, v2")
    k("v_cmp_gt_u32 vcc, 48, v2")
    k("v_bfrev_b32 v13, 1")
    k(f"s_mul_i32 s39, s28, {8*12288}")
    k("v_add_u32 v12, s39, v12")
    k("v_cndmask_b32 v12, v13, v12, vcc")
    k("v_lshlrev_b32 v14, 1, v2")
    k("s_waitcnt lgkmcnt(0)")
    st(1)
    if flags and tables is not True:
        k("s_cmp_ge_u32 s2, 36")
        k(f"s_cbranch_scc1 {name}_noflg")
        k("s_cmp_lg_u32 s28, 7")
        k(f"s_cbranch_scc1 {name}_noflg")
        srd(k, 16, 32, 256*128 + 4096, off_imm=FLAG_OFF)
        for r in range(4): k(f"v_mov_b32 v{112+r}, 0")
        k("v_lshlrev_b32 v116, 4, v2")
        k("s_lshl_b32 s34, s2, 10")
        k("buffer_store_dwordx4 v[112:115], v116, s[16:19], s34 offen")
        k.label(f"{name}_noflg")
    if tlbpf:
        k("s_cmp_ge_u32 s2, 8")
        k(f"s_cbranch_scc1 {name}_notlb")
        k(f"s_load_dwordx4 s[60:63], s[0:1], {KA['wg']}")
        k(f"s_load_dwordx2 s[64:65], s[0:1], {KA['wd']}")
        k(f"s_load_dwordx2 s[66:67], s[0:1], {KA['out']}")
        k(f"v_mul_u32_u24 v107, {tlbpf}, v0")
        srd(k, 68, 32, 0x2C00000)
        k("buffer_load_dword v108, v107, s[68:71], 0 offen")
        k("s_waitcnt lgkmcnt(0)")
        for i, (b, n) in enumerate(((60, D*F*2), (62, D*F*2), (64, D*F*2), (66, S*D*2))):
            srd(k, 68, b, n)
            k(f"buffer_load_dword v{109+i}, v107, s[68:71], 0 offen")
        k.label(f"{name}_notlb")
    k("s_lshl_b32 s34, s2, 14")
    srd(k, 8, 4, 16384, off_s="s34")
    for q in range(4):
        k(f"buffer_load_dwordx2 v[{16+2*q}:{17+2*q}], v5, s[8:11], 0 offen offset:{q*64}{xntf}")
    k("s_lshr_b32 s35, s2, 4")
    k("s_and_b32 s36, s2, 15")
    k(f"s_mul_i32 s37, s35, {64*12288}")
    k("s_mul_i32 s38, s36, 768")
    k("s_add_u32 s37, s37, s38")
    k(f"s_sub_u32 s38, {1024*12288}, s37")
    srd(k, 44, 6, "s38", off_s="s37")
    k("s_lshl_b32 s37, s35, 7")
    k("s_lshl_b32 s38, s28, 4")
    k("s_add_u32 s37, s37, s38")
    srd(k, 48, 42, 16, off_s="s37")
    k("buffer_load_ushort v15, v14, s[48:51], 0 offen")
    for p in range(8):
        k(f"s_mov_b32 s37, {p*12288}")
        k(f"buffer_load_dwordx4 v[{64+4*p}:{67+4*p}], v12, s[44:47], s37 offen{ntf}")
    srd(k, 12, 32, S * D * 2, off_imm=XS_OFF)
    k("v_mov_b32 v8, 0"); k("v_mov_b32 v9, 0")
    for q in range(4):
        k(f"s_waitcnt vmcnt({3-q+9})")
        for d in range(2):
            src = 16 + 2*q + d; dst = 32 + 4*q + 2*d
            k(f"v_lshlrev_b32 v{dst}, 16, v{src}")
            k(f"v_and_b32 v{dst+1}, 0xffff0000, v{src}")
        for e in range(4):
            r = 32 + 4*q + e
            k(f"v_add_f32 v8, v8, v{r}")
            k(f"v_fma_f32 v9, v{r}, v{r}, v9")
    st(2)
    dpp_add(k, [8, 9], "row_ror:8")
    k("s_nop 1")
    xlane_sum_16_32(k, [8, 9], [10, 11])
    k("v_lshlrev_b32 v10, 6, v3")
    k("s_lshl_b32 s34, s28, 3")
    k("v_add_u32 v11, s34, v10")
    k("v_cmp_gt_u32 vcc, 8, v2")
    k("s_and_saveexec_b64 s[40:41], vcc")
    k("ds_write_b64 v11, v[8:9]")
    k("s_mov_b64 exec, s[40:41]")
    k("s_waitcnt vmcnt(8)")
    k("v_lshlrev_b32 v15, 16, v15")
    k(f"v_mul_f32 v24, {f2u(-math.log2(math.e)):#x}, v15")
    k("v_exp_f32 v24, v24")
    k("s_nop 0")
    k("v_add_f32 v24, 1.0, v24")
    k("v_rcp_f32 v24, v24")
    k("s_nop 0")
    k("v_mul_f32 v15, v15, v24")
    k("v_cvt_pk_bf16_f32 v15, v15, v15")
    k("v_lshlrev_b32 v15, 16, v15")
    k("s_waitcnt lgkmcnt(0)")
    k("s_barrier")
    for q in range(4):
        k(f"ds_read_b128 v[{48+4*q}:{51+4*q}], v10 offset:{q*16}")
    for p in range(8): k(f"v_readlane_b32 s{52+p}, v15, {p}")
    k("s_waitcnt lgkmcnt(0)")
    k("v_add_f32 v8, v48, v50"); k("v_add_f32 v9, v49, v51")
    for r in range(52, 64, 2):
        k(f"v_add_f32 v8, v8, v{r}"); k(f"v_add_f32 v9, v9, v{r+1}")
    k(f"v_mul_f32 v8, {f2u(1.0/1024):#x}, v8")
    k(f"v_mul_f32 v9, {f2u(1.0/1024):#x}, v9")
    k("v_fma_f32 v9, -v8, v8, v9")
    k("v_max_f32 v9, 0, v9")
    k(f"v_add_f32 v9, {f2u(1e-5):#x}, v9")
    k("v_rsq_f32 v9, v9")
    k("s_nop 0")
    k("v_mul_f32 v8, v8, v9")
    for r in range(32, 48):
        k(f"v_fma_f32 v{r}, v{r}, v9, -v8")
    for q in range(4):
        for d in range(2):
            k(f"v_cvt_pk_bf16_f32 v{16+2*q+d}, v{32+4*q+2*d}, v{32+4*q+2*d+1}")
    for q in range(4):
        k(f"s_mov_b32 s34, {q*8*16384}")
        k(f"buffer_store_dwordx2 v[{16+2*q}:{17+2*q}], v6, s[12:15], s34 offen{sf}")
    for e in range(8): k(f"v_mov_b32 v{32+e}, 0")
    for p in range(8):
        k(f"s_waitcnt vmcnt({7-p+4})")
        for d in range(4):
            k(f"v_lshlrev_b32 v8, 16, v{64+4*p+d}")
            k(f"v_and_b32 v9, 0xffff0000, v{64+4*p+d}")
            k(f"v_fma_f32 v{32+2*d}, v8, s{52+p}, v{32+2*d}")
            k(f"v_fma_f32 v{33+2*d}, v9, s{52+p}, v{33+2*d}")
    k("v_lshlrev_b32 v10, 5, v2")
    k("s_mul_i32 s34, s28, 1536")
    k("s_add_u32 s34, s34, 1024")
    k("v_add_u32 v10, s34, v10")
    k("v_cmp_gt_u32 vcc, 48, v2")
    k("s_and_saveexec_b64 s[40:41], vcc")
    k("ds_write_b128 v10, v[32:35]")
    k("ds_write_b128 v10, v[36:39] offset:16")
    k("s_mov_b64 exec, s[40:41]")
    k("s_waitcnt lgkmcnt(0)")
    k("s_barrier")
    k("v_cmp_gt_u32 vcc, 384, v0")
    k("s_and_saveexec_b64 s[40:41], vcc")
    k(f"s_cbranch_execz {name}_fin")
    k("v_lshlrev_b32 v7, 2, v0")
    for w in range(8):
        k(f"ds_read_b32 v{16+w}, v7 offset:{1024+w*1536}")
    k("s_waitcnt lgkmcnt(0)")
    k("v_add_f32 v16, v16, v17"); k("v_add_f32 v18, v18, v19"); k("v_add_f32 v20, v20, v21"); k("v_add_f32 v22, v22, v23")
    k("v_add_f32 v16, v16, v18"); k("v_add_f32 v20, v20, v22"); k("v_add_f32 v16, v16, v20")
    k(f"s_mul_i32 s37, s35, {6144*4}")
    k("s_mul_i32 s38, s36, 1536")
    k("s_add_u32 s37, s37, s38")
    srd(k, 12, 32, 16*6144*4, off_imm=MODP_OFF)
    k(f"buffer_store_dword v16, v7, s[12:15], s37 offen{sf}")
    k.label(f"{name}_fin")
    st(3)
    st.end(32, 28)
    k("s_endpgm")
    if tables:
        k.label(f"{name}_tab")
        k("v_mov_b32 v0, v2")
        if tables == 'c':
            k("s_cmp_lg_u32 s28, 0")
            k(f"s_cbranch_scc1 {name}_end")
            k("s_waitcnt lgkmcnt(0)")
            k(f"s_branch {name}_tabc")
        k(f"s_cmp_gt_u32 s28, {5 if flags else 4}")
        k(f"s_cbranch_scc1 {name}_end")
        k("s_waitcnt lgkmcnt(0)")
        if flags:
            k("s_cmp_eq_u32 s28, 5")
            k(f"s_cbranch_scc1 {name}_flg")
        k("s_cmp_eq_u32 s28, 4")
        k(f"s_cbranch_scc1 {name}_tabc")
        k("v_lshrrev_b32 v3, 4, v0")
        k("v_and_b32 v4, 15, v0")
        kb_consts(k)
        srd(k, 12, 32, 32768, off_imm=TB_OFF)
        k("v_lshlrev_b32 v5, 4, v0")
        k("s_lshl_b32 s36, s28, 12")
        k("s_add_u32 s36, s36, 16384")
        for q in range(4):
            k(f"buffer_store_dwordx4 v[{72+4*q}:{75+4*q}], v5, s[12:15], s36 offen offset:{q*1024}")
        k("s_lshr_b32 s36, s28, 1")
        k("s_mul_i32 s36, s36, 6144")
        k("s_add_u32 s36, s36, 4096")
        for q in range(6):
            if q == 4: k("s_add_u32 s36, s36, 4096")
            k(f"buffer_store_dwordx4 v[{48+4*q}:{51+4*q}], v5, s[12:15], s36 offen offset:{(q%4)*1024}")
        k("s_mov_b32 s36, 0")
        for q in range(4):
            k(f"buffer_store_dwordx4 v[{32+4*q}:{35+4*q}], v5, s[12:15], s36 offen offset:{q*1024}")
        k("s_endpgm")
        if flags:
            k.label(f"{name}_flg")
            srd(k, 12, 32, 256*128, off_imm=FLAG_OFF)
            k("v_lshlrev_b32 v5, 4, v0")
            for r in range(4): k(f"v_mov_b32 v{8+r}, 0")
            for q in range(32):
                k(f"s_mov_b32 s36, {q*1024}")
                k("buffer_store_dwordx4 v[8:11], v5, s[12:15], s36 offen")
            k("s_endpgm")
        if helpers:
            k.label(f"{name}_help")
            first, last = codepf
            k("s_getpc_b64 s[56:57]")
            k.label(f"{name}_pch")
            k(f"s_add_u32 s56, s56, {first}-{name}_pch")
            k("s_addc_u32 s57, s57, 0")
            k(f"s_mov_b32 s58, {last}-{first}")
            k("v_lshlrev_b32 v100, 6, v0")
            if htlb:
                k(f"s_load_dwordx2 s[32:33], s[0:1], {KA['ws']}")
                k(f"s_load_dwordx4 s[60:63], s[0:1], {KA['wg']}")
                k(f"s_load_dwordx2 s[64:65], s[0:1], {KA['wd']}")
                k(f"s_load_dwordx2 s[66:67], s[0:1], {KA['out']}")
            for q in range(2):
                if q: k("v_add_u32 v100, 0x8000, v100")
                k("v_cmp_gt_u32 vcc, s58, v100")
                k("s_and_saveexec_b64 s[40:41], vcc")
                k(f"s_cbranch_execz {name}_hcp{q}")
                k("v_mov_b32 v103, s57")
                k("v_add_co_u32 v102, vcc, s56, v100")
                k("s_nop 1")
                k("v_addc_co_u32 v103, vcc, 0, v103, vcc")
                k(f"global_load_dword v{104+q}, v[102:103], off")
                k.label(f"{name}_hcp{q}")
                k("s_mov_b64 exec, s[40:41]")
            if htlb:
                k(f"v_mul_u32_u24 v107, {htlb}, v0")
                k("s_waitcnt lgkmcnt(0)")
                srd(k, 68, 32, 0x2C00000)
                k("buffer_load_dword v108, v107, s[68:71], 0 offen")
                for i, (b, n) in enumerate(((60, D*F*2), (62, D*F*2), (64, D*F*2), (66, S*D*2))):
                    srd(k, 68, b, n)
                    k(f"buffer_load_dword v{109+i}, v107, s[68:71], 0 offen")
            k("s_endpgm")
        k.label(f"{name}_tabc")
        kc_consts(k)
        srd(k, 12, 32, 18432, off_imm=TC_OFF)
        k("v_lshlrev_b32 v5, 4, v0")
        k("s_mov_b32 s36, 0")
        for q in range(18):
            k(f"buffer_store_dwordx4 v[{32+4*q}:{35+4*q}], v5, s[12:15], s36 offen offset:{(q%4)*1024}")
            if q % 4 == 3: k("s_add_u32 s36, s36, 4096")
    k.label(f"{name}_end")
    k("s_endpgm")
    k.lds = 1024 + 8*1536; k.grid = NG + helpers; k.block = 512; k.vgpr = 128; k.accum = 128
    return k
```

```python
from asmlib import *
from layout import *
from ka_util import f2u, dpp_add, xlane_sum_16_32
import math

def cos_sin(k, dc, ds, n, scale):
    k(f"v_cvt_f32_u32 v{ds}, v{n}")
    k(f"v_mul_f32 v{ds}, {f2u(scale):#x}, v{ds}")
    k(f"v_cos_f32 v{dc}, v{ds}")
    k(f"v_sin_f32 v{ds}, v{ds}")

KB_C1, KB_C3, KB_TW = 32, 48, 72
def kb_consts(k):
    C1, C3, TW, TC, TS = KB_C1, KB_C3, KB_TW, 100, 108
    k("v_lshlrev_b32 v24, 3, v3")
    k("v_mul_u32_u24 v24, v24, v4")
    for e in range(8):
        k("v_and_b32 v25, 31, v24")
        cos_sin(k, TC+e, TS+e, 25, 1.0/32)
        if e < 7: k("v_add_u32 v24, v24, v4")
    k("s_nop 0")
    for d in range(4):
        k(f"v_cvt_pk_bf16_f32 v{C1+d}, v{TC+2*d}, v{TC+2*d+1}")
        k(f"v_cvt_pk_bf16_f32 v{C1+8+d}, -v{TS+2*d}, -v{TS+2*d+1}")
    for d in range(4):
        k(f"v_xor_b32 v{C1+4+d}, 0x80000000, v{C1+d}")
        k(f"v_xor_b32 v{C1+12+d}, 0x80000000, v{C1+8+d}")
    k("s_lshr_b32 s36, s28, 1")
    k("s_lshl_b32 s36, s36, 4")
    k("v_add_u32 v26, s36, v4")
    for e in range(8):
        s2c = 16*(e >> 2) + 4*(e & 3)
        k(f"v_add_u32 v25, {s2c}, v3")
        k("v_mul_u32_u24 v25, v25, v26")
        k("v_and_b32 v25, 63, v25")
        cos_sin(k, TC+e, TS+e, 25, 1.0/64)
    k("v_and_b32 v25, 1, v26")
    k("v_sub_u32 v27, 0, v25")
    k("v_and_b32 v27, 0x80008000, v27")
    for d in range(4):
        k(f"v_cvt_pk_bf16_f32 v{C3+d}, v{TC+2*d}, v{TC+2*d+1}")
        k(f"v_cvt_pk_bf16_f32 v{C3+8+d}, v{TS+2*d}, v{TS+2*d+1}")
    for d in range(4):
        k(f"v_xor_b32 v{C3+4+d}, v27, v{C3+d}")
        k(f"v_xor_b32 v{C3+12+d}, v27, v{C3+8+d}")
    for d in range(8):
        k(f"v_xor_b32 v{C3+16+d}, 0x80008000, v{C3+8+d}")
    k("s_lshl_b32 s36, s28, 4")
    for tau in range(4):
        k(f"v_add_u32 v25, s36, v3")
        if tau: k(f"v_add_u32 v25, {4*tau}, v25")
        for th in range(2):
            k(f"v_add_u32 v27, {16*th}, v4")
            k("v_mul_u32_u24 v27, v25, v27")
            b = TW + (tau*2 + th)*2
            cos_sin(k, b, b+1, 27, 1.0/2048)

def gen_kb(name="kb_kernel", stamps=False, pf=True, sf='', table=True, pfn=2, cpf=None, ctable=False, pfs=6, cont=None, KTBL=49152, side_dma=False):
    k = Kern(name)
    st = Stamps(k, stamps, 1)
    TOFF = 16384
    C1, C3, TW = KB_C1, KB_C3, KB_TW
    k(f"s_cmp_ge_u32 s2, {257 if ctable else 256}")
    k(f"s_cbranch_scc1 {name}_end")
    if ctable:
        k("s_cmp_eq_u32 s2, 256")
        k(f"s_cbranch_scc1 {name}_ctab")
    st.start()
    k(f"s_load_dwordx2 s[32:33], s[0:1], {KA['ws']}")
    k(f"s_load_dwordx2 s[4:5], s[0:1], {KA['wg']}")
    k("v_mov_b32 v30, v0")
    k("v_lshrrev_b32 v1, 6, v0")
    k("v_and_b32 v0, 63, v0")
    k("v_readfirstlane_b32 s28, v1")
    if cont:
        k("s_cmp_ge_u32 s28, 4")
        k(f"s_cbranch_scc1 {name}_side")
    k("s_and_b32 s34, s2, 7")
    k("s_lshl_b32 s34, s34, 5")
    k("s_lshr_b32 s35, s2, 3")
    k("s_add_u32 s34, s34, s35")
    k("v_lshlrev_b32 v2, 4, v0")
    k("v_lshrrev_b32 v3, 4, v0")
    k("v_and_b32 v4, 15, v0")
    k("s_lshl_b32 s36, s28, 12")
    k("v_add_u32 v5, s36, v2")
    k("s_lshl_b32 s37, s34, 4")
    k("v_lshrrev_b32 v6, 2, v0")
    k("v_mul_u32_u24 v6, 24576, v6")
    k("v_and_b32 v7, 3, v0")
    k("v_lshl_add_u32 v6, v7, 2, v6")
    k("v_add_u32 v6, s37, v6")
    k("v_add_u32 v7, 4096, v6")
    k("s_mul_i32 s37, s2, 24")
    k("s_mul_i32 s38, s28, 6")
    k("s_add_u32 s37, s37, s38")
    k("v_add_u32 v16, s37, v3")
    k("v_mul_u32_u24 v17, 24576, v4")
    k("v_lshl_add_u32 v17, v16, 2, v17")
    k("s_waitcnt lgkmcnt(0)")
    k("s_lshl_b32 s35, s34, 14")
    srd(k, 8, 32, 16384, off_s="s35", off_imm=XS_OFF)
    k("s_mov_b32 m0, s36")
    srd(k, 56, 32, 32768, off_imm=TB_OFF)
    for q in range(4):
        k(f"buffer_load_dwordx4 v5, s[8:11], 0 offen offset:{q*1024} lds")
    TBL = 49152
    if table:
        k("s_lshl_b32 s36, s28, 13")
        for hq in range(2):
            k(f"s_add_u32 m0, s36, {TBL + hq*4096}")
            k(f"s_add_u32 s37, s36, {hq*4096}")
            for q in range(4):
                k(f"buffer_load_dwordx4 v2, s[56:59], s37 offen offset:{q*1024} lds")
    srd(k, 12, 32, 16*6144*4, off_imm=MODP_OFF)
    k("buffer_load_dword v8, v6, s[12:15], 0 offen")
    k("buffer_load_dword v12, v7, s[12:15], 0 offen")
    k("buffer_load_dword v20, v17, s[12:15], 0 offen")
    k("buffer_load_dword v21, v17, s[12:15], 0 offen offset:16")
    NPF = 0
    k(f"s_mul_i32 s35, s34, {ZROWS*16}")
    srd(k, 16, 32, ZROWS*16, off_s="s35", off_imm=ZS_OFF)
    RA = 88
    k("v_bfe_u32 v25, v0, 2, 2")
    k("v_and_b32 v26, 3, v0")
    k("v_lshlrev_b32 v27, 12, v3")
    k("v_lshlrev_b32 v28, 9, v25")
    k("v_add_u32 v27, v27, v28")
    k("v_lshlrev_b32 v28, 2, v25")
    k("v_add_u32 v28, v28, v26")
    k("v_and_b32 v29, 1, v3")
    k("v_lshlrev_b32 v29, 4, v29")
    k("v_add_u32 v28, v28, v29")
    k("s_lshl_b32 s36, s28, 4")
    k("v_add_u32 v28, s36, v28")
    for tau in range(4):
        k(f"v_add_u32 v29, {4*tau}, v28")
        k("v_and_b32 v29, 63, v29")
        k(f"v_lshl_add_u32 v{RA+tau}, v29, 3, v27")
    k("s_lshr_b32 s36, s28, 1")
    k("s_lshl_b32 s36, s36, 10")
    k("s_and_b32 s37, s28, 1")
    k("s_lshl_b32 s37, s37, 3")
    k("s_add_u32 s36, s36, s37")
    k(f"s_add_u32 s36, s36, {TOFF}")
    k("v_add_u32 v92, s36, v2")
    k("s_and_b32 s36, s28, 1")
    k("s_lshl_b32 s36, s36, 12")
    k(f"s_add_u32 s36, s36, {TOFF}")
    k("v_add_u32 v93, s36, v2")
    k("s_and_b32 s36, s28, 1")
    k("s_lshl_b32 s36, s36, 4")
    k("s_lshr_b32 s37, s28, 1")
    k("s_lshl_b32 s37, s37, 9")
    k("s_add_u32 s36, s36, s37")
    k("v_lshlrev_b32 v94, 7, v3")
    k("v_add_u32 v94, v94, v4")
    k("v_add_u32 v94, s36, v94")
    k("v_lshlrev_b32 v94, 4, v94")
    k("v_and_b32 v25, 1, v3")
    k("v_lshlrev_b32 v25, 31, v25")
    k("v_lshrrev_b32 v26, 16, v25")
    k("v_or_b32 v25, v25, v26")
    k("v_or_b32 v25, 0x3f803f80, v25")
    k("v_cmp_eq_u32 vcc, 0, v4")
    k("s_nop 1")
    k("v_cndmask_b32 v25, 0, v25, vcc")
    NC = 240
    for d in range(4): k(f"v_mov_b32 v{NC+d}, v25")
    if not table: kb_consts(k)
    st(1)
    k(f"s_waitcnt vmcnt(0)")
    k("s_barrier")
    st(2)
    if cpf: code_pf(k, cpf[0], cpf[1], "a", 116, 30, sp=60)
    if pf:
        srd(k, 24, 4, D*F*2)
        k("s_lshl_b32 s37, s2, 8")
        k("v_add_u32 v31, s37, v30")
        k(f"v_lshlrev_b32 v31, {pfs}, v31")
        if pfs == 7: pfn = 1
        for i in range(pfn):
            k(f"s_mov_b32 s37, {65536*64*i}")
            k(f"buffer_load_dword v{96+i}, v31, s[24:27], s37 offen")
        NPF = pfn
    if table:
        k("s_lshr_b32 s36, s28, 1")
        k("s_mul_i32 s36, s36, 6144")
        k("v_add_u32 v98, s36, v2")
        k("s_lshl_b32 s36, s28, 12")
        k(f"s_add_u32 s36, s36, {TBL+16384}")
        k("v_add_u32 v99, s36, v2")
        for q in range(4): k(f"ds_read_b128 v[{C1+4*q}:{C1+4*q+3}], v2 offset:{TBL+q*1024}")
    AF = 100
    for tau in range(4):
        for h in range(2):
            k(f"ds_read_b64_tr_b16 v[{AF+4*tau+2*h}:{AF+4*tau+2*h+1}], v{RA+tau} offset:{h*2048}")
    ACC = 128
    def a1(tau, th, ri): return ACC + ((tau*2 + th)*2 + ri)*4
    if table:
        for q in range(4): k(f"ds_read_b128 v[{TW+4*q}:{TW+4*q+3}], v99 offset:{q*1024}")
    for tau in range(4):
        k(f"s_waitcnt lgkmcnt({6-2*tau+(4 if table else 0)})")
        for th in range(2):
            for ri in range(2):
                cb = C1 + ri*8 + th*4
                k(f"v_mfma_f32_16x16x32_bf16 v[{a1(tau,th,ri)}:{a1(tau,th,ri)+3}], v[{AF+4*tau}:{AF+4*tau+3}], v[{cb}:{cb+3}], 0")
    if table:
        for q in range(6): k(f"ds_read_b128 v[{C3+4*q}:{C3+4*q+3}], v98 offset:{TBL+4096+q*1024}")
    dpp_add(k, [8, 12], "row_ror:4")
    dpp_add(k, [8, 12], "row_ror:8")
    k("s_nop 1")
    xlane_sum_16_32(k, [8, 12], [9, 13])
    for r in (8, 12):
        k(f"v_cvt_pk_bf16_f32 v{r}, v{r}, v{r}")
        k(f"v_lshlrev_b32 v{r}, 16, v{r}")
    k("v_add_f32 v13, 1.0, v12")
    k("v_cvt_pk_bf16_f32 v13, v13, v13")
    k("v_lshlrev_b32 v13, 16, v13")
    k(f"v_mul_f32 v8, {f2u(2048.0):#x}, v8")
    if table: k("s_waitcnt lgkmcnt(6)")
    R2 = 192
    def r2(tau, th): return R2 + (tau*2 + th)*4
    def pr(b): return f"v[{b}:{b+1}]"
    TT = 224
    for tau in range(4):
        for th in range(2):
            cs = TW + (tau*2 + th)*2
            tr = a1(tau, th, 0); ti = a1(tau, th, 1); o = r2(tau, th)
            bc = "op_sel:[0,0] op_sel_hi:[1,0]"
            for hq in range(2):
                k(f"v_pk_mul_f32 {pr(o+2*hq)}, {pr(tr+2*hq)}, {pr(cs)} {bc}")
                k(f"v_pk_mul_f32 {pr(TT+2*hq)}, {pr(ti+2*hq)}, {pr(cs)} {bc}")
            bs = "op_sel:[0,1,0] op_sel_hi:[1,1,1]"
            for hq in range(2):
                k(f"v_pk_fma_f32 {pr(o+2*hq)}, {pr(ti+2*hq)}, {pr(cs)}, {pr(o+2*hq)} {bs}")
                k(f"v_pk_fma_f32 {pr(ti+2*hq)}, {pr(tr+2*hq)}, {pr(cs)}, {pr(TT+2*hq)} {bs} neg_lo:[1,0,0] neg_hi:[1,0,0]")
    for dd in range(4):
        k(f"v_readlane_b32 s{44+dd}, v13, {dd}")
        k(f"v_readlane_b32 s{48+dd}, v8, {dd}")
    pk = 8
    idx = 0
    for dd in range(4):
        for th in range(2):
            for ri in range(2):
                p = 100 + (idx % 8) * 2; idx += 1
                src = (lambda tau: r2(tau, th) + dd) if ri == 0 else (lambda tau: a1(tau, th, 1) + dd)
                k(f"v_cvt_pk_bf16_f32 v{p}, v{src(0)}, v{src(1)}")
                k(f"v_cvt_pk_bf16_f32 v{p+1}, v{src(2)}, v{src(3)}")
                k(f"ds_write_b64 v92, v[{p}:{p+1}] offset:{((dd*2+th)*2+ri)*2048}")
    k("s_waitcnt lgkmcnt(0)")
    k("s_barrier")
    BF = 128
    def bfr(dd, ri, m): return BF + ((dd*2 + ri)*2 + m)*4
    for dd in range(4):
        for ri in range(2):
            for m in range(2):
                off = dd*8192 + ri*2048 + m*1024
                k(f"ds_read_b128 v[{bfr(dd,ri,m)}:{bfr(dd,ri,m)+3}], v93 offset:{off}")
    Z = 192
    def z(dd, ri): return Z + (dd*2 + ri)*4
    NQ = 224
    k("v_cmp_eq_u32 vcc, 0, v94")
    for dd in range(4): k(f"v_mov_b32 v{26+dd}, s{48+dd}")
    k("s_nop 1")
    for dd in range(4): k(f"v_cndmask_b32 v{26+dd}, 0, v{26+dd}, vcc")
    def mf(d, a, b, c):
        cs = "0" if c is None else f"v[{c}:{c+3}]"
        k(f"v_mfma_f32_16x16x32_bf16 v[{d}:{d+3}], v[{a}:{a+3}], v[{b}:{b+3}], {cs}")
    for dd in range(4):
        k(f"s_waitcnt lgkmcnt({12-4*dd})")
        mf(z(dd,0), C3+0, bfr(dd,0,0), None)
        mf(z(dd,1), C3+0, bfr(dd,1,0), None)
        mf(NQ+4*dd, NC, bfr(dd,0,0), None)
        mf(z(dd,0), C3+4, bfr(dd,0,1), z(dd,0))
        mf(z(dd,1), C3+4, bfr(dd,1,1), z(dd,1))
        mf(NQ+4*dd, NC, bfr(dd,0,1), NQ+4*dd)
        mf(z(dd,0), C3+8, bfr(dd,1,0), z(dd,0))
        mf(z(dd,1), C3+16, bfr(dd,0,0), z(dd,1))
        mf(z(dd,0), C3+12, bfr(dd,1,1), z(dd,0))
        mf(z(dd,1), C3+20, bfr(dd,0,1), z(dd,1))
    k("s_nop 7")
    k("v_cmp_eq_u32 vcc, 0, v94")
    k("s_nop 1")
    for dd in range(4): k(f"v_cndmask_b32 v{z(dd,1)}, v{z(dd,1)}, v{NQ+4*dd}, vcc")
    for dd in range(4):
        k(f"v_fma_f32 v{z(dd,0)}, v{z(dd,0)}, s{44+dd}, v{26+dd}")
        for r in range(1, 4): k(f"v_mul_f32 v{z(dd,0)+r}, s{44+dd}, v{z(dd,0)+r}")
        for r in range(4): k(f"v_mul_f32 v{z(dd,1)+r}, s{44+dd}, v{z(dd,1)+r}")
    for r in range(4):
        o = 100 + 4*r
        k(f"v_cvt_pk_bf16_f32 v{o}, v{z(0,0)+r}, v{z(1,0)+r}")
        k(f"v_cvt_pk_bf16_f32 v{o+1}, v{z(2,0)+r}, v{z(3,0)+r}")
        k(f"v_cvt_pk_bf16_f32 v{o+2}, v{z(0,1)+r}, v{z(1,1)+r}")
        k(f"v_cvt_pk_bf16_f32 v{o+3}, v{z(2,1)+r}, v{z(3,1)+r}")
        k(f"buffer_store_dwordx4 v[{o}:{o+3}], v94, s[16:19], 0 offen offset:{r*512}{sf}")
    for ctrl in ("quad_perm:[1,0,3,2]", "quad_perm:[2,3,0,1]", "row_half_mirror", "row_mirror"):
        dpp_add(k, [20, 21], ctrl)
    srd(k, 20, 32, 6144*4, off_imm=MODF_OFF)
    srd(k, 52, 32, 12288, off_imm=MODC_OFF)
    for q in range(2):
        val, idx = 20 + q, 16
        if q == 1: k("v_add_u32 v16, 4, v16")
        k(f"v_cvt_pk_bf16_f32 v{val}, v{val}, v{val}")
        k(f"v_lshlrev_b32 v{val}, 16, v{val}")
        k(f"v_add_f32 v22, 1.0, v{val}")
        k("v_cvt_pk_bf16_f32 v22, v22, v22")
        k("v_lshlrev_b32 v22, 16, v22")
        k("v_lshrrev_b32 v23, 10, v16")
        k("v_cmp_eq_u32 vcc, 1, v23")
        k("v_cmp_eq_u32 s[40:41], 4, v23")
        k("s_or_b64 vcc, vcc, s[40:41]")
        k("s_nop 1")
        k(f"v_cndmask_b32 v{val}, v{val}, v22, vcc")
        k("v_cmp_eq_u32 vcc, 0, v4")
        if q == 1:
            k("v_cmp_gt_u32 s[40:41], 2, v3")
            k("s_and_b64 vcc, vcc, s[40:41]")
        k("s_and_saveexec_b64 s[42:43], vcc")
        k("v_lshlrev_b32 v24, 2, v16")
        k(f"buffer_store_dword v{val}, v24, s[20:23], 0 offen{sf if cont else str()}")
        k("v_and_b32 v25, 1023, v16")
        k("v_lshrrev_b32 v26, 5, v25")
        k("v_bfe_u32 v27, v25, 3, 1")
        k("v_lshl_add_u32 v26, v27, 5, v26")
        k("v_lshlrev_b32 v26, 4, v26")
        k("v_and_b32 v27, 3, v25")
        k("v_lshl_add_u32 v26, v27, 2, v26")
        k("v_bfe_u32 v27, v25, 4, 1")
        k("v_bfe_u32 v28, v25, 2, 1")
        k("v_lshl_add_u32 v27, v27, 1, v28")
        k("v_lshl_add_u32 v26, v27, 10, v26")
        k("v_mov_b32 v27, 0x10000")
        k("v_cmp_eq_u32 vcc, 2, v23")
        k("s_nop 1")
        k("v_cndmask_b32 v27, v27, 0, vcc")
        k("v_mov_b32 v28, 4096")
        k("v_cmp_eq_u32 vcc, 4, v23")
        k("s_nop 1")
        k("v_cndmask_b32 v27, v27, v28, vcc")
        k("v_mov_b32 v28, 8192")
        k("v_cmp_eq_u32 vcc, 3, v23")
        k("s_nop 1")
        k("v_cndmask_b32 v27, v27, v28, vcc")
        k("v_add_u32 v26, v26, v27")
        k(f"buffer_store_dword v{val}, v26, s[52:55], 0 offen{sf if cont else str()}")
        k("s_mov_b64 exec, s[42:43]")
    st(3)
    k.label(f"{name}_fin")
    if cont:
        k(f"s_branch {name}_join")
        k.label(f"{name}_side")
        if side_dma:
            k("s_waitcnt lgkmcnt(0)")
            srd(k, 48, 32, 18432, off_imm=TC_OFF)
            k("v_lshlrev_b32 v5, 4, v0")
            k("s_sub_u32 s38, s28, 4")
            k("s_lshl_b32 s38, s38, 10")
            for i in range(5):
                k(f"s_add_u32 m0, s38, {KTBL}")
                k("s_nop 0")
                k("buffer_load_dwordx4 v5, s[48:51], s38 offen lds")
                k("s_add_u32 s38, s38, 4096")
        else:
            k("s_cmp_lg_u32 s28, 4")
            k(f"s_cbranch_scc1 {name}_side2")
            from kc import kc_consts
            kc_consts(k)
            k("v_lshlrev_b32 v5, 4, v0")
            k(f"v_add_u32 v5, {KTBL}, v5")
            for q in range(18):
                k(f"ds_write_b128 v5, v[{32+4*q}:{35+4*q}] offset:{q*1024}")
        k.label(f"{name}_side2")
        k("s_waitcnt lgkmcnt(0)")
        k("s_barrier")
        k("s_barrier")
        k.label(f"{name}_join")
        srd(k, 60, 32, 1024, off_imm=CNTB_OFF)
        k("s_waitcnt vmcnt(0) lgkmcnt(0)")
        k("s_barrier")
        k("s_cmp_lg_u32 s28, 0")
        k(f"s_cbranch_scc1 {name}_nosig")
        k("s_and_b32 s38, s2, 7")
        k("s_lshl_b32 s38, s38, 7")
        k("v_mov_b32 v20, 1")
        k("v_mov_b32 v21, s38")
        k("s_mov_b64 exec, 1")
        k("buffer_atomic_add v20, v21, s[60:63], 0 offen sc1")
        k("s_mov_b64 exec, -1")
        k.label(f"{name}_nosig")
        cont(k)
    st.end(32, 28)
    if ctable:
        k("s_endpgm")
        k.label(f"{name}_ctab")
        from kc import kc_consts
        k(f"s_load_dwordx2 s[32:33], s[0:1], {KA['ws']}")
        k("v_cmp_gt_u32 vcc, 64, v0")
        k("s_and_saveexec_b64 s[40:41], vcc")
        k(f"s_cbranch_execz {name}_end")
        kc_consts(k)
        k("s_waitcnt lgkmcnt(0)")
        srd(k, 12, 32, 18432, off_imm=TC_OFF)
        k("v_lshlrev_b32 v5, 4, v0")
        k("s_mov_b32 s36, 0")
        for q in range(18):
            k(f"buffer_store_dwordx4 v[{32+4*q}:{35+4*q}], v5, s[12:15], s36 offen offset:{(q%4)*1024}")
            if q % 4 == 3: k("s_add_u32 s36, s36, 4096")
    k.label(f"{name}_end")
    k("s_endpgm")
    k.lds = max(49152 + (32768 if table else 0), getattr(k, 'lds2', 0)); k.grid = 257 if ctable else 256; k.block = 512 if cont else 256
    return k
```

```python
from mk_all import *
S1 = " sc1"
def mk(level, af='', hf=''):
    ka = gen_ka("ka_kernel", xnt=False, codepf=("kb_kernel", "code_end_label"), flags=True, tables=False)
    g4 = lambda k: gen_gemm4b("g4", into=k, sf=S1, af=af)
    if level == 0: return best()
    if level == 1:
        kb = gen_kb("kb_kernel", sf=S1, table=False, ctable=True, cpf=("kc_kernel", "g3_kernel"))
        kc = gen_kc("kc_kernel", xnt=False, cpf=("g3_kernel", "code_end_label"))
        g = gen_gemm3c("g3_kernel", cpf=None, peel_first=False, peel_last=True, fuse=True, cont=g4)
        return [ka, kb, kc, g]
    if level == 2:
        kb = gen_kb("kb_kernel", sf=S1, table=False, ctable=True, cpf=("kc_kernel", "code_end_label"))
        g3 = lambda k: gen_gemm3c("g3", into=k, cpf=None, peel_first=False, peel_last=True, fuse=True, cont=g4, hf=hf)
        kc = gen_kc("kc_kernel", xnt=False, x1lds=True, sf=S1, sf2=S1, cont=g3)
        return [ka, kb, kc]
    if level == 3:
        g3 = lambda k: gen_gemm3c("g3", into=k, cpf=None, peel_first=False, peel_last=True, fuse=True, cont=g4, hf=hf)
        kc = lambda k: gen_kc("kc", into=k, xnt=False, x1lds=True, sf=S1, sf2=S1, cont=g3)
        kb = gen_kb("kb_kernel", sf=S1, table=False, ctable=False, cont=kc, cpf=None)
        return [ka, kb]
    if level == 4:
        ka = gen_ka("ka_kernel", xnt=False, codepf=("kb_kernel", "code_end_label"), flags=True, tables='c')
        g3 = lambda k: gen_gemm3c("g3", into=k, cpf=None, peel_first=False, peel_last=True, fuse=True, cont=g4, hf=hf)
        kc = lambda k: gen_kc("kc", into=k, xnt=False, x1lds=True, sf=S1, sf2=S1, cont=g3)
        kb = gen_kb("kb_kernel", sf=S1, table=False, ctable=False, cont=kc, cpf=None, side_dma=True)
        return [ka, kb]
if __name__ == "__main__":
    build("fu_a.s", mk(0))
    build("fu_b.s", mk(1))
    build("fu_c.s", mk(1, af=S1))
    build("fu_d.s", mk(2))
    build("fu_e.s", mk(2, af=S1, hf=S1))
    build("fu_f.s", mk(3, af=S1, hf=S1))
    build("fu_g.s", mk(4, af=S1, hf=S1))
```

```python
import sys
from asmlib import *
from ka import gen_ka
from kb import gen_kb
from kc import gen_kc
from gemm3 import gen_gemm3
from gemm3b import gen_gemm3b
from gemm4 import gen_gemm4
from gemm4b import gen_gemm4b
NAME = "adaLN_cond__spectral_fnet__geglu_ffn__prompt"
ref = open(f"cdna_kernels/{NAME}.s.ref").read().split("\n")
hdr = []
for l in ref:
    if l.startswith("; Override launch") : break
    hdr.append(l)
hdr = "\n".join(hdr)
DOC = """; ---------------------------------------------------------------------------------------------
; ---------------------------------------------------------------------------------------------"""
def build(path, ks):
    txt = build_file(hdr + "\n" + DOC, [(k.name, k.grid, k.block, k.lds) for k in ks], ks)
    open(path, "w").write(txt)
from gemm3c import gen_gemm3c
from gemm4c import gen_gemm4c
def best5(stamps=False):
    S1 = " sc1"
    return [gen_ka("ka_kernel", stamps=stamps, xnt=False, codepf=("kb_kernel", "code_end_label"), flags=True, tables=False),
            gen_kb("kb_kernel", stamps=stamps, sf=S1, table=False, ctable=True, cpf=None if stamps else ("kc_kernel", "g3_kernel")),
            gen_kc("kc_kernel", stamps=stamps, xnt=False, cpf=None if stamps else ("g3_kernel", "g4_kernel")),
            gen_gemm3c("g3_kernel", stamps=stamps, cpf=None if stamps else ("g4_kernel", "code_end_label"), peel_first=False, peel_last=True, fuse=True),
            gen_gemm4b("g4_kernel", stamps=stamps, sf=S1)]
def best(stamps=False):
    if stamps: return best5(True)
    S1 = " sc1"
    ka = gen_ka("ka_kernel", xnt=False, codepf=("kb_kernel", "code_end_label"), flags=True, tables=False)
    kb = gen_kb("kb_kernel", sf=S1, table=False, ctable=True, cpf=("kc_kernel", "code_end_label"))
    g4 = lambda k: gen_gemm4b("g4", into=k, sf=S1, af=S1)
    g3 = lambda k: gen_gemm3c("g3", into=k, cpf=None, peel_first=False, peel_last=True, fuse=True, cont=g4, hf=S1)
    kc = gen_kc("kc_kernel", xnt=False, x1lds=True, sf=S1, sf2=S1, cont=g3)
    return [ka, kb, kc]
if __name__ == "__main__":
    stamps = len(sys.argv) > 2
    out = sys.argv[1] if len(sys.argv) > 1 else f"cdna_kernels/{NAME}.s"
    build(out, best(stamps))
```
